```python
import torch

def _softmax(x, axis=-1):
    return torch.softmax(x, dim=axis)

def _gelu(x):
    return torch.nn.functional.gelu(x, approximate='tanh')

def _silu(x):
    return torch.nn.functional.silu(x)

def _sigmoid(x):
    return torch.sigmoid(x)

def _layernorm(x, axis=-1, eps=1e-05):
    m = x.mean(dim=axis, keepdim=True)
    v = x.var(dim=axis, keepdim=True, unbiased=False)
    return (x - m) / torch.sqrt(v + eps)

def _scatter_add(tgt, idx, src, axis=0):
    return tgt.clone().index_add_(axis, idx, src)

def _segment_sum(src, seg, n):
    out = torch.zeros((n,) + src.shape[1:], dtype=src.dtype)
    return out.index_add_(0, seg, src)

def _pad(x, pw):
    flat = tuple((v for pair in reversed(pw) for v in pair))
    return torch.nn.functional.pad(x, flat)
kernel_name = 'interleave_layers__memory_aug_recurrent_mem_tr__swiglu_ffn__prompt'

def setup_inputs():

    _w = lambda a: (lambda t: t.to(torch.bfloat16) if t.is_floating_point() else t)(torch.as_tensor(a))

    def _A_setup():
        B, S, Dm = (1, 2048, 448)
        H, Dh = (16, 256)
        M, seg = (8, 32)
        seg = min(seg, S)
        S = S // seg * seg
        return {'x': _w((lambda *s: torch.randn(*s, dtype=torch.bfloat16) * 0.05)(B, S, Dm)), 'mem0': _w((lambda *s: torch.randn(*s, dtype=torch.bfloat16) * 0.8)(B, M, Dm)), 'Wq': _w((lambda *s: torch.randn(*s, dtype=torch.bfloat16) * 1.6)(Dm, H, Dh) * Dm ** (-0.5)), 'Wk': _w((lambda *s: torch.randn(*s, dtype=torch.bfloat16) * 1.6)(Dm, H, Dh) * Dm ** (-0.5)), 'Wv': _w((lambda *s: torch.randn(*s, dtype=torch.bfloat16) * 0.8)(Dm, H, Dh) * Dm ** (-0.5)), 'Wo': _w((lambda *s: torch.randn(*s, dtype=torch.bfloat16) * 0.8)(H, Dh, Dm) * (H * Dh) ** (-0.5)), 'seg_len': seg}
    _A_in = _A_setup()

    def _B_setup():
        B, S, D, F = (1, 2048, 448, 1792)
        return {'x': _w((lambda *s: torch.randn(*s, dtype=torch.bfloat16) * 0.05)(B, S, D)), 'w_gate': _w((lambda *s: torch.randn(*s, dtype=torch.bfloat16) * 0.05)(D, F)), 'w_up': _w((lambda *s: torch.randn(*s, dtype=torch.bfloat16) * 0.05)(D, F)), 'w_down': _w((lambda *s: torch.randn(*s, dtype=torch.bfloat16) * 0.05)(F, D))}
    _B_in = _B_setup()
    return {'A_x': _A_in['x'], 'A_mem0': _A_in['mem0'], 'A_Wq': _A_in['Wq'], 'A_Wk': _A_in['Wk'], 'A_Wv': _A_in['Wv'], 'A_Wo': _A_in['Wo'], 'A_seg_len': _A_in['seg_len'], 'B_x': _B_in['x'], 'B_w_gate': _B_in['w_gate'], 'B_w_up': _B_in['w_up'], 'B_w_down': _B_in['w_down']}

def reference(A_x, A_mem0, A_Wq, A_Wk, A_Wv, A_Wo, A_seg_len, B_x, B_w_gate, B_w_up, B_w_down):

    def _A_ref(x, mem0, Wq, Wk, Wv, Wo, seg_len):
        B, S, Dm = x.shape
        H, Dh = (Wq.shape[1], Wq.shape[2])
        M = mem0.shape[1]
        scale = Dh ** (-0.5)
        n_seg = S // seg_len
        L = M + seg_len
        idx = torch.arange(L)
        mask = (idx[:, None] < M) | (idx[:, None] >= idx[None, :])
        mem = mem0
        outs = []
        for s in range(n_seg):
            xs = x[:, s * seg_len:(s + 1) * seg_len, :].clone()
            h = torch.concatenate([mem, xs], axis=1)
            q = torch.einsum('btd,dhe->bhte', h, Wq)
            k = torch.einsum('btd,dhe->bhte', h, Wk)
            v = torch.einsum('btd,dhe->bhte', h, Wv)
            scores = torch.einsum('bhqe,bhke->bhqk', q, k) * scale
            scores = torch.where(mask[None, None], scores, -1000000000.0)
            p = _softmax(scores, axis=-1)
            o = torch.einsum('bhqk,bhke->bhqe', p, v)
            o = torch.einsum('bhte,hed->btd', o, Wo)
            mem = o[:, :M, :].clone()
            outs.append(o[:, M:, :])
        return torch.concatenate(outs, axis=1)

    def _B_ref(x, w_gate, w_up, w_down):
        g = _silu(x @ w_gate)
        u = x @ w_up
        return g * u @ w_down
    x = A_x
    x = x + _A_ref(_layernorm(x, axis=-1), A_mem0, A_Wq, A_Wk, A_Wv, A_Wo, A_seg_len)
    x = x + _B_ref(_layernorm(x, axis=-1), B_w_gate, B_w_up, B_w_down)
    x = x + _A_ref(_layernorm(x, axis=-1), A_mem0, A_Wq, A_Wk, A_Wv, A_Wo, A_seg_len)
    x = x + _B_ref(_layernorm(x, axis=-1), B_w_gate, B_w_up, B_w_down)
    return x
```

```python
import re

_reg_re = re.compile(r'^(v|a|s)(\d+)$')
_rng_re = re.compile(r'^(v|a|s)\[(\d+):(\d+)\]$')

def parse_regs(tok):
    tok = tok.strip()
    if tok.startswith('-'): tok = tok[1:]
    m = re.match(r'^abs\((.*)\)$', tok) or re.match(r'^\|(.*)\|$', tok)
    if m: tok = m.group(1)
    m = _reg_re.match(tok)
    if m: return [(m.group(1), int(m.group(2)))]
    m = _rng_re.match(tok)
    if m: return [(m.group(1), i) for i in range(int(m.group(2)), int(m.group(3)) + 1)]
    if tok == 'vcc': return [('s', 106), ('s', 107)]
    if tok == 'vcc_lo': return [('s', 106)]
    if tok == 'vcc_hi': return [('s', 107)]
    if tok == 'exec': return [('s', 126), ('s', 127)]
    if tok == 'exec_lo': return [('s', 126)]
    if tok == 'exec_hi': return [('s', 127)]
    if tok == 'm0': return [('s', 124)]
    return []

TRANS = ('v_exp_f32', 'v_log_f32', 'v_rcp_f32', 'v_rsq_f32', 'v_sqrt_f32', 'v_sin_f32', 'v_cos_f32', 'v_rcp_iflag_f32')

def split_ops(s):
    out, depth, cur = [], 0, ''
    for ch in s:
        if ch in '[(': depth += 1
        if ch in '])': depth -= 1
        if ch == ',' and depth == 0:
            out.append(cur.strip()); cur = ''
        else: cur += ch
    if cur.strip(): out.append(cur.strip())
    return out

class Ins:
    __slots__ = ('text', 'op', 'cls', 'dst', 'src', 'srcC', 'srcAB', 'passes', 'dpp', 'ws', 'wide_store', 'lds_dma', 'sdata')
    def __init__(self, text):
        self.text = text
        t = text.split(';')[0].strip()
        parts = t.split(None, 1)
        op = parts[0]; self.op = op
        rest = parts[1] if len(parts) > 1 else ''
        ops = split_ops(rest)
        mods = ''
        if ops:
            l = ops[-1].split(None, 1)
            ops[-1] = l[0]
            if len(l) > 1: mods = l[1]
        self.dst, self.src, self.srcC, self.srcAB = [], [], [], []
        self.passes = 0; self.dpp = False; self.ws = 1; self.wide_store = False; self.lds_dma = False; self.sdata = []
        R = [parse_regs(o) for o in ops]
        flat = lambda L: [x for r in L for x in r]
        if op == 's_nop':
            self.cls = 'nop'; self.ws = int(ops[0], 0) + 1
        elif op.startswith('v_mfma') or op.startswith('v_smfmac'):
            self.cls = 'mfma'
            self.passes = 8 if '32x32' in op else 4
            self.dst = R[0]
            if op.startswith('v_smfmac'):
                self.srcC = R[0]; self.srcAB = R[1] + R[2] + R[3]
            else:
                self.srcC = R[3]; self.srcAB = R[1] + R[2]
            self.src = self.srcC + self.srcAB
        elif op.startswith('v_'):
            self.cls = 'valu'
            self.dpp = '_dpp' in op or 'row_' in mods or 'quad_perm' in mods
            if op.startswith('v_cmp'):
                self.dst = R[0]; self.src = flat(R[1:])
                if op.startswith('v_cmpx'): self.dst = self.dst + parse_regs('exec')
            elif op.startswith('v_permlane') and 'swap' in op:
                self.dst = R[0] + R[1]; self.src = R[0] + R[1]
            elif re.match(r'v_(add|sub|subrev)_co_u32', op) or op.startswith('v_mad_u64') or op.startswith('v_div_scale'):
                self.dst = R[0] + R[1]; self.src = flat(R[2:])
            elif re.match(r'v_(addc|subb|subbrev)_co_u32', op):
                self.dst = R[0] + R[1]; self.src = flat(R[2:])
            else:
                self.dst = R[0]; self.src = flat(R[1:])
                if op.startswith('v_fmac') or op.startswith('v_dot2c') or op.startswith('v_pk_fmac') or self.dpp or op.startswith('v_writelane'):
                    self.src = self.src + R[0]
                if op.startswith('v_cndmask') and len(ops) == 3: self.src += parse_regs('vcc')
        elif op.startswith('ds_'):
            self.cls = 'ds'
            if op.startswith('ds_read') or op.startswith('ds_bpermute') or op.startswith('ds_permute') or op.startswith('ds_swizzle') or '_rtn' in op:
                self.dst = R[0]; self.src = flat(R[1:])
            else:
                self.src = flat(R)
        elif op.startswith('global_') or op.startswith('buffer_') or op.startswith('flat_'):
            self.cls = 'vmem'
            allm = mods + ' ' + ' '.join(ops)
            is_lds = bool(re.search(r'\blds\b', mods)) or 'load_lds' in op
            if is_lds:
                self.lds_dma = True; self.src = flat(R) + parse_regs('m0')
            elif '_load' in op:
                self.dst = R[0]; self.src = flat(R[1:])
            elif '_atomic' in op:
                if op.startswith('global') and len(ops) == 4:
                    self.dst = R[0]; self.src = flat(R[1:])
                else:
                    self.src = flat(R)
                    if op.startswith('buffer') and 'sc0' in mods: self.dst = R[0]
            elif '_store' in op:
                self.src = flat(R)
                data = R[0] if op.startswith('buffer') else R[1]
                if 'x4' in op or 'x3' in op:
                    self.wide_store = True; self.sdata = data
            else:
                self.src = flat(R)
        elif op.startswith('s_'):
            self.cls = 'salu'
            if op.startswith('s_cmp') or op.startswith('s_cbranch') or op.startswith('s_branch') or op in ('s_waitcnt', 's_barrier', 's_endpgm', 's_sleep', 's_setprio', 's_bitcmp0_b32', 's_bitcmp1_b32'):
                self.src = flat(R)
            else:
                self.dst = R[0] if R else []; self.src = flat(R[1:])
                if 'saveexec' in op: self.dst = self.dst + parse_regs('exec')
        else:
            raise ValueError('unknown instruction class: ' + text)

def need(p, c):
    n = 0
    pd = set(p.dst)
    cs, cd = set(c.src), set(c.dst)
    if p.cls == 'valu':
        vd = {r for r in pd if r[0] in 'va'}
        sd = {r for r in pd if r[0] == 's'}
        if c.cls == 'mfma' and vd & cs: n = max(n, 2)
        if c.cls == 'valu':
            if vd & cs:
                if c.dpp or c.op.startswith('v_permlane'): n = max(n, 2)
                if c.op.startswith('v_readlane') or c.op.startswith('v_readfirstlane'): n = max(n, 1)
                if p.op.startswith(TRANS) and not c.op.startswith(TRANS): n = max(n, 1)
                if p.op.startswith(TRANS): n = max(n, 1)
                if ('op_sel' in p.text and not p.op.startswith('v_pk_')) or 'sdwa' in p.text or 'dst_sel' in p.text: n = max(n, 1)
            if sd & cs:
                n = max(n, 4 if (c.op.startswith('v_readlane') or c.op.startswith('v_writelane') or c.op.startswith('v_div_fmas')) else 2)
            if ('s', 126) in sd or ('s', 127) in sd:
                n = max(n, 5 if c.dpp else 4 if (c.op.startswith('v_read') or c.op.startswith('v_write') or c.op.startswith('v_permlane')) else 0)
        if c.cls == 'mfma' and (('s', 126) in sd): n = max(n, 4)
        if c.cls == 'vmem' and sd & cs: n = max(n, 5)
        if c.cls == 'salu' and sd & cs: n = max(n, 1)
    if p.cls == 'mfma':
        big = {4: 8, 8: 12}[p.passes]
        if c.cls == 'mfma':
            if pd & set(c.srcAB): n = max(n, big)
            if pd & set(c.srcC):
                if not (list(p.dst) == list(c.srcC) and p.passes == c.passes): n = max(n, big - 2)
            elif pd & cd: n = max(n, big)
        elif c.cls in ('valu', 'vmem', 'ds'):
            if pd & (cs | cd): n = max(n, big)
        if c.cls == 'valu' and set(p.srcC) & cd: n = max(n, p.passes - 1)
    if p.cls == 'vmem' and p.wide_store and set(p.sdata) & cd:
        n = max(n, 2 if c.cls in ('valu', 'mfma') else 1)
    if p.cls == 'salu' and ('s', 124) in pd and (c.lds_dma or 'addtid' in c.op or c.op.startswith('s_movrel')): n = max(n, 1)
    return n

def worst(p):
    if p.cls == 'mfma': return {4: 8, 8: 12}[p.passes]
    if p.cls == 'valu':
        return 5 if any(r[0] == 's' for r in p.dst) else 2
    if p.cls == 'vmem' and p.wide_store: return 2
    if p.cls == 'salu' and ('s', 124) in p.dst: return 1
    return 0

class Asm:
    def __init__(self):
        self.lines = []
        self.hist = []
        self.nlabel = 0
        self.nops = 0
    def raw(self, s): self.lines.append(s)
    def comment(self, s): self.lines.append('    ; ' + s)
    def _pad(self, k):
        while k > 0:
            n = min(k, 16)
            self.lines.append('    s_nop %d' % (n - 1)); self.nops += n
            self.hist = [(p, d + n) for p, d in self.hist if d + n < 20]
            k -= n
    def flush(self):
        k = 0
        for p, d in self.hist: k = max(k, worst(p) - d)
        self._pad(k)
        self.hist = []
    def __call__(self, text):
        for line in text.strip().split('\n'):
            line = line.strip()
            if not line or line.startswith(';'):
                if line: self.lines.append('    ' + line)
                continue
            if line.endswith(':'):
                self.label(line[:-1]); continue
            c = Ins(line)
            if c.op.startswith('s_cbranch') or c.op == 's_branch':
                k = 0
                for p, d in self.hist: k = max(k, worst(p) - d - 1, need(p, c) - d)
                self._pad(k)
            else:
                k = 0
                for p, d in self.hist: k = max(k, need(p, c) - d)
                self._pad(k)
            self.lines.append('    ' + line)
            self.hist = [(p, d + c.ws) for p, d in self.hist if d + c.ws < 20]
            if c.cls in ('valu', 'mfma', 'vmem', 'salu'): self.hist.append((c, 0))
    def br(self, line):
        self.lines.append('    ' + line)
        self.hist = [(p, d + 1) for p, d in self.hist if d + 1 < 20]
    def label(self, name):
        self.lines.append(name + ':')
    def newlabel(self, stem='L'):
        self.nlabel += 1
        return '%s_%d' % (stem, self.nlabel)
    def text(self): return '\n'.join(self.lines) + '\n'

def vr(base, n=1, kind='v'):
    return '%s%d' % (kind, base) if n == 1 else '%s[%d:%d]' % (kind, base, base + n - 1)

class RegFile:
    @staticmethod
    def r(i, n=1):
        if i >= 256: return vr(i - 256, n, 'a')
        assert i + n <= 256, (i, n)
        return vr(i, n, 'v')
```

```python
from common import *

def poll2(a, mk, bases, nreg, tmp, consume, gap=2):
    lab = a.newlabel('PP'); n = len(mk(bases[0]))
    a('s_waitcnt vmcnt(0)')
    for l in mk(bases[0]): a(l)
    a(f's_sleep {gap}')
    a.label(lab)
    for l in mk(bases[1]): a(l)
    a(f's_waitcnt vmcnt({n})')
    check(a, range(bases[0], bases[0] + nreg), tmp)
    a.br(f's_cbranch_vccz {lab}_d0')
    for l in mk(bases[0]): a(l)
    a(f's_sub_u32 s{S_ABORT}, s{S_ABORT}, 1')
    a(f's_cbranch_scc1 {lab}_abort')
    a(f's_waitcnt vmcnt({n})')
    check(a, range(bases[1], bases[1] + nreg), tmp)
    a.br(f's_cbranch_vccnz {lab}')
    a.label(lab + '_d1')
    consume(bases[1])
    a.br(f's_branch {lab}_j')
    h = list(a.hist)
    a.label(lab + '_d0'); a.hist = []
    consume(bases[0])
    a.label(lab + '_j')
    a.deferred.append(f'{lab}_abort:\n    s_mov_b32 s{S_ABORT}, 0\n    s_waitcnt vmcnt(0)\n    s_branch {lab}_d1\n')


def prog_gate(a, vreg, vz, s_prog, s_need):
    lab = a.newlabel('PG')
    a.label(lab)
    a(f'v_readfirstlane_b32 s{S_T0}, v{vreg}')
    a(f's_cmp_gt_u32 s{S_T0}, s{s_need}')
    a(f's_cbranch_scc0 {lab}_slow')
    a.label(lab + '_ok')
    a.deferred.append(f"""{lab}_slow:
    buffer_load_dword v{vreg}, v{vz}, {SRD}, s{s_prog} offen sc1
    s_sub_u32 s{S_ABORT}, s{S_ABORT}, 1
    s_cbranch_scc1 {lab}_ab
    s_waitcnt vmcnt(0)
    s_branch {lab}
{lab}_ab:
    s_mov_b32 s{S_ABORT}, 0
    s_waitcnt vmcnt(0)
    s_branch {lab}_ok
""")

def load_weights(a, groups, voff, soff):
    for g, r in enumerate(groups):
        for p in range(2):
            o = (g * 2048 + p * 1024) % 4096
            a(f'buffer_load_dwordx4 {R(r + 4 * p, 4)}, v{voff}, {SRD}, s{soff} offen offset:{o}')
        if g % 2 == 1: a(f's_add_u32 s{soff}, s{soff}, 4096')

def gather_mem_setup(a, v_g0):
    a(f'''
    s_lshl_b32 s{S_T0}, s{S_W}, 10
    s_cmp_eq_u32 s{S_W}, 3
    s_cselect_b32 s33, 3, 4
    s_lshl_b32 s33, s33, 10
    v_lshlrev_b32 v{v_g0}, 4, v{V_LANE}
    v_add_u32 v{v_g0}, s{S_T0}, v{v_g0}
    ''')

def gather_mem(a, st, G, VG0, S_MEM, TMP, LDS_MEM, VPROG):
    a(f's_add_u32 s34, s{S_MEM}, s33')
    st()
    poll(a, [f'buffer_load_dword v{VPROG}, off, {SRD}, s35 sc1',
             f'buffer_load_dwordx4 v[{G}:{G+3}], v{VG0}, {SRD}, s{S_MEM} offen sc1',
             f'buffer_load_dwordx4 v[{G+4}:{G+7}], v{VG0}, {SRD}, s34 offen sc1'], range(G, G + 8), TMP)
    st()
    a(f'''
    ds_write_b128 v{VG0}, v[{G}:{G+3}] offset:{LDS_MEM}
    ds_write_b128 v{VG0}, v[{G+4}:{G+7}] offset:{LDS_MEM+4096}
    s_waitcnt lgkmcnt(0)
    s_barrier
    ''')

def gather_mem2(a, st, G0, G1, VG0, S_MEM, TMP, LDS_MEM):
    a(f's_add_u32 s34, s{S_MEM}, s33')
    a('s_waitcnt vmcnt(0)')
    st()
    mk = lambda G: [f'buffer_load_dwordx4 v[{G}:{G+3}], v{VG0}, {SRD}, s{S_MEM} offen sc1',
                    f'buffer_load_dwordx4 v[{G+4}:{G+7}], v{VG0}, {SRD}, s34 offen sc1']
    def cons(G):
        a(f'ds_write_b128 v{VG0}, v[{G}:{G+3}] offset:{LDS_MEM}')
        a(f'ds_write_b128 v{VG0}, v[{G+4}:{G+7}] offset:{LDS_MEM+4096}')
    poll2(a, mk, [G0, G1], 8, TMP, cons)
    st()
    a('s_waitcnt lgkmcnt(0)')
    a('s_barrier')

def chain_A(a, stamps=False, st_flag=''):
    st = Stamps(a, stamps)
    WG = [256 + 8 * g for g in range(32)] + [120 + 8 * g for g in range(17)]
    MEMF, XNF, MEMH, ACC, TB = 0, 28, 56, 70, 90
    SACCS = [78, 98, 102]
    G = TB
    VG0, VIDX, VMF, VMH, VMH3, VTW, VTR, VTR3, VSPW, VSPR, VPST, VXA, VXA3 = range(106, 119)
    VPROG = 119
    TMP, TMP2 = 98, 99
    LDS_MEM, LDS_TI, LDS_SP = 0, 8192, 8192 + 4 * 1792
    SPH = 8 * 528
    S_MEM, S_PB, S_XN = 21, 22, 23
    lane = f'v{V_LANE}'
    a(f'''
    s_lshl_b32 s{S_T0}, s{S_ROLE}, 2
    s_add_u32 s{S_T0}, s{S_T0}, s{S_W}
    s_mul_i32 s{S_T0}, s{S_T0}, 100352
    s_add_u32 s{S_T2}, s{S_T0}, {L.WAC}
    v_lshlrev_b32 v{TMP}, 4, {lane}
    ''')
    load_weights(a, WG, TMP, S_T2)
    gather_mem_setup(a, VG0)
    a(f'''
    v_lshrrev_b32 v{TMP}, 4, {lane}
    v_and_b32 v{TMP2}, 15, {lane}
    v_and_b32 v{VIDX}, 2, {lane}
    v_cmp_eq_u32 vcc, 2, v{VIDX}
    v_mov_b32 v{VIDX}, 0x44444444
    v_mov_b32 v{VMF}, 0xeeeeeeee
    v_cndmask_b32 v{VIDX}, v{VIDX}, v{VMF}, vcc
    v_and_b32 v{VMF}, 2, {lane}
    v_lshlrev_b32 v{VMF}, 6, v{VMF}
    v_lshl_add_u32 v{VMF}, v{TMP}, 8, v{VMF}
    v_bfe_u32 v{VMH}, {lane}, 2, 2
    v_lshl_add_u32 v{VMF}, v{VMH}, 5, v{VMF}
    v_and_b32 v{VMH}, 1, {lane}
    v_lshl_add_u32 v{VMF}, v{VMH}, 4, v{VMF}
    ; VMH = (14w + q)*128 + 16*(j&7)
    s_mul_i32 s{S_T0}, s{S_W}, 14
    v_add_u32 v{VMH}, s{S_T0}, v{TMP}
    v_lshlrev_b32 v{VMH}, 7, v{VMH}
    v_and_b32 v{VMH3}, 7, {lane}
    v_lshl_add_u32 v{VMH}, v{VMH3}, 4, v{VMH}
    ; VMH3 = (14w + 12 + (q>>1))*128 + 16*(j&7) + 8*(q&1)
    v_lshlrev_b32 v{VMH3}, 4, v{VMH3}
    v_lshrrev_b32 v{VTW}, 5, {lane}
    v_add_u32 v{VTW}, s{S_T0}, v{VTW}
    v_add_u32 v{VTW}, 12, v{VTW}
    v_lshl_add_u32 v{VMH3}, v{VTW}, 7, v{VMH3}
    v_and_b32 v{VTR}, 1, v{TMP}
    v_lshl_add_u32 v{VMH3}, v{VTR}, 3, v{VMH3}
    v_add_u32 v{VXA}, s{S_T0}, v{TMP}
    v_lshlrev_b32 v{VXA}, 9, v{VXA}
    v_lshl_add_u32 v{VXA}, v{TMP2}, 4, v{VXA}
    v_lshlrev_b32 v{VXA3}, 9, v{VTW}
    v_lshl_add_u32 v{VXA3}, v{TMP2}, 4, v{VXA3}
    v_lshl_add_u32 v{VXA3}, v{VTR}, 3, v{VXA3}
    s_mul_i32 s{S_T1}, s{S_W}, 1792
    s_add_u32 s{S_T1}, s{S_T1}, {LDS_TI}
    v_lshlrev_b32 v{VTW}, 4, v{TMP2}
    v_lshl_add_u32 v{VTW}, v{TMP}, 2, v{VTW}
    v_add_u32 v{VTW}, s{S_T1}, v{VTW}
    v_bfe_u32 v{VTR}, {lane}, 2, 2
    v_lshlrev_b32 v{VTR}, 4, v{VTR}
    v_and_b32 v{VTR3}, 1, {lane}
    v_lshl_add_u32 v{VTR}, v{VTR3}, 3, v{VTR}
    v_add_u32 v{VTR}, s{S_T1}, v{VTR}
    v_lshl_add_u32 v{VTR3}, v{TMP}, 6, v{VTR}
    v_add_u32 v{VTR3}, {96*16}, v{VTR3}
    v_lshl_add_u32 v{VTR}, v{TMP}, 7, v{VTR}
    s_lshr_b32 s{S_T0}, s{S_W}, 1
    s_mul_i32 s{S_T0}, s{S_T0}, {SPH}
    s_and_b32 s{S_T1}, s{S_W}, 1
    s_lshl_b32 s{S_T1}, s{S_T1}, 3
    s_add_u32 s{S_T0}, s{S_T0}, s{S_T1}
    s_add_u32 s{S_T0}, s{S_T0}, {LDS_SP}
    v_and_b32 v{VSPW}, 7, {lane}
    v_mul_u32_u24 v{VSPW}, 528, v{VSPW}
    v_lshl_add_u32 v{VSPW}, v{TMP}, 5, v{VSPW}
    v_add_u32 v{VSPW}, s{S_T0}, v{VSPW}
    s_mul_i32 s{S_T0}, s{S_W}, 1056
    s_add_u32 s{S_T0}, s{S_T0}, {LDS_SP}
    v_lshrrev_b32 v{VSPR}, 5, {lane}
    v_mul_u32_u24 v{VSPR}, 528, v{VSPR}
    v_and_b32 v{VPST}, 31, {lane}
    v_lshl_add_u32 v{VSPR}, v{VPST}, 4, v{VSPR}
    v_add_u32 v{VSPR}, s{S_T0}, v{VSPR}
    v_mov_b32 v{ACC}, 0xf149f2ca
    v_mov_b32 v{ACC+1}, 0xf149f2ca
    v_mov_b32 v{ACC+2}, 0xf149f2ca
    v_mov_b32 v{ACC+3}, 0xf149f2ca
    ds_write_b128 v{VSPR}, v[{ACC}:{ACC+3}]
    ds_write_b128 v{VSPR}, v[{ACC}:{ACC+3}] offset:{SPH}
    ''')
    a(f'''
    s_lshr_b32 s{S_T0}, s{S_ROLE}, 2
    s_mul_i32 s{S_T0}, s{S_T0}, 2560
    s_bfe_u32 s{S_T1}, s{S_ROLE}, 0x10001
    s_and_b32 s{S_T2}, s{S_ROLE}, 1
    v_lshrrev_b32 v{TMP}, 5, {lane}
    s_lshl_b32 s{S_T3}, s{S_W}, 2
    v_add_u32 v{TMP}, s{S_T3}, v{TMP}
    v_bfe_u32 v{ACC}, {lane}, 3, 1
    v_lshl_add_u32 v{ACC}, v{ACC}, 4, v{TMP}
    v_and_b32 v{ACC+1}, 1, {lane}
    v_lshl_add_u32 v{ACC}, v{ACC+1}, 1, v{ACC}
    v_lshlrev_b32 v{ACC}, 4, v{ACC}
    v_bfe_u32 v{ACC+1}, {lane}, 1, 2
    v_lshl_add_u32 v{ACC}, v{ACC+1}, 2, v{ACC}
    s_lshl_b32 s{S_T3}, s{S_T1}, 10
    s_lshl_b32 s{S_MEM}, s{S_T2}, 9
    s_add_u32 s{S_T3}, s{S_T3}, s{S_MEM}
    s_add_u32 s{S_T3}, s{S_T3}, s{S_T0}
    v_add_u32 v{ACC}, s{S_T3}, v{ACC}
    v_and_b32 v{ACC+2}, 3, {lane}
    v_lshl_add_u32 v{ACC+2}, v{ACC+2}, 4, v{TMP}
    v_lshlrev_b32 v{ACC+2}, 3, v{ACC+2}
    s_lshl_b32 s{S_T3}, s{S_T2}, 4
    s_lshl_b32 s{S_MEM}, s{S_T1}, 2
    s_add_u32 s{S_T3}, s{S_T3}, s{S_MEM}
    s_add_u32 s{S_T3}, s{S_T3}, s{S_T0}
    s_add_u32 s{S_T3}, s{S_T3}, 2048
    v_add_u32 v{ACC+2}, s{S_T3}, v{ACC+2}
    v_cmp_gt_u32 vcc, 16, v{VPST}
    v_cndmask_b32 v{VPST}, v{ACC+2}, v{ACC}, vcc
    s_mul_i32 s30, s{S_LAYER}, {4*L.MEM_SZ}
    s_add_u32 s30, s30, {L.MEML}
    s_mul_i32 s31, s{S_LAYER}, {4*L.PB_SZ}
    s_add_u32 s31, s31, {L.PB}
    s_mul_i32 s{S_XN}, s{S_LAYER}, {64*L.XN_SZ}
    s_add_u32 s{S_XN}, s{S_XN}, {L.XN}
    s_mov_b32 s{S_STEP}, 0
    s_mov_b32 s24, 0x00ff00ff
    s_mov_b32 s25, 0x00ff00ff
    s_mov_b32 s26, 0x00ff00ff
    s_mov_b32 s27, 0
    s_mov_b32 s28, 0x000fffff
    s_mov_b32 s29, 0x000fffff
    s_lshl_b32 s35, s{S_LAYER}, 15
    s_add_u32 s35, s35, {L.flag(L.FL_PROG)}
    v_mov_b32 v{VPROG}, 0
    v_mov_b32 v{TMP2}, 0
    ''')
    prog_gate(a, VPROG, TMP2, 35, S_STEP)
    def xn_loads():
        for kk in range(3):
            for tt in range(2):
                o = kk * 2048 + tt * 256
                if o < 4096: a(f'buffer_load_dwordx4 v[{XNF+8*kk+4*tt}:{XNF+8*kk+4*tt+3}], v{VXA}, {SRD}, s{S_XN} offen offset:{o} sc1')
                else: a(f'buffer_load_dwordx4 v[{XNF+8*kk+4*tt}:{XNF+8*kk+4*tt+3}], v{VXA}, {SRD}, s{S_T0} offen offset:{o-4096} sc1')
            if kk == 1: a(f's_add_u32 s{S_T0}, s{S_XN}, 4096')
        for tt in range(2):
            a(f'buffer_load_dwordx2 v[{XNF+24+2*tt}:{XNF+25+2*tt}], v{VXA3}, {SRD}, s{S_XN} offen offset:{tt*256} sc1')
        a(f's_add_u32 s{S_XN}, s{S_XN}, {L.XN_SZ}')
    xn_loads()
    def body(st_flag):
        loop = a.newlabel('CA_LOOP')
        a.flush(); a.label(loop)
        a(f"""
        s_and_b32 s{S_T0}, s{S_STEP}, 3
        s_mul_i32 s{S_T1}, s{S_T0}, {L.MEM_SZ}
        s_add_u32 s{S_MEM}, s{S_T1}, s30
        s_mul_i32 s{S_T1}, s{S_T0}, {L.PB_SZ}
        s_add_u32 s{S_PB}, s{S_T1}, s31
        s_add_u32 s{S_T0}, s{S_STEP}, 3
        s_and_b32 s{S_T0}, s{S_T0}, 3
        s_mul_i32 s{S_T1}, s{S_T0}, {L.PB_SZ}
        s_add_u32 s32, s{S_T1}, s31
        """)
        def zero(r):
            return [f'v_mov_b64 v[{r+i}:{r+i+1}], 0' for i in (0, 2)]
        def acc(t): return ACC + 4 * {0: 0, 1: 1, 2: 2, 3: 3, 4: 4, 5: 0, 6: 1}[t]
        for t in range(5):
            for s_ in zero(acc(t)): a(s_)
        gather_mem2(a, st, G, MEMH, VG0, S_MEM, TMP, LDS_MEM)
        for ks in range(7): a(f'ds_read_b128 v[{MEMF+4*ks}:{MEMF+4*ks+3}], v{VMF} offset:{LDS_MEM+1024*ks}')
        memh = [f'ds_read_b64 v[{MEMH+12}:{MEMH+13}], v{VMH3} offset:{LDS_MEM}'] + \
               [f'ds_read_b128 v[{MEMH+4*kk}:{MEMH+4*kk+3}], v{VMH} offset:{LDS_MEM+512*kk}' for kk in range(3)]
        TILE = [6, 0, 1, 2, 3, 4, 5]
        def post(p):
            c = acc(p)
            return [f'v_pk_add_f32 v[{c}:{c+1}], v[{c}:{c+1}], v[{c+2}:{c+3}]',
                    f'v_cvt_pk_bf16_f32 v{c}, v{c}, v{c+1}', f'ds_write_b32 v{VTW}, v{c} offset:{256*TILE[p]}']
        def trread(kk):
            tb = TB + 4 * (kk % 2)
            if kk < 3: return [f'ds_read_b64_tr_b16 v[{tb}:{tb+1}], v{VTR} offset:{512*kk}', f'ds_read_b64_tr_b16 v[{tb+2}:{tb+3}], v{VTR} offset:{512*kk+64}']
            return [f'ds_read_b64_tr_b16 v[{tb}:{tb+1}], v{VTR3}']
        def smf(kk):
            tb = TB + 4 * (kk % 2); out = []
            for jt in range(3):
                c = f'v[{SACCS[jt]}:{SACCS[jt]+3}]'; cin = '0' if kk == 3 else c
                if kk < 3:
                    h = f'v[{MEMH+4*kk}:{MEMH+4*kk+3}]' if jt == 2 else f'v[{XNF+8*kk+4*jt}:{XNF+8*kk+4*jt+3}]'
                    out.append(f'v_mfma_f32_16x16x32_bf16 {c}, {h}, v[{tb}:{tb+3}], {cin}')
                else:
                    h = f'v[{MEMH+12}:{MEMH+13}]' if jt == 2 else f'v[{XNF+24+2*jt}:{XNF+25+2*jt}]'
                    out.append(f'v_mfma_f32_16x16x16_bf16 {c}, {h}, v[{tb}:{tb+1}], {cin}')
            return out
        def smfmac(p, ks):
            c = acc(p)
            return f'v_smfmac_f32_16x16x64_bf16 v[{c}:{c+3}], v[{MEMF+4*ks}:{MEMF+4*ks+3}], {R(WG[7*TILE[p]+ks],8)}, v{VIDX}'
        for ks in range(7):
            a(f's_waitcnt lgkmcnt({6-ks})' if not stamps or ks == 0 else 's_waitcnt lgkmcnt(0)')
            for p in range(3): a(smfmac(p, ks))
        a('s_waitcnt vmcnt(0)')
        side = memh + post(0) + post(1) + post(2) + trread(3) + trread(0) + zero(acc(5)) + zero(acc(6))
        seq = [smfmac(p, ks) for ks in range(7) for p in (3, 4)]
        for i, m in enumerate(seq):
            a(m)
            for _ in range(2 if i < 6 else 1):
                if side: a(side.pop(0))
        assert not side
        a('s_waitcnt lgkmcnt(0)')
        a(f'buffer_load_dword v{VPROG}, off, {SRD}, s35 sc1')
        seq = [smfmac(p, ks) for ks in range(7) for p in (5, 6)]
        seq = seq[:2] + smf(3) + seq[2:4] + smf(0) + seq[4:]
        side = post(3) + post(4) + trread(1)
        for i, m in enumerate(seq):
            a(m)
            if i >= 6:
                for _ in range(1):
                    if side: a(side.pop(0))
        a('s_waitcnt lgkmcnt(0)')
        for s_ in smf(1): a(s_)
        p5, p6 = post(5), post(6)
        for s_ in p5 + p6: a(s_)
        for s_ in trread(2): a(s_)
        a('s_waitcnt lgkmcnt(0)')
        for s_ in smf(2): a(s_)
        a(f"""
        s_mov_b64 exec, s[24:25]
        ds_write2_b64 v{VSPW}, v[{SACCS[0]}:{SACCS[0]+1}], v[{SACCS[0]+2}:{SACCS[0]+3}] offset0:0 offset1:2
        ds_write2_b64 v{VSPW}, v[{SACCS[1]}:{SACCS[1]+1}], v[{SACCS[1]+2}:{SACCS[1]+3}] offset0:16 offset1:18
        s_mov_b64 exec, s[26:27]
        ds_write2_b64 v{VSPW}, v[{SACCS[2]}:{SACCS[2]+1}], v[{SACCS[2]+2}:{SACCS[2]+3}] offset0:32 offset1:34
        s_mov_b64 exec, -1
        s_waitcnt lgkmcnt(0)
        s_barrier
        ds_read_b128 v[{ACC}:{ACC+3}], v{VSPR}
        ds_read_b128 v[{ACC+4}:{ACC+7}], v{VSPR} offset:{SPH}
        s_waitcnt lgkmcnt(1)
        v_pk_add_f32 v[{ACC}:{ACC+1}], v[{ACC}:{ACC+1}], v[{ACC+2}:{ACC+3}]
        s_waitcnt lgkmcnt(0)
        v_pk_add_f32 v[{ACC+4}:{ACC+5}], v[{ACC+4}:{ACC+5}], v[{ACC+6}:{ACC+7}]
        v_pk_add_f32 v[{ACC}:{ACC+1}], v[{ACC}:{ACC+1}], v[{ACC+4}:{ACC+5}]
        v_max_f32 v{TMP}, v{ACC}, v{ACC+1}
        """)
        st()
        def allred(op):
            for r in (8, 4, 2, 1): a(f'{op}_dpp v{TMP}, v{TMP}, v{TMP} row_ror:{r} row_mask:0xf bank_mask:0xf')
            a(f'v_mov_b32 v{TMP2}, v{TMP}')
            a(f'v_permlane16_swap_b32 v{TMP}, v{TMP2}')
            a(f'{op} v{TMP}, v{TMP}, v{TMP2}')
        allred('v_max_f32')
        a(f"""
        v_sub_f32 v{ACC}, v{ACC}, v{TMP}
        v_sub_f32 v{ACC+1}, v{ACC+1}, v{TMP}
        v_exp_f32 v{ACC}, v{ACC}
        v_exp_f32 v{ACC+1}, v{ACC+1}
        v_add_f32 v{TMP}, v{ACC}, v{ACC+1}
        """)
        allred('v_add_f32')
        a(f"""
        v_rcp_f32 v{TMP}, v{TMP}
        s_mov_b64 exec, s[28:29]
        v_mul_f32 v{ACC}, v{ACC}, v{TMP}
        v_mul_f32 v{ACC+1}, v{ACC+1}, v{TMP}
        v_cvt_pk_bf16_f32 v{ACC}, v{ACC}, v{ACC+1}
        v_min_u32 v{ACC}, -2, v{ACC}
        buffer_store_dword v{ACC}, v{VPST}, {SRD}, s{S_PB} offen {st_flag}
        v_mov_b32 v{TMP}, -1
        buffer_store_dword v{TMP}, v{VPST}, {SRD}, s32 offen {st_flag}
        s_mov_b64 exec, -1
        """)
        st()
        st.flush(0, TMP, TMP2)
        a(f"""
        s_add_u32 s{S_STEP}, s{S_STEP}, 1
        s_cmp_ge_u32 s{S_STEP}, 63
        s_cbranch_scc1 {loop}_end
        v_mov_b32 v{TMP2}, 0
        s_waitcnt vmcnt({3 if stamps else 2})
        """)
        prog_gate(a, VPROG, TMP2, 35, S_STEP)
        xn_loads()
        a(f's_branch {loop}')
        a.label(loop + '_end')
        a('s_endpgm')
    mode_split(a, body, TMP)

def chain_B(a, stamps=False, st_flag=''):
    st = Stamps(a, stamps)
    regs = [256 + 8 * g for g in range(32)] + [128 + 8 * g for g in range(16)]
    WG = {}
    n = 0
    for tl in range(8):
        for ks in range(6):
            WG[(tl, ks)] = regs[n]; n += 1
    ACC = 4
    UXF = 36
    MEMF = 68
    PF = MEMF
    W6 = 96
    UMF = 112
    G = W6
    FACC = ACC
    VG0, VW6, VIDX, VMF, VL16, VUX, VRW, VMST = 120, 121, 122, 123, 124, 125, 126, 127
    TMP, TMP2 = 2, 3
    VRR, VL8 = 0, 1
    LDS_MEM, LDS_RED, LDS_W = 0, 8192, 12288
    S_MEM, S_PB, S_UX, S_UM, S_MX = 21, 22, 23, 24, 25
    lane = f'v{V_LANE}'
    a(f'''
    s_lshl_b32 s{S_T0}, s{S_ROLE}, 2
    s_add_u32 s{S_T0}, s{S_T0}, s{S_W}
    s_mul_i32 s{S_T0}, s{S_T0}, 114688
    s_add_u32 s{S_T2}, s{S_T0}, {L.WBC}
    v_lshlrev_b32 v{VL16}, 4, {lane}
    s_lshl_b32 s{S_T3}, s{S_W}, 14
    s_add_u32 s{S_T3}, s{S_T3}, {LDS_W}
    ''')
    for tl in range(8):
        for ks in range(7):
            for p in range(2):
                o = (ks * 2048 + p * 1024) % 4096
                if ks < 6:
                    a(f'buffer_load_dwordx4 {R(WG[(tl,ks)] + 4 * p, 4)}, v{VL16}, {SRD}, s{S_T2} offen offset:{o}')
                else:
                    if p == 0: a(f's_mov_b32 m0, s{S_T3}')
                    a(f'buffer_load_dwordx4 v{VL16}, {SRD}, s{S_T2} offen offset:{o} lds')
            if ks % 2 == 1: a(f's_add_u32 s{S_T2}, s{S_T2}, 4096')
        a(f's_add_u32 s{S_T2}, s{S_T2}, 2048')
        a(f's_add_u32 s{S_T3}, s{S_T3}, 2048')
    gather_mem_setup(a, VG0)
    a(f'''
    v_lshrrev_b32 v{TMP}, 4, {lane}
    v_and_b32 v{TMP2}, 15, {lane}
    v_and_b32 v{VIDX}, 2, {lane}
    v_cmp_eq_u32 vcc, 2, v{VIDX}
    v_mov_b32 v{VIDX}, 0x44444444
    v_mov_b32 v{VMF}, 0xeeeeeeee
    v_cndmask_b32 v{VIDX}, v{VIDX}, v{VMF}, vcc
    v_and_b32 v{VMF}, 2, {lane}
    v_lshlrev_b32 v{VMF}, 6, v{VMF}
    v_lshl_add_u32 v{VMF}, v{TMP}, 8, v{VMF}
    v_bfe_u32 v{VUX}, {lane}, 2, 2
    v_lshl_add_u32 v{VMF}, v{VUX}, 5, v{VMF}
    v_and_b32 v{VUX}, 1, {lane}
    v_lshl_add_u32 v{VMF}, v{VUX}, 4, v{VMF}
    s_mul_i32 s{S_T0}, s{S_W}, {4*28672}
    s_lshl_b32 s{S_T1}, s{S_ROLE}, 11
    s_add_u32 s{S_T0}, s{S_T0}, s{S_T1}
    v_lshlrev_b32 v{VUX}, 5, v{TMP2}
    v_and_b32 v{VRW}, 16, {lane}
    v_add_u32 v{VUX}, v{VUX}, v{VRW}
    v_lshrrev_b32 v{VRW}, 5, {lane}
    v_lshl_add_u32 v{VUX}, v{VRW}, 10, v{VUX}
    v_add_u32 v{VUX}, s{S_T0}, v{VUX}
    s_lshr_b32 s{S_T0}, s{S_W}, 1
    s_lshl_b32 s{S_T0}, s{S_T0}, 10
    s_and_b32 s{S_T1}, s{S_W}, 1
    s_lshl_b32 s{S_T1}, s{S_T1}, 3
    s_add_u32 s{S_T0}, s{S_T0}, s{S_T1}
    s_add_u32 s{S_T0}, s{S_T0}, {LDS_RED}
    v_add_u32 v{VRW}, s{S_T0}, v{VL16}
    v_lshrrev_b32 v{VMST}, 2, v{TMP2}
    v_lshlrev_b32 v{VMST}, 7, v{VMST}
    v_lshl_add_u32 v{VMST}, v{TMP}, 5, v{VMST}
    v_and_b32 v{TMP2}, 3, {lane}
    v_lshl_add_u32 v{VMST}, v{TMP2}, 2, v{VMST}
    s_lshl_b32 s{S_T0}, s{S_ROLE}, 9
    s_lshl_b32 s{S_T1}, s{S_T1}, 1
    s_add_u32 s{S_T0}, s{S_T0}, s{S_T1}
    v_add_u32 v{VMST}, s{S_T0}, v{VMST}
    s_mul_i32 s{S_MX}, s{S_LAYER}, {64*L.MEM_SZ}
    s_add_u32 s{S_MX}, s{S_MX}, {L.MEMX}
    s_mul_i32 s30, s{S_LAYER}, {4*L.MEM_SZ}
    s_add_u32 s30, s30, {L.MEML}
    s_mul_i32 s31, s{S_LAYER}, {4*L.PB_SZ}
    s_mul_i32 s{S_T0}, s{S_W}, 2560
    s_add_u32 s31, s31, s{S_T0}
    s_add_u32 s31, s31, {L.PB}
    s_mul_i32 s{S_UX}, s{S_LAYER}, {64*L.UX_SZ}
    s_add_u32 s{S_UX}, s{S_UX}, {L.UX}
    s_mul_i32 s{S_UM}, s{S_LAYER}, {64*L.UM_SZ}
    s_lshl_b32 s{S_T0}, s{S_ROLE}, 2
    s_add_u32 s{S_T0}, s{S_T0}, s{S_W}
    s_lshl_b32 s{S_T0}, s{S_T0}, 11
    s_add_u32 s{S_UM}, s{S_UM}, s{S_T0}
    s_add_u32 s{S_UM}, s{S_UM}, {L.UM}
    s_lshl_b32 s26, s{S_W}, 14
    s_add_u32 s26, s26, {LDS_W}
    v_add_u32 v{VW6}, s26, v{VL16}
    s_and_b32 s27, s{S_W}, 1
    s_lshl_b32 s27, s27, 11
    s_add_u32 s27, s27, {LDS_RED}
    v_add_u32 v{VRR}, s27, v{VL16}
    v_lshrrev_b32 v{VL8}, 1, v{VL16}
    s_lshl_b32 s35, s{S_LAYER}, 15
    s_lshl_b32 s36, s{S_ROLE}, 2
    s_add_u32 s36, s36, s{S_W}
    s_lshl_b32 s36, s36, 2
    s_add_u32 s36, s36, s35
    s_add_u32 s36, s36, {L.flag(L.FL_UM)}
    s_add_u32 s35, s35, {L.flag(L.FL_PROG)}
    s_mov_b32 s{S_STEP}, 0
    ''')
    def ux_list():
        out = []
        for hp in range(4):
            for ct in range(2):
                r = UXF + 16 * ct + 8 * (hp >> 1) + 4 * (hp & 1)
                l = f'buffer_load_dwordx4 v[{r}:{r+3}], v{VUX}, {SRD}, s{S_UX} offen offset:{512*ct} sc1'
                if ct == 1: l += f'\ns_add_u32 s{S_UX}, s{S_UX}, {28672 if hp < 3 else L.UX_SZ - 3 * 28672}'
                out.append(l)
        return out
    def um_stores():
        a(f'''
        buffer_store_dwordx4 v[{UMF}:{UMF+3}], v{VL16}, {SRD}, s{S_UM} offen sc1
        buffer_store_dwordx4 v[{UMF+4}:{UMF+7}], v{VL16}, {SRD}, s{S_UM} offen offset:1024 sc1
        s_add_u32 s{S_UM}, s{S_UM}, {L.UM_SZ}
        ''')
    def body(st_flag):
        loop = a.newlabel('CB_LOOP'); end = a.newlabel('CB_END'); skip = a.newlabel('CB_SKIP')
        a.flush(); a.label(loop)
        a(f'''
        s_and_b32 s{S_T0}, s{S_STEP}, 3
        s_mul_i32 s{S_T1}, s{S_T0}, {L.MEM_SZ}
        s_add_u32 s{S_MEM}, s{S_T1}, s30
        s_mul_i32 s{S_T1}, s{S_T0}, {L.PB_SZ}
        s_add_u32 s{S_PB}, s{S_T1}, s31
        s_add_u32 s{S_T0}, s{S_STEP}, 1
        s_and_b32 s{S_T0}, s{S_T0}, 3
        s_mul_i32 s{S_T1}, s{S_T0}, {L.MEM_SZ}
        s_add_u32 s28, s{S_T1}, s30
        s_add_u32 s{S_T0}, s{S_STEP}, 3
        s_and_b32 s{S_T0}, s{S_T0}, 3
        s_mul_i32 s{S_T1}, s{S_T0}, {L.MEM_SZ}
        s_add_u32 s29, s{S_T1}, s30
        ''')
        for i in range(0, 32, 2): a(f'v_mov_b64 v[{ACC+i}:{ACC+i+1}], 0')
        gather_mem(a, st, G, VG0, S_MEM, TMP, LDS_MEM, TMP2)
        for ks in range(7): a(f'ds_read_b128 v[{MEMF+4*ks}:{MEMF+4*ks+3}], v{VMF} offset:{LDS_MEM+1024*ks}')
        nx = a.newlabel('CB_NX'); nu = a.newlabel('CB_NU')
        a(f'''
        s_cmp_lg_u32 s{S_ROLE}, 0
        s_cbranch_scc1 {nx}
        s_add_u32 s34, s{S_MX}, s33
        buffer_store_dwordx4 v[{G}:{G+3}], v{VG0}, {SRD}, s{S_MX} offen sc1
        buffer_store_dwordx4 v[{G+4}:{G+7}], v{VG0}, {SRD}, s34 offen sc1
        s_nop 0
        ''')
        a.label(nx)
        a(f'''
        s_cmp_eq_u32 s{S_STEP}, 0
        s_cbranch_scc1 {nu}
        ''')
        um_stores()
        a.label(nu)
        a(f'v_mov_b32 v{TMP}, 0')
        prog_gate(a, TMP2, TMP, 35, S_STEP)
        def w6read(tl):
            r = W6 + 8 * (tl % 2)
            return [f'ds_read_b128 v[{r}:{r+3}], v{VW6} offset:{2048*tl}', f'ds_read_b128 v[{r+4}:{r+7}], v{VW6} offset:{2048*tl+1024}']
        for s_ in w6read(0) + w6read(1): a(s_)
        def pack(tl):
            c = ACC + 4 * tl; hh, ct = tl >> 1, tl & 1
            return [f'v_pk_add_f32 v[{c}:{c+1}], v[{c}:{c+1}], v[{c+2}:{c+3}]', f'v_cvt_pk_bf16_f32 v{UMF+4*ct+hh}, v{c}, v{c+1}']
        uxl = ux_list()
        for ks in range(6):
            if ks < 2: a(f's_waitcnt lgkmcnt({10-ks})')
            for tl in range(8):
                c = ACC + 4 * tl
                a(f'v_smfmac_f32_16x16x64_bf16 v[{c}:{c+3}], v[{MEMF+4*ks}:{MEMF+4*ks+3}], {R(WG[(tl,ks)],8)}, v{VIDX}')
                if tl in (1, 5) and uxl: a(uxl.pop(0))
            if 1 <= ks <= 4:
                a('s_waitcnt lgkmcnt(0)')
                for j in range(2):
                    tl = [2, 3, 4, 5, 0, 1, 6, 7][2 * (ks - 1) + j] if False else 2 * (ks - 1) + j
                    c = ACC + 4 * tl; r = W6 + 8 * j
                    a(f'v_smfmac_f32_16x16x64_bf16 v[{c}:{c+3}], v[{MEMF+24}:{MEMF+27}], v[{r}:{r+7}], v{VIDX}')
                if ks < 4:
                    for s_ in w6read(2 * ks) + w6read(2 * ks + 1): a(s_)
                if ks == 4:
                    nf = a.newlabel('CB_NF')
                    a(f's_cmp_eq_u32 s{S_STEP}, 0')
                    a.br(f's_cbranch_scc1 {nf}')
                    a(f'v_mov_b32 v{TMP2}, 1')
                    signal(a, 36, TMP, TMP2, 'sc1', wait='s_waitcnt vmcnt(8)')
                    a('s_add_u32 s36, s36, 512')
                    a.label(nf)
        for tl in range(8):
            for s_ in pack(tl): a(s_)
        a(f'''
        s_cmp_eq_u32 s{S_STEP}, 63
        s_cbranch_scc1 {end}
        ''')
        for i in range(0, 8, 2): a(f'v_mov_b64 v[{FACC+i}:{FACC+i+1}], 0')
        st()
        mk = lambda P: [f'buffer_load_dwordx4 v[{P}:{P+3}], v{VL16}, {SRD}, s{S_PB} offen sc1',
                 f'buffer_load_dwordx4 v[{P+4}:{P+7}], v{VL16}, {SRD}, s{S_PB} offen offset:1024 sc1',
                 f'buffer_load_dwordx2 v[{P+8}:{P+9}], v{VL8}, {SRD}, s{S_PB} offen offset:2048 sc1']
        def cons(PF):
            for m in range(2):
                for ct in range(2):
                    a(f'v_smfmac_f32_16x16x64_bf16 v[{FACC+4*ct}:{FACC+4*ct+3}], v[{PF+4*m}:{PF+4*m+3}], v[{UXF+16*ct+8*m}:{UXF+16*ct+8*m+7}], v{VIDX}')
            for ct in range(2):
                a(f'v_smfmac_f32_16x16x32_bf16 v[{FACC+4*ct}:{FACC+4*ct+3}], v[{PF+8}:{PF+9}], v[{UMF+4*ct}:{UMF+4*ct+3}], v{VIDX}')
        poll2(a, mk, [PF, PF + 12], 10, TMP, cons)
        st()
        T = ACC + 8
        a(f'''
        v_mov_b32 v{TMP}, -1
        s_cmp_ge_u32 s{S_W}, 2
        v_add_f32 v{T}, v{FACC}, v{FACC+2}
        v_add_f32 v{T+2}, v{FACC+1}, v{FACC+3}
        v_add_f32 v{T+1}, v{FACC+4}, v{FACC+6}
        v_add_f32 v{T+3}, v{FACC+5}, v{FACC+7}
        ds_write2st64_b64 v{VRW}, v[{T}:{T+1}], v[{T+2}:{T+3}] offset0:0 offset1:4
        s_waitcnt lgkmcnt(0)
        s_barrier
        s_cbranch_scc1 {skip}
        ds_read_b128 v[{T}:{T+3}], v{VRR}
        ds_read_b128 v[{T+4}:{T+7}], v{VRR} offset:1024
        s_waitcnt lgkmcnt(1)
        v_pk_add_f32 v[{T}:{T+1}], v[{T}:{T+1}], v[{T+2}:{T+3}]
        s_waitcnt lgkmcnt(0)
        v_pk_add_f32 v[{T+4}:{T+5}], v[{T+4}:{T+5}], v[{T+6}:{T+7}]
        v_pk_add_f32 v[{T}:{T+1}], v[{T}:{T+1}], v[{T+4}:{T+5}]
        v_cvt_pk_bf16_f32 v{T}, v{T}, v{T+1}
        v_min_u32 v{T}, -2, v{T}
        buffer_store_dword v{T}, v{VMST}, {SRD}, s28 offen {st_flag}
        buffer_store_dword v{TMP}, v{VMST}, {SRD}, s29 offen {st_flag}
        ''')
        a.label(skip)
        st()
        st.flush(2 << 20, TMP, TMP2)
        a(f'''
        s_add_u32 s{S_MX}, s{S_MX}, {L.MEM_SZ}
        s_add_u32 s{S_STEP}, s{S_STEP}, 1
        s_branch {loop}
        ''')
        a.label(end)
        um_stores()
        a(f'v_mov_b32 v{TMP2}, 1')
        signal(a, 36, TMP, TMP2, 'sc1')
        a('s_endpgm')
    mode_split(a, body, TMP)

def helper_prog(a, st_flag=''):
    def body(st_flag):
        loop = a.newlabel('HP')
        a(f"""
        s_cmp_lg_u32 s{S_W}, 0
        s_cbranch_scc1 {loop}_end
        v_min_u32 v2, 55, v{V_LANE}
        v_lshlrev_b32 v2, 3, v2
        v_mov_b32 v3, 0
        s_lshl_b32 s21, s{S_LAYER}, 15
        s_add_u32 s22, s21, {L.flag(L.FL_PROG)}
        s_add_u32 s21, s21, {L.flag(L.FL_U)}
        s_mov_b32 s{S_STEP}, 0
        """)
        a.label(loop)
        wait_flags(a, 21, 2, 4, width=2, sleep=1)
        a(f"""
        s_add_u32 s{S_STEP}, s{S_STEP}, 1
        s_add_u32 s21, s21, 512
        v_mov_b32 v6, s{S_STEP}
        s_mov_b64 exec, 1
        buffer_store_dword v6, v3, {SRD}, s22 offen {st_flag}
        s_mov_b64 exec, -1
        s_cmp_lt_u32 s{S_STEP}, 64
        s_cbranch_scc1 {loop}
        """)
        a.label(loop + '_end')
        a('s_endpgm')
    mode_split(a, body, 4)

def helper_warm(a):
    loop = a.newlabel('WX'); pl = a.newlabel('WXP')
    a(f"""
    v_lshlrev_b32 v2, 4, v0
    v_mov_b32 v3, 0
    s_mul_i32 s21, s{S_LAYER}, {64*L.XN_SZ}
    s_add_u32 s21, s21, {L.XN}
    s_mul_i32 s22, s{S_LAYER}, {64*L.MEM_SZ}
    s_add_u32 s22, s22, {L.MEMX}
    s_lshl_b32 s23, s{S_LAYER}, 15
    s_add_u32 s23, s23, {L.flag(L.FL_PROG)}
    s_mov_b32 s{S_STEP}, 0
    """)
    a.label(loop)
    a(f"""
    s_sleep 4
    buffer_load_dword v8, v3, {SRD}, s22 offen sc1
    buffer_load_dword v9, v3, {SRD}, s23 offen sc1
    s_sub_u32 s{S_ABORT}, s{S_ABORT}, 1
    s_cbranch_scc1 {loop}_end
    s_waitcnt vmcnt(0)
    v_readfirstlane_b32 s24, v9
    v_readfirstlane_b32 s25, v8
    s_cmp_gt_u32 s24, s{S_STEP}
    s_cbranch_scc0 {loop}
    s_cmp_lt_u32 s{S_STEP}, 3
    s_cbranch_scc1 {pl}
    s_cmp_eq_u32 s25, -1
    s_cbranch_scc1 {loop}
    s_add_u32 s22, s22, {L.MEM_SZ}
    """)
    a.label(pl)
    for i in range(7):
        a(f'buffer_load_dwordx4 v[4:7], v2, {SRD}, s21 offen sc1')
        a('s_add_u32 s21, s21, 4096')
    a(f"""
    s_add_u32 s{S_STEP}, s{S_STEP}, 1
    s_cmp_lt_u32 s{S_STEP}, 63
    s_cbranch_scc1 {loop}
    """)
    a.label(loop + '_end')
    a('s_endpgm')
```

```python
from asmlib import *
import layout as L
R = RegFile.r
SRD = 's[8:11]'
S_WS, S_DBG = 4, 6
S_W = 12
S_ROLE = 13
S_LAYER = 14
S_STEP = 15
S_ABORT = 16
S_T0, S_T1, S_T2, S_T3 = 17, 18, 19, 20
V_LANE = 1
POLL_BUDGET = 300000

def common_prologue(a):
    a(f'''
    s_load_dwordx2 s[{S_WS}:{S_WS+1}], s[0:1], 104
    s_load_dwordx2 s[{S_DBG}:{S_DBG+1}], s[0:1], 96
    v_lshrrev_b32 v2, 6, v0
    v_and_b32 v{V_LANE}, 63, v0
    v_readfirstlane_b32 s{S_W}, v2
    s_waitcnt lgkmcnt(0)
    s_mov_b32 s8, s{S_WS}
    s_and_b32 s9, s{S_WS+1}, 0xffff
    s_mov_b32 s10, 0x10000000
    s_mov_b32 s11, 0x00020000
    s_mov_b32 s{S_ABORT}, {POLL_BUDGET}
    ''')

def check(a, regs, tmp):
    r = list(regs)
    a(f'v_max3_u32 v{tmp}, v{r[0]}, v{r[1]}, v{r[2]}'); r = r[3:]
    while len(r) >= 2:
        a(f'v_max3_u32 v{tmp}, v{tmp}, v{r[0]}, v{r[1]}'); r = r[2:]
    if r: a(f'v_max_u32 v{tmp}, v{tmp}, v{r[0]}')
    a(f'v_cmp_eq_u32 vcc, -1, v{tmp}')

def poll(a, loads, regs, tmp, sleep=0):
    lab = a.newlabel('POLL'); done = a.newlabel('POLLD')
    if sleep:
        a(f's_branch {lab}_in')
        a.label(lab); a(f's_sleep {sleep}'); a.label(lab + '_in')
    else: a.label(lab)
    for l in loads: a(l)
    a(f's_sub_u32 s{S_ABORT}, s{S_ABORT}, 1')
    a(f's_cbranch_scc1 {done}_abort')
    a('s_waitcnt vmcnt(0)')
    check(a, regs, tmp)
    a.br(f's_cbranch_vccnz {lab}')
    a.label(done)
    a.deferred.append(f'{done}_abort:\n    s_mov_b32 s{S_ABORT}, 0\n    s_waitcnt vmcnt(0)\n    s_branch {done}\n')

def wait_flags(a, soff, voff, tmp, width=1, sleep=2):
    lab = a.newlabel('WF'); done = a.newlabel('WFD')
    a(f's_branch {lab}_in')
    a.label(lab); a(f's_sleep {sleep}'); a.label(lab + '_in')
    if width == 1: a(f'buffer_load_dword v{tmp}, v{voff}, {SRD}, s{soff} offen sc1')
    else: a(f'buffer_load_dwordx2 v[{tmp}:{tmp+1}], v{voff}, {SRD}, s{soff} offen sc1')
    a(f's_sub_u32 s{S_ABORT}, s{S_ABORT}, 1')
    a(f's_cbranch_scc1 {done}_abort')
    a('s_waitcnt vmcnt(0)')
    if width == 2: a(f'v_min_u32 v{tmp}, v{tmp}, v{tmp+1}')
    a(f'v_cmp_eq_u32 vcc, 0, v{tmp}')
    a.br(f's_cbranch_vccnz {lab}')
    a.label(done)
    a.deferred.append(f'{done}_abort:\n    s_mov_b32 s{S_ABORT}, 0\n    s_waitcnt vmcnt(0)\n    s_branch {done}\n')

def signal(a, soff, vzero, vone, mode='sc1', wait='s_waitcnt vmcnt(0)'):
    a(f'''
    {wait}
    s_mov_b64 exec, 1
    buffer_store_dword v{vone}, v{vzero}, {SRD}, s{soff} offen {mode}
    s_mov_b64 exec, -1
    ''')

def load_frags(a, regs, voff, soff, mods=''):
    for i, r in enumerate(regs):
        a(f'buffer_load_dwordx4 {R(r, 4)}, v{voff}, {SRD}, s{soff} offen offset:{(i % 4) * 1024} {mods}')
        if i % 4 == 3: a(f's_add_u32 s{soff}, s{soff}, 4096')

class Stamps:
    def __init__(self, a, on, base=60):
        self.a, self.on, self.base, self.n = a, on, base, 0
    def __call__(self):
        if self.on:
            self.a(f's_memrealtime s[{self.base+2*self.n}:{self.base+2*self.n+1}]'); self.n += 1
    def flush(self, role_off, vt, va, sstep=S_STEP):
        if not self.on: return
        a = self.a
        a('s_waitcnt lgkmcnt(0)')
        a(f's_lshl_b32 s{S_T0}, s{S_ROLE}, 2')
        a(f's_add_u32 s{S_T0}, s{S_T0}, s{S_W}')
        a(f's_lshl_b32 s{S_T0}, s{S_T0}, 7')
        a(f's_add_u32 s{S_T0}, s{S_T0}, s{sstep}')
        a(f's_lshl_b32 s{S_T0}, s{S_T0}, 6')
        a(f's_add_u32 s{S_T0}, s{S_T0}, s59')
        a(f's_add_u32 s{S_T0}, s{S_T0}, {L.DBG + role_off}')
        a(f'v_mbcnt_lo_u32_b32 v{va}, -1, 0')
        a(f'v_lshlrev_b32 v{va}, 2, v{va}')
        for i in range(self.n):
            a(f'v_writelane_b32 v{vt}, s{self.base+2*i}, {i}')
        a('s_mov_b64 exec, 0xffff')
        a(f'buffer_store_dword v{vt}, v{va}, {SRD}, s{S_T0} offen')
        a('s_mov_b64 exec, -1')
        self.n = 0

def interleave(a, main, side, per=1, start=0):
    side = list(side)
    for i, m in enumerate(main):
        a(m)
        if i >= start:
            for _ in range(per):
                if side: a(side.pop(0))
    return side

def stats_ops(S, T):
    return [
        f'v_pk_add_f32 v[{S}:{S+1}], v[{S}:{S+1}], v[{S+2}:{S+3}]',
        f'v_pk_add_f32 v[{S+4}:{S+5}], v[{S+4}:{S+5}], v[{S+6}:{S+7}]',
        f'v_pk_add_f32 v[{S}:{S+1}], v[{S}:{S+1}], v[{S+4}:{S+5}]',
        f'v_mov_b32 v{T}, v{S}',
        f'v_mov_b32 v{T+1}, v{S+1}',
        f'v_permlane32_swap_b32 v{T}, v{S}',
        f'v_permlane32_swap_b32 v{T+1}, v{S+1}',
        f'v_pk_add_f32 v[{S}:{S+1}], v[{S}:{S+1}], v[{T}:{T+1}]',
        f'v_mul_f32 v{T}, {hex(f2u(1.0/448))}, v{S}',
        f'v_mul_f32 v{T+1}, {hex(f2u(1.0/448))}, v{S+1}',
        f'v_fma_f32 v{T+1}, -v{T}, v{T}, v{T+1}',
        f'v_max_f32 v{T+1}, 0, v{T+1}',
        f'v_add_f32 v{T+1}, {hex(f2u(1e-5))}, v{T+1}',
        f'v_rsq_f32 v{S}, v{T+1}',
        f'v_mov_b32 v{S+1}, v{T}',
    ]

import struct
def f2u(x): return struct.unpack('<I', struct.pack('<f', x))[0]

def kernel_wrap(name, body, vgpr=512, accum=256, sgpr=102):
    return f'''.text
.globl {name}
.p2align 8
.type {name},@function
{name}:
{body}
.section .rodata,"a"
.p2align 6
.amdhsa_kernel {name}
  .amdhsa_next_free_vgpr {vgpr}
  .amdhsa_next_free_sgpr {sgpr}
  .amdhsa_accum_offset {accum}
  .amdhsa_group_segment_fixed_size 0
  .amdhsa_kernarg_size 112
  .amdhsa_user_sgpr_count 2
  .amdhsa_user_sgpr_kernarg_segment_ptr 1
  .amdhsa_system_sgpr_workgroup_id_x 1
.end_amdhsa_kernel
'''

S_GRP = 56
S_NEED = 57
def mode_split(a, body, vt):
    lab = a.newlabel('MS')
    a.flush()
    a.label(lab)
    a(f"""
    buffer_load_dword v{vt}, off, {SRD}, s{S_GRP} sc1
    s_sub_u32 s{S_ABORT}, s{S_ABORT}, 1
    s_cbranch_scc1 {lab}_ab
    s_waitcnt vmcnt(0)
    v_readfirstlane_b32 s58, v{vt}
    s_and_b32 s{S_T0}, s58, 0xffff
    s_cmp_ge_u32 s{S_T0}, s{S_NEED}
    s_cbranch_scc0 {lab}
    s_lshr_b32 s{S_T0}, s58, 16
    s_cbranch_scc1 {lab}_slow
    """)
    body('')
    a.label(lab + '_ab')
    a(f's_mov_b32 s{S_ABORT}, 0')
    a('s_waitcnt vmcnt(0)')
    a.label(lab + '_slow')
    body('sc1')
```

```python
import numpy as np
NSEG = 64
MB = 1 << 20
WAC = 0
WBC = 7 * MB
WAT = 14 * MB
WBU = 21 * MB
WF1 = 28 * MB
WF2 = 32 * MB
MEM_SZ, PB_SZ, XN_SZ, UX_SZ, UM_SZ, PX_SZ, HB_SZ, ST_SZ = 7168, 10240, 28672, 458752, 114688, 40960, 114688, 2048
MEML = 34 * MB
PB = MEML + 65536
MEMX = MEML + 65536 + 98304
SENT_BYTES = 65536 + 98304 + 917504
FLAGS = 36 * MB
FL_U, FL_T, FL_XN, FL_P, FL_H, FL_X, FL_PROG = 0, 1, 2, 3, 4, 5, 6
FLAG_BYTES = 8 * 2 * 64 * 512
def flag(kind, layer=0, s=0): return FLAGS + ((kind * 2 + layer) * 64 + s) * 512
ST = 37 * MB
XN = 38 * MB
XS = 42 * MB
PX = 52 * MB
UM = 58 * MB
HB = 74 * MB
UX = 96 * MB
DBG = 200 * MB

def bf16(x):
    u = np.ascontiguousarray(x, np.float32).view(np.uint32)
    return ((u + 0x7fff + ((u >> 16) & 1)) >> 16).astype(np.uint16)
def f32(u): return (u.astype(np.uint32) << 16).view(np.float32)

def amap(k):
    return 16 * (k >> 4) + 8 * ((k >> 1) & 1) + 2 * ((k >> 2) & 3) + (k & 1)
def perm32(r):
    return 16 * (r >> 4) + 8 * ((r >> 2) & 1) + 4 * ((r >> 3) & 1) + (r & 3)

L64 = np.arange(64); E8 = np.arange(8)
def smf_bfrag_rows():
    p = np.arange(2)[:, None, None]; l = L64[None, :, None]; e = E8[None, None, :]
    return amap(32 * p + 8 * (l >> 4) + e)

def pack_WAC(A):
    ar = smf_bfrag_rows(); c = (L64 & 15)[None, :, None]
    out = np.empty((16, 4, 7, 7, 2, 64, 8), A.dtype)
    for w in range(4):
        for t in range(7):
            for ks in range(7):
                out[:, w, t, ks] = A[:, 64 * ks + ar, 112 * w + 16 * t + c]
    return out

def pack_WBC(B):
    ar = smf_bfrag_rows(); c = (L64 & 15)[None, :, None]
    out = np.empty((14, 4, 4, 2, 7, 2, 64, 8), B.dtype)
    for cu in range(14):
        for ct in range(2):
            for ks in range(7):
                out[cu, :, :, ct, ks] = B[:, 64 * ks + ar, 32 * cu + 2 * c + ct].reshape(4, 4, 2, 64, 8)
    return out

def wat_col(w, t, rho):
    if t == 6: return 112 * w + 96 + rho
    return 112 * w + 32 * (t >> 1) + 8 * (rho >> 2) + 4 * (t & 1) + (rho & 3)
def pack_WAT(A):
    out = np.empty((16, 4, 7, 14, 64, 8), A.dtype)
    q = (L64 >> 4)[:, None]; rho = (L64 & 15)[:, None]
    for w in range(4):
        for t in range(7):
            for ks in range(14):
                out[:, w, t, ks] = A[:, 32 * ks + 8 * q + E8[None, :], wat_col(w, t, rho)]
    return out

POS2COL = np.array([32 * (p >> 5) + 2 * (p & 15) + ((p >> 4) & 1) for p in range(448)])
def pack_WBU(B):
    out = np.empty((8, 14, 2, 28, 64, 8), B.dtype)
    hi = (L64 >> 5)[:, None]; c = (L64 & 31)[:, None]
    for cu in range(14):
        for ks in range(28):
            out[:, cu, :, ks] = B[:, 16 * ks + 8 * hi + E8[None, :], POS2COL[32 * cu + c]].reshape(8, 2, 64, 8)
    return out
def pack_WF1(wg, wu):
    out = np.empty((112, 28, 64, 8), wg.dtype)
    hi = (L64 >> 5)[:, None]; rho = (L64 & 31)[:, None]
    f = perm32(rho & 15)
    for phi in range(112):
        for ks in range(28):
            k = 16 * ks + 8 * hi + E8[None, :]
            out[phi, ks] = np.where(rho < 16, wg[k, 16 * phi + f], wu[k, 16 * phi + f])
    return out
def pack_WF2(wd):
    out = np.empty((7, 4, 2, 28, 64, 8), wd.dtype)
    hi = (L64 >> 5)[:, None]; rho = (L64 & 31)[:, None]
    for c in range(7):
        for w in range(4):
            for ct2 in range(2):
                for kk in range(28):
                    out[c, w, ct2, kk] = wd[16 * (28 * w + kk) + 8 * hi + E8[None, :], 64 * c + 32 * ct2 + perm32(rho)]
    return out

def pack_G(x):
    T = x.shape[0]
    return np.ascontiguousarray(x.reshape(T, -1, 8).transpose(1, 0, 2))
def unpack_G(g, T):
    return np.ascontiguousarray(g.reshape(-1, T, 8).transpose(1, 0, 2)).reshape(T, -1)

def pack_UX(U):
    V = U[:, :, POS2COL].reshape(16, 4, 8, 14, 32)
    return np.ascontiguousarray(V.transpose(0, 3, 1, 4, 2))
def pack_UM(Um):
    out = np.empty((14, 4, 2, 64, 4, 2), Um.dtype)
    q = L64 >> 4; c = L64 & 15
    for cu in range(14):
        for w in range(4):
            for ct in range(2):
                for hh in range(4):
                    for b in range(2):
                        out[cu, w, ct, :, hh, b] = Um[4 * w + hh, 2 * q + b, 32 * cu + 2 * c + ct]
    return out
def pack_PX(P):
    out = np.empty((4, 10, 2, 32, 8), P.dtype)
    for w in range(4):
        for hh in range(4):
            for kh in range(2):
                for hi in range(2):
                    out[w, 2 * hh + kh, hi] = P[4 * w + hh, 8:, 8 + 16 * kh + 8 * hi: 16 + 16 * kh + 8 * hi]
            for kk2 in range(2):
                for hi in range(2):
                    q = 2 * kk2 + hi
                    out[w, 8 + kk2, hi, :, 2 * hh: 2 * hh + 2] = P[4 * w + hh, 8:, 2 * q: 2 * q + 2]
    return out
def pack_ST(x):
    out = np.zeros((32, 8, 2), np.float32)
    v = x.reshape(32, 7, 64).astype(np.float64)
    out[:, :7, 0] = v.sum(-1); out[:, :7, 1] = (v * v).sum(-1)
    return out

FL_UM = FL_XN
FLU = FLAGS + FLAG_BYTES
FLXN = FLU + 128 * 2048
assert FLXN + 128 * 2048 <= ST
```

```python
from common import *
import chain, workers

def mega(stamps=False, mask=0xff, static=True, fast=True):
    a = Asm(); a.deferred = []
    common_prologue(a)
    mode = '' if fast else 'sc1'
    REG = L.flag(7)
    a(f'''
    s_cmp_ge_u32 s2, 256
    s_cbranch_scc1 M_EXIT
    s_cmp_lg_u32 s{S_W}, 0
    s_cbranch_scc1 M_WAITROLE
    s_getreg_b32 s3, hwreg(HW_REG_XCC_ID, 0, 3)
    s_mov_b64 exec, 1
    v_mov_b32 v2, 1
    s_lshl_b32 s{S_T0}, s3, 9
    s_add_u32 s{S_T0}, s{S_T0}, {REG}
    buffer_atomic_add v2, off, {SRD}, s{S_T0} sc0 sc1
    s_cmp_ge_u32 s3, 4
    s_cselect_b32 s{S_NEED}, 28, 32
    s_waitcnt vmcnt(0)
    v_readfirstlane_b32 s{S_ROLE}, v2
    s_and_b32 s{S_ROLE}, s{S_ROLE}, 0xffff
    s_mov_b64 exec, -1
    s_cmp_lt_u32 s{S_ROLE}, s{S_NEED}
    s_cbranch_scc1 M_GOTROLE
    v_and_b32 v3, 7, v{V_LANE}
    v_cmp_gt_u32 vcc, 4, v3
    v_cndmask_b32 v4, 28, 32, vcc
    v_lshlrev_b32 v3, 9, v3
    s_mov_b32 s{S_T1}, {REG}
    s_mov_b32 s{S_T2}, 60
M_SURP:
    buffer_load_dword v5, v3, {SRD}, s{S_T1} offen sc1
    s_waitcnt vmcnt(0)
    v_and_b32 v5, 0xffff, v5
    v_cmp_lt_u32 vcc, v5, v4
    s_mov_b32 s3, 8
    s_cbranch_vccz M_GOTROLE
    s_sleep 8
    s_sub_u32 s{S_T2}, s{S_T2}, 1
    s_cbranch_scc0 M_SURP
    s_mov_b32 s{S_T2}, 0
    s_ff1_i32_b32 s3, vcc_lo
    s_mov_b64 exec, 1
    v_mov_b32 v2, 0x10001
    s_lshl_b32 s{S_T0}, s3, 9
    s_add_u32 s{S_T0}, s{S_T0}, {REG}
    buffer_atomic_add v2, off, {SRD}, s{S_T0} sc0 sc1
    s_cmp_ge_u32 s3, 4
    s_cselect_b32 s{S_NEED}, 28, 32
    s_waitcnt vmcnt(0)
    v_readfirstlane_b32 s{S_ROLE}, v2
    s_and_b32 s{S_ROLE}, s{S_ROLE}, 0xffff
    s_mov_b64 exec, -1
    s_cmp_lt_u32 s{S_ROLE}, s{S_NEED}
    s_cbranch_scc0 M_SURP
M_GOTROLE:
    s_lshl_b32 s{S_T0}, s3, 16
    s_or_b32 s{S_T0}, s{S_T0}, s{S_ROLE}
    v_mov_b32 v2, s{S_T0}
    v_mov_b32 v3, 0
    ds_write_b32 v3, v2
    s_waitcnt lgkmcnt(0)
M_WAITROLE:
    s_barrier
    v_mov_b32 v3, 0
    ds_read_b32 v2, v3
    s_waitcnt lgkmcnt(0)
    v_readfirstlane_b32 s{S_T0}, v2
    s_barrier
    s_lshr_b32 s3, s{S_T0}, 16
    s_and_b32 s{S_ROLE}, s{S_T0}, 0xffff
    s_cmp_ge_u32 s3, 8
    s_cbranch_scc1 M_EXIT
    s_cmp_ge_u32 s3, 4
    s_cselect_b32 s{S_NEED}, 28, 32
    s_lshl_b32 s{S_GRP}, s3, 9
    s_add_u32 s{S_GRP}, s{S_GRP}, {REG}
    s_and_b32 s{S_LAYER}, s3, 1
    s_lshl_b32 s59, s{S_LAYER}, 20
    s_lshr_b32 s3, s3, 1
    s_cmp_eq_u32 s3, 1
    s_cbranch_scc1 M_T
    s_cmp_eq_u32 s3, 2
    s_cbranch_scc1 M_U
    s_cmp_eq_u32 s3, 3
    s_cbranch_scc1 M_PFF
    s_cmp_eq_u32 s{S_ROLE}, 30
    s_cbranch_scc1 M_HP
    s_cmp_eq_u32 s{S_ROLE}, 31
    s_cbranch_scc1 M_HW
    s_cmp_ge_u32 s{S_ROLE}, 16
    s_cbranch_scc1 M_CB
    ''')
    chain.chain_A(a, stamps)
    a.label('M_CB'); a(f's_sub_u32 s{S_ROLE}, s{S_ROLE}, 16'); chain.chain_B(a, stamps)
    a.label('M_HP'); chain.helper_prog(a)
    a.label('M_HW'); chain.helper_warm(a)
    a.label('M_T'); workers.role_T(a, stamps)
    a.label('M_U')
    a(f's_cmp_ge_u32 s{S_ROLE}, 28'); a('s_cbranch_scc1 M_EXIT')
    workers.role_U(a, stamps)
    a.label('M_PFF')
    a(f'''
    s_cmp_ge_u32 s{S_ROLE}, 28
    s_cbranch_scc1 M_EXIT
    s_cmp_ge_u32 s{S_ROLE}, 21
    s_cbranch_scc1 M_F2
    s_cmp_ge_u32 s{S_ROLE}, 14
    s_cbranch_scc1 M_PU
    ''')
    workers.role_F1(a, stamps)
    a.label('M_PU'); a(f's_sub_u32 s{S_ROLE}, s{S_ROLE}, 14'); workers.role_PU(a, stamps)
    a.label('M_F2'); a(f's_sub_u32 s{S_ROLE}, s{S_ROLE}, 21'); workers.role_F2(a, stamps)
    a.label('M_EXIT')
    a('s_endpgm')
    for d in a.deferred: a.raw(d)
    return kernel_wrap('mega_kernel', a.text())

HDR = '.amdgcn_target "amdgcn-amd-amdhsa--gfx950"\n'
if __name__ == '__main__':
    for nm, kw in (('mega', {}), ('mega_st', dict(stamps=True))):
        open(f'work/{nm}.s', 'w').write('; @launch grid=(256,1,1) block=(256,1,1) lds=98304\n' + HDR + mega(**kw))
```

```python
from common import *
lane = f'v{V_LANE}'
WBYTES = 448 * 4096 * 2

def prep():
    a = Asm(); a.deferred = []; a.nlabel = 5000
    a('''
    s_cmp_ge_u32 s2, 256
    s_cbranch_scc1 P_EXIT
    s_load_dwordx8 s[24:31], s[0:1], 16
    s_load_dwordx4 s[32:35], s[0:1], 0
    ''')
    common_prologue(a)
    a(f'''
    s_and_b32 s3, s2, 7
    s_lshr_b32 s21, s2, 3
    s_cmp_ge_u32 s21, 28
    s_cbranch_scc1 P_MISC
    ; pair = x*4 + i/7 ; cb = i%7
    s_mul_i32 s22, s21, 37
    s_lshr_b32 s22, s22, 8
    s_mul_i32 s23, s22, 7
    s_sub_u32 s23, s21, s23
    s_lshl_b32 s3, s3, 2
    s_add_u32 s22, s22, s3
    s_and_b32 s36, s22, 15
    s_lshr_b32 s37, s22, 4
    s_cmp_eq_u32 s37, 0
    s_cselect_b32 s40, s24, s28
    s_cselect_b32 s41, s25, s29
    s_cselect_b32 s44, s26, s30
    s_cselect_b32 s45, s27, s31
    s_and_b32 s41, s41, 0xffff
    s_and_b32 s45, s45, 0xffff
    s_mov_b32 s42, {WBYTES}
    s_mov_b32 s43, 0x00020000
    s_mov_b32 s46, {WBYTES}
    s_mov_b32 s47, 0x00020000
    ''')
    H, M, CB = 36, 37, 23
    LS, RS_ = 's[40:43]', 's[44:47]'
    VSRC, VA, V1A, V1B, V2, VSC = 2, 4, 12, 13, 14, 16
    T = 18
    RF = 24
    FR = 88
    ACC = 104
    PK = 120
    LDS_R = 65536
    def dma_rows(srd, sbase, ldsbase_s, natural):
        for i in range(8):
            rowi = (2 * i) if natural else (16 * ((i >> 1) & 1) + 4 * (i >> 2) + 2 * (i & 1))
            a(f'v_xor_b32 v{T}, {32 * i}, v{VSRC}')
            a(f's_add_u32 s{S_T1}, s{sbase}, {rowi * 8192}')
            a(f's_add_u32 m0, s{ldsbase_s}, {1024 * i}')
            a(f'buffer_load_dwordx4 v{T}, {srd}, s{S_T1} offen lds')
    a(f'''
    ; VSRC = (l>>5)*8192 + ((p ^ (l>>5)) * 16)
    v_lshrrev_b32 v{T}, 5, {lane}
    v_and_b32 v{T+1}, 31, {lane}
    v_xor_b32 v{VSRC}, v{T+1}, v{T}
    v_lshlrev_b32 v{VSRC}, 4, v{VSRC}
    v_lshl_add_u32 v{VSRC}, v{T}, 13, v{VSRC}
    s_lshr_b32 s{S_T0}, s{S_W}, 1
    s_lshl_b32 s48, s{S_T0}, 5
    s_and_b32 s{S_T1}, s{S_W}, 1
    s_lshl_b32 s{S_T2}, s{S_T1}, 3
    s_add_u32 s48, s48, s{S_T2}
    s_lshl_b32 s48, s48, 13
    s_lshl_b32 s{S_T2}, s{H}, 9
    s_add_u32 s48, s48, s{S_T2}
    s_lshl_b32 s49, s{S_W}, 13
    s_add_u32 s50, s49, {LDS_R}
    s_cmp_eq_u32 s{M}, 1
    s_cbranch_scc1 P_RB
    s_lshl_b32 s51, s{CB}, 6
    s_lshl_b32 s{S_T3}, s{S_W}, 4
    s_add_u32 s51, s51, s{S_T3}
    s_lshl_b32 s51, s51, 13
    s_add_u32 s51, s51, s{S_T2}
    ''')
    dma_rows(RS_, 51, 50, True)
    a('s_branch P_RDONE')
    a.label('P_RB')
    a(f'''
    v_lshrrev_b32 v{T}, 3, {lane}
    v_mul_u32_u24 v{T}, 896, v{T}
    v_and_b32 v{T+2}, 7, {lane}
    v_lshl_add_u32 v{T}, v{T+2}, 4, v{T}
    s_lshl_b32 s51, s{H}, 8
    s_lshl_b32 s{S_T3}, s{S_W}, 6
    s_add_u32 s51, s51, s{S_T3}
    s_mul_i32 s51, s51, 896
    s_lshl_b32 s{S_T3}, s{CB}, 7
    s_add_u32 s51, s51, s{S_T3}
    ''')
    for i in range(8):
        a(f's_add_u32 m0, s50, {1024 * i}')
        a(f'buffer_load_dwordx4 v{T}, {RS_}, s51 offen lds')
        a(f's_add_u32 s51, s51, {8 * 896}')
    a.label('P_RDONE')
    dma_rows(LS, 48, 49, False)
    a(f's_add_u32 s48, s48, {64 * 8192}')
    a(f'''
    v_lshrrev_b32 v{T}, 5, {lane}
    v_and_b32 v{T+1}, 31, {lane}
    v_and_b32 v{T+2}, 15, {lane}
    v_xor_b32 v{T+2}, v{T+2}, v{T}
    v_lshlrev_b32 v{T+2}, 4, v{T+2}
    v_lshl_add_u32 v{T+2}, v{T+1}, 9, v{T+2}
    ''')
    for k in range(8): a(f'v_xor_b32 v{VA+k}, {32*k}, v{T+2}')
    a(f'''
    s_and_b32 s{S_T1}, s{S_W}, 1
    s_lshr_b32 s{S_T0}, s{S_W}, 1
    s_lshl_b32 s{S_T2}, s{CB}, 1
    s_add_u32 s{S_T2}, s{S_T2}, s{S_T1}
    s_cmp_eq_u32 s{M}, 1
    s_cbranch_scc1 P_OB
    s_lshl_b32 s{S_T3}, s{S_T2}, 5
    v_add_u32 v{T+2}, s{S_T3}, v{T+1}
    v_lshrrev_b32 v{V2}, 4, v{T+2}
    v_mul_u32_u24 v{V2}, 14336, v{V2}
    v_and_b32 v{T+3}, 15, v{T+2}
    v_lshl_add_u32 v{V2}, v{T+3}, 4, v{V2}
    ; WAT
    v_mul_u32_u24 v{T+3}, 586, v{T+2}
    v_lshrrev_b32 v{T+3}, 16, v{T+3}
    v_mul_u32_u24 v{T+4}, 112, v{T+3}
    v_sub_u32 v{T+4}, v{T+2}, v{T+4}
    v_lshrrev_b32 v{V1A}, 5, v{T+4}
    v_lshlrev_b32 v{V1A}, 1, v{V1A}
    v_bfe_u32 v{T+5}, v{T+4}, 2, 1
    v_add_u32 v{V1B}, v{V1A}, v{T+5}
    v_cmp_gt_u32 vcc, 96, v{T+4}
    v_cndmask_b32 v{V1A}, v{V1A}, v{V1B}, vcc
    v_mad_u32_u24 v{V1A}, v{T+3}, 7, v{V1A}
    v_mul_u32_u24 v{V1A}, 14336, v{V1A}
    v_bfe_u32 v{T+5}, v{T+4}, 3, 2
    v_lshlrev_b32 v{T+5}, 2, v{T+5}
    v_and_b32 v{V1B}, 3, v{T+4}
    v_add_u32 v{T+5}, v{T+5}, v{V1B}
    v_and_b32 v{V1B}, 15, v{T+4}
    v_cndmask_b32 v{T+5}, v{V1B}, v{T+5}, vcc
    v_lshl_add_u32 v{V1A}, v{T+5}, 4, v{V1A}
    v_lshl_add_u32 v{V1A}, v{T}, 9, v{V1A}
    v_add_u32 v{V1B}, 256, v{V1A}
    s_mul_i32 s52, s{H}, 401408
    s_lshl_b32 s{S_T3}, s{S_T0}, 10
    s_add_u32 s52, s52, s{S_T3}
    s_add_u32 s53, s52, {L.WAC}
    s_add_u32 s52, s52, {L.WAT}
    s_mov_b32 s54, 2048
    v_mov_b32 v{VSC}, {hex(f2u(1.4426950408889634/16))}
    s_branch P_ODONE
    ''')
    a.label('P_OB')
    a(f'''
    v_and_b32 v{T+2}, 1, v{T+1}
    v_lshrrev_b32 v{T+3}, 1, v{T+1}
    v_mul_u32_u24 v{V2}, 14336, v{T+2}
    v_lshl_add_u32 v{V2}, v{T+3}, 4, v{V2}
    s_lshl_b32 s53, s{S_T2}, 4
    s_add_u32 s53, s53, s{H}
    s_mul_i32 s53, s53, 28672
    s_lshl_b32 s{S_T3}, s{S_T0}, 10
    s_add_u32 s53, s53, s{S_T3}
    s_add_u32 s53, s53, {L.WBC}
    v_lshl_add_u32 v{V1A}, v{T+2}, 4, v{T+3}
    v_lshlrev_b32 v{V1A}, 4, v{V1A}
    v_lshl_add_u32 v{V1A}, v{T}, 10, v{V1A}
    v_add_u32 v{V1B}, 512, v{V1A}
    s_lshr_b32 s52, s{H}, 1
    s_mul_i32 s52, s52, 14
    s_add_u32 s52, s52, s{S_T2}
    s_lshl_b32 s52, s52, 1
    s_and_b32 s{S_T3}, s{H}, 1
    s_add_u32 s52, s52, s{S_T3}
    s_mul_i32 s52, s52, 28672
    s_lshl_b32 s{S_T3}, s{S_T0}, 11
    s_add_u32 s52, s52, s{S_T3}
    s_add_u32 s52, s52, {L.WBU}
    s_mov_b32 s54, 4096
    v_mov_b32 v{VSC}, 1.0
    ''')
    a.label('P_ODONE')
    a(f'''
    v_lshl_add_u32 v{V2}, v{T}, 9, v{V2}
    s_waitcnt vmcnt(8)
    s_barrier
    s_cmp_eq_u32 s{M}, 1
    s_cbranch_scc1 P_FB
    s_lshl_b32 s{S_T3}, s{S_T1}, 14
    s_add_u32 s{S_T3}, s{S_T3}, {LDS_R}
    ''')
    for k in range(8):
        a(f'v_add_u32 v{T+2}, s{S_T3}, v{VA+k}')
        a(f'ds_read_b128 v[{RF+4*k}:{RF+4*k+3}], v{T+2}')
        a(f'ds_read_b128 v[{RF+32+4*k}:{RF+32+4*k+3}], v{T+2} offset:256')
    a('s_branch P_FDONE')
    a.label('P_FB')
    a(f'''
    v_bfe_u32 v{T+2}, {lane}, 2, 2
    v_lshl_add_u32 v{T+2}, v{T}, 3, v{T+2}
    v_lshlrev_b32 v{T+2}, 7, v{T+2}
    v_bfe_u32 v{T+3}, {lane}, 4, 1
    v_lshl_add_u32 v{T+2}, v{T+3}, 5, v{T+2}
    v_and_b32 v{T+3}, 3, {lane}
    v_lshl_add_u32 v{T+2}, v{T+3}, 3, v{T+2}
    s_lshl_b32 s{S_T3}, s{S_T1}, 6
    s_add_u32 s{S_T3}, s{S_T3}, {LDS_R}
    v_add_u32 v{T+2}, s{S_T3}, v{T+2}
    ''')
    for ks in range(16):
        a(f'ds_read_b64_tr_b16 v[{RF+4*ks}:{RF+4*ks+1}], v{T+2} offset:{2048*ks}')
        a(f'ds_read_b64_tr_b16 v[{RF+4*ks+2}:{RF+4*ks+3}], v{T+2} offset:{2048*ks+512}')
    a.label('P_FDONE')
    a(f's_lshl_b32 s{S_T3}, s{S_T0}, 14')
    for k in range(8): a(f'v_add_u32 v{VA+k}, s{S_T3}, v{VA+k}')
    a('s_waitcnt lgkmcnt(0)')
    for j in range(7):
        buf = (j & 1) * 32768
        a(f's_waitcnt vmcnt({0 if j == 0 else 4})')
        a('s_barrier')
        if j < 6:
            a(f's_add_u32 s55, s49, {32768 - buf}')
            dma_rows(LS, 48, 55, False)
            a(f's_add_u32 s48, s48, {64 * 8192}')
        rd = lambda ks: f'ds_read_b128 v[{FR+4*(ks%4)}:{FR+4*(ks%4)+3}], v{VA+(ks&7)} offset:{buf+256*(ks>>3)}'
        for ks in range(3): a(rd(ks))
        c = f'v[{ACC}:{ACC+15}]'
        for ks in range(16):
            a(f's_waitcnt lgkmcnt({min(2, 15-ks)})')
            a(f'v_mfma_f32_32x32x16_bf16 {c}, v[{FR+4*(ks%4)}:{FR+4*(ks%4)+3}], v[{RF+4*ks}:{RF+4*ks+3}], {"0" if ks == 0 else c}')
            if ks + 3 < 16: a(rd(ks + 3))
        for i in range(8): a(f'v_pk_mul_f32 v[{ACC+2*i}:{ACC+2*i+1}], v[{ACC+2*i}:{ACC+2*i+1}], v[{VSC}:{VSC+1}] op_sel_hi:[1,0]')
        pos2 = {0: 0, 4: 1, 1: 2, 5: 3, 2: 4, 6: 5, 3: 6, 7: 7}
        for i in range(8):
            a(f'v_cvt_pk_bf16_f32 v{PK+i}, v{ACC+2*i}, v{ACC+2*i+1}')
            a(f'v_cvt_pk_bf16_f32 v{PK+8+pos2[i]}, v{ACC+2*i}, v{ACC+2*i+1}')
        a(f'''
        buffer_store_dwordx4 v[{PK}:{PK+3}], v{V1A}, {SRD}, s52 offen
        buffer_store_dwordx4 v[{PK+4}:{PK+7}], v{V1B}, {SRD}, s52 offen
        buffer_store_dwordx4 v[{PK+8}:{PK+11}], v{V2}, {SRD}, s53 offen
        buffer_store_dwordx4 v[{PK+12}:{PK+15}], v{V2}, {SRD}, s53 offen offset:256
        s_add_u32 s52, s52, s54
        s_add_u32 s53, s53, 2048
        ''')
    a('s_endpgm')
    a.label('P_MISC')
    X, U, Q = 24, 88, 96
    VI, VO, VS = 2, 3, 4
    a(f'''
    ; j = (i-28)*8 + x
    s_sub_u32 s21, s21, 28
    s_lshl_b32 s21, s21, 3
    s_add_u32 s21, s21, s3
    s_mov_b32 s40, s32
    s_and_b32 s41, s33, 0xffff
    s_mov_b32 s42, {2048*896}
    s_mov_b32 s43, 0x00020000
    s_mov_b32 s44, s34
    s_and_b32 s45, s35, 0xffff
    s_mov_b32 s46, 7168
    s_mov_b32 s47, 0x00020000
    v_lshrrev_b32 v{T}, 3, v0
    v_and_b32 v{T+1}, 7, v0
    v_mul_u32_u24 v{VI}, 896, v{T}
    v_lshl_add_u32 v{VI}, v{T+1}, 4, v{VI}
    v_lshlrev_b32 v{VO}, 9, v{T+1}
    v_lshl_add_u32 v{VO}, v{T}, 4, v{VO}
    v_lshlrev_b32 v{VS}, 6, v{T}
    s_mul_i32 s22, s21, {2*28672}
    s_add_u32 s23, s22, 28672
    ''')
    for sg in range(2):
        for c in range(7):
            r = X + 4 * (7 * sg + c)
            a(f'buffer_load_dwordx4 v[{r}:{r+3}], v{VI}, s[40:43], s{22+sg} offen offset:{128*c}')
    nS = (L.SENT_BYTES - 65536) // 32 // 4096 + 1
    a(f'''
    v_lshlrev_b32 v5, 4, v0
    v_mov_b32 v8, -1
    v_mov_b32 v9, -1
    v_mov_b32 v10, -1
    v_mov_b32 v11, -1
    v_mov_b64 v[12:13], 0
    v_mov_b64 v[14:15], 0
    s_mul_i32 s48, s21, {nS*4096}
    s_add_u32 s48, s48, {L.PB}
    ''')
    for i in range(nS):
        a(f'buffer_store_dwordx4 v[8:11], v5, {SRD}, s48 offen'); a('s_add_u32 s48, s48, 4096')
    assert L.PB + 32 * nS * 4096 <= L.FLAGS
    a(f's_lshl_b32 s48, s21, 14'); a(f's_add_u32 s48, s48, {L.FLAGS}')
    for i in range(4):
        a(f'buffer_store_dwordx4 v[12:15], v5, {SRD}, s48 offen'); a('s_add_u32 s48, s48, 4096')
    a(f's_mul_i32 s48, s21, 12288'); a(f's_add_u32 s48, s48, {L.ST + 64*L.ST_SZ}')
    for i in range(3):
        a(f'buffer_store_dwordx4 v[12:15], v5, {SRD}, s48 offen'); a('s_add_u32 s48, s48, 4096')
    a(f'''
    s_cmp_ge_u32 s21, 2
    s_cbranch_scc1 P_NOMEM
    s_mul_i32 s48, s21, {4*L.MEM_SZ}
    s_add_u32 s48, s48, {L.MEML}
    v_mul_u32_u24 v6, 896, v{T+1}
    v_lshl_add_u32 v6, v{T}, 4, v6
    buffer_load_dwordx4 v[{U}:{U+3}], v6, s[44:47], 0 offen
    buffer_load_dwordx4 v[{U+4}:{U+7}], v6, s[44:47], 0 offen offset:512
    s_add_u32 s49, s48, {L.MEM_SZ}
    ''')
    for i in range(5):
        a(f'buffer_store_dwordx4 v[8:11], v5, {SRD}, s49 offen'); a('s_add_u32 s49, s49, 4096')
    a(f'''
    v_cmp_gt_u32 vcc, 64, v0
    s_and_saveexec_b64 s[50:51], vcc
    s_cbranch_execz P_M1
    buffer_store_dwordx4 v[8:11], v5, {SRD}, s49 offen
    ''')
    a.label('P_M1')
    a(f'''
    s_mov_b64 exec, s[50:51]
    s_waitcnt vmcnt(0)
    ''')
    for i in range(8): a(f'v_min_u32 v{U+i}, -2, v{U+i}')
    a(f'''
    buffer_store_dwordx4 v[{U}:{U+3}], v5, {SRD}, s48 offen
    s_add_u32 s48, s48, 4096
    v_cmp_gt_u32 vcc, 192, v0
    s_and_saveexec_b64 s[50:51], vcc
    s_cbranch_execz P_M2
    buffer_store_dwordx4 v[{U+4}:{U+7}], v5, {SRD}, s48 offen
    ''')
    a.label('P_M2')
    a('s_mov_b64 exec, s[50:51]')
    a.label('P_NOMEM')
    a(f'''
    s_waitcnt vmcnt(0)
    s_add_u32 s22, s22, {L.XS}
    s_lshl_b32 s23, s21, 12
    s_add_u32 s23, s23, {L.ST}
    s_mov_b32 s36, 0x01010101
    s_mov_b32 s37, 0x01010101
    ''')
    for sg in range(2):
        for c in range(7):
            r = X + 4 * (7 * sg + c)
            a(f'buffer_store_dwordx4 v[{r}:{r+3}], v{VO}, {SRD}, s22 offen')
            a('s_add_u32 s22, s22, 4096')
            for i in range(4):
                a(f'v_lshlrev_b32 v{U+2*i}, 16, v{r+i}')
                a(f'v_and_b32 v{U+2*i+1}, 0xffff0000, v{r+i}')
            a(f'v_pk_add_f32 v[{Q}:{Q+1}], v[{U}:{U+1}], v[{U+2}:{U+3}]')
            a(f'v_pk_mul_f32 v[{Q+2}:{Q+3}], v[{U}:{U+1}], v[{U}:{U+1}]')
            a(f'v_pk_add_f32 v[{Q+4}:{Q+5}], v[{U+4}:{U+5}], v[{U+6}:{U+7}]')
            for i in (2, 4, 6): a(f'v_pk_fma_f32 v[{Q+2}:{Q+3}], v[{U+i}:{U+i+1}], v[{U+i}:{U+i+1}], v[{Q+2}:{Q+3}]')
            a(f'v_pk_add_f32 v[{Q}:{Q+1}], v[{Q}:{Q+1}], v[{Q+4}:{Q+5}]')
            a(f'v_add_f32 v{Q+6}, v{Q}, v{Q+1}')
            a(f'v_add_f32 v{Q+7}, v{Q+2}, v{Q+3}')
            for d in ('quad_perm:[1,0,3,2]', 'quad_perm:[2,3,0,1]', 'row_half_mirror'):
                for q in (Q + 6, Q + 7): a(f'v_add_f32_dpp v{q}, v{q}, v{q} {d} row_mask:0xf bank_mask:0xf')
            a('s_mov_b64 exec, s[36:37]')
            a(f'buffer_store_dwordx2 v[{Q+6}:{Q+7}], v{VS}, {SRD}, s23 offen offset:{2048*sg+8*c}')
            if c == 6: a(f'buffer_store_dwordx2 v[12:13], v{VS}, {SRD}, s23 offen offset:{2048*sg+56}')
            a('s_mov_b64 exec, -1')
    a.label('P_EXIT')
    a('s_endpgm')
    for d in a.deferred: a.raw(d)
    return kernel_wrap('prep_kernel', a.text(), vgpr=136, accum=136)

if __name__ == '__main__':
    open('prep.s', 'w').write('; @launch grid=(256,1,1) block=(256,1,1) lds=98304\n.amdgcn_target "amdgcn-amd-amdhsa--gfx950"\n' + prep())
```

```python
from common import *
lane = f'v{V_LANE}'
LOG2E = 1.4426950408889634
XBUF = 28672

def x_dma(a, s_src, s_buf, vl16):
    a(f's_lshl_b32 s{S_T0}, s{S_W}, 10')
    a(f's_add_u32 s{S_T1}, s{S_T0}, s{s_buf}')
    a(f's_add_u32 s{S_T0}, s{S_T0}, s{s_src}')
    for j in range(7):
        a(f's_mov_b32 m0, s{S_T1}')
        if j < 6: a(f's_add_u32 s{S_T1}, s{S_T1}, 4096')
        a(f'buffer_load_dwordx4 v{vl16}, {SRD}, s{S_T0} offen sc1 lds')
        if j < 6: a(f's_add_u32 s{S_T0}, s{S_T0}, 4096')

def perm32_v(a, dst, src, tmp):
    a(f'''
    v_and_b32 v{dst}, 0x13, v{src}
    v_and_b32 v{tmp}, 4, v{src}
    v_lshl_or_b32 v{dst}, v{tmp}, 1, v{dst}
    v_and_b32 v{tmp}, 8, v{src}
    v_lshrrev_b32 v{tmp}, 1, v{tmp}
    v_or_b32 v{dst}, v{dst}, v{tmp}
    ''')

def load_w_tr(a, W, dma, vtr, toff, hoff):
    def issue(k0, k1):
        for ks in range(k0, k1):
            for p in range(2):
                a(f's_add_u32 m0, s38, {(ks % 20) * 2048 + p * 1024}')
                a(dma(ks, p))
    def read(k0, k1):
        for ks in range(k0, k1):
            for t in range(2):
                for hf in range(2):
                    a(f'ds_read_b64_tr_b16 {R(W(t, ks) + 2 * hf, 2)}, v{vtr} offset:{(ks % 20) * 2048 + t * toff + hf * hoff}')
        a('s_waitcnt lgkmcnt(0)')
    issue(0, 20)
    a('s_waitcnt vmcnt(20)'); read(0, 10)
    issue(20, 28)
    a('s_waitcnt vmcnt(16)'); read(10, 20)
    a('s_waitcnt vmcnt(0)'); read(20, 28)
    a('s_barrier')

def tr_addr(a, dst, t0, t1, rowshift, gshift):
    a(f"""
    s_mul_i32 s38, s{S_W}, 40960
    v_lshrrev_b32 v{t0}, 5, {lane}
    v_bfe_u32 v{t1}, {lane}, 2, 2
    v_lshl_add_u32 v{dst}, v{t0}, 3, v{t1}
    v_lshlrev_b32 v{dst}, {rowshift}, v{dst}
    v_bfe_u32 v{t0}, {lane}, 4, 1
    v_lshl_add_u32 v{dst}, v{t0}, {gshift}, v{dst}
    v_and_b32 v{t0}, 1, {lane}
    v_lshl_add_u32 v{dst}, v{t0}, 4, v{dst}
    v_bfe_u32 v{t0}, {lane}, 1, 1
    v_lshl_add_u32 v{dst}, v{t0}, 3, v{dst}
    v_add_u32 v{dst}, s38, v{dst}
    """)

def role_U(a, stamps=False, D=16):
    st = Stamps(a, stamps)
    W = lambda t, ks: 256 + 112 * t + 4 * ks
    VL16, VFR, VZ, VONE, VST, VFL, VSW, VSR, VO, VFRB, VXNR = 2, 3, 4, 5, 6, 7, 8, 9, 10, 11, 12
    CS = 14
    TMP = 18
    S8 = 20
    FR = 28
    ACC = 48
    RR, NN = 80, 96
    TT = 112
    PK = 144
    XR = 160
    LDS_ST = 2 * XBUF
    S1, S2, S_L, S_S, S_BUF, S_PRE, S_UO, S_X, S_O, S_F = 21, 22, 23, 24, 25, 26, 27, 28, 29, 30
    a(f'''
    s_lshl_b32 s{S_T0}, s{S_ROLE}, 2
    s_add_u32 s{S_T0}, s{S_T0}, s{S_W}
    s_mul_i32 s{S_T2}, s{S_T0}, 57344
    s_add_u32 s{S_T2}, s{S_T2}, {L.WBU}
    v_lshlrev_b32 v{VL16}, 4, {lane}
    ''')
    load_frags(a, [W(t, ks) for t in range(2) for ks in range(28)], VL16, S_T2)
    a(f'''
    s_mul_i32 s{S_T1}, s{S_T0}, 4682
    s_lshr_b32 s{S_T1}, s{S_T1}, 16
    s_mul_i32 s{S_T2}, s{S_T1}, 14
    s_sub_u32 s{S_T2}, s{S_T0}, s{S_T2}
    s_mul_i32 s{S_UO}, s{S_T1}, {2*28672}
    s_lshl_b32 s{S_T2}, s{S_T2}, 11
    s_add_u32 s{S_UO}, s{S_UO}, s{S_T2}
    s_add_u32 s{S_UO}, s{S_UO}, {L.UX}
    s_lshl_b32 s31, s{S_T0}, 2
    s_add_u32 s31, s31, {L.flag(L.FL_U)}
    v_mov_b32 v{VZ}, 0
    v_mov_b32 v{VONE}, 1
    ''')
    perm32_v(a, VFR, V_LANE, TMP)
    a(f'''
    v_lshrrev_b32 v{TMP}, 5, {lane}
    v_lshlrev_b32 v{VFR}, 4, v{VFR}
    v_lshl_add_u32 v{VFR}, v{TMP}, 9, v{VFR}
    v_and_b32 v{TMP+1}, 31, {lane}
    v_lshlrev_b32 v{VST}, 6, v{TMP+1}
    v_lshl_add_u32 v{VST}, v{TMP}, 5, v{VST}
    v_min_u32 v{VFL}, 27, {lane}
    v_lshlrev_b32 v{VFL}, 2, v{VFL}
    s_lshl_b32 s{S_T0}, s{S_W}, 8
    s_add_u32 s{S_T0}, s{S_T0}, {LDS_ST}
    v_lshlrev_b32 v{VSW}, 2, v{TMP+1}
    v_add_u32 v{VSW}, s{S_T0}, v{VSW}
    v_lshlrev_b32 v{VSR}, 5, v{TMP}
    v_add_u32 v{VSR}, s{S_T0}, v{VSR}
    v_lshlrev_b32 v{VO}, 5, v{TMP+1}
    v_lshl_add_u32 v{VO}, v{TMP}, 4, v{VO}
    s_lshl_b32 s{S_T0}, s{S_W}, 4
    s_mov_b64 s[32:33], 0xffff
    s_lshl_b64 s[32:33], s[32:33], s{S_T0}
    v_mov_b32 v{FR}, 0x3f803f80
    v_mov_b32 v{FR+1}, 0x3f803f80
    v_mov_b32 v{FR+2}, 0x3f803f80
    v_mov_b32 v{FR+3}, 0x3f803f80
    s_waitcnt vmcnt(0)
    ''')
    for ks in range(28):
        for t in range(2):
            c = f'v[{ACC+16*t}:{ACC+16*t+15}]'
            a(f'v_mfma_f32_32x32x16_bf16 {c}, v[{FR}:{FR+3}], {R(W(t,ks),4)}, {"0" if ks == 0 else c}')
    a(f'''
    v_mov_b32 v{CS}, v{ACC}
    v_mov_b32 v{CS+2}, v{ACC+16}
    s_mov_b32 s{S1}, s{S_LAYER}
    s_mov_b32 s{S2}, s{S_LAYER}
    s_mov_b32 s{S_BUF}, 0
    s_mov_b32 s{S_PRE}, 0
    ''')
    loop, l2, go, end, nodma, nopre = [a.newlabel(x) for x in ('U_LOOP', 'U_L2', 'U_GO', 'U_END', 'U_NODMA', 'U_NOPRE')]
    a.flush(); a.label(loop)
    a(f'''
    s_add_u32 s{S_T0}, s{S2}, {D}
    s_min_u32 s{S_T0}, s{S_T0}, 64
    s_cmp_lt_u32 s{S1}, s{S_T0}
    s_cbranch_scc0 {l2}
    s_mov_b32 s{S_L}, 0
    s_mov_b32 s{S_S}, s{S1}
    s_add_u32 s{S1}, s{S1}, 2
    s_branch {go}
    ''')
    a.label(l2)
    a(f'''
    s_cmp_ge_u32 s{S2}, 64
    s_cbranch_scc1 {end}
    s_mov_b32 s{S_L}, 1
    s_mov_b32 s{S_S}, s{S2}
    s_add_u32 s{S2}, s{S2}, 2
    s_lshl_b32 s{S_F}, s{S_S}, 9
    s_add_u32 s{S_F}, s{S_F}, {L.flag(L.FL_X, 0)}
    ''')
    wait_flags(a, S_F, VFL, TMP)
    a.label(go)
    st()
    a(f'''
    s_lshl_b32 s{S_T2}, s{S_L}, 7
    s_add_u32 s{S_T2}, s{S_T2}, s{S_S}
    s_mul_i32 s{S_X}, s{S_T2}, {L.XN_SZ}
    s_add_u32 s{S_X}, s{S_X}, {L.XS}
    s_lshl_b32 s{S_T3}, s{S_T2}, 11
    s_add_u32 s{S_T3}, s{S_T3}, {L.ST}
    s_cmp_eq_u32 s{S_PRE}, 1
    s_cbranch_scc1 {nodma}
    ''')
    x_dma(a, S_X, S_BUF, VL16)
    a.label(nodma)
    a(f'''
    buffer_load_dwordx4 v[{S8}:{S8+3}], v{VST}, {SRD}, s{S_T3} offen sc1
    buffer_load_dwordx4 v[{S8+4}:{S8+7}], v{VST}, {SRD}, s{S_T3} offen offset:16 sc1
    v_add_u32 v{VFRB}, s{S_BUF}, v{VFR}
    s_lshl_b32 s{S_T0}, s{S_ROLE}, 10
    s_add_u32 s{S_T0}, s{S_T0}, s{S_BUF}
    v_add_u32 v{VXNR}, s{S_T0}, v{VL16}
    s_lshl_b32 s{S_T2}, s{S_L}, 6
    s_add_u32 s{S_T2}, s{S_T2}, s{S_S}
    s_mul_i32 s{S_O}, s{S_T2}, {L.UX_SZ}
    s_add_u32 s{S_O}, s{S_O}, s{S_UO}
    s_lshl_b32 s{S_F}, s{S_T2}, 9
    s_add_u32 s{S_F}, s{S_F}, s31
    s_mul_i32 s34, s{S_T2}, {L.XN_SZ}
    s_lshl_b32 s{S_T0}, s{S_ROLE}, 10
    s_add_u32 s34, s34, s{S_T0}
    s_add_u32 s34, s34, {L.XN}
    s_mov_b32 s{S_STEP}, s{S_T2}
    ''')
    rd = lambda ks: f'ds_read_b128 v[{FR+4*(ks%4)}:{FR+4*(ks%4)+3}], v{VFRB} offset:{1024*ks}'
    def mm(ks):
        out = []
        for t in range(2):
            c = f'v[{ACC+16*t}:{ACC+16*t+15}]'
            out.append(f'v_mfma_f32_32x32x16_bf16 {c}, v[{FR+4*(ks%4)}:{FR+4*(ks%4)+3}], {R(W(t,ks),4)}, {"0" if ks == 0 else c}')
        return out
    def chunk(k0, k1, side=()):
        side = list(side)
        for k in range(k0, min(k0 + 3, k1)): a(rd(k))
        for k in range(k0, k1):
            a(f's_waitcnt lgkmcnt({min(2, k1 - 1 - k)})')
            m = mm(k); a(m[0])
            for _ in range(4):
                if side: a(side.pop(0))
            a(m[1])
            if k + 3 < k1: a(rd(k + 3))
            for _ in range(3):
                if side: a(side.pop(0))
        assert not side, len(side)
    a('s_waitcnt vmcnt(8)'); a('s_barrier')
    chunk(0, 4)
    a('s_waitcnt vmcnt(6)'); a('s_barrier')
    chunk(4, 12)
    a('s_waitcnt vmcnt(0)'); a('s_barrier')
    a(f'''
    s_xor_b32 s{S_BUF}, s{S_BUF}, {XBUF}
    s_mov_b32 s{S_PRE}, 0
    s_add_u32 s{S_T0}, s{S2}, {D}
    s_min_u32 s{S_T0}, s{S_T0}, 64
    s_cmp_lt_u32 s{S1}, s{S_T0}
    s_cbranch_scc0 {nopre}
    s_mov_b32 s{S_PRE}, 1
    s_mul_i32 s{S_X}, s{S1}, {L.XN_SZ}
    s_add_u32 s{S_X}, s{S_X}, {L.XS}
    ''')
    x_dma(a, S_X, S_BUF, VL16)
    a.label(nopre)
    a(f'ds_read_b128 v[{XR}:{XR+3}], v{VXNR}')
    side = stats_ops(S8, TMP) + [f'v_mul_f32 v{S8+2}, v{S8}, v{S8+1}', f'v_sub_f32 v{S8+2}, 0, v{S8+2}']
    chunk(12, 16, side)
    a(f'ds_write2_b32 v{VSW}, v{S8}, v{S8+2} offset0:0 offset1:32')
    for j in range(2):
        for i in range(2):
            a(f'ds_read_b128 v[{RR+8*j+4*i}:{RR+8*j+4*i+3}], v{VSR} offset:{64*j+16*i}')
            a(f'ds_read_b128 v[{NN+8*j+4*i}:{NN+8*j+4*i+3}], v{VSR} offset:{128+64*j+16*i}')
    U8 = XR + 4
    side = []
    for i in range(4):
        side += [f'v_lshlrev_b32 v{U8+2*i}, 16, v{XR+i}', f'v_and_b32 v{U8+2*i+1}, 0xffff0000, v{XR+i}',
                 f'v_pk_fma_f32 v[{U8+2*i}:{U8+2*i+1}], v[{U8+2*i}:{U8+2*i+1}], v[{S8}:{S8+1}], v[{S8+2}:{S8+3}] op_sel_hi:[1,0,0]',
                 f'v_cvt_pk_bf16_f32 v{XR+i}, v{U8+2*i}, v{U8+2*i+1}']
    side += ['s_mov_b64 exec, s[32:33]\n' + f'buffer_store_dwordx4 v[{XR}:{XR+3}], v{VL16}, {SRD}, s34 offen sc1\n' + 's_mov_b64 exec, -1']
    for t in range(2):
        for i in range(0, 16, 2):
            side.append(f'v_pk_mul_f32 v[{TT+16*t+i}:{TT+16*t+i+1}], v[{NN+i}:{NN+i+1}], v[{CS+2*t}:{CS+2*t+1}] op_sel_hi:[1,0]')
    chunk(16, 28, side)
    for t in range(2):
        for i in range(0, 16, 2):
            c = ACC + 16 * t + i
            a(f'v_pk_fma_f32 v[{c}:{c+1}], v[{c}:{c+1}], v[{RR+i}:{RR+i+1}], v[{TT+16*t+i}:{TT+16*t+i+1}]')
            a(f'v_cvt_pk_bf16_f32 v{PK+8*t+i//2}, v{c}, v{c+1}')
            if i in (6, 14):
                p = PK + 8 * t + (4 if i == 14 else 0)
                a(f'buffer_store_dwordx4 v[{p}:{p+3}], v{VO}, {SRD}, s{S_O} offen offset:{1024 if i == 14 else 0} sc1')
        if t == 0: a(f's_add_u32 s{S_O}, s{S_O}, 28672')
    st()
    signal(a, S_F, VZ, VONE)
    st()
    st.flush(4 << 20, TMP, TMP + 1)
    a(f's_branch {loop}')
    a.label(end)
    a('s_endpgm')

def role_F1(a, stamps=False, mode='sc1'):
    st = Stamps(a, stamps)
    W = lambda t, ks: 256 + 112 * t + 4 * ks
    VL16, VZ, VONE, VST, VFL, VFRB = 2, 4, 5, 6, 7, 11
    TMP = 18; S8 = 20; FR = 28
    ACC = 48
    CS = 80
    EX = 112
    PK = 120
    S_BUF, S_X, S_ST, S_O, S_FI, S_FO = 25, 26, 27, 28, 29, 30
    a(f'''
    s_lshl_b32 s{S_T0}, s{S_ROLE}, 2
    s_add_u32 s{S_T0}, s{S_T0}, s{S_W}
    s_load_dwordx4 s[48:51], s[0:1], 64
    v_lshlrev_b32 v{VL16}, 4, {lane}
    v_lshrrev_b32 v{TMP}, 2, {lane}
    v_mul_u32_u24 v{EX}, 3584, v{TMP}
    v_and_b32 v{TMP}, 3, {lane}
    v_lshl_add_u32 v{EX}, v{TMP}, 4, v{EX}
    s_lshl_b32 s{S_T2}, s{S_T0}, 6
    s_waitcnt lgkmcnt(0)
    s_mov_b32 s40, s48
    s_and_b32 s41, s49, 0xffff
    s_mov_b32 s42, {448*3584}
    s_mov_b32 s43, 0x00020000
    s_mov_b32 s44, s50
    s_and_b32 s45, s51, 0xffff
    s_mov_b32 s46, {448*3584}
    s_mov_b32 s47, 0x00020000
    ''')
    tr_addr(a, EX + 1, TMP, TMP + 1, 6, 10)
    load_w_tr(a, W, lambda ks, p: f'buffer_load_dwordx4 v{EX}, s[{40+4*p}:{43+4*p}], s{S_T2} offen lds' + (f'\ns_add_u32 s{S_T2}, s{S_T2}, {16*3584}' if p else ''), EX + 1, 32, 256)
    a(f'''
    s_mul_i32 s{S_O}, s{S_LAYER}, {64*L.HB_SZ}
    s_lshl_b32 s{S_T1}, s{S_T0}, 11
    s_add_u32 s{S_O}, s{S_O}, s{S_T1}
    s_add_u32 s{S_O}, s{S_O}, {L.HB}
    s_lshl_b32 s{S_T1}, s{S_LAYER}, 15
    s_add_u32 s{S_FI}, s{S_T1}, {L.flag(L.FL_P)}
    s_lshl_b32 s{S_FO}, s{S_T0}, 2
    s_add_u32 s{S_FO}, s{S_FO}, s{S_T1}
    s_add_u32 s{S_FO}, s{S_FO}, {L.flag(L.FL_H)}
    s_mul_i32 s{S_X}, s{S_LAYER}, {128*L.XN_SZ}
    s_add_u32 s{S_X}, s{S_X}, {L.XS + 64*L.XN_SZ}
    s_lshl_b32 s{S_ST}, s{S_LAYER}, 18
    s_add_u32 s{S_ST}, s{S_ST}, {L.ST + 64*L.ST_SZ}
    v_mov_b32 v{VZ}, 0
    v_mov_b32 v{VONE}, 1
    v_lshrrev_b32 v{TMP}, 5, {lane}
    v_and_b32 v{TMP+1}, 31, {lane}
    v_lshlrev_b32 v{VST}, 6, v{TMP+1}
    v_lshl_add_u32 v{VST}, v{TMP}, 5, v{VST}
    v_min_u32 v{VFL}, 27, {lane}
    v_lshlrev_b32 v{VFL}, 2, v{VFL}
    v_mov_b32 v{FR}, 0x3f803f80
    v_mov_b32 v{FR+1}, 0x3f803f80
    v_mov_b32 v{FR+2}, 0x3f803f80
    v_mov_b32 v{FR+3}, 0x3f803f80
    s_mov_b32 s{S_BUF}, 0
    s_mov_b32 s{S_STEP}, 0
    s_waitcnt vmcnt(0)
    ''')
    for ks in range(28):
        for t in range(2):
            c = f'v[{CS+16*t}:{CS+16*t+15}]'
            a(f'v_mfma_f32_32x32x16_bf16 {c}, {R(W(t,ks),4)}, v[{FR}:{FR+3}], {"0" if ks == 0 else c}')
    def body(mode):
        loop = a.newlabel('F1_LOOP')
        a.flush(); a.label(loop)
        wait_flags(a, S_FI, VFL, TMP)
        st()
        x_dma(a, S_X, S_BUF, VL16)
        a(f'''
        buffer_load_dwordx4 v[{S8}:{S8+3}], v{VST}, {SRD}, s{S_ST} offen sc1
        buffer_load_dwordx4 v[{S8+4}:{S8+7}], v{VST}, {SRD}, s{S_ST} offen offset:16 sc1
        v_add_u32 v{VFRB}, s{S_BUF}, v{VL16}
        s_xor_b32 s{S_BUF}, s{S_BUF}, {XBUF}
        s_add_u32 s{S_X}, s{S_X}, {L.XN_SZ}
        s_add_u32 s{S_ST}, s{S_ST}, {L.ST_SZ}
        s_add_u32 s{S_FI}, s{S_FI}, 512
        ''')
        def run(seq, side=(), per=5):
            side = list(side); n = len(seq)
            rd = lambda i: f'ds_read_b128 v[{FR+4*(i%4)}:{FR+4*(i%4)+3}], v{VFRB} offset:{1024*seq[i][0]}'
            for i in range(min(3, n)): a(rd(i))
            for i, (ks, tiles) in enumerate(seq):
                a(f's_waitcnt lgkmcnt({min(2, n - 1 - i)})')
                for j, t in enumerate(tiles):
                    c = f'v[{ACC+16*t}:{ACC+16*t+15}]'
                    a(f'v_mfma_f32_32x32x16_bf16 {c}, {R(W(t,ks),4)}, v[{FR+4*(i%4)}:{FR+4*(i%4)+3}], {"0" if ks == 0 else c}')
                    if j == len(tiles) - 1 and i + 3 < n: a(rd(i + 3))
                    budget = per
                    while side and budget > 0:
                        s_ = side.pop(0); a(s_); budget -= 2 if s_.startswith(('v_exp', 'v_rcp')) else 1
            return side
        sto = stats_ops(S8, TMP) + [f'v_sub_f32 v{S8+2}, 0, v{S8+1}', f'v_mul_f32 v{S8+4}, {hex(f2u(-LOG2E))}, v{S8}', f'v_mul_f32 v{S8+6}, v{S8}, v{S8}']
        def epi(t):
            c = ACC + 16 * t; o = []
            for i in range(0, 16, 2):
                o.append(f'v_pk_fma_f32 v[{c+i}:{c+i+1}], v[{CS+16*t+i}:{CS+16*t+i+1}], v[{S8+2}:{S8+3}], v[{c+i}:{c+i+1}] op_sel_hi:[1,0,1]')
            for i in range(0, 8, 2): o.append(f'v_pk_mul_f32 v[{EX+i}:{EX+i+1}], v[{c+i}:{c+i+1}], v[{S8+4}:{S8+5}] op_sel_hi:[1,0]')
            for i in range(8): o.append(f'v_exp_f32 v{EX+i}, v{EX+i}')
            for i in range(0, 8, 2): o.append(f'v_pk_mul_f32 v[{c+i}:{c+i+1}], v[{c+i}:{c+i+1}], v[{c+8+i}:{c+9+i}]')
            for i in range(0, 8, 2): o.append(f'v_pk_add_f32 v[{EX+i}:{EX+i+1}], v[{EX+i}:{EX+i+1}], 1.0 op_sel_hi:[1,0]')
            for i in range(8): o.append(f'v_rcp_f32 v{EX+i}, v{EX+i}')
            for i in range(0, 8, 2): o.append(f'v_pk_mul_f32 v[{c+i}:{c+i+1}], v[{c+i}:{c+i+1}], v[{S8+6}:{S8+7}] op_sel_hi:[1,0]')
            for i in range(0, 8, 2): o.append(f'v_pk_mul_f32 v[{c+i}:{c+i+1}], v[{c+i}:{c+i+1}], v[{EX+i}:{EX+i+1}]')
            for i in range(0, 8, 2): o.append(f'v_cvt_pk_bf16_f32 v{PK+4*t+i//2}, v{c+i}, v{c+i+1}')
            o.append(f'buffer_store_dwordx4 v[{PK+4*t}:{PK+4*t+3}], v{VL16}, {SRD}, s{S_O} offen offset:{1024*t} {mode}')
            return o
        a('s_waitcnt vmcnt(8)'); a('s_barrier')
        run([(k, (0, 1)) for k in range(0, 4)])
        a('s_waitcnt vmcnt(6)'); a('s_barrier')
        run([(k, (0, 1)) for k in range(4, 12)])
        a('s_waitcnt vmcnt(0)'); a('s_barrier')
        left = run([(k, (0,)) for k in range(12, 28)] + [(k, (1,)) for k in range(12, 15)], sto, per=3); assert not left
        left = run([(k, (1,)) for k in range(15, 28)], epi(0))
        for s_ in left + epi(1): a(s_)
        st()
        signal(a, S_FO, VZ, VONE, mode)
        st()
        st.flush(10 << 20, TMP, TMP + 1)
        a(f'''
        s_add_u32 s{S_O}, s{S_O}, {L.HB_SZ}
        s_add_u32 s{S_FO}, s{S_FO}, 512
        s_add_u32 s{S_STEP}, s{S_STEP}, 1
        s_cmp_lt_u32 s{S_STEP}, 64
        s_cbranch_scc1 {loop}
        s_endpgm
        ''')
    mode_split(a, body, TMP)

PH, PQ, PT, PW = 544, 1184, 4736, 9472
def red_setup(a, VRW, VRR, VXO, VSO, TMP, base=0):
    a(f'''
    v_lshrrev_b32 v{TMP}, 5, {lane}
    v_mul_u32_u24 v{VRW}, {PH}, v{TMP}
    v_and_b32 v{TMP}, 31, {lane}
    v_lshl_add_u32 v{VRW}, v{TMP}, 4, v{VRW}
    s_mul_i32 s{S_T0}, s{S_W}, {PW}
    s_add_u32 s{S_T0}, s{S_T0}, {base}
    v_add_u32 v{VRW}, s{S_T0}, v{VRW}
    v_and_b32 v{TMP}, 1, {lane}
    v_mul_u32_u24 v{VRR}, {PH}, v{TMP}
    v_bfe_u32 v{TMP}, {lane}, 1, 1
    v_mul_u32_u24 v{TMP}, {2*PQ}, v{TMP}
    v_add_u32 v{VRR}, v{VRR}, v{TMP}
    v_bfe_u32 v{TMP}, {lane}, 2, 1
    v_mul_u32_u24 v{TMP}, {PT}, v{TMP}
    v_add_u32 v{VRR}, v{VRR}, v{TMP}
    v_lshrrev_b32 v{TMP}, 3, {lane}
    s_lshl_b32 s{S_T0}, s{S_W}, 3
    v_add_u32 v{TMP}, s{S_T0}, v{TMP}
    v_lshl_add_u32 v{VRR}, v{TMP}, 4, v{VRR}
    v_add_u32 v{VRR}, {base}, v{VRR}
    v_and_b32 v{VXO}, 7, {lane}
    s_lshl_b32 s{S_T0}, s{S_ROLE}, 3
    v_add_u32 v{VXO}, s{S_T0}, v{VXO}
    v_lshlrev_b32 v{VXO}, 9, v{VXO}
    v_lshl_add_u32 v{VXO}, v{TMP}, 4, v{VXO}
    v_lshlrev_b32 v{VSO}, 6, v{TMP}
    v_add_u32 v{VSO}, s{S_T0}, v{VSO}
    s_mov_b32 s36, 0x01010101
    s_mov_b32 s37, 0x01010101
    ''')

def red_epilogue(a, ACC, VRW, VRR, XRES, T, store_x, store_st):
    for t in range(2):
        for rq in range(4):
            a(f'ds_write_b128 v{VRW}, v[{ACC+16*t+4*rq}:{ACC+16*t+4*rq+3}] offset:{t*PT+rq*PQ}')
    X = ACC
    a('s_waitcnt lgkmcnt(0)')
    a('s_barrier')
    for w in range(4):
        for j in range(2):
            a(f'ds_read_b128 v[{T+8*w+4*j}:{T+8*w+4*j+3}], v{VRR} offset:{w*PW+j*PQ}')
    for i in range(4):
        a(f'v_lshlrev_b32 v{X+2*i}, 16, v{XRES+i}')
        a(f'v_and_b32 v{X+2*i+1}, 0xffff0000, v{XRES+i}')
    for w in range(4):
        a(f's_waitcnt lgkmcnt({6-2*w})')
        for i in range(0, 8, 2):
            a(f'v_pk_add_f32 v[{X+i}:{X+i+1}], v[{X+i}:{X+i+1}], v[{T+8*w+i}:{T+8*w+i+1}]')
    for i in range(4): a(f'v_cvt_pk_bf16_f32 v{XRES+i}, v{X+2*i}, v{X+2*i+1}')
    store_x(XRES)
    if store_st is None: return
    for i in range(4):
        a(f'v_lshlrev_b32 v{X+2*i}, 16, v{XRES+i}')
        a(f'v_and_b32 v{X+2*i+1}, 0xffff0000, v{XRES+i}')
    a(f'v_pk_add_f32 v[{T}:{T+1}], v[{X}:{X+1}], v[{X+2}:{X+3}]')
    a(f'v_pk_mul_f32 v[{T+2}:{T+3}], v[{X}:{X+1}], v[{X}:{X+1}]')
    a(f'v_pk_add_f32 v[{T+4}:{T+5}], v[{X+4}:{X+5}], v[{X+6}:{X+7}]')
    for i in (2, 4, 6): a(f'v_pk_fma_f32 v[{T+2}:{T+3}], v[{X+i}:{X+i+1}], v[{X+i}:{X+i+1}], v[{T+2}:{T+3}]')
    a(f'v_pk_add_f32 v[{T}:{T+1}], v[{T}:{T+1}], v[{T+4}:{T+5}]')
    a(f'v_add_f32 v{T}, v{T}, v{T+1}')
    a(f'v_add_f32 v{T+1}, v{T+2}, v{T+3}')
    for d in ('quad_perm:[1,0,3,2]', 'quad_perm:[2,3,0,1]', 'row_half_mirror'):
        for r in (T, T + 1): a(f'v_add_f32_dpp v{r}, v{r}, v{r} {d} row_mask:0xf bank_mask:0xf')
    a('s_mov_b64 exec, s[36:37]')
    store_st(T)
    a('s_mov_b64 exec, -1')

def role_F2(a, stamps=False, mode='sc1'):
    st = Stamps(a, stamps)
    W = lambda t, kk: 256 + 112 * t + 4 * kk
    VL16, VZ, VONE, VFL, VRW, VRR, VXO, VSO, VOUT = 2, 4, 5, 7, 8, 9, 10, 11, 12
    TMP = 18; XRES = 20; ACC = 48; T = 80; H = 112
    S_H, S_XI, S_XO, S_SO, S_FI, S_FO = 25, 26, 27, 28, 29, 30
    OSRD = 's[40:43]'
    a(f'''
    s_load_dwordx4 s[48:51], s[0:1], 80
    s_lshl_b32 s{S_T0}, s{S_ROLE}, 2
    s_add_u32 s{S_T0}, s{S_T0}, s{S_W}
    v_lshlrev_b32 v{VL16}, 4, {lane}
    v_lshrrev_b32 v{TMP}, 3, {lane}
    v_mul_u32_u24 v{H}, 896, v{TMP}
    v_and_b32 v{TMP}, 7, {lane}
    v_lshl_add_u32 v{H}, v{TMP}, 4, v{H}
    s_mul_i32 s{S_T2}, s{S_W}, {448*896}
    s_lshl_b32 s{S_T1}, s{S_ROLE}, 7
    s_add_u32 s{S_T2}, s{S_T2}, s{S_T1}
    s_waitcnt lgkmcnt(0)
    s_mov_b32 s44, s48
    s_and_b32 s45, s49, 0xffff
    s_mov_b32 s46, {1792*896}
    s_mov_b32 s47, 0x00020000
    s_mov_b32 s40, s50
    s_and_b32 s41, s51, 0xffff
    s_mov_b32 s42, {2048*896}
    s_mov_b32 s43, 0x00020000
    ''')
    tr_addr(a, H + 1, TMP, TMP + 1, 7, 5)
    load_w_tr(a, W, lambda ks, p: f'buffer_load_dwordx4 v{H}, s[44:47], s{S_T2} offen lds\ns_add_u32 s{S_T2}, s{S_T2}, {8*896}', H + 1, 64, 512)
    a(f'''
    s_mul_i32 s{S_H}, s{S_LAYER}, {64*L.HB_SZ}
    s_mul_i32 s{S_T1}, s{S_W}, 28672
    s_add_u32 s{S_H}, s{S_H}, s{S_T1}
    s_add_u32 s{S_H}, s{S_H}, {L.HB}
    s_lshl_b32 s{S_T1}, s{S_LAYER}, 15
    s_mul_i32 s{S_FI}, s{S_W}, 56
    s_add_u32 s{S_FI}, s{S_FI}, s{S_T1}
    s_add_u32 s{S_FI}, s{S_FI}, {L.flag(L.FL_H)}
    s_lshl_b32 s{S_FO}, s{S_T0}, 2
    s_add_u32 s{S_FO}, s{S_FO}, s{S_T1}
    s_add_u32 s{S_FO}, s{S_FO}, {L.flag(L.FL_X)}
    s_mul_i32 s{S_XI}, s{S_LAYER}, {128*L.XN_SZ}
    s_add_u32 s{S_XI}, s{S_XI}, {L.XS + 64*L.XN_SZ}
    s_mov_b32 s{S_XO}, {L.XS + 128*L.XN_SZ}
    s_mov_b32 s{S_SO}, {L.ST + 128*L.ST_SZ}
    v_mov_b32 v{VZ}, 0
    v_mov_b32 v{VONE}, 1
    v_min_u32 v{VFL}, 13, {lane}
    v_lshlrev_b32 v{VFL}, 2, v{VFL}
    s_mov_b32 s{S_STEP}, 0
    s_mov_b32 s35, 0
    ''')
    red_setup(a, VRW, VRR, VXO, VSO, TMP)
    a(f'''
    v_mul_u32_u24 v{VOUT}, 896, v{TMP}
    v_and_b32 v{TMP}, 7, {lane}
    v_add_u32 v{TMP}, s{S_T0}, v{TMP}
    v_lshl_add_u32 v{VOUT}, v{TMP}, 4, v{VOUT}
    ''')
    loop, fin, nxt = a.newlabel('F2_LOOP'), a.newlabel('F2_FIN'), a.newlabel('F2_NXT')
    a.flush(); a.label(loop)
    wait_flags(a, S_FI, VFL, TMP)
    st()
    a(f's_mov_b32 s{S_T2}, s{S_H}')
    load_frags(a, [H + 4 * kk for kk in range(28)], VL16, S_T2, 'sc1')
    a(f'buffer_load_dwordx4 v[{XRES}:{XRES+3}], v{VXO}, {SRD}, s{S_XI} offen sc1')
    for kk in range(28):
        a(f's_waitcnt vmcnt({28-kk})')
        for t in range(2):
            c = f'v[{ACC+16*t}:{ACC+16*t+15}]'
            a(f'v_mfma_f32_32x32x16_bf16 {c}, {R(W(t,kk),4)}, v[{H+4*kk}:{H+4*kk+3}], {"0" if kk == 0 else c}')
    a('s_waitcnt vmcnt(0)')
    a(f's_cmp_eq_u32 s{S_LAYER}, 1')
    def sx(r):
        a(f's_cbranch_scc1 {fin}')
        a(f'buffer_store_dwordx4 v[{r}:{r+3}], v{VXO}, {SRD}, s{S_XO} offen sc1')
    red_epilogue(a, ACC, VRW, VRR, XRES, T, sx, lambda r: a(f'buffer_store_dwordx2 v[{r}:{r+1}], v{VSO}, {SRD}, s{S_SO} offen sc1'))
    st()
    signal(a, S_FO, VZ, VONE, 'sc1')
    a(f's_branch {nxt}')
    a.label(fin)
    a(f'buffer_store_dwordx4 v[{XRES}:{XRES+3}], v{VOUT}, {OSRD}, s35 offen')
    if stamps: st.n -= 1; st()
    a.label(nxt)
    st()
    st.flush(12 << 20, TMP, TMP + 1)
    a(f'''
    s_barrier
    s_add_u32 s35, s35, {32*896}
    s_add_u32 s{S_H}, s{S_H}, {L.HB_SZ}
    s_add_u32 s{S_XI}, s{S_XI}, {L.XN_SZ}
    s_add_u32 s{S_XO}, s{S_XO}, {L.XN_SZ}
    s_add_u32 s{S_SO}, s{S_SO}, {L.ST_SZ}
    s_add_u32 s{S_FI}, s{S_FI}, 512
    s_add_u32 s{S_FO}, s{S_FO}, 512
    s_add_u32 s{S_STEP}, s{S_STEP}, 1
    s_cmp_lt_u32 s{S_STEP}, 64
    s_cbranch_scc1 {loop}
    s_endpgm
    ''')

def role_PU(a, stamps=False, mode='sc1'):
    st = Stamps(a, stamps)
    VL16, VZ, VONE, VFU, VRW, VRR, VXO, VSO, VUX, VUM, VFT, VFM = 2, 4, 5, 7, 8, 9, 10, 11, 12, 13, 14, 15
    TMP = 18; XRES = 20; ACC = 48; T = 80
    UF = lambda t, k: 112 + 40 * t + 4 * k
    PF = lambda k: 192 + 4 * k
    S_UX, S_UM, S_PX, S_XI, S_XO, S_SO, S_FL, S_FO = 21, 22, 23, 24, 25, 26, 27, 28
    a(f'''
    v_lshlrev_b32 v{VL16}, 4, {lane}
    v_mov_b32 v{VZ}, 0
    v_mov_b32 v{VONE}, 1
    ''')
    red_setup(a, VRW, VRR, VXO, VSO, TMP)
    perm32_v(a, VUX, V_LANE, TMP)
    a(f'''
    v_and_b32 v{TMP}, 1, v{VUX}
    v_lshrrev_b32 v{TMP+1}, 1, v{VUX}
    v_lshrrev_b32 v{VFU}, 5, {lane}
    v_lshl_add_u32 v{VUX}, v{TMP}, 4, v{TMP+1}
    v_lshlrev_b32 v{VUX}, 5, v{VUX}
    v_lshl_add_u32 v{VUX}, v{VFU}, 4, v{VUX}
    v_lshl_add_u32 v{VUM}, v{VFU}, 4, v{TMP+1}
    v_lshlrev_b32 v{VUM}, 4, v{VUM}
    v_lshl_add_u32 v{VUM}, v{TMP}, 10, v{VUM}
    v_and_b32 v{VFU}, 1, {lane}
    v_mul_u32_u24 v{VFU}, 14, v{VFU}
    v_bfe_u32 v{TMP}, {lane}, 1, 1
    v_add_u32 v{VFU}, v{VFU}, v{TMP}
    s_mul_i32 s{S_T0}, s{S_W}, 28
    s_lshl_b32 s{S_T1}, s{S_ROLE}, 1
    s_add_u32 s{S_T0}, s{S_T0}, s{S_T1}
    v_add_u32 v{VFU}, s{S_T0}, v{VFU}
    v_lshlrev_b32 v{VFU}, 2, v{VFU}
    v_add_u32 v{VFU}, {L.flag(L.FL_U)}, v{VFU}
    ; T flags: 16w + (l&15)
    v_and_b32 v{VFT}, 15, {lane}
    s_lshl_b32 s{S_T0}, s{S_W}, 4
    v_add_u32 v{VFT}, s{S_T0}, v{VFT}
    v_lshlrev_b32 v{VFT}, 2, v{VFT}
    v_add_u32 v{VFT}, {L.flag(L.FL_T)}, v{VFT}
    v_and_b32 v{VFM}, 1, {lane}
    v_add_u32 v{VFM}, s{S_T1}, v{VFM}
    v_lshlrev_b32 v{VFM}, 2, v{VFM}
    v_add_u32 v{VFM}, s{S_W}, v{VFM}
    v_lshlrev_b32 v{VFM}, 2, v{VFM}
    v_add_u32 v{VFM}, {L.flag(L.FL_UM)}, v{VFM}
    s_lshl_b32 s{S_FL}, s{S_LAYER}, 15
    s_lshl_b32 s{S_T0}, s{S_ROLE}, 2
    s_add_u32 s{S_T0}, s{S_T0}, s{S_W}
    s_lshl_b32 s{S_FO}, s{S_T0}, 2
    s_add_u32 s{S_FO}, s{S_FO}, s{S_FL}
    s_add_u32 s{S_FO}, s{S_FO}, {L.flag(L.FL_P)}
    s_mul_i32 s{S_UX}, s{S_LAYER}, {64*L.UX_SZ}
    s_mul_i32 s{S_T0}, s{S_W}, {4*28672}
    s_add_u32 s{S_UX}, s{S_UX}, s{S_T0}
    s_lshl_b32 s{S_T0}, s{S_ROLE}, 12
    s_add_u32 s{S_UX}, s{S_UX}, s{S_T0}
    s_add_u32 s{S_UX}, s{S_UX}, {L.UX}
    s_mul_i32 s{S_UM}, s{S_LAYER}, {64*L.UM_SZ}
    s_lshl_b32 s{S_T0}, s{S_ROLE}, 14
    s_add_u32 s{S_UM}, s{S_UM}, s{S_T0}
    s_lshl_b32 s{S_T0}, s{S_W}, 11
    s_add_u32 s{S_UM}, s{S_UM}, s{S_T0}
    s_add_u32 s{S_UM}, s{S_UM}, {L.UM}
    s_mul_i32 s{S_PX}, s{S_LAYER}, {64*L.PX_SZ}
    s_mul_i32 s{S_T0}, s{S_W}, 10240
    s_add_u32 s{S_PX}, s{S_PX}, s{S_T0}
    s_add_u32 s{S_PX}, s{S_PX}, {L.PX}
    s_mul_i32 s{S_XI}, s{S_LAYER}, {128*L.XN_SZ}
    s_add_u32 s{S_XI}, s{S_XI}, {L.XS}
    s_add_u32 s{S_XO}, s{S_XI}, {64*L.XN_SZ}
    s_lshl_b32 s{S_SO}, s{S_LAYER}, 18
    s_add_u32 s{S_SO}, s{S_SO}, {L.ST + 64*L.ST_SZ}
    s_mov_b32 s{S_STEP}, 0
    ''')
    def body(mode):
        loop = a.newlabel('PU_LOOP')
        a.flush(); a.label(loop)
        wait_flags(a, S_FL, VFU, TMP)
        a(f's_mov_b32 s{S_T2}, s{S_UX}')
        for hh in range(4):
            for t in range(2):
                for kh in range(2):
                    r = UF(t, 2 * hh + kh)
                    a(f'buffer_load_dwordx4 v[{r}:{r+3}], v{VUX}, {SRD}, s{S_T2} offen offset:{2048*t+1024*kh} sc1')
            if hh < 3: a(f's_add_u32 s{S_T2}, s{S_T2}, 28672')
        a(f'buffer_load_dwordx4 v[{XRES}:{XRES+3}], v{VXO}, {SRD}, s{S_XI} offen sc1')
        st()
        wait_flags(a, S_FL, VFT, TMP)
        st()
        a(f's_mov_b32 s{S_T2}, s{S_PX}')
        load_frags(a, [PF(k) for k in range(10)], VL16, S_T2, 'sc1')
        def mm(k):
            for t in range(2):
                c = f'v[{ACC+16*t}:{ACC+16*t+15}]'
                a(f'v_mfma_f32_32x32x16_bf16 {c}, v[{UF(t,k)}:{UF(t,k)+3}], v[{PF(k)}:{PF(k)+3}], {"0" if k == 0 else c}')
        for k in range(8):
            a(f's_waitcnt vmcnt({9-k})'); mm(k)
        wait_flags(a, S_FL, VFM, TMP)
        st()
        a(f's_add_u32 s{S_T2}, s{S_UM}, 8192')
        for kk2 in range(2):
            for t in range(2):
                r = UF(t, 8 + kk2)
                a(f'buffer_load_dwordx4 v[{r}:{r+3}], v{VUM}, {SRD}, s{S_UM if t == 0 else S_T2} offen offset:{512*kk2} sc1')
        a('s_waitcnt vmcnt(2)'); mm(8)
        a('s_waitcnt vmcnt(0)'); mm(9)
        red_epilogue(a, ACC, VRW, VRR, XRES, T,
                     lambda r: a(f'buffer_store_dwordx4 v[{r}:{r+3}], v{VXO}, {SRD}, s{S_XO} offen {mode}'),
                     lambda r: a(f'buffer_store_dwordx2 v[{r}:{r+1}], v{VSO}, {SRD}, s{S_SO} offen {mode}'))
        st()
        signal(a, S_FO, VZ, VONE, mode)
        st()
        st.flush(8 << 20, TMP, TMP + 1)
        a(f'''
        s_barrier
        s_add_u32 s{S_UX}, s{S_UX}, {L.UX_SZ}
        s_add_u32 s{S_UM}, s{S_UM}, {L.UM_SZ}
        s_add_u32 s{S_PX}, s{S_PX}, {L.PX_SZ}
        s_add_u32 s{S_XI}, s{S_XI}, {L.XN_SZ}
        s_add_u32 s{S_XO}, s{S_XO}, {L.XN_SZ}
        s_add_u32 s{S_SO}, s{S_SO}, {L.ST_SZ}
        s_add_u32 s{S_FL}, s{S_FL}, 512
        s_add_u32 s{S_FO}, s{S_FO}, 512
        s_add_u32 s{S_STEP}, s{S_STEP}, 1
        s_cmp_lt_u32 s{S_STEP}, 64
        s_cbranch_scc1 {loop}
        s_endpgm
        ''')
    mode_split(a, body, TMP)

def role_T(a, stamps=False):
    st = Stamps(a, stamps)
    WR = [256 + 4 * i for i in range(64)] + [120 + 4 * i for i in range(34)]
    W = lambda t, ks: WR[14 * t + ks]
    ACC = lambda tt, t: 0 + 28 * tt + 4 * t
    TB = lambda tt, kk: 56 + 14 * tt + 4 * kk
    FR = 84
    VL16, VFB, VHB, VHB3, VMA, VMA3, VSXW, VSXR, VSMW, VSMR, VPX, VPM, VFL, VZ, VONE, VROW = range(96, 112)
    TMP = 112
    SX = lambda c: 0 + 4 * c
    HF = 12
    SM = lambda tt: 28 + 4 * tt
    MF = 36
    XV = 50
    RS = 144
    LDS_SX = XBUF
    LDS_SM = LDS_SX + 4 * 32 * RS
    S_XN, S_MX, S_PX, S_FI, S_FO, S_ZERO = 21, 22, 23, 24, 25, 26
    a(f'''
    s_and_b32 s27, s{S_ROLE}, 15
    s_lshr_b32 s{S_STEP}, s{S_ROLE}, 4
    s_lshl_b32 s{S_T0}, s27, 2
    s_add_u32 s{S_T0}, s{S_T0}, s{S_W}
    s_mul_i32 s{S_T2}, s{S_T0}, 100352
    s_add_u32 s{S_T2}, s{S_T2}, {L.WAT}
    v_lshlrev_b32 v{VL16}, 4, {lane}
    ''')
    load_frags(a, WR, VL16, S_T2)
    q, c = TMP, TMP + 1
    a(f'''
    s_lshl_b32 s{S_T1}, s{S_LAYER}, 6
    s_add_u32 s{S_T1}, s{S_T1}, s{S_STEP}
    s_mul_i32 s{S_XN}, s{S_T1}, {L.XN_SZ}
    s_add_u32 s{S_XN}, s{S_XN}, {L.XN}
    s_mul_i32 s{S_MX}, s{S_T1}, {L.MEM_SZ}
    s_add_u32 s{S_MX}, s{S_MX}, {L.MEMX}
    s_mul_i32 s{S_PX}, s{S_T1}, {L.PX_SZ}
    s_add_u32 s{S_PX}, s{S_PX}, {L.PX}
    s_lshl_b32 s{S_FI}, s{S_T1}, 9
    s_lshl_b32 s{S_FO}, s{S_T0}, 2
    s_add_u32 s{S_FO}, s{S_FO}, s{S_FI}
    s_add_u32 s{S_FO}, s{S_FO}, {L.flag(L.FL_T)}
    s_add_u32 s{S_FI}, s{S_FI}, {L.flag(L.FL_U)}
    s_mov_b32 s{S_ZERO}, 0
    v_mov_b32 v{VZ}, 0
    v_mov_b32 v{VONE}, 1
    v_min_u32 v{VFL}, 55, {lane}
    v_lshlrev_b32 v{VFL}, 3, v{VFL}
    v_lshrrev_b32 v{q}, 4, {lane}
    v_and_b32 v{c}, 15, {lane}
    ; VFB = q*512 + c*16
    v_lshlrev_b32 v{VFB}, 9, v{q}
    v_lshl_add_u32 v{VFB}, v{c}, 4, v{VFB}
    s_mul_i32 s{S_T1}, s{S_W}, 14
    s_lshl_b32 s{S_T2}, s{S_T1}, 9
    v_add_u32 v{VHB}, s{S_T2}, v{VFB}
    v_lshrrev_b32 v{TMP+2}, 5, {lane}
    v_add_u32 v{TMP+2}, s{S_T1}, v{TMP+2}
    v_add_u32 v{TMP+2}, 12, v{TMP+2}
    v_and_b32 v{TMP+3}, 1, v{q}
    v_lshlrev_b32 v{VHB3}, 9, v{TMP+2}
    v_lshl_add_u32 v{VHB3}, v{c}, 4, v{VHB3}
    v_lshl_add_u32 v{VHB3}, v{TMP+3}, 3, v{VHB3}
    v_and_b32 v{TMP+4}, 7, {lane}
    v_add_u32 v{VMA}, s{S_T1}, v{q}
    v_lshlrev_b32 v{VMA}, 7, v{VMA}
    v_lshl_add_u32 v{VMA}, v{TMP+4}, 4, v{VMA}
    v_lshlrev_b32 v{VMA3}, 7, v{TMP+2}
    v_lshl_add_u32 v{VMA3}, v{TMP+4}, 4, v{VMA3}
    v_lshl_add_u32 v{VMA3}, v{TMP+3}, 3, v{VMA3}
    s_mul_i32 s{S_T2}, s{S_W}, {32*RS}
    s_add_u32 s{S_T2}, s{S_T2}, {LDS_SX}
    v_mul_u32_u24 v{VSXW}, {RS}, v{c}
    v_lshl_add_u32 v{VSXW}, v{q}, 4, v{VSXW}
    v_add_u32 v{VSXW}, s{S_T2}, v{VSXW}
    s_lshl_b32 s{S_T2}, s{S_W}, 10
    s_add_u32 s{S_T2}, s{S_T2}, {LDS_SM}
    v_lshlrev_b32 v{VSMW}, 5, v{c}
    v_lshl_add_u32 v{VSMW}, v{TMP+3}, 4, v{VSMW}
    v_add_u32 v{VSMW}, s{S_T2}, v{VSMW}
    v_lshrrev_b32 v{VROW}, 3, {lane}
    s_lshl_b32 s{S_T2}, s{S_W}, 3
    v_add_u32 v{VROW}, s{S_T2}, v{VROW}
    v_mul_u32_u24 v{VSXR}, {RS}, v{VROW}
    v_lshl_add_u32 v{VSXR}, v{TMP+4}, 4, v{VSXR}
    v_add_u32 v{VSXR}, {LDS_SX}, v{VSXR}
    v_lshlrev_b32 v{VSMR}, 5, v{VROW}
    v_lshl_add_u32 v{VSMR}, v{TMP+4}, 2, v{VSMR}
    v_add_u32 v{VSMR}, {LDS_SM}, v{VSMR}
    v_lshrrev_b32 v{TMP+5}, 1, v{TMP+4}
    v_lshlrev_b32 v{VPM}, 9, v{TMP+5}
    v_lshl_add_u32 v{VPM}, v{VROW}, 4, v{VPM}
    v_and_b32 v{TMP+5}, 1, {lane}
    v_lshl_add_u32 v{VPX}, v{TMP+5}, 3, v{VPM}
    s_lshr_b32 s{S_T1}, s27, 2
    s_mul_i32 s{S_T1}, s{S_T1}, 10240
    s_and_b32 s{S_T2}, s27, 3
    s_lshl_b32 s{S_T3}, s{S_T2}, 11
    s_add_u32 s{S_T3}, s{S_T3}, s{S_T1}
    v_add_u32 v{VPX}, s{S_T3}, v{VPX}
    s_lshl_b32 s{S_T3}, s{S_T2}, 2
    s_add_u32 s{S_T3}, s{S_T3}, s{S_T1}
    s_add_u32 s{S_T3}, s{S_T3}, 8192
    v_add_u32 v{VPM}, s{S_T3}, v{VPM}
    v_lshlrev_b32 v{TMP+5}, 2, v{TMP+4}
    v_sub_u32 v{VROW}, v{VROW}, v{TMP+5}
    v_cmp_le_i32 s[40:41], 0, v{VROW}
    v_cmp_le_i32 s[42:43], 1, v{VROW}
    v_cmp_le_i32 s[44:45], 2, v{VROW}
    v_cmp_le_i32 s[46:47], 3, v{VROW}
    v_mov_b32 v{VROW}, 0xf149f2ca
    s_mov_b32 s48, 0x55555555
    s_mov_b32 s49, 0x55555555
    ''')
    loop = a.newlabel('T_LOOP')
    a.flush(); a.label(loop)
    wait_flags(a, S_FI, VFL, TMP, width=2)
    st()
    x_dma(a, S_XN, S_ZERO, VL16)
    a('s_waitcnt vmcnt(0)'); a('s_barrier')
    seq = [(tt, ks) for tt in range(2) for ks in range(14)]
    rd = lambda i: f'ds_read_b128 v[{FR+4*(i%3)}:{FR+4*(i%3)+3}], v{VFB} offset:{2048*seq[i][1]+256*seq[i][0]}'
    def cvt(tt):
        o = []
        for kk in range(3):
            for p in range(2):
                c = ACC(tt, 2 * kk + p)
                o += [f'v_cvt_pk_bf16_f32 v{TB(tt,kk)+2*p}, v{c}, v{c+1}', f'v_cvt_pk_bf16_f32 v{TB(tt,kk)+2*p+1}, v{c+2}, v{c+3}']
        c = ACC(tt, 6)
        o += [f'v_cvt_pk_bf16_f32 v{TB(tt,3)}, v{c}, v{c+1}', f'v_cvt_pk_bf16_f32 v{TB(tt,3)+1}, v{c+2}, v{c+3}']
        return o
    a(rd(0)); a(rd(1))
    side = []
    for i, (tt, ks) in enumerate(seq):
        a(f's_waitcnt lgkmcnt({1 if i < 27 else 0})')
        if i == 15: side = cvt(0)
        for t in range(7):
            c = f'v[{ACC(tt,t)}:{ACC(tt,t)+3}]'
            a(f'v_mfma_f32_16x16x32_bf16 {c}, {R(W(t,ks),4)}, v[{FR+4*(i%3)}:{FR+4*(i%3)+3}], {"0" if ks == 0 else c}')
            if t == 0 and i + 2 < 28: a(rd(i + 2))
            elif side: a(side.pop(0))
    def hrd(kk):
        h = HF + 8 * (kk % 2)
        if kk < 3: return [f'ds_read_b128 v[{h+4*jt}:{h+4*jt+3}], v{VHB} offset:{2048*kk+256*jt}' for jt in range(2)]
        return [f'ds_read_b64 v[{h+4*jt}:{h+4*jt+1}], v{VHB3} offset:{256*jt}' for jt in range(2)]
    for s_ in hrd(0) + hrd(1): a(s_)
    for s_ in cvt(1): a(s_)
    for kk in range(4):
        a(f's_waitcnt lgkmcnt({2 if kk < 3 else 0})')
        h = HF + 8 * (kk % 2)
        for ci, (jt, tt) in enumerate(((0, 0), (0, 1), (1, 1))):
            c = f'v[{SX(ci)}:{SX(ci)+3}]'; cin = '0' if kk == 0 else c
            if kk < 3: a(f'v_mfma_f32_16x16x32_bf16 {c}, v[{h+4*jt}:{h+4*jt+3}], v[{TB(tt,kk)}:{TB(tt,kk)+3}], {cin}')
            else: a(f'v_mfma_f32_16x16x16_bf16 {c}, v[{h+4*jt}:{h+4*jt+1}], v[{TB(tt,kk)}:{TB(tt,kk)+1}], {cin}')
        if kk < 2:
            for s_ in hrd(kk + 2): a(s_)
    for ci, (jt, tt) in enumerate(((0, 0), (0, 1), (1, 1))):
        a(f'ds_write_b128 v{VSXW}, v[{SX(ci)}:{SX(ci)+3}] offset:{16*RS*tt+64*jt}')
    a('s_waitcnt lgkmcnt(0)'); a('s_barrier')
    for w in range(4): a(f'ds_read_b128 v[{HF+4*w}:{HF+4*w+3}], v{VSXR} offset:{32*RS*w}')
    a('s_waitcnt lgkmcnt(2)')
    for i in (0, 2): a(f'v_pk_add_f32 v[{XV+i}:{XV+i+1}], v[{HF+i}:{HF+i+1}], v[{HF+4+i}:{HF+5+i}]')
    a('s_waitcnt lgkmcnt(0)')
    for i in (0, 2): a(f'v_pk_add_f32 v[{HF+8+i}:{HF+9+i}], v[{HF+8+i}:{HF+9+i}], v[{HF+12+i}:{HF+13+i}]')
    for i in (0, 2): a(f'v_pk_add_f32 v[{XV+i}:{XV+i+1}], v[{XV+i}:{XV+i+1}], v[{HF+8+i}:{HF+9+i}]')
    for r in range(4): a(f'v_cndmask_b32 v{XV+r}, v{VROW}, v{XV+r}, s[{40+2*r}:{41+2*r}]')
    a(f'v_max3_f32 v{XV+4}, v{XV}, v{XV+1}, v{XV+2}')
    a(f'v_max_f32 v{XV+4}, v{XV+4}, v{XV+3}')
    st()
    poll(a, [f'buffer_load_dwordx4 v[{MF+4*kk}:{MF+4*kk+3}], v{VMA}, {SRD}, s{S_MX} offen offset:{512*kk} sc1' for kk in range(3)] +
            [f'buffer_load_dwordx2 v[{MF+12}:{MF+13}], v{VMA3}, {SRD}, s{S_MX} offen sc1'], range(MF, MF + 14), TMP, sleep=2)
    st()
    for kk in range(4):
        for tt in range(2):
            c = f'v[{SM(tt)}:{SM(tt)+3}]'; cin = '0' if kk == 0 else c
            if kk < 3: a(f'v_mfma_f32_16x16x32_bf16 {c}, v[{MF+4*kk}:{MF+4*kk+3}], v[{TB(tt,kk)}:{TB(tt,kk)+3}], {cin}')
            else: a(f'v_mfma_f32_16x16x16_bf16 {c}, v[{MF+12}:{MF+13}], v[{TB(tt,kk)}:{TB(tt,kk)+1}], {cin}')
    for tt in range(2): a(f'ds_write_b128 v{VSMW}, v[{SM(tt)}:{SM(tt)+3}] offset:{512*tt}')
    M, X5 = TMP, TMP + 2
    a(f'''
    s_waitcnt lgkmcnt(0)
    s_barrier
    ds_read2st64_b32 v[{X5}:{X5+1}], v{VSMR} offset0:0 offset1:4
    ds_read2st64_b32 v[{X5+2}:{X5+3}], v{VSMR} offset0:8 offset1:12
    s_waitcnt lgkmcnt(0)
    v_pk_add_f32 v[{X5}:{X5+1}], v[{X5}:{X5+1}], v[{X5+2}:{X5+3}]
    v_add_f32 v{X5}, v{X5}, v{X5+1}
    v_max_f32 v{M}, v{XV+4}, v{X5}
    ''')
    D3 = ('quad_perm:[1,0,3,2]', 'quad_perm:[2,3,0,1]', 'row_half_mirror')
    for d in D3: a(f'v_max_f32_dpp v{M}, v{M}, v{M} {d} row_mask:0xf bank_mask:0xf')
    a(f'''
    v_sub_f32 v{X5}, v{X5}, v{M}
    v_pk_add_f32 v[{XV}:{XV+1}], v[{XV}:{XV+1}], v[{M}:{M+1}] op_sel_hi:[1,0] neg_lo:[0,1] neg_hi:[0,1]
    v_pk_add_f32 v[{XV+2}:{XV+3}], v[{XV+2}:{XV+3}], v[{M}:{M+1}] op_sel_hi:[1,0] neg_lo:[0,1] neg_hi:[0,1]
    v_exp_f32 v{X5}, v{X5}
    v_exp_f32 v{XV}, v{XV}
    v_exp_f32 v{XV+1}, v{XV+1}
    v_exp_f32 v{XV+2}, v{XV+2}
    v_exp_f32 v{XV+3}, v{XV+3}
    v_add_f32 v{M}, v{X5}, v{XV}
    v_add_f32 v{M}, v{M}, v{XV+1}
    v_add_f32 v{M}, v{M}, v{XV+2}
    v_add_f32 v{M}, v{M}, v{XV+3}
    ''')
    for d in D3: a(f'v_add_f32_dpp v{M}, v{M}, v{M} {d} row_mask:0xf bank_mask:0xf')
    a(f'''
    v_rcp_f32 v{M}, v{M}
    v_mul_f32 v{X5}, v{X5}, v{M}
    v_pk_mul_f32 v[{XV}:{XV+1}], v[{XV}:{XV+1}], v[{M}:{M+1}] op_sel_hi:[1,0]
    v_pk_mul_f32 v[{XV+2}:{XV+3}], v[{XV+2}:{XV+3}], v[{M}:{M+1}] op_sel_hi:[1,0]
    v_mov_b32_dpp v{X5+1}, v{X5} quad_perm:[1,0,3,2] row_mask:0xf bank_mask:0xf
    v_cvt_pk_bf16_f32 v{XV}, v{XV}, v{XV+1}
    v_cvt_pk_bf16_f32 v{XV+1}, v{XV+2}, v{XV+3}
    v_cvt_pk_bf16_f32 v{X5}, v{X5}, v{X5+1}
    buffer_store_dwordx2 v[{XV}:{XV+1}], v{VPX}, {SRD}, s{S_PX} offen sc1
    s_mov_b64 exec, s[48:49]
    buffer_store_dword v{X5}, v{VPM}, {SRD}, s{S_PX} offen sc1
    s_mov_b64 exec, -1
    ''')
    st()
    signal(a, S_FO, VZ, VONE)
    st()
    st.flush(6 << 20, TMP, TMP + 1)
    a(f'''
    s_add_u32 s{S_XN}, s{S_XN}, {2*L.XN_SZ}
    s_add_u32 s{S_MX}, s{S_MX}, {2*L.MEM_SZ}
    s_add_u32 s{S_PX}, s{S_PX}, {2*L.PX_SZ}
    s_add_u32 s{S_FI}, s{S_FI}, 1024
    s_add_u32 s{S_FO}, s{S_FO}, 1024
    s_add_u32 s{S_STEP}, s{S_STEP}, 2
    s_cmp_lt_u32 s{S_STEP}, 64
    s_cbranch_scc1 {loop}
    s_endpgm
    ''')
```

```python
import sys
from common import *
import mega, prep
NAME = 'interleave_layers__memory_aug_recurrent_mem_tr__swiglu_ffn__prompt'
def build(**kw):
    ref = open(f'cdna_kernels/{NAME}.s.ref').read().split('\n')
    hdr = [l for l in ref if l.startswith(';') and '@launch' not in l and 'Override' not in l and 'grid=ceil' not in l]
    hdr = hdr[:15]
    out = '\n'.join(hdr) + '\n'
    out += '; @launch kernel=prep_kernel grid=(256,1,1) block=(256,1,1) lds=163840\n'
    out += '; @launch kernel=mega_kernel grid=(256,1,1) block=(256,1,1) lds=163840\n'
    out += '.amdgcn_target "amdgcn-amd-amdhsa--gfx950"\n'
    out += prep.prep(kw.get('stamps', False)) + mega.mega(**kw)
    return out
if __name__ == '__main__':
    open(f'cdna_kernels/{NAME}.s', 'w').write(build())
    open('full_st.s', 'w').write(build(stamps=True))
```

```python
import re

_reg_re = re.compile(r'^(v|a|s)(\d+)$')
_rng_re = re.compile(r'^(v|a|s)\[(\d+):(\d+)\]$')

def parse_regs(tok):
    tok = tok.strip()
    if tok.startswith('-'): tok = tok[1:]
    m = re.match(r'^abs\((.*)\)$', tok) or re.match(r'^\|(.*)\|$', tok)
    if m: tok = m.group(1)
    m = _reg_re.match(tok)
    if m: return [(m.group(1), int(m.group(2)))]
    m = _rng_re.match(tok)
    if m: return [(m.group(1), i) for i in range(int(m.group(2)), int(m.group(3)) + 1)]
    if tok == 'vcc': return [('s', 106), ('s', 107)]
    if tok == 'vcc_lo': return [('s', 106)]
    if tok == 'vcc_hi': return [('s', 107)]
    if tok == 'exec': return [('s', 126), ('s', 127)]
    if tok == 'exec_lo': return [('s', 126)]
    if tok == 'exec_hi': return [('s', 127)]
    if tok == 'm0': return [('s', 124)]
    return []

TRANS = ('v_exp_f32', 'v_log_f32', 'v_rcp_f32', 'v_rsq_f32', 'v_sqrt_f32', 'v_sin_f32', 'v_cos_f32', 'v_rcp_iflag_f32')

def split_ops(s):
    out, depth, cur = [], 0, ''
    for ch in s:
        if ch in '[(': depth += 1
        if ch in '])': depth -= 1
        if ch == ',' and depth == 0:
            out.append(cur.strip()); cur = ''
        else: cur += ch
    if cur.strip(): out.append(cur.strip())
    return out

class Ins:
    __slots__ = ('text', 'op', 'cls', 'dst', 'src', 'srcC', 'srcAB', 'passes', 'dpp', 'ws', 'wide_store', 'lds_dma', 'sdata')
    def __init__(self, text):
        self.text = text
        t = text.split(';')[0].strip()
        parts = t.split(None, 1)
        op = parts[0]; self.op = op
        rest = parts[1] if len(parts) > 1 else ''
        ops = split_ops(rest)
        mods = ''
        if ops:
            l = ops[-1].split(None, 1)
            ops[-1] = l[0]
            if len(l) > 1: mods = l[1]
        self.dst, self.src, self.srcC, self.srcAB = [], [], [], []
        self.passes = 0; self.dpp = False; self.ws = 1; self.wide_store = False; self.lds_dma = False; self.sdata = []
        R = [parse_regs(o) for o in ops]
        flat = lambda L: [x for r in L for x in r]
        if op == 's_nop':
            self.cls = 'nop'; self.ws = int(ops[0], 0) + 1
        elif op.startswith('v_mfma') or op.startswith('v_smfmac'):
            self.cls = 'mfma'
            self.passes = 8 if '32x32' in op else 4
            self.dst = R[0]
            if op.startswith('v_smfmac'):
                self.srcC = R[0]; self.srcAB = R[1] + R[2] + R[3]
            else:
                self.srcC = R[3]; self.srcAB = R[1] + R[2]
            self.src = self.srcC + self.srcAB
        elif op.startswith('v_'):
            self.cls = 'valu'
            self.dpp = '_dpp' in op or 'row_' in mods or 'quad_perm' in mods
            if op.startswith('v_cmp'):
                self.dst = R[0]; self.src = flat(R[1:])
                if op.startswith('v_cmpx'): self.dst = self.dst + parse_regs('exec')
            elif op.startswith('v_permlane') and 'swap' in op:
                self.dst = R[0] + R[1]; self.src = R[0] + R[1]
            elif re.match(r'v_(add|sub|subrev)_co_u32', op) or op.startswith('v_mad_u64') or op.startswith('v_div_scale'):
                self.dst = R[0] + R[1]; self.src = flat(R[2:])
            elif re.match(r'v_(addc|subb|subbrev)_co_u32', op):
                self.dst = R[0] + R[1]; self.src = flat(R[2:])
            else:
                self.dst = R[0]; self.src = flat(R[1:])
                if op.startswith('v_fmac') or op.startswith('v_dot2c') or op.startswith('v_pk_fmac') or self.dpp or op.startswith('v_writelane'):
                    self.src = self.src + R[0]
                if op.startswith('v_cndmask') and len(ops) == 3: self.src += parse_regs('vcc')
        elif op.startswith('ds_'):
            self.cls = 'ds'
            if op.startswith('ds_read') or op.startswith('ds_bpermute') or op.startswith('ds_permute') or op.startswith('ds_swizzle') or '_rtn' in op:
                self.dst = R[0]; self.src = flat(R[1:])
            else:
                self.src = flat(R)
        elif op.startswith('global_') or op.startswith('buffer_') or op.startswith('flat_'):
            self.cls = 'vmem'
            allm = mods + ' ' + ' '.join(ops)
            is_lds = bool(re.search(r'\blds\b', mods)) or 'load_lds' in op
            if is_lds:
                self.lds_dma = True; self.src = flat(R) + parse_regs('m0')
            elif '_load' in op:
                self.dst = R[0]; self.src = flat(R[1:])
            elif '_atomic' in op:
                if op.startswith('global') and len(ops) == 4:
                    self.dst = R[0]; self.src = flat(R[1:])
                else:
                    self.src = flat(R)
                    if op.startswith('buffer') and 'sc0' in mods: self.dst = R[0]
            elif '_store' in op:
                self.src = flat(R)
                data = R[0] if op.startswith('buffer') else R[1]
                if 'x4' in op or 'x3' in op:
                    self.wide_store = True; self.sdata = data
            else:
                self.src = flat(R)
        elif op.startswith('s_'):
            self.cls = 'salu'
            if op.startswith('s_cmp') or op.startswith('s_cbranch') or op.startswith('s_branch') or op in ('s_waitcnt', 's_barrier', 's_endpgm', 's_sleep', 's_setprio', 's_bitcmp0_b32', 's_bitcmp1_b32'):
                self.src = flat(R)
            else:
                self.dst = R[0] if R else []; self.src = flat(R[1:])
                if 'saveexec' in op: self.dst = self.dst + parse_regs('exec')
        else:
            raise ValueError('unknown instruction class: ' + text)

def need(p, c):
    n = 0
    pd = set(p.dst)
    cs, cd = set(c.src), set(c.dst)
    if p.cls == 'valu':
        vd = {r for r in pd if r[0] in 'va'}
        sd = {r for r in pd if r[0] == 's'}
        if c.cls == 'mfma' and vd & cs: n = max(n, 2)
        if c.cls == 'valu':
            if vd & cs:
                if c.dpp or c.op.startswith('v_permlane'): n = max(n, 2)
                if c.op.startswith('v_readlane') or c.op.startswith('v_readfirstlane'): n = max(n, 1)
                if p.op.startswith(TRANS) and not c.op.startswith(TRANS): n = max(n, 1)
                if p.op.startswith(TRANS): n = max(n, 1)
                if ('op_sel' in p.text and not p.op.startswith('v_pk_')) or 'sdwa' in p.text or 'dst_sel' in p.text: n = max(n, 1)
            if sd & cs:
                n = max(n, 4 if (c.op.startswith('v_readlane') or c.op.startswith('v_writelane') or c.op.startswith('v_div_fmas')) else 2)
            if ('s', 126) in sd or ('s', 127) in sd:
                n = max(n, 5 if c.dpp else 4 if (c.op.startswith('v_read') or c.op.startswith('v_write') or c.op.startswith('v_permlane')) else 0)
        if c.cls == 'mfma' and (('s', 126) in sd): n = max(n, 4)
        if c.cls == 'vmem' and sd & cs: n = max(n, 5)
        if c.cls == 'salu' and sd & cs: n = max(n, 1)
    if p.cls == 'mfma':
        big = {4: 8, 8: 12}[p.passes]
        if c.cls == 'mfma':
            if pd & set(c.srcAB): n = max(n, big)
            if pd & set(c.srcC):
                if not (list(p.dst) == list(c.srcC) and p.passes == c.passes): n = max(n, big - 2)
            elif pd & cd: n = max(n, big)
        elif c.cls in ('valu', 'vmem', 'ds'):
            if pd & (cs | cd): n = max(n, big)
        if c.cls == 'valu' and set(p.srcC) & cd: n = max(n, p.passes - 1)
    if p.cls == 'vmem' and p.wide_store and set(p.sdata) & cd:
        n = max(n, 2 if c.cls in ('valu', 'mfma') else 1)
    if p.cls == 'salu' and ('s', 124) in pd and (c.lds_dma or 'addtid' in c.op or c.op.startswith('s_movrel')): n = max(n, 1)
    return n

def worst(p):
    if p.cls == 'mfma': return {4: 8, 8: 12}[p.passes]
    if p.cls == 'valu':
        return 5 if any(r[0] == 's' for r in p.dst) else 2
    if p.cls == 'vmem' and p.wide_store: return 2
    if p.cls == 'salu' and ('s', 124) in p.dst: return 1
    return 0

class Asm:
    def __init__(self):
        self.lines = []
        self.hist = []
        self.nlabel = 0
        self.nops = 0
        self.vm = []
        self.lg = []
        self.opt = None
    def raw(self, s): self.lines.append(s)
    def comment(self, s): self.lines.append('    ; ' + s)
    def _pad(self, k):
        while k > 0:
            n = min(k, 16)
            self.lines.append('    s_nop %d' % (n - 1)); self.nops += n
            self.hist = [(p, d + n) for p, d in self.hist if d + n < 20]
            k -= n
    def flush(self):
        k = 0
        for p, d in self.hist: k = max(k, worst(p) - d)
        self._pad(k)
        self.hist = []
    def __call__(self, text, tag=None):
        for line in text.strip().split('\n'):
            line = line.strip()
            if not line or line.startswith(';'):
                if line: self.lines.append('    ' + line)
                continue
            if line.endswith(':'):
                self.label(line[:-1]); continue
            c = Ins(line)
            if c.op.startswith('s_cbranch') or c.op == 's_branch':
                k = 0
                for p, d in self.hist: k = max(k, worst(p) - d - 1, need(p, c) - d)
                self._pad(k)
            else:
                k = 0
                for p, d in self.hist: k = max(k, need(p, c) - d)
                self._pad(k)
            self.lines.append('    ' + line)
            if self.opt is None:
                if c.cls == 'vmem': self.vm.append(tag)
                if c.cls == 'ds': self.lg.append(tag)
                if c.op == 's_waitcnt':
                    m = re.search(r'vmcnt\((\d+)\)', line)
                    if m: self.vm = self.vm[max(0, len(self.vm) - int(m.group(1))):] if int(m.group(1)) else []
                    m = re.search(r'lgkmcnt\((\d+)\)', line)
                    if m: self.lg = self.lg[max(0, len(self.lg) - int(m.group(1))):] if int(m.group(1)) else []
            self.hist = [(p, d + c.ws) for p, d in self.hist if d + c.ws < 20]
            if c.cls in ('valu', 'mfma', 'vmem', 'salu'): self.hist.append((c, 0))
    def wait_vm(self, tag):
        if tag not in self.vm: return
        idx = len(self.vm) - 1 - self.vm[::-1].index(tag)
        self('s_waitcnt vmcnt(%d)' % min(63, len(self.vm) - 1 - idx))
    def wait_lg(self, tag):
        if tag not in self.lg: return
        idx = len(self.lg) - 1 - self.lg[::-1].index(tag)
        self('s_waitcnt lgkmcnt(%d)' % min(15, len(self.lg) - 1 - idx))
    def opt_begin(self, branch):
        lab = self.newlabel('OPT')
        self.br(branch + ' ' + lab)
        self.opt = (lab, list(self.hist))
    def opt_end(self):
        lab, h = self.opt
        inner = [(p, d) for p, d in self.hist if not any(p is q for q, _ in h)]
        self.hist = h + inner
        self.opt = None
        self.label(lab)
    def br(self, line):
        self.lines.append('    ' + line)
        self.hist = [(p, d + 1) for p, d in self.hist if d + 1 < 20]
    def label(self, name):
        self.lines.append(name + ':')
    def newlabel(self, stem='L'):
        self.nlabel += 1
        return '%s_%d' % (stem, self.nlabel)
    def text(self): return '\n'.join(self.lines) + '\n'

def vr(base, n=1, kind='v'):
    return '%s%d' % (kind, base) if n == 1 else '%s[%d:%d]' % (kind, base, base + n - 1)

class RegFile:
    @staticmethod
    def r(i, n=1):
        if i >= 256: return vr(i - 256, n, 'a')
        assert i + n <= 256, (i, n)
        return vr(i, n, 'v')
```

```python
from common import *

def poll2(a, mk, bases, nreg, tmp, consume, gap=2):
    lab = a.newlabel('PP'); n = len(mk(bases[0]))
    a('s_waitcnt vmcnt(0)')
    for l in mk(bases[0]): a(l)
    a(f's_sleep {gap}')
    a.label(lab)
    for l in mk(bases[1]): a(l)
    a(f's_waitcnt vmcnt({n})')
    check(a, range(bases[0], bases[0] + nreg), tmp)
    a.br(f's_cbranch_vccz {lab}_d0')
    for l in mk(bases[0]): a(l)
    a(f's_sub_u32 s{S_ABORT}, s{S_ABORT}, 1')
    a(f's_cbranch_scc1 {lab}_abort')
    a(f's_waitcnt vmcnt({n})')
    check(a, range(bases[1], bases[1] + nreg), tmp)
    a.br(f's_cbranch_vccnz {lab}')
    a.label(lab + '_d1')
    consume(bases[1])
    a.br(f's_branch {lab}_j')
    h = list(a.hist)
    a.label(lab + '_d0'); a.hist = []
    consume(bases[0])
    a.label(lab + '_j')
    a.deferred.append(f'{lab}_abort:\n    s_mov_b32 s{S_ABORT}, 0\n    s_waitcnt vmcnt(0)\n    s_branch {lab}_d1\n')


def prog_gate(a, vreg, vz, s_prog, s_need):
    lab = a.newlabel('PG')
    a.label(lab)
    a(f'v_readfirstlane_b32 s{S_T0}, v{vreg}')
    a(f's_cmp_gt_u32 s{S_T0}, s{s_need}')
    a(f's_cbranch_scc0 {lab}_slow')
    a.label(lab + '_ok')
    a.deferred.append(f"""{lab}_slow:
    buffer_load_dword v{vreg}, v{vz}, {SRD}, s{s_prog} offen sc1
    s_sub_u32 s{S_ABORT}, s{S_ABORT}, 1
    s_cbranch_scc1 {lab}_ab
    s_waitcnt vmcnt(0)
    s_branch {lab}
{lab}_ab:
    s_mov_b32 s{S_ABORT}, 0
    s_waitcnt vmcnt(0)
    s_branch {lab}_ok
""")

def load_weights(a, groups, voff, soff):
    for g, r in enumerate(groups):
        for p in range(2):
            o = (g * 2048 + p * 1024) % 4096
            a(f'buffer_load_dwordx4 {R(r + 4 * p, 4)}, v{voff}, {SRD}, s{soff} offen offset:{o}')
        if g % 2 == 1: a(f's_add_u32 s{soff}, s{soff}, 4096')

def gather_mem_setup(a, v_g0):
    a(f'''
    s_lshl_b32 s{S_T0}, s{S_W}, 10
    s_cmp_eq_u32 s{S_W}, 3
    s_cselect_b32 s33, 3, 4
    s_lshl_b32 s33, s33, 10
    v_lshlrev_b32 v{v_g0}, 4, v{V_LANE}
    v_add_u32 v{v_g0}, s{S_T0}, v{v_g0}
    ''')

def gather_mem(a, st, G, VG0, S_MEM, TMP, LDS_MEM, VPROG):
    a(f's_add_u32 s34, s{S_MEM}, s33')
    st()
    poll(a, [f'buffer_load_dword v{VPROG}, off, {SRD}, s35 sc1',
             f'buffer_load_dwordx4 v[{G}:{G+3}], v{VG0}, {SRD}, s{S_MEM} offen sc1',
             f'buffer_load_dwordx4 v[{G+4}:{G+7}], v{VG0}, {SRD}, s34 offen sc1'], range(G, G + 8), TMP)
    st()
    a(f'''
    ds_write_b128 v{VG0}, v[{G}:{G+3}] offset:{LDS_MEM}
    ds_write_b128 v{VG0}, v[{G+4}:{G+7}] offset:{LDS_MEM+4096}
    s_waitcnt lgkmcnt(0)
    s_barrier
    ''')

def gather_mem2(a, st, G0, G1, VG0, S_MEM, TMP, LDS_MEM, extra=()):
    a(f's_add_u32 s34, s{S_MEM}, s33')
    a('s_waitcnt vmcnt(0)')
    st()
    mk = lambda G: [f'buffer_load_dwordx4 v[{G}:{G+3}], v{VG0}, {SRD}, s{S_MEM} offen sc1',
                    f'buffer_load_dwordx4 v[{G+4}:{G+7}], v{VG0}, {SRD}, s34 offen sc1']
    def cons(G):
        a(f'ds_write_b128 v{VG0}, v[{G}:{G+3}] offset:{LDS_MEM}')
        a(f'ds_write_b128 v{VG0}, v[{G+4}:{G+7}] offset:{LDS_MEM+4096}')
    poll2(a, mk, [G0, G1], 8, TMP, cons)
    st()
    a('s_waitcnt lgkmcnt(0)')
    a('s_barrier')

def gtile(n): return 4 * n if n < 4 else 16 + 3 * (n - 4) - 1

def chain_A(a, stamps=False):
    lane = f'v{V_LANE}'
    LDS_MEM, LDS_TI, LDS_PG = 0, 8192, 16384
    S_MEM, S_PB, S_XN, S_TU, S_TX = 21, 22, 23, 24, 25
    MEMF, ACC, G0, G1 = 0, 28, 40, 48
    VG0, VIDX, VMF, VTW, VPGA, TMP, VPGV = 56, 57, 58, 59, 60, 61, 62
    w0 = a.newlabel('CA_W0')
    def common_setup(WG, ntile):
        a(f'''
        s_mul_i32 s{S_T2}, s{S_ROLE}, 401408
        s_mul_i32 s{S_T0}, s{S_W}, 14336
        s_add_u32 s26, s{S_T2}, s{S_T0}
        s_add_u32 s26, s26, {L.WAC}
        v_lshlrev_b32 v{TMP}, 4, {lane}
        ''')
        for n in range(ntile):
            a(f's_add_u32 s{S_T2}, s26, {gtile(n) * 14336}')
            load_weights(a, WG[7 * n: 7 * n + 7], TMP, S_T2)
        gather_mem_setup(a, VG0)
        q, c, t = 2, 3, 4
        a(f'''
        v_lshrrev_b32 v{q}, 4, {lane}
        v_and_b32 v{c}, 15, {lane}
        v_and_b32 v{VIDX}, 2, {lane}
        v_cmp_eq_u32 vcc, 2, v{VIDX}
        v_mov_b32 v{VIDX}, 0x44444444
        v_mov_b32 v{VMF}, 0xeeeeeeee
        v_cndmask_b32 v{VIDX}, v{VIDX}, v{VMF}, vcc
        v_and_b32 v{VMF}, 2, {lane}
        v_lshlrev_b32 v{VMF}, 6, v{VMF}
        v_lshl_add_u32 v{VMF}, v{q}, 8, v{VMF}
        v_bfe_u32 v{t}, {lane}, 2, 2
        v_lshl_add_u32 v{VMF}, v{t}, 5, v{VMF}
        v_lshlrev_b32 v{VTW}, 6, v{t}
        v_and_b32 v{t}, 1, {lane}
        v_lshl_add_u32 v{VMF}, v{t}, 4, v{VMF}
        v_lshl_add_u32 v{VTW}, v{t}, 5, v{VTW}
        v_lshl_add_u32 v{VTW}, v{q}, 3, v{VTW}
        v_bfe_u32 v{t}, {lane}, 1, 1
        v_lshl_add_u32 v{VTW}, v{t}, 2, v{VTW}
        s_lshl_b32 s{S_T0}, s{S_W}, 8
        s_add_u32 s{S_T0}, s{S_T0}, {LDS_TI}
        v_add_u32 v{VTW}, s{S_T0}, v{VTW}
        s_lshl_b32 s{S_T0}, s{S_W}, 8
        s_add_u32 s{S_T0}, s{S_T0}, {LDS_PG}
        v_lshl_add_u32 v{VPGA}, {lane}, 2, s{S_T0}
        v_mov_b32 v{VPGV}, 0
        ds_write_b32 v{VPGA}, v{VPGV}
        s_mul_i32 s30, s{S_LAYER}, {4*L.MEM_SZ}
        s_add_u32 s30, s30, {L.MEML}
        s_mov_b32 s{S_STEP}, 0
        ''')
    def acc(n): return ACC + 4 * (n % 3)
    def zero(r): return [f'v_mov_b64 v[{r+i}:{r+i+1}], 0' for i in (0, 2)]
    def post(n, pk=False):
        c = acc(n)
        if pk: return [f'v_pk_add_f32 v[{c}:{c+1}], v[{c}:{c+1}], v[{c+2}:{c+3}]', f'v_cvt_pk_bf16_f32 v{c}, v{c}, v{c+1}',
                f'ds_write_b32 v{VTW}, v{c} offset:{256*gtile(n)}']
        return [f'v_add_f32 v{c}, v{c}, v{c+2}', f'v_add_f32 v{c+1}, v{c+1}, v{c+3}', f'v_cvt_pk_bf16_f32 v{c}, v{c}, v{c+1}',
                f'ds_write_b32 v{VTW}, v{c} offset:{256*gtile(n)}']
    BAR = 's_waitcnt lgkmcnt(0)\ns_barrier'
    def step_head(st, extra_loads=()):
        a(f'''
        s_and_b32 s{S_T0}, s{S_STEP}, 3
        s_mul_i32 s{S_T1}, s{S_T0}, {L.MEM_SZ}
        s_add_u32 s{S_MEM}, s{S_T1}, s30
        ''')
        for n in range(3):
            for s_ in zero(acc(n)): a(s_)
        gather_mem2(a, st, G0, G1, VG0, S_MEM, TMP, LDS_MEM, extra_loads)
        for ks in range(7): a(f'ds_read_b128 v[{MEMF+4*ks}:{MEMF+4*ks+3}], v{VMF} offset:{LDS_MEM+1024*ks}')
        for x in extra_loads: a(x)
    def tsm(WG, n, ks):
        c = acc(n)
        return f'v_smfmac_f32_16x16x64_bf16 v[{c}:{c+3}], v[{MEMF+4*ks}:{MEMF+4*ks+3}], {R(WG[7*n+ks],8)}, v{VIDX}'
    def t_phase(WG, ntile, extra=None):
        for ks in range(7):
            a(f's_waitcnt lgkmcnt({6-ks})' if not stamps or ks == 0 else 's_waitcnt lgkmcnt(0)')
            a(tsm(WG, 0, ks)); a(tsm(WG, 1, ks))
        PG = [f'v_add_u32 v{VPGV}, 1, v{VPGV}', f'ds_write_b32 v{VPGA}, v{VPGV}'] if ntile == 8 else []
        NOP = ['s_nop 0']
        for n in range(2, ntile):
            if n == 2:
                p0, p1, z = post(0), post(1), zero(acc(3))
                side = {0: ['s_nop 1'] + PG[:1], 1: ['s_nop 1'] + p0[:1], 2: p0[1:2], 3: p0[2:], 4: z[:1] + p1[:1], 5: z[1:] + p1[1:2], 6: p1[2:]}
            else:
                z = zero(acc(n + 1)) if n + 1 < ntile else NOP * 2
                sig = n in (3, 4, 6, 7); p = post(n - 1)
                side = {0: NOP + z[:1], 1: NOP + z[1:], 2: NOP + p[:1], 3: p[1:2], 4: p[2:] + (PG[1:] if sig else []), 5: PG[:1] if sig else []}
            for ks in range(7):
                a(tsm(WG, n, ks))
                for s_ in side.get(ks, []): a(s_)
                if extra: extra(n, ks)
    a(f's_cmp_eq_u32 s{S_W}, 0')
    a(f's_cbranch_scc1 {w0}')
    WG = [256 + 8 * g for g in range(32)] + [64 + 8 * g for g in range(24)]
    common_setup(WG, 8)
    st = Stamps(a, stamps)
    loop = a.newlabel('CA_LOOP')
    a.flush(); a.label(loop)
    step_head(st)
    t_phase(WG, 8)
    for s_ in post(7, True): a(s_)
    a(f'ds_write_b32 v{VPGA}, v{VPGV}')
    st()
    st.flush(0, G0, G0 + 1)
    a(f'''
    s_add_u32 s{S_STEP}, s{S_STEP}, 1
    s_cmp_lt_u32 s{S_STEP}, 63
    s_cbranch_scc1 {loop}
    s_endpgm
    ''')
    a.label(w0)
    WG0 = [256 + 8 * g for g in range(28)]
    XF = lambda g, jt: 144 + 16 * g + 8 * jt
    TB = lambda g: 64 + 4 * (g % 4)
    MH = lambda g: 80 + 8 * (g % 4)
    SA = lambda jt: 112 + 4 * jt
    VTR, VMH, VXA, VP0, VPM, VPROG, VZ, VTX = 124, 125, 126, 127, 128, 129, 130, 131
    M, T2, PGR = 132, 134, 136
    common_setup(WG0, 4)
    q, c, t = 2, 3, 4
    a(f'''
    v_min_u32 v{VPGA}, 2, {lane}
    v_mul_u32_u24 v{VPGA}, 260, v{VPGA}
    v_add_u32 v{VPGA}, {LDS_PG + 256}, v{VPGA}
    v_lshlrev_b32 v{VTR}, 8, v{q}
    v_lshl_add_u32 v{VTR}, v{c}, 3, v{VTR}
    v_add_u32 v{VTR}, {LDS_TI}, v{VTR}
    v_and_b32 v{t}, 7, {lane}
    v_lshlrev_b32 v{VMH}, 7, v{q}
    v_lshl_add_u32 v{VMH}, v{t}, 4, v{VMH}
    v_lshlrev_b32 v{VXA}, 9, v{q}
    v_lshl_add_u32 v{VXA}, v{c}, 4, v{VXA}
    s_lshr_b32 s{S_T0}, s{S_ROLE}, 2
    s_mul_i32 s{S_T0}, s{S_T0}, 2560
    s_bfe_u32 s{S_T1}, s{S_ROLE}, 0x10001
    s_and_b32 s{S_T2}, s{S_ROLE}, 1
    v_bfe_u32 v{VP0}, {lane}, 3, 1
    v_lshlrev_b32 v{VP0}, 8, v{VP0}
    v_lshl_add_u32 v{VP0}, v{q}, 6, v{VP0}
    v_and_b32 v{t}, 1, {lane}
    v_lshl_add_u32 v{VP0}, v{t}, 5, v{VP0}
    v_bfe_u32 v{t}, {lane}, 1, 2
    v_lshl_add_u32 v{VP0}, v{t}, 2, v{VP0}
    s_lshl_b32 s{S_T3}, s{S_T1}, 10
    s_add_u32 s{S_T3}, s{S_T3}, s{S_T0}
    s_lshl_b32 s27, s{S_T2}, 9
    s_add_u32 s{S_T3}, s{S_T3}, s27
    v_add_u32 v{VP0}, s{S_T3}, v{VP0}
    v_lshlrev_b32 v{VPM}, 7, v{t}
    v_lshl_add_u32 v{VPM}, v{q}, 5, v{VPM}
    v_bfe_u32 v{t}, {lane}, 3, 1
    v_lshl_add_u32 v{VPM}, v{t}, 3, v{VPM}
    s_lshl_b32 s{S_T3}, s{S_T2}, 4
    s_lshl_b32 s27, s{S_T1}, 2
    s_add_u32 s{S_T3}, s{S_T3}, s27
    s_add_u32 s{S_T3}, s{S_T3}, s{S_T0}
    s_add_u32 s{S_T3}, s{S_T3}, 2048
    v_add_u32 v{VPM}, s{S_T3}, v{VPM}
    s_mul_i32 s31, s{S_LAYER}, {4*L.PB_SZ}
    s_add_u32 s31, s31, {L.PB}
    s_mul_i32 s{S_XN}, s{S_LAYER}, {64*L.XN_SZ}
    s_add_u32 s{S_XN}, s{S_XN}, {L.XN}
    v_min_u32 v{VTX}, 13, {lane}
    v_lshlrev_b32 v{VTX}, 7, v{VTX}
    s_mul_i32 s{S_TX}, s{S_ROLE}, 1792
    s_add_u32 s{S_TX}, s{S_TX}, s{S_XN}
    s_add_u32 s{S_TX}, s{S_TX}, {2*L.XN_SZ}
    s_mov_b32 s28, 0xff00ff00
    s_mov_b32 s29, 0xff00ff00
    s_mov_b32 s36, 0x55555555
    s_mov_b32 s37, 0x55555555
    s_lshl_b32 s35, s{S_LAYER}, 15
    s_add_u32 s35, s35, {L.flag(L.FL_PROG)}
    v_mov_b32 v{VPROG}, 0
    v_mov_b32 v{VZ}, 0
    ''')
    def xld(g):
        out = []
        for jt in range(2):
            for p in range(2):
                r = XF(g, jt) + 4 * p
                out.append(f'buffer_load_dwordx4 v[{r}:{r+3}], v{VXA}, {SRD}, s{S_XN} offen offset:{2048*p+256*jt} sc1')
        out[-1] += f'\ns_add_u32 s{S_XN}, s{S_XN}, 4096'
        return out
    prog_gate(a, VPROG, VZ, 35, S_STEP)
    for g in range(7):
        for s_ in xld(g): a(s_)
    def body(st_flag):
        st = Stamps(a, stamps)
        loop = a.newlabel('CA0_LOOP')
        a.flush(); a.label(loop); a.lg = []; a.vm = []
        a(f'''
        s_and_b32 s{S_T0}, s{S_STEP}, 3
        s_mul_i32 s{S_T1}, s{S_T0}, {L.PB_SZ}
        s_add_u32 s{S_PB}, s{S_T1}, s31
        s_add_u32 s{S_T0}, s{S_STEP}, 3
        s_and_b32 s{S_T0}, s{S_T0}, 3
        s_mul_i32 s{S_T1}, s{S_T0}, {L.PB_SZ}
        s_add_u32 s32, s{S_T1}, s31
        ''')
        for jt in range(3):
            for s_ in zero(SA(jt)): a(s_)
        step_head(st, [f'buffer_load_dword v{VPROG}, off, {SRD}, s35 sc1'])
        a(f's_add_u32 s{S_STEP}, s{S_STEP}, 1')
        def mh(g): return [f'ds_read_b128 v[{MH(g)+4*p}:{MH(g)+4*p+3}], v{VMH} offset:{LDS_MEM+1024*g+512*p}' for p in range(2)]
        def tr(g): return [f'ds_read_b64_tr_b16 v[{TB(g)+2*p}:{TB(g)+2*p+1}], v{VTR} offset:{1024*g+128*p}' for p in range(2)]
        def ssm(g):
            return [f'v_smfmac_f32_16x16x64_bf16 v[{SA(jt)}:{SA(jt)+3}], v[{TB(g)}:{TB(g)+3}], v[{(MH(g) if jt == 2 else XF(g, jt))}:{(MH(g) if jt == 2 else XF(g, jt))+7}], v{VIDX}' for jt in range(3)]
        pre = mh(0) + mh(1) + mh(2) + mh(3)
        def issue(gs, first=True):
            if first: a(f'v_add_u32 v{VPGV}, 1, v{VPGV}')
            a(f'ds_read_b32 v{PGR}, v{VPGA}', tag='pg')
            for g in gs:
                for s_ in tr(g): a(s_, tag=('tr', g))
        def chk(gs):
            lab = a.newlabel('CA_PW')
            a.wait_lg('pg')
            a(f'v_cmp_lt_u32 vcc, v{PGR}, v{VPGV}')
            a.br(f's_cbranch_vccnz {lab}')
            a.label(lab + '_ok')
            d = f'{lab}:\n    ds_read_b32 v{PGR}, v{VPGA}\n' + ''.join(f'    {x}\n' for g in gs for x in tr(g))
            d += f'    s_waitcnt lgkmcnt({2*len(gs)})\n    v_cmp_lt_u32 vcc, v{PGR}, v{VPGV}\n    s_cbranch_vccnz {lab}\n    s_branch {lab}_ok\n'
            a.deferred.append(d)
        def extra(n, ks):
            if (n, ks) in ((2, 0), (2, 1), (3, 0), (3, 1)):
                for _ in range(2): a(pre.pop(0))
            if (n, ks) == (3, 2):
                a(f's_waitcnt vmcnt(0)\nv_readfirstlane_b32 s{S_T0}, v{VPROG}')
            if (n, ks) == (3, 5):
                a(f's_cmp_gt_u32 s{S_T0}, s{S_STEP}\ns_cselect_b32 s38, 1, 0')
            if (n, ks) == (3, 6): issue((0, 1, 2))
        t_phase(WG0, 4, extra)
        def optx(g):
            a('s_cmp_eq_u32 s38, 1')
            a.opt_begin('s_cbranch_scc0')
            for s_ in xld(g): a(s_)
            a.opt_end()
        def run(g, side=()):
            a.wait_lg(('tr', g))
            side = list(side)
            for s_ in ssm(g):
                a(s_)
                if side: a(side.pop(0))
        for s_ in post(3, True)[:2]: a(s_)
        chk((0, 1, 2))
        run(0); run(1)
        a.wait_lg(('tr', 2))
        a(post(3, True)[2])
        issue((3,))
        run(2)
        chk((3,))
        run(3)
        for s_ in mh(4) + mh(5) + mh(6): a(s_)
        optx(0)
        issue((4,)); optx(1); chk((4,)); run(4)
        issue((5,)); optx(2); chk((5,))
        a.wait_lg(('tr', 5))
        issue((6,)); run(5); chk((6,)); run(6)
        st()
        E, O, K = SA(0), SA(1), SA(2)
        for r in (E, O, K): a(f'v_pk_add_f32 v[{r}:{r+1}], v[{r}:{r+1}], v[{r+2}:{r+3}]')
        for b in range(2): a(f'v_max3_f32 v{M+b}, v{E+b}, v{O+b}, v{K+b}')
        def red(op):
            for r in (8, 4, 2, 1):
                for b in range(2): a(f'{op}_dpp v{M+b}, v{M+b}, v{M+b} row_ror:{r} row_mask:0xf bank_mask:0xf')
        red('v_max_f32')
        for r in (E, O, K): a(f'v_pk_add_f32 v[{r}:{r+1}], v[{r}:{r+1}], v[{M}:{M+1}] neg_lo:[0,1] neg_hi:[0,1]')
        for r in (E, O, K):
            for b in range(2): a(f'v_exp_f32 v{r+b}, v{r+b}')
        a(f'v_pk_add_f32 v[{M}:{M+1}], v[{E}:{E+1}], v[{O}:{O+1}]')
        a(f'v_pk_fma_f32 v[{M}:{M+1}], v[{K}:{K+1}], 0.5, v[{M}:{M+1}] op_sel_hi:[1,0,1]')
        red('v_add_f32')
        a(f'''
        v_rcp_f32 v{M}, v{M}
        v_rcp_f32 v{M+1}, v{M+1}
        v_pk_mul_f32 v[{K}:{K+1}], v[{K}:{K+1}], v[{M}:{M+1}]
        v_pk_mul_f32 v[{E}:{E+1}], v[{E}:{E+1}], v[{M}:{M+1}]
        v_cndmask_b32 v{K}, v{K}, v{K+1}, s[28:29]
        v_pk_mul_f32 v[{O}:{O+1}], v[{O}:{O+1}], v[{M}:{M+1}]
        v_cvt_pk_bf16_f32 v{E}, v{E}, v{O}
        v_mov_b32_dpp v{K+1}, v{K} quad_perm:[1,0,3,2] row_mask:0xf bank_mask:0xf
        v_min_u32 v{E}, -2, v{E}
        buffer_store_dword v{E}, v{VP0}, {SRD}, s{S_PB} offen {st_flag}
        v_cvt_pk_bf16_f32 v{E+1}, v{E+1}, v{O+1}
        v_cvt_pk_bf16_f32 v{K}, v{K}, v{K+1}
        v_min_u32 v{E+1}, -2, v{E+1}
        buffer_store_dword v{E+1}, v{VP0}, {SRD}, s{S_PB} offen offset:16 {st_flag}
        v_min_u32 v{K}, -2, v{K}
        v_mov_b32 v{M}, -1
        s_mov_b64 exec, s[36:37]
        buffer_store_dword v{K}, v{VPM}, {SRD}, s{S_PB} offen {st_flag}
        buffer_store_dword v{M}, v{VPM}, {SRD}, s32 offen {st_flag}
        s_mov_b64 exec, -1
        buffer_store_dword v{M}, v{VP0}, {SRD}, s32 offen {st_flag}
        buffer_store_dword v{M}, v{VP0}, {SRD}, s32 offen offset:16 {st_flag}
        ''')
        st()
        if stamps: a(f's_sub_u32 s{S_STEP}, s{S_STEP}, 1')
        st.flush(0, G0, G0 + 1)
        if stamps: a(f's_add_u32 s{S_STEP}, s{S_STEP}, 1')
        late = a.newlabel('CA0_LATE')
        a(f'''
        s_cmp_ge_u32 s{S_STEP}, 63
        s_cbranch_scc1 {loop}_end
        s_cmp_eq_u32 s38, 1
        s_cbranch_scc1 {late}
        ''')
        prog_gate(a, VPROG, VZ, 35, S_STEP)
        for g in range(3):
            for s_ in xld(g): a(s_)
        a.label(late)
        for g in (3, 4, 5, 6):
            for s_ in xld(g): a(s_)
        a(f'v_readfirstlane_b32 s{S_T0}, v{VPROG}')
        a(f's_add_u32 s{S_T1}, s{S_STEP}, 1')
        a(f's_cmp_gt_u32 s{S_T0}, s{S_T1}')
        a.opt_begin('s_cbranch_scc0')
        a(f'buffer_load_dword v{T2}, v{VTX}, {SRD}, s{S_TX} offen sc1')
        a.opt_end()
        a(f's_add_u32 s{S_TX}, s{S_TX}, {L.XN_SZ}')
        a(f's_branch {loop}')
        a.label(loop + '_end')
        a('s_endpgm')
    mode_split(a, body, TMP)

def chain_B(a, stamps=False, st_flag=''):
    st = Stamps(a, stamps)
    regs = [256 + 8 * g for g in range(32)] + [128 + 8 * g for g in range(16)]
    WG = {}
    n = 0
    for tl in range(8):
        for ks in range(6):
            WG[(tl, ks)] = regs[n]; n += 1
    ACC = 4
    UXF = 36
    MEMF = 68
    PF = MEMF
    W6 = 96
    UMF = 112
    G = W6
    FACC = ACC
    VG0, VW6, VIDX, VMF, VL16, VUX, VRW, VMST = 120, 121, 122, 123, 124, 125, 126, 127
    TMP, TMP2 = 2, 3
    VRR, VL8 = 0, 1
    LDS_MEM, LDS_RED, LDS_W = 0, 8192, 12288
    S_MEM, S_PB, S_UX, S_UM, S_MX = 21, 22, 23, 24, 25
    lane = f'v{V_LANE}'
    a(f'''
    s_lshl_b32 s{S_T0}, s{S_ROLE}, 2
    s_add_u32 s{S_T0}, s{S_T0}, s{S_W}
    s_mul_i32 s{S_T0}, s{S_T0}, 114688
    s_add_u32 s{S_T2}, s{S_T0}, {L.WBC}
    v_lshlrev_b32 v{VL16}, 4, {lane}
    s_lshl_b32 s{S_T3}, s{S_W}, 14
    s_add_u32 s{S_T3}, s{S_T3}, {LDS_W}
    ''')
    for tl in range(8):
        for ks in range(7):
            for p in range(2):
                o = (ks * 2048 + p * 1024) % 4096
                if ks < 6:
                    a(f'buffer_load_dwordx4 {R(WG[(tl,ks)] + 4 * p, 4)}, v{VL16}, {SRD}, s{S_T2} offen offset:{o}')
                else:
                    if p == 0: a(f's_mov_b32 m0, s{S_T3}')
                    a(f'buffer_load_dwordx4 v{VL16}, {SRD}, s{S_T2} offen offset:{o} lds')
            if ks % 2 == 1: a(f's_add_u32 s{S_T2}, s{S_T2}, 4096')
        a(f's_add_u32 s{S_T2}, s{S_T2}, 2048')
        a(f's_add_u32 s{S_T3}, s{S_T3}, 2048')
    gather_mem_setup(a, VG0)
    a(f'''
    v_lshrrev_b32 v{TMP}, 4, {lane}
    v_and_b32 v{TMP2}, 15, {lane}
    v_and_b32 v{VIDX}, 2, {lane}
    v_cmp_eq_u32 vcc, 2, v{VIDX}
    v_mov_b32 v{VIDX}, 0x44444444
    v_mov_b32 v{VMF}, 0xeeeeeeee
    v_cndmask_b32 v{VIDX}, v{VIDX}, v{VMF}, vcc
    v_and_b32 v{VMF}, 2, {lane}
    v_lshlrev_b32 v{VMF}, 6, v{VMF}
    v_lshl_add_u32 v{VMF}, v{TMP}, 8, v{VMF}
    v_bfe_u32 v{VUX}, {lane}, 2, 2
    v_lshl_add_u32 v{VMF}, v{VUX}, 5, v{VMF}
    v_and_b32 v{VUX}, 1, {lane}
    v_lshl_add_u32 v{VMF}, v{VUX}, 4, v{VMF}
    s_mul_i32 s{S_T0}, s{S_W}, {4*28672}
    s_lshl_b32 s{S_T1}, s{S_ROLE}, 11
    s_add_u32 s{S_T0}, s{S_T0}, s{S_T1}
    v_lshlrev_b32 v{VUX}, 4, v{TMP2}
    v_lshl_add_u32 v{VUX}, v{TMP}, 9, v{VUX}
    v_add_u32 v{VUX}, s{S_T0}, v{VUX}
    s_lshr_b32 s{S_T0}, s{S_W}, 1
    s_lshl_b32 s{S_T0}, s{S_T0}, 10
    s_and_b32 s{S_T1}, s{S_W}, 1
    s_lshl_b32 s{S_T1}, s{S_T1}, 3
    s_add_u32 s{S_T0}, s{S_T0}, s{S_T1}
    s_add_u32 s{S_T0}, s{S_T0}, {LDS_RED}
    v_add_u32 v{VRW}, s{S_T0}, v{VL16}
    v_lshrrev_b32 v{VMST}, 2, v{TMP2}
    v_lshlrev_b32 v{VMST}, 7, v{VMST}
    v_lshl_add_u32 v{VMST}, v{TMP}, 5, v{VMST}
    v_and_b32 v{TMP2}, 3, {lane}
    v_lshl_add_u32 v{VMST}, v{TMP2}, 2, v{VMST}
    s_lshl_b32 s{S_T0}, s{S_ROLE}, 9
    s_lshl_b32 s{S_T1}, s{S_T1}, 1
    s_add_u32 s{S_T0}, s{S_T0}, s{S_T1}
    v_add_u32 v{VMST}, s{S_T0}, v{VMST}
    s_mul_i32 s{S_MX}, s{S_LAYER}, {64*L.MEM_SZ}
    s_add_u32 s{S_MX}, s{S_MX}, {L.MEMX}
    s_mul_i32 s30, s{S_LAYER}, {4*L.MEM_SZ}
    s_add_u32 s30, s30, {L.MEML}
    s_mul_i32 s31, s{S_LAYER}, {4*L.PB_SZ}
    s_mul_i32 s{S_T0}, s{S_W}, 2560
    s_add_u32 s31, s31, s{S_T0}
    s_add_u32 s31, s31, {L.PB}
    s_mul_i32 s{S_UX}, s{S_LAYER}, {64*L.UX_SZ}
    s_add_u32 s{S_UX}, s{S_UX}, {L.UX}
    s_mul_i32 s{S_UM}, s{S_LAYER}, {64*L.UM_SZ}
    s_lshl_b32 s{S_T0}, s{S_ROLE}, 2
    s_add_u32 s{S_T0}, s{S_T0}, s{S_W}
    s_lshl_b32 s{S_T0}, s{S_T0}, 11
    s_add_u32 s{S_UM}, s{S_UM}, s{S_T0}
    s_add_u32 s{S_UM}, s{S_UM}, {L.UM}
    s_lshl_b32 s26, s{S_W}, 14
    s_add_u32 s26, s26, {LDS_W}
    v_add_u32 v{VW6}, s26, v{VL16}
    s_and_b32 s27, s{S_W}, 1
    s_lshl_b32 s27, s27, 11
    s_add_u32 s27, s27, {LDS_RED}
    v_add_u32 v{VRR}, s27, v{VL16}
    v_lshrrev_b32 v{VL8}, 1, v{VL16}
    s_lshl_b32 s35, s{S_LAYER}, 15
    s_lshl_b32 s36, s{S_ROLE}, 2
    s_add_u32 s36, s36, s{S_W}
    s_lshl_b32 s36, s36, 2
    s_add_u32 s36, s36, s35
    s_add_u32 s36, s36, {L.flag(L.FL_UM)}
    s_add_u32 s35, s35, {L.flag(L.FL_PROG)}
    s_mov_b32 s{S_STEP}, 0
    ''')
    def ux_list():
        out = []
        for hp in range(4):
            for ct in range(2):
                r = UXF + 16 * ct + 8 * (hp >> 1) + 4 * (hp & 1)
                l = f'buffer_load_dwordx4 v[{r}:{r+3}], v{VUX}, {SRD}, s{S_UX} offen offset:{256*ct} sc1'
                if ct == 1: l += f'\ns_add_u32 s{S_UX}, s{S_UX}, {28672 if hp < 3 else L.UX_SZ - 3 * 28672}'
                out.append(l)
        return out
    def um_stores():
        a(f'''
        buffer_store_dwordx4 v[{UMF}:{UMF+3}], v{VL16}, {SRD}, s{S_UM} offen sc1
        buffer_store_dwordx4 v[{UMF+4}:{UMF+7}], v{VL16}, {SRD}, s{S_UM} offen offset:1024 sc1
        s_add_u32 s{S_UM}, s{S_UM}, {L.UM_SZ}
        ''')
    def body(st_flag):
        loop = a.newlabel('CB_LOOP'); end = a.newlabel('CB_END'); skip = a.newlabel('CB_SKIP')
        a.flush(); a.label(loop)
        a(f'''
        s_and_b32 s{S_T0}, s{S_STEP}, 3
        s_mul_i32 s{S_T1}, s{S_T0}, {L.MEM_SZ}
        s_add_u32 s{S_MEM}, s{S_T1}, s30
        s_mul_i32 s{S_T1}, s{S_T0}, {L.PB_SZ}
        s_add_u32 s{S_PB}, s{S_T1}, s31
        s_add_u32 s{S_T0}, s{S_STEP}, 1
        s_and_b32 s{S_T0}, s{S_T0}, 3
        s_mul_i32 s{S_T1}, s{S_T0}, {L.MEM_SZ}
        s_add_u32 s28, s{S_T1}, s30
        s_add_u32 s{S_T0}, s{S_STEP}, 3
        s_and_b32 s{S_T0}, s{S_T0}, 3
        s_mul_i32 s{S_T1}, s{S_T0}, {L.MEM_SZ}
        s_add_u32 s29, s{S_T1}, s30
        ''')
        for i in range(0, 32, 2): a(f'v_mov_b64 v[{ACC+i}:{ACC+i+1}], 0')
        gather_mem(a, st, G, VG0, S_MEM, TMP, LDS_MEM, TMP2)
        for ks in range(7): a(f'ds_read_b128 v[{MEMF+4*ks}:{MEMF+4*ks+3}], v{VMF} offset:{LDS_MEM+1024*ks}')
        nx = a.newlabel('CB_NX'); nu = a.newlabel('CB_NU')
        a(f'''
        s_cmp_lg_u32 s{S_ROLE}, 0
        s_cbranch_scc1 {nx}
        s_add_u32 s34, s{S_MX}, s33
        buffer_store_dwordx4 v[{G}:{G+3}], v{VG0}, {SRD}, s{S_MX} offen sc1
        buffer_store_dwordx4 v[{G+4}:{G+7}], v{VG0}, {SRD}, s34 offen sc1
        s_nop 0
        ''')
        a.label(nx)
        a(f'''
        s_cmp_eq_u32 s{S_STEP}, 0
        s_cbranch_scc1 {nu}
        ''')
        um_stores()
        a.label(nu)
        a(f'v_mov_b32 v{TMP}, 0')
        prog_gate(a, TMP2, TMP, 35, S_STEP)
        def w6read(tl):
            r = W6 + 8 * (tl % 2)
            return [f'ds_read_b128 v[{r}:{r+3}], v{VW6} offset:{2048*tl}', f'ds_read_b128 v[{r+4}:{r+7}], v{VW6} offset:{2048*tl+1024}']
        for s_ in w6read(0) + w6read(1): a(s_)
        def pack(tl):
            c = ACC + 4 * tl; hh, ct = tl >> 1, tl & 1
            return [f'v_pk_add_f32 v[{c}:{c+1}], v[{c}:{c+1}], v[{c+2}:{c+3}]', f'v_cvt_pk_bf16_f32 v{UMF+4*ct+hh}, v{c}, v{c+1}', f'v_min_u32 v{UMF+4*ct+hh}, -2, v{UMF+4*ct+hh}']
        uxl = ux_list()
        for ks in range(6):
            if ks < 2: a(f's_waitcnt lgkmcnt({10-ks})')
            for tl in range(8):
                c = ACC + 4 * tl
                a(f'v_smfmac_f32_16x16x64_bf16 v[{c}:{c+3}], v[{MEMF+4*ks}:{MEMF+4*ks+3}], {R(WG[(tl,ks)],8)}, v{VIDX}')
                if tl in (1, 5) and uxl: a(uxl.pop(0))
            if 1 <= ks <= 4:
                a('s_waitcnt lgkmcnt(0)')
                for j in range(2):
                    tl = [2, 3, 4, 5, 0, 1, 6, 7][2 * (ks - 1) + j] if False else 2 * (ks - 1) + j
                    c = ACC + 4 * tl; r = W6 + 8 * j
                    a(f'v_smfmac_f32_16x16x64_bf16 v[{c}:{c+3}], v[{MEMF+24}:{MEMF+27}], v[{r}:{r+7}], v{VIDX}')
                if ks < 4:
                    for s_ in w6read(2 * ks) + w6read(2 * ks + 1): a(s_)
        for tl in range(8):
            for s_ in pack(tl): a(s_)
        a(f'''
        s_cmp_eq_u32 s{S_STEP}, 63
        s_cbranch_scc1 {end}
        ''')
        for i in range(0, 8, 2): a(f'v_mov_b64 v[{FACC+i}:{FACC+i+1}], 0')
        st()
        mk = lambda P: [f'buffer_load_dwordx4 v[{P}:{P+3}], v{VL16}, {SRD}, s{S_PB} offen sc1',
                 f'buffer_load_dwordx4 v[{P+4}:{P+7}], v{VL16}, {SRD}, s{S_PB} offen offset:1024 sc1',
                 f'buffer_load_dwordx2 v[{P+8}:{P+9}], v{VL8}, {SRD}, s{S_PB} offen offset:2048 sc1']
        def cons(PF):
            for m in range(2):
                for ct in range(2):
                    a(f'v_smfmac_f32_16x16x64_bf16 v[{FACC+4*ct}:{FACC+4*ct+3}], v[{PF+4*m}:{PF+4*m+3}], v[{UXF+16*ct+8*m}:{UXF+16*ct+8*m+7}], v{VIDX}')
            for ct in range(2):
                a(f'v_smfmac_f32_16x16x32_bf16 v[{FACC+4*ct}:{FACC+4*ct+3}], v[{PF+8}:{PF+9}], v[{UMF+4*ct}:{UMF+4*ct+3}], v{VIDX}')
        poll2(a, mk, [PF, PF + 12], 10, TMP, cons)
        st()
        T = ACC + 8
        a(f'''
        v_mov_b32 v{TMP}, -1
        s_cmp_ge_u32 s{S_W}, 2
        v_add_f32 v{T}, v{FACC}, v{FACC+2}
        v_add_f32 v{T+2}, v{FACC+1}, v{FACC+3}
        v_add_f32 v{T+1}, v{FACC+4}, v{FACC+6}
        v_add_f32 v{T+3}, v{FACC+5}, v{FACC+7}
        ds_write2st64_b64 v{VRW}, v[{T}:{T+1}], v[{T+2}:{T+3}] offset0:0 offset1:4
        s_waitcnt lgkmcnt(0)
        s_barrier
        s_cbranch_scc1 {skip}
        ds_read_b128 v[{T}:{T+3}], v{VRR}
        ds_read_b128 v[{T+4}:{T+7}], v{VRR} offset:1024
        s_waitcnt lgkmcnt(1)
        v_pk_add_f32 v[{T}:{T+1}], v[{T}:{T+1}], v[{T+2}:{T+3}]
        s_waitcnt lgkmcnt(0)
        v_pk_add_f32 v[{T+4}:{T+5}], v[{T+4}:{T+5}], v[{T+6}:{T+7}]
        v_pk_add_f32 v[{T}:{T+1}], v[{T}:{T+1}], v[{T+4}:{T+5}]
        v_cvt_pk_bf16_f32 v{T}, v{T}, v{T+1}
        v_min_u32 v{T}, -2, v{T}
        buffer_store_dword v{T}, v{VMST}, {SRD}, s28 offen {st_flag}
        buffer_store_dword v{TMP}, v{VMST}, {SRD}, s29 offen {st_flag}
        ''')
        a.label(skip)
        st()
        st.flush(2 << 20, TMP, TMP2)
        a(f'''
        s_add_u32 s{S_MX}, s{S_MX}, {L.MEM_SZ}
        s_add_u32 s{S_STEP}, s{S_STEP}, 1
        s_branch {loop}
        ''')
        a.label(end)
        um_stores()
        a('s_endpgm')
    mode_split(a, body, TMP)

def helper_prog(a, st_flag=''):
    def body(st_flag):
        loop = a.newlabel('HP')
        a(f"""
        s_cmp_lg_u32 s{S_W}, 0
        s_cbranch_scc1 {loop}_end
        v_min_u32 v2, 59, v{V_LANE}
        v_lshlrev_b32 v2, 3, v2
        v_mov_b32 v3, 0
        s_lshl_b32 s21, s{S_LAYER}, 15
        s_add_u32 s22, s21, {L.flag(L.FL_PROG)}
        s_add_u32 s21, s21, {L.flag(L.FL_U)}
        s_mov_b32 s{S_STEP}, 0
        """)
        a.label(loop)
        wait_flags(a, 21, 2, 4, width=2, sleep=1)
        a(f"""
        s_add_u32 s{S_STEP}, s{S_STEP}, 1
        s_add_u32 s21, s21, 512
        v_mov_b32 v6, s{S_STEP}
        s_mov_b64 exec, 1
        buffer_store_dword v6, v3, {SRD}, s22 offen {st_flag}
        s_mov_b64 exec, -1
        s_cmp_lt_u32 s{S_STEP}, 64
        s_cbranch_scc1 {loop}
        """)
        a.label(loop + '_end')
        a('s_endpgm')
    mode_split(a, body, 4)

def helper_touch(a):
    loop = a.newlabel('WX')
    a(f'''
    v_min_u32 v2, 55, v{V_LANE}
    v_lshlrev_b32 v2, 7, v2
    v_and_b32 v3, 1, v{V_LANE}
    v_mul_u32_u24 v3, {L.MEM_SZ}, v3
    s_mul_i32 s22, s{S_LAYER}, {64*L.MEM_SZ}
    s_add_u32 s22, s22, {L.MEMX}
    s_lshl_b32 s23, s{S_LAYER}, 15
    s_add_u32 s23, s23, {L.flag(L.FL_PROG)}
    s_mul_i32 s{S_T2}, s{S_LAYER}, {64*L.UX_SZ}
    s_add_u32 s{S_T2}, s{S_T2}, {L.UX + L.UX_SZ + 57344}
    s_mov_b32 s{S_STEP}, 1
    ''')
    for i in range(5):
        a(f'''
        s_add_u32 s{S_T0}, s21, {7*i}
        s_min_u32 s{S_T0}, s{S_T0}, 31
        s_lshr_b32 s{S_T1}, s{S_T0}, 3
        s_mul_i32 s{S_T1}, s{S_T1}, 114688
        s_and_b32 s{S_T0}, s{S_T0}, 7
        s_mul_i32 s{S_T0}, s{S_T0}, 7168
        s_add_u32 s{S_T0}, s{S_T0}, s{S_T1}
        s_add_u32 s{26+i}, s{S_T0}, s{S_T2}
        ''')
    a.label(loop)
    a(f'''
    s_sleep 2
    buffer_load_dword v8, v3, {SRD}, s22 offen sc1
    buffer_load_dword v9, off, {SRD}, s23 sc1
    s_sub_u32 s{S_ABORT}, s{S_ABORT}, 1
    s_cbranch_scc1 {loop}_end
    s_waitcnt vmcnt(0)
    v_readfirstlane_b32 s24, v9
    v_readlane_b32 s25, v8, 0
    v_readlane_b32 s31, v8, 1
    s_cmp_lg_u32 s31, -1
    s_cbranch_scc1 {loop}_skip
    s_cmp_gt_u32 s24, s{S_STEP}
    s_cbranch_scc0 {loop}
    s_cmp_eq_u32 s25, -1
    s_cbranch_scc1 {loop}
    ''')
    for i in range(5): a(f'buffer_load_dword v4, v2, {SRD}, s{26+i} offen sc1')
    a.label(loop + '_skip')
    for i in range(5): a(f's_add_u32 s{26+i}, s{26+i}, {L.UX_SZ}')
    a(f'''
    s_add_u32 s22, s22, {L.MEM_SZ}
    s_add_u32 s{S_STEP}, s{S_STEP}, 1
    s_cmp_lt_u32 s{S_STEP}, 63
    s_cbranch_scc1 {loop}
    ''')
    a.label(loop + '_end')
    a('s_endpgm')

def filler(a):
    loop = a.newlabel('FILL')
    a(f'''
    v_lshlrev_b32 v2, 4, v{V_LANE}
    v_mov_b32 v4, -1
    v_mov_b32 v5, -1
    v_mov_b32 v6, -1
    v_mov_b32 v7, -1
    v_mov_b32 v8, 1
    s_mul_i32 s22, s{S_W}, 28672
    s_add_u32 s22, s22, {L.UM}
    s_lshl_b32 s23, s{S_W}, 2
    s_add_u32 s23, s23, {L.flag(L.FL_U) + 448}
    ''')
    a.label(loop)
    a(f'''
    s_lshr_b32 s27, s21, 1
    s_cmp_lt_u32 s27, 10
    s_cbranch_scc1 {loop}_go
    s_sub_u32 s28, s27, 10
    s_mul_i32 s28, s28, {L.MEM_SZ}
    s_add_u32 s28, s28, {L.MEMX}
    ''')
    a.label(loop + '_w')
    a(f'''
    buffer_load_dword v9, off, {SRD}, s28 sc1
    s_sub_u32 s{S_ABORT}, s{S_ABORT}, 1
    s_cbranch_scc1 {loop}_ab
    s_waitcnt vmcnt(0)
    v_cmp_eq_u32 vcc, -1, v9
    s_cbranch_vccz {loop}_go
    s_sleep 16
    s_branch {loop}_w
    ''')
    a.label(loop + '_ab')
    a(f's_mov_b32 s{S_ABORT}, 0')
    a.label(loop + '_go')
    a('s_and_b32 s28, s21, 1')
    a('s_lshl_b32 s28, s28, 6')
    a('s_add_u32 s28, s28, s27')
    a(f's_mul_i32 s24, s28, {L.UM_SZ}')
    a('s_add_u32 s24, s24, s22')
    for i in range(28):
        a(f'buffer_store_dwordx4 v[4:7], v2, {SRD}, s24 offen offset:{(i % 4) * 1024} sc1')
        if i % 4 == 3: a('s_add_u32 s24, s24, 4096')
    a(f'''
    s_lshl_b32 s24, s28, 9
    s_add_u32 s24, s24, s23
    s_sub_u32 s25, s24, {512 - 16}
    s_cmp_eq_u32 s27, 0
    s_cselect_b32 s26, {64*512}, 0
    s_add_u32 s25, s25, s26
    s_waitcnt vmcnt(0)
    s_mov_b64 exec, 1
    buffer_store_dword v8, off, {SRD}, s24 sc1
    buffer_store_dword v8, off, {SRD}, s25 sc1
    s_mov_b64 exec, -1
    s_add_u32 s21, s21, 8
    s_cmp_lt_u32 s21, 128
    s_cbranch_scc1 {loop}
    s_endpgm
    ''')
```

```python
from asmlib import *
import layout as L
R = RegFile.r
SRD = 's[8:11]'
S_WS, S_DBG = 4, 6
S_W = 12
S_ROLE = 13
S_LAYER = 14
S_STEP = 15
S_ABORT = 16
S_T0, S_T1, S_T2, S_T3 = 17, 18, 19, 20
V_LANE = 1
POLL_BUDGET = 300000
import os
CYC = bool(os.environ.get('CYC'))

def common_prologue(a):
    a(f'''
    s_load_dwordx2 s[{S_WS}:{S_WS+1}], s[0:1], 104
    s_load_dwordx2 s[{S_DBG}:{S_DBG+1}], s[0:1], 96
    v_lshrrev_b32 v2, 6, v0
    v_and_b32 v{V_LANE}, 63, v0
    v_readfirstlane_b32 s{S_W}, v2
    s_waitcnt lgkmcnt(0)
    s_mov_b32 s8, s{S_WS}
    s_and_b32 s9, s{S_WS+1}, 0xffff
    s_mov_b32 s10, 0x10000000
    s_mov_b32 s11, 0x00020000
    s_mov_b32 s{S_ABORT}, {POLL_BUDGET}
    ''')

def check(a, regs, tmp):
    r = list(regs)
    a(f'v_max3_u32 v{tmp}, v{r[0]}, v{r[1]}, v{r[2]}'); r = r[3:]
    while len(r) >= 2:
        a(f'v_max3_u32 v{tmp}, v{tmp}, v{r[0]}, v{r[1]}'); r = r[2:]
    if r: a(f'v_max_u32 v{tmp}, v{tmp}, v{r[0]}')
    a(f'v_cmp_eq_u32 vcc, -1, v{tmp}')

def poll(a, loads, regs, tmp, sleep=0):
    lab = a.newlabel('POLL'); done = a.newlabel('POLLD')
    if sleep:
        a(f's_branch {lab}_in')
        a.label(lab); a(f's_sleep {sleep}'); a.label(lab + '_in')
    else: a.label(lab)
    for l in loads: a(l)
    a(f's_sub_u32 s{S_ABORT}, s{S_ABORT}, 1')
    a(f's_cbranch_scc1 {done}_abort')
    a('s_waitcnt vmcnt(0)')
    check(a, regs, tmp)
    a.br(f's_cbranch_vccnz {lab}')
    a.label(done)
    a.deferred.append(f'{done}_abort:\n    s_mov_b32 s{S_ABORT}, 0\n    s_waitcnt vmcnt(0)\n    s_branch {done}\n')

def wait_flags(a, soff, voff, tmp, width=1, sleep=2):
    lab = a.newlabel('WF'); done = a.newlabel('WFD')
    a(f's_branch {lab}_in')
    a.label(lab); a(f's_sleep {sleep}'); a.label(lab + '_in')
    if width == 1: a(f'buffer_load_dword v{tmp}, v{voff}, {SRD}, s{soff} offen sc1')
    else: a(f'buffer_load_dwordx2 v[{tmp}:{tmp+1}], v{voff}, {SRD}, s{soff} offen sc1')
    a(f's_sub_u32 s{S_ABORT}, s{S_ABORT}, 1')
    a(f's_cbranch_scc1 {done}_abort')
    a('s_waitcnt vmcnt(0)')
    if width == 2: a(f'v_min_u32 v{tmp}, v{tmp}, v{tmp+1}')
    a(f'v_cmp_eq_u32 vcc, 0, v{tmp}')
    a.br(f's_cbranch_vccnz {lab}')
    a.label(done)
    a.deferred.append(f'{done}_abort:\n    s_mov_b32 s{S_ABORT}, 0\n    s_waitcnt vmcnt(0)\n    s_branch {done}\n')

def signal(a, soff, vzero, vone, mode='sc1', wait='s_waitcnt vmcnt(0)'):
    a(f'''
    {wait}
    s_mov_b64 exec, 1
    buffer_store_dword v{vone}, v{vzero}, {SRD}, s{soff} offen {mode}
    s_mov_b64 exec, -1
    ''')

def load_frags(a, regs, voff, soff, mods=''):
    for i, r in enumerate(regs):
        a(f'buffer_load_dwordx4 {R(r, 4)}, v{voff}, {SRD}, s{soff} offen offset:{(i % 4) * 1024} {mods}')
        if i % 4 == 3: a(f's_add_u32 s{soff}, s{soff}, 4096')

class Stamps:
    def __init__(self, a, on, base=60):
        self.a, self.on, self.base, self.n = a, on, base, 0
    def __call__(self):
        if self.on:
            self.a(f's_memrealtime s[{self.base+2*self.n}:{self.base+2*self.n+1}]'); self.n += 1
    def cyc(self, k):
        if self.on and CYC: self.a(f's_memtime s[{self.base+16+2*k}:{self.base+17+2*k}]'); self.nc = max(getattr(self, 'nc', 0), k + 1)
    def flush(self, role_off, vt, va, sstep=S_STEP):
        if not self.on: return
        a = self.a
        a('s_waitcnt lgkmcnt(0)')
        a(f's_lshl_b32 s{S_T0}, s{S_ROLE}, 2')
        a(f's_add_u32 s{S_T0}, s{S_T0}, s{S_W}')
        a(f's_lshl_b32 s{S_T0}, s{S_T0}, 7')
        a(f's_add_u32 s{S_T0}, s{S_T0}, s{sstep}')
        a(f's_lshl_b32 s{S_T0}, s{S_T0}, 6')
        a(f's_add_u32 s{S_T0}, s{S_T0}, s59')
        a(f's_add_u32 s{S_T0}, s{S_T0}, {L.DBG + role_off}')
        a(f'v_mbcnt_lo_u32_b32 v{va}, -1, 0')
        a(f'v_lshlrev_b32 v{va}, 2, v{va}')
        for i in range(self.n):
            a(f'v_writelane_b32 v{vt}, s{self.base+2*i}, {i}')
        for i in range(getattr(self, 'nc', 0)):
            a(f'v_writelane_b32 v{vt}, s{self.base+16+2*i}, {8+i}')
        a('s_mov_b64 exec, 0xffff')
        a(f'buffer_store_dword v{vt}, v{va}, {SRD}, s{S_T0} offen')
        a('s_mov_b64 exec, -1')
        self.n = 0

def interleave(a, main, side, per=1, start=0):
    side = list(side)
    for i, m in enumerate(main):
        a(m)
        if i >= start:
            for _ in range(per):
                if side: a(side.pop(0))
    return side

def stats_ops(S, T):
    return [
        f'v_pk_add_f32 v[{S}:{S+1}], v[{S}:{S+1}], v[{S+2}:{S+3}]',
        f'v_pk_add_f32 v[{S+4}:{S+5}], v[{S+4}:{S+5}], v[{S+6}:{S+7}]',
        f'v_pk_add_f32 v[{S}:{S+1}], v[{S}:{S+1}], v[{S+4}:{S+5}]',
        f'v_mov_b32 v{T}, v{S}',
        f'v_mov_b32 v{T+1}, v{S+1}',
        f'v_permlane32_swap_b32 v{T}, v{S}',
        f'v_permlane32_swap_b32 v{T+1}, v{S+1}',
        f'v_pk_add_f32 v[{S}:{S+1}], v[{S}:{S+1}], v[{T}:{T+1}]',
        f'v_mul_f32 v{T}, {hex(f2u(1.0/448))}, v{S}',
        f'v_mul_f32 v{T+1}, {hex(f2u(1.0/448))}, v{S+1}',
        f'v_fma_f32 v{T+1}, -v{T}, v{T}, v{T+1}',
        f'v_max_f32 v{T+1}, 0, v{T+1}',
        f'v_add_f32 v{T+1}, {hex(f2u(1e-5))}, v{T+1}',
        f'v_rsq_f32 v{S}, v{T+1}',
        f'v_mov_b32 v{S+1}, v{T}',
    ]

import struct
def f2u(x): return struct.unpack('<I', struct.pack('<f', x))[0]

def kernel_wrap(name, body, vgpr=512, accum=256, sgpr=102):
    return f'''.text
.globl {name}
.p2align 8
.type {name},@function
{name}:
{body}
.section .rodata,"a"
.p2align 6
.amdhsa_kernel {name}
  .amdhsa_next_free_vgpr {vgpr}
  .amdhsa_next_free_sgpr {sgpr}
  .amdhsa_accum_offset {accum}
  .amdhsa_group_segment_fixed_size 0
  .amdhsa_kernarg_size 112
  .amdhsa_user_sgpr_count 2
  .amdhsa_user_sgpr_kernarg_segment_ptr 1
  .amdhsa_system_sgpr_workgroup_id_x 1
.end_amdhsa_kernel
'''

S_GRP = 56
S_NEED = 57
def mode_split(a, body, vt):
    lab = a.newlabel('MS')
    a.flush()
    a.label(lab)
    a(f"""
    buffer_load_dword v{vt}, off, {SRD}, s{S_GRP} sc1
    s_sub_u32 s{S_ABORT}, s{S_ABORT}, 1
    s_cbranch_scc1 {lab}_ab
    s_waitcnt vmcnt(0)
    v_readfirstlane_b32 s58, v{vt}
    s_and_b32 s{S_T0}, s58, 0xffff
    s_cmp_ge_u32 s{S_T0}, s{S_NEED}
    s_cbranch_scc0 {lab}
    s_lshr_b32 s{S_T0}, s58, 16
    s_cbranch_scc1 {lab}_slow
    """)
    body('')
    a.label(lab + '_ab')
    a(f's_mov_b32 s{S_ABORT}, 0')
    a('s_waitcnt vmcnt(0)')
    a.label(lab + '_slow')
    body('sc1')

def wg_stamp(a, slot, vt, va):
    a(f"""
    s_memrealtime s[96:97]
    s_memtime s[98:99]
    s_lshl_b32 s100, s2, 4
    s_add_u32 s100, s100, {L.DBG + (14 << 20) + slot * 4096}
    s_waitcnt lgkmcnt(0)
    v_mov_b32 v{vt}, s96
    v_mov_b32 v{vt+1}, s98
    buffer_store_dwordx2 v[{vt}:{vt+1}], off, {SRD}, s100
    """)
```

```python
from common import *
import chain, workers

def mega(stamps=False, mask=0xff, static=True, fast=True):
    a = Asm(); a.deferred = []
    common_prologue(a)
    mode = '' if fast else 'sc1'
    REG = L.flag(7)
    if stamps: wg_stamp(a, 2, 10, 0)
    a(f'''
    s_cmp_ge_u32 s2, 256
    s_cbranch_scc1 M_EXIT
    s_mov_b32 s52, 0x20202020
    s_mov_b32 s53, 0x1c1c2020
    s_cmp_lg_u32 s{S_W}, 0
    s_cbranch_scc1 M_WAITROLE
    s_getreg_b32 s3, hwreg(HW_REG_XCC_ID, 0, 3)
    s_mov_b64 exec, 1
    v_mov_b32 v2, 1
    s_lshl_b32 s{S_T0}, s3, 9
    s_add_u32 s{S_T0}, s{S_T0}, {REG}
    buffer_atomic_add v2, off, {SRD}, s{S_T0} sc0 sc1
    s_lshl_b32 s{S_T3}, s3, 3
    s_lshr_b64 s[54:55], s[52:53], s{S_T3}
    s_and_b32 s{S_NEED}, s54, 0xff
    s_waitcnt vmcnt(0)
    v_readfirstlane_b32 s{S_ROLE}, v2
    s_and_b32 s{S_ROLE}, s{S_ROLE}, 0xffff
    s_mov_b64 exec, -1
    s_cmp_lt_u32 s{S_ROLE}, s{S_NEED}
    s_cbranch_scc1 M_GOTROLE
    v_and_b32 v3, 7, v{V_LANE}
    v_lshlrev_b32 v4, 3, v3
    v_lshrrev_b64 v[4:5], v4, s[52:53]
    v_and_b32 v4, 0xff, v4
    v_lshlrev_b32 v3, 9, v3
    s_mov_b32 s{S_T1}, {REG}
    s_mov_b32 s{S_T2}, 60
M_SURP:
    buffer_load_dword v5, v3, {SRD}, s{S_T1} offen sc1
    s_waitcnt vmcnt(0)
    v_and_b32 v5, 0xffff, v5
    v_cmp_lt_u32 vcc, v5, v4
    s_mov_b32 s3, 8
    s_cbranch_vccz M_GOTROLE
    s_sleep 8
    s_sub_u32 s{S_T2}, s{S_T2}, 1
    s_cbranch_scc0 M_SURP
    s_mov_b32 s{S_T2}, 0
    s_ff1_i32_b32 s3, vcc_lo
    s_mov_b64 exec, 1
    v_mov_b32 v2, 0x10001
    s_lshl_b32 s{S_T0}, s3, 9
    s_add_u32 s{S_T0}, s{S_T0}, {REG}
    buffer_atomic_add v2, off, {SRD}, s{S_T0} sc0 sc1
    s_lshl_b32 s{S_T3}, s3, 3
    s_lshr_b64 s[54:55], s[52:53], s{S_T3}
    s_and_b32 s{S_NEED}, s54, 0xff
    s_waitcnt vmcnt(0)
    v_readfirstlane_b32 s{S_ROLE}, v2
    s_and_b32 s{S_ROLE}, s{S_ROLE}, 0xffff
    s_mov_b64 exec, -1
    s_cmp_lt_u32 s{S_ROLE}, s{S_NEED}
    s_cbranch_scc0 M_SURP
M_GOTROLE:
    s_lshl_b32 s{S_T0}, s3, 16
    s_or_b32 s{S_T0}, s{S_T0}, s{S_ROLE}
    v_mov_b32 v2, s{S_T0}
    v_mov_b32 v3, 0
    ds_write_b32 v3, v2
    s_waitcnt lgkmcnt(0)
M_WAITROLE:
    s_barrier
    v_mov_b32 v3, 0
    ds_read_b32 v2, v3
    s_waitcnt lgkmcnt(0)
    v_readfirstlane_b32 s{S_T0}, v2
    s_barrier
    s_lshr_b32 s3, s{S_T0}, 16
    s_and_b32 s{S_ROLE}, s{S_T0}, 0xffff
    s_cmp_ge_u32 s3, 8
    s_cbranch_scc1 M_EXIT
    s_mov_b32 s101, s{S_T0}
    s_lshl_b32 s{S_T3}, s3, 3
    s_lshr_b64 s[54:55], s[52:53], s{S_T3}
    s_and_b32 s{S_NEED}, s54, 0xff
    s_lshl_b32 s{S_GRP}, s3, 9
    s_add_u32 s{S_GRP}, s{S_GRP}, {REG}
    s_and_b32 s{S_LAYER}, s3, 1
    s_lshl_b32 s59, s{S_LAYER}, 20
    s_lshr_b32 s3, s3, 1
    s_cmp_eq_u32 s3, 1
    s_cbranch_scc1 M_T
    s_cmp_eq_u32 s3, 2
    s_cbranch_scc1 M_U
    s_cmp_eq_u32 s3, 3
    s_cbranch_scc1 M_PFF
    s_mov_b32 s21, s{S_W}
    s_cmp_eq_u32 s{S_ROLE}, 31
    s_cbranch_scc1 M_HT
    s_add_u32 s21, s{S_W}, 3
    s_cmp_eq_u32 s{S_ROLE}, 30
    s_cbranch_scc1 M_HP
    s_cmp_ge_u32 s{S_ROLE}, 16
    s_cbranch_scc1 M_CB
    ''')
    chain.chain_A(a, stamps)
    a.label('M_CB'); a(f's_sub_u32 s{S_ROLE}, s{S_ROLE}, 16'); chain.chain_B(a, stamps)
    a.label('M_HP'); a(f's_cmp_lg_u32 s{S_W}, 0'); a('s_cbranch_scc1 M_HT'); chain.helper_prog(a)
    a.label('M_HT'); chain.helper_touch(a)
    a.label('M_T'); workers.role_T(a, stamps)
    a.label('M_U')
    a(f's_cmp_ge_u32 s{S_ROLE}, 28'); a('s_cbranch_scc1 M_FILL')
    workers.role_U(a, stamps)
    a.label('M_FILL')
    a(f's_sub_u32 s21, s{S_ROLE}, 28'); a('s_lshl_b32 s21, s21, 1'); a(f's_add_u32 s21, s21, s{S_LAYER}')
    chain.filler(a)
    a.label('M_PFF')
    a(f'''
    s_cmp_ge_u32 s{S_ROLE}, 28
    s_cbranch_scc1 M_EXIT
    s_cmp_ge_u32 s{S_ROLE}, 21
    s_cbranch_scc1 M_F2
    s_cmp_ge_u32 s{S_ROLE}, 14
    s_cbranch_scc1 M_PU
    ''')
    workers.role_F1(a, stamps)
    a.label('M_PU'); a(f's_sub_u32 s{S_ROLE}, s{S_ROLE}, 14'); workers.role_PU(a, stamps)
    a.label('M_F2'); a(f's_sub_u32 s{S_ROLE}, s{S_ROLE}, 21'); workers.role_F2(a, stamps)
    a.label('M_EXIT')
    a('s_endpgm')
    if stamps:
        a.lines = [('    s_branch M_FIN' if l.strip() == 's_endpgm' else l) for l in a.lines]
        a.lines[-1] = '    s_endpgm'
        a.label('M_FIN'); a('s_mov_b64 exec, -1'); wg_stamp(a, 4, 10, 0)
        a('v_mov_b32 v10, s101'); a(f'buffer_store_dword v10, off, {SRD}, s100 offset:8'); a('s_endpgm')
    for d in a.deferred: a.raw(d)
    return kernel_wrap('mega_kernel', a.text())

HDR = '.amdgcn_target "amdgcn-amd-amdhsa--gfx950"\n'
if __name__ == '__main__':
    for nm, kw in (('mega', {}), ('mega_st', dict(stamps=True))):
        open(f'work/{nm}.s', 'w').write('; @launch grid=(256,1,1) block=(256,1,1) lds=98304\n' + HDR + mega(**kw))
```

```python
from common import *
lane = f'v{V_LANE}'
WBYTES = 448 * 4096 * 2

def prep(stamps=False):
    a = Asm(); a.deferred = []; a.nlabel = 5000
    a('''
    s_cmp_ge_u32 s2, 256
    s_cbranch_scc1 P_EXIT
    s_load_dwordx8 s[24:31], s[0:1], 16
    s_load_dwordx4 s[32:35], s[0:1], 0
    ''')
    common_prologue(a)
    if stamps: wg_stamp(a, 0, 130, 0)
    a(f'''
    s_and_b32 s3, s2, 7
    s_lshr_b32 s21, s2, 3
    s_cmp_ge_u32 s21, 28
    s_cbranch_scc1 P_MISC
    ; pair = x*4 + i/7 ; cb = i%7
    s_mul_i32 s22, s21, 37
    s_lshr_b32 s22, s22, 8
    s_mul_i32 s23, s22, 7
    s_sub_u32 s23, s21, s23
    s_lshl_b32 s3, s3, 2
    s_add_u32 s22, s22, s3
    s_and_b32 s36, s22, 15
    s_lshr_b32 s37, s22, 4
    s_cmp_eq_u32 s37, 0
    s_cselect_b32 s40, s24, s28
    s_cselect_b32 s41, s25, s29
    s_cselect_b32 s44, s26, s30
    s_cselect_b32 s45, s27, s31
    s_and_b32 s41, s41, 0xffff
    s_and_b32 s45, s45, 0xffff
    s_mov_b32 s42, {WBYTES}
    s_mov_b32 s43, 0x00020000
    s_mov_b32 s46, {WBYTES}
    s_mov_b32 s47, 0x00020000
    ''')
    H, M, CB = 36, 37, 23
    LS, RS_ = 's[40:43]', 's[44:47]'
    VSRC, VA, V1A, V1B, V2, VSC = 2, 4, 12, 13, 14, 16
    T = 18
    RF = 24
    FR = 88
    ACC = 104
    PK = 120
    LDS_R = 65536
    def dma_rows(srd, sbase, ldsbase_s, natural):
        for i in range(8):
            rowi = (2 * i) if natural else (16 * ((i >> 1) & 1) + 4 * (i >> 2) + 2 * (i & 1))
            a(f'v_xor_b32 v{T}, {32 * i}, v{VSRC}')
            a(f's_add_u32 s{S_T1}, s{sbase}, {rowi * 8192}')
            a(f's_add_u32 m0, s{ldsbase_s}, {1024 * i}')
            a(f'buffer_load_dwordx4 v{T}, {srd}, s{S_T1} offen lds')
    a(f'''
    ; VSRC = (l>>5)*8192 + ((p ^ (l>>5)) * 16)
    v_lshrrev_b32 v{T}, 5, {lane}
    v_and_b32 v{T+1}, 31, {lane}
    v_xor_b32 v{VSRC}, v{T+1}, v{T}
    v_lshlrev_b32 v{VSRC}, 4, v{VSRC}
    v_lshl_add_u32 v{VSRC}, v{T}, 13, v{VSRC}
    s_lshr_b32 s{S_T0}, s{S_W}, 1
    s_lshl_b32 s48, s{S_T0}, 5
    s_and_b32 s{S_T1}, s{S_W}, 1
    s_lshl_b32 s{S_T2}, s{S_T1}, 3
    s_add_u32 s48, s48, s{S_T2}
    s_lshl_b32 s48, s48, 13
    s_lshl_b32 s{S_T2}, s{H}, 9
    s_add_u32 s48, s48, s{S_T2}
    s_lshl_b32 s49, s{S_W}, 13
    s_add_u32 s50, s49, {LDS_R}
    s_cmp_eq_u32 s{M}, 1
    s_cbranch_scc1 P_RB
    s_lshl_b32 s51, s{CB}, 6
    s_lshl_b32 s{S_T3}, s{S_W}, 4
    s_add_u32 s51, s51, s{S_T3}
    s_lshl_b32 s51, s51, 13
    s_add_u32 s51, s51, s{S_T2}
    ''')
    dma_rows(RS_, 51, 50, True)
    a('s_branch P_RDONE')
    a.label('P_RB')
    a(f'''
    v_lshrrev_b32 v{T}, 3, {lane}
    v_mul_u32_u24 v{T}, 896, v{T}
    v_and_b32 v{T+2}, 7, {lane}
    v_lshl_add_u32 v{T}, v{T+2}, 4, v{T}
    s_lshl_b32 s51, s{H}, 8
    s_lshl_b32 s{S_T3}, s{S_W}, 6
    s_add_u32 s51, s51, s{S_T3}
    s_mul_i32 s51, s51, 896
    s_lshl_b32 s{S_T3}, s{CB}, 7
    s_add_u32 s51, s51, s{S_T3}
    ''')
    for i in range(8):
        a(f's_add_u32 m0, s50, {1024 * i}')
        a(f'buffer_load_dwordx4 v{T}, {RS_}, s51 offen lds')
        a(f's_add_u32 s51, s51, {8 * 896}')
    a.label('P_RDONE')
    dma_rows(LS, 48, 49, False)
    a(f's_add_u32 s48, s48, {64 * 8192}')
    a(f'''
    v_lshrrev_b32 v{T}, 5, {lane}
    v_and_b32 v{T+1}, 31, {lane}
    v_and_b32 v{T+2}, 15, {lane}
    v_xor_b32 v{T+2}, v{T+2}, v{T}
    v_lshlrev_b32 v{T+2}, 4, v{T+2}
    v_lshl_add_u32 v{T+2}, v{T+1}, 9, v{T+2}
    ''')
    for k in range(8): a(f'v_xor_b32 v{VA+k}, {32*k}, v{T+2}')
    a(f'''
    s_and_b32 s{S_T1}, s{S_W}, 1
    s_lshr_b32 s{S_T0}, s{S_W}, 1
    s_lshl_b32 s{S_T2}, s{CB}, 1
    s_add_u32 s{S_T2}, s{S_T2}, s{S_T1}
    s_cmp_eq_u32 s{M}, 1
    s_cbranch_scc1 P_OB
    s_lshl_b32 s{S_T3}, s{S_T2}, 5
    v_add_u32 v{T+2}, s{S_T3}, v{T+1}
    v_lshrrev_b32 v{V2}, 4, v{T+2}
    v_mul_u32_u24 v{V2}, 14336, v{V2}
    v_and_b32 v{T+3}, 15, v{T+2}
    v_lshl_add_u32 v{V2}, v{T+3}, 4, v{V2}
    ; WAT
    v_mul_u32_u24 v{T+3}, 586, v{T+2}
    v_lshrrev_b32 v{T+3}, 16, v{T+3}
    v_mul_u32_u24 v{T+4}, 112, v{T+3}
    v_sub_u32 v{T+4}, v{T+2}, v{T+4}
    v_lshrrev_b32 v{V1A}, 5, v{T+4}
    v_lshlrev_b32 v{V1A}, 1, v{V1A}
    v_bfe_u32 v{T+5}, v{T+4}, 2, 1
    v_add_u32 v{V1B}, v{V1A}, v{T+5}
    v_cmp_gt_u32 vcc, 96, v{T+4}
    v_cndmask_b32 v{V1A}, v{V1A}, v{V1B}, vcc
    v_mad_u32_u24 v{V1A}, v{T+3}, 7, v{V1A}
    v_mul_u32_u24 v{V1A}, 14336, v{V1A}
    v_bfe_u32 v{T+5}, v{T+4}, 3, 2
    v_lshlrev_b32 v{T+5}, 2, v{T+5}
    v_and_b32 v{V1B}, 3, v{T+4}
    v_add_u32 v{T+5}, v{T+5}, v{V1B}
    v_and_b32 v{V1B}, 15, v{T+4}
    v_cndmask_b32 v{T+5}, v{V1B}, v{T+5}, vcc
    v_lshl_add_u32 v{V1A}, v{T+5}, 4, v{V1A}
    v_lshl_add_u32 v{V1A}, v{T}, 9, v{V1A}
    v_add_u32 v{V1B}, 256, v{V1A}
    s_mul_i32 s52, s{H}, 401408
    s_lshl_b32 s{S_T3}, s{S_T0}, 10
    s_add_u32 s52, s52, s{S_T3}
    s_add_u32 s53, s52, {L.WAC}
    s_add_u32 s52, s52, {L.WAT}
    s_mov_b32 s54, 2048
    v_mov_b32 v{VSC}, {hex(f2u(1.4426950408889634/16))}
    s_branch P_ODONE
    ''')
    a.label('P_OB')
    a(f'''
    v_and_b32 v{T+2}, 1, v{T+1}
    v_lshrrev_b32 v{T+3}, 1, v{T+1}
    v_mul_u32_u24 v{V2}, 14336, v{T+2}
    v_lshl_add_u32 v{V2}, v{T+3}, 4, v{V2}
    s_lshl_b32 s53, s{S_T2}, 4
    s_add_u32 s53, s53, s{H}
    s_mul_i32 s53, s53, 28672
    s_lshl_b32 s{S_T3}, s{S_T0}, 10
    s_add_u32 s53, s53, s{S_T3}
    s_add_u32 s53, s53, {L.WBC}
    v_lshl_add_u32 v{V1A}, v{T+2}, 4, v{T+3}
    v_lshlrev_b32 v{V1A}, 4, v{V1A}
    v_lshl_add_u32 v{V1A}, v{T}, 10, v{V1A}
    v_add_u32 v{V1B}, 512, v{V1A}
    s_lshr_b32 s52, s{H}, 1
    s_mul_i32 s52, s52, 14
    s_add_u32 s52, s52, s{S_T2}
    s_lshl_b32 s52, s52, 1
    s_and_b32 s{S_T3}, s{H}, 1
    s_add_u32 s52, s52, s{S_T3}
    s_mul_i32 s52, s52, 28672
    s_lshl_b32 s{S_T3}, s{S_T0}, 11
    s_add_u32 s52, s52, s{S_T3}
    s_add_u32 s52, s52, {L.WBU}
    s_mov_b32 s54, 4096
    v_mov_b32 v{VSC}, 1.0
    ''')
    a.label('P_ODONE')
    a(f'''
    v_lshl_add_u32 v{V2}, v{T}, 9, v{V2}
    s_waitcnt vmcnt(8)
    s_barrier
    s_cmp_eq_u32 s{M}, 1
    s_cbranch_scc1 P_FB
    s_lshl_b32 s{S_T3}, s{S_T1}, 14
    s_add_u32 s{S_T3}, s{S_T3}, {LDS_R}
    ''')
    for k in range(8):
        a(f'v_add_u32 v{T+2}, s{S_T3}, v{VA+k}')
        a(f'ds_read_b128 v[{RF+4*k}:{RF+4*k+3}], v{T+2}')
        a(f'ds_read_b128 v[{RF+32+4*k}:{RF+32+4*k+3}], v{T+2} offset:256')
    a('s_branch P_FDONE')
    a.label('P_FB')
    a(f'''
    v_bfe_u32 v{T+2}, {lane}, 2, 2
    v_lshl_add_u32 v{T+2}, v{T}, 3, v{T+2}
    v_lshlrev_b32 v{T+2}, 7, v{T+2}
    v_bfe_u32 v{T+3}, {lane}, 4, 1
    v_lshl_add_u32 v{T+2}, v{T+3}, 5, v{T+2}
    v_and_b32 v{T+3}, 3, {lane}
    v_lshl_add_u32 v{T+2}, v{T+3}, 3, v{T+2}
    s_lshl_b32 s{S_T3}, s{S_T1}, 6
    s_add_u32 s{S_T3}, s{S_T3}, {LDS_R}
    v_add_u32 v{T+2}, s{S_T3}, v{T+2}
    ''')
    for ks in range(16):
        a(f'ds_read_b64_tr_b16 v[{RF+4*ks}:{RF+4*ks+1}], v{T+2} offset:{2048*ks}')
        a(f'ds_read_b64_tr_b16 v[{RF+4*ks+2}:{RF+4*ks+3}], v{T+2} offset:{2048*ks+512}')
    a.label('P_FDONE')
    a(f's_lshl_b32 s{S_T3}, s{S_T0}, 14')
    for k in range(8): a(f'v_add_u32 v{VA+k}, s{S_T3}, v{VA+k}')
    a('s_waitcnt lgkmcnt(0)')
    for j in range(7):
        buf = (j & 1) * 32768
        a(f's_waitcnt vmcnt({0 if j == 0 else 4})')
        a('s_barrier')
        if j < 6:
            a(f's_add_u32 s55, s49, {32768 - buf}')
            dma_rows(LS, 48, 55, False)
            a(f's_add_u32 s48, s48, {64 * 8192}')
        rd = lambda ks: f'ds_read_b128 v[{FR+4*(ks%4)}:{FR+4*(ks%4)+3}], v{VA+(ks&7)} offset:{buf+256*(ks>>3)}'
        for ks in range(3): a(rd(ks))
        c = f'v[{ACC}:{ACC+15}]'
        for ks in range(16):
            a(f's_waitcnt lgkmcnt({min(2, 15-ks)})')
            a(f'v_mfma_f32_32x32x16_bf16 {c}, v[{FR+4*(ks%4)}:{FR+4*(ks%4)+3}], v[{RF+4*ks}:{RF+4*ks+3}], {"0" if ks == 0 else c}')
            if ks + 3 < 16: a(rd(ks + 3))
        for i in range(8): a(f'v_pk_mul_f32 v[{ACC+2*i}:{ACC+2*i+1}], v[{ACC+2*i}:{ACC+2*i+1}], v[{VSC}:{VSC+1}] op_sel_hi:[1,0]')
        pos2 = {0: 0, 4: 1, 1: 2, 5: 3, 2: 4, 6: 5, 3: 6, 7: 7}
        for i in range(8):
            a(f'v_cvt_pk_bf16_f32 v{PK+i}, v{ACC+2*i}, v{ACC+2*i+1}')
            a(f'v_cvt_pk_bf16_f32 v{PK+8+pos2[i]}, v{ACC+2*i}, v{ACC+2*i+1}')
        a(f'''
        buffer_store_dwordx4 v[{PK}:{PK+3}], v{V1A}, {SRD}, s52 offen
        buffer_store_dwordx4 v[{PK+4}:{PK+7}], v{V1B}, {SRD}, s52 offen
        buffer_store_dwordx4 v[{PK+8}:{PK+11}], v{V2}, {SRD}, s53 offen
        buffer_store_dwordx4 v[{PK+12}:{PK+15}], v{V2}, {SRD}, s53 offen offset:256
        s_add_u32 s52, s52, s54
        s_add_u32 s53, s53, 2048
        ''')
    if stamps:
        a('s_waitcnt vmcnt(0)'); wg_stamp(a, 1, 130, 0)
    a('s_endpgm')
    a.label('P_MISC')
    X, U, Q = 24, 88, 96
    VI, VO, VS = 2, 3, 4
    a(f'''
    ; j = (i-28)*8 + x
    s_sub_u32 s21, s21, 28
    s_lshl_b32 s21, s21, 3
    s_add_u32 s21, s21, s3
    s_mov_b32 s40, s32
    s_and_b32 s41, s33, 0xffff
    s_mov_b32 s42, {2048*896}
    s_mov_b32 s43, 0x00020000
    s_mov_b32 s44, s34
    s_and_b32 s45, s35, 0xffff
    s_mov_b32 s46, 7168
    s_mov_b32 s47, 0x00020000
    v_lshrrev_b32 v{T}, 3, v0
    v_and_b32 v{T+1}, 7, v0
    v_mul_u32_u24 v{VI}, 896, v{T}
    v_lshl_add_u32 v{VI}, v{T+1}, 4, v{VI}
    v_lshlrev_b32 v{VO}, 9, v{T+1}
    v_lshl_add_u32 v{VO}, v{T}, 4, v{VO}
    v_lshlrev_b32 v{VS}, 4, v{T}
    s_mul_i32 s22, s21, {2*28672}
    s_add_u32 s23, s22, 28672
    ''')
    for sg in range(2):
        for c in range(7):
            r = X + 4 * (7 * sg + c)
            a(f'buffer_load_dwordx4 v[{r}:{r+3}], v{VI}, s[40:43], s{22+sg} offen offset:{128*c}')
    nS = (L.SENT_BYTES - 65536) // 32 // 4096 + 1
    a(f'''
    v_lshlrev_b32 v5, 4, v0
    v_mov_b32 v8, -1
    v_mov_b32 v9, -1
    v_mov_b32 v10, -1
    v_mov_b32 v11, -1
    v_mov_b64 v[12:13], 0
    v_mov_b64 v[14:15], 0
    s_mul_i32 s48, s21, {nS*4096}
    s_add_u32 s48, s48, {L.PB}
    ''')
    for i in range(nS):
        a(f'buffer_store_dwordx4 v[8:11], v5, {SRD}, s48 offen'); a('s_add_u32 s48, s48, 4096')
    assert L.PB + 32 * nS * 4096 <= L.FLAGS
    a(f's_lshl_b32 s48, s21, 14'); a(f's_add_u32 s48, s48, {L.FLAGS}')
    for i in range(4):
        a(f'buffer_store_dwordx4 v[12:15], v5, {SRD}, s48 offen'); a('s_add_u32 s48, s48, 4096')
    a(f's_mul_i32 s48, s21, 12288'); a(f's_add_u32 s48, s48, {L.ST + 64*L.ST_SZ}')
    for i in range(3):
        a(f'buffer_store_dwordx4 v[12:15], v5, {SRD}, s48 offen'); a('s_add_u32 s48, s48, 4096')
    a(f'''
    s_cmp_ge_u32 s21, 2
    s_cbranch_scc1 P_NOMEM
    s_mul_i32 s48, s21, {4*L.MEM_SZ}
    s_add_u32 s48, s48, {L.MEML}
    v_mul_u32_u24 v6, 896, v{T+1}
    v_lshl_add_u32 v6, v{T}, 4, v6
    buffer_load_dwordx4 v[{U}:{U+3}], v6, s[44:47], 0 offen
    buffer_load_dwordx4 v[{U+4}:{U+7}], v6, s[44:47], 0 offen offset:512
    s_add_u32 s49, s48, {L.MEM_SZ}
    ''')
    for i in range(5):
        a(f'buffer_store_dwordx4 v[8:11], v5, {SRD}, s49 offen'); a('s_add_u32 s49, s49, 4096')
    a(f'''
    v_cmp_gt_u32 vcc, 64, v0
    s_and_saveexec_b64 s[50:51], vcc
    s_cbranch_execz P_M1
    buffer_store_dwordx4 v[8:11], v5, {SRD}, s49 offen
    ''')
    a.label('P_M1')
    a(f'''
    s_mov_b64 exec, s[50:51]
    s_waitcnt vmcnt(0)
    ''')
    for i in range(8): a(f'v_min_u32 v{U+i}, -2, v{U+i}')
    a(f'''
    buffer_store_dwordx4 v[{U}:{U+3}], v5, {SRD}, s48 offen
    s_add_u32 s48, s48, 4096
    v_cmp_gt_u32 vcc, 192, v0
    s_and_saveexec_b64 s[50:51], vcc
    s_cbranch_execz P_M2
    buffer_store_dwordx4 v[{U+4}:{U+7}], v5, {SRD}, s48 offen
    ''')
    a.label('P_M2')
    a('s_mov_b64 exec, s[50:51]')
    a.label('P_NOMEM')
    a(f'''
    s_waitcnt vmcnt(0)
    s_add_u32 s22, s22, {L.XS}
    s_lshl_b32 s23, s21, 12
    s_add_u32 s23, s23, {L.ST}
    s_mov_b32 s36, 0x01010101
    s_mov_b32 s37, 0x01010101
    ''')
    for sg in range(2):
        for c in range(7):
            r = X + 4 * (7 * sg + c)
            a(f'buffer_store_dwordx4 v[{r}:{r+3}], v{VO}, {SRD}, s22 offen')
            a('s_add_u32 s22, s22, 4096')
            for i in range(4):
                a(f'v_lshlrev_b32 v{U+2*i}, 16, v{r+i}')
                a(f'v_and_b32 v{U+2*i+1}, 0xffff0000, v{r+i}')
            a(f'v_pk_add_f32 v[{Q}:{Q+1}], v[{U}:{U+1}], v[{U+2}:{U+3}]')
            a(f'v_pk_mul_f32 v[{Q+2}:{Q+3}], v[{U}:{U+1}], v[{U}:{U+1}]')
            a(f'v_pk_add_f32 v[{Q+4}:{Q+5}], v[{U+4}:{U+5}], v[{U+6}:{U+7}]')
            for i in (2, 4, 6): a(f'v_pk_fma_f32 v[{Q+2}:{Q+3}], v[{U+i}:{U+i+1}], v[{U+i}:{U+i+1}], v[{Q+2}:{Q+3}]')
            a(f'v_pk_add_f32 v[{Q}:{Q+1}], v[{Q}:{Q+1}], v[{Q+4}:{Q+5}]')
            a(f'v_add_f32 v{Q+6}, v{Q}, v{Q+1}')
            a(f'v_add_f32 v{Q+7}, v{Q+2}, v{Q+3}')
            for d in ('quad_perm:[1,0,3,2]', 'quad_perm:[2,3,0,1]', 'row_half_mirror'):
                for q in (Q + 6, Q + 7): a(f'v_add_f32_dpp v{q}, v{q}, v{q} {d} row_mask:0xf bank_mask:0xf')
            a('s_mov_b64 exec, s[36:37]')
            a(f'buffer_store_dwordx2 v[{Q+6}:{Q+7}], v{VS}, {SRD}, s23 offen offset:{2048*sg+512*(c>>1)+8*(c&1)}')
            if c == 6: a(f'buffer_store_dwordx2 v[12:13], v{VS}, {SRD}, s23 offen offset:{2048*sg+1536+8}')
            a('s_mov_b64 exec, -1')
    if stamps:
        a('s_waitcnt vmcnt(0)'); wg_stamp(a, 1, 130, 0)
    a.label('P_EXIT')
    a('s_endpgm')
    for d in a.deferred: a.raw(d)
    return kernel_wrap('prep_kernel', a.text(), vgpr=136, accum=136)

if __name__ == '__main__':
    open('prep.s', 'w').write('; @launch grid=(256,1,1) block=(256,1,1) lds=98304\n.amdgcn_target "amdgcn-amd-amdhsa--gfx950"\n' + prep())
```

```python
from common import *
lane = f'v{V_LANE}'
LOG2E = 1.4426950408889634
XBUF = 28672

def x_dma(a, s_src, s_buf, vl16):
    a(f's_lshl_b32 s{S_T0}, s{S_W}, 10')
    a(f's_add_u32 s{S_T1}, s{S_T0}, s{s_buf}')
    a(f's_add_u32 s{S_T0}, s{S_T0}, s{s_src}')
    for j in range(7):
        a(f's_mov_b32 m0, s{S_T1}')
        if j < 6: a(f's_add_u32 s{S_T1}, s{S_T1}, 4096')
        a(f'buffer_load_dwordx4 v{vl16}, {SRD}, s{S_T0} offen sc1 lds')
        if j < 6: a(f's_add_u32 s{S_T0}, s{S_T0}, 4096')

def perm32_v(a, dst, src, tmp):
    a(f'''
    v_and_b32 v{dst}, 0x13, v{src}
    v_and_b32 v{tmp}, 4, v{src}
    v_lshl_or_b32 v{dst}, v{tmp}, 1, v{dst}
    v_and_b32 v{tmp}, 8, v{src}
    v_lshrrev_b32 v{tmp}, 1, v{tmp}
    v_or_b32 v{dst}, v{dst}, v{tmp}
    ''')

def xn_pos(a, dst, tmp):
    a(f'''
    v_and_b32 v{dst}, 32, {lane}
    v_lshlrev_b32 v{dst}, 4, v{dst}
    v_and_b32 v{tmp}, 1, {lane}
    v_lshl_add_u32 v{dst}, v{tmp}, 8, v{dst}
    v_bfe_u32 v{tmp}, {lane}, 1, 4
    v_lshl_add_u32 v{dst}, v{tmp}, 4, v{dst}
    ''')

def load_w_tr(a, W, dma, vtr, toff, hoff):
    def issue(k0, k1):
        for ks in range(k0, k1):
            for p in range(2):
                a(f's_add_u32 m0, s38, {(ks % 20) * 2048 + p * 1024}')
                a(dma(ks, p))
    def read(k0, k1):
        for ks in range(k0, k1):
            for t in range(2):
                for hf in range(2):
                    a(f'ds_read_b64_tr_b16 {R(W(t, ks) + 2 * hf, 2)}, v{vtr} offset:{(ks % 20) * 2048 + t * toff + hf * hoff}')
        a('s_waitcnt lgkmcnt(0)')
    issue(0, 20)
    a('s_waitcnt vmcnt(20)'); read(0, 10)
    issue(20, 28)
    a('s_waitcnt vmcnt(16)'); read(10, 20)
    a('s_waitcnt vmcnt(0)'); read(20, 28)
    a('s_barrier')

def tr_addr(a, dst, t0, t1, rowshift, gshift):
    a(f"""
    s_mul_i32 s38, s{S_W}, 40960
    v_lshrrev_b32 v{t0}, 5, {lane}
    v_bfe_u32 v{t1}, {lane}, 2, 2
    v_lshl_add_u32 v{dst}, v{t0}, 3, v{t1}
    v_lshlrev_b32 v{dst}, {rowshift}, v{dst}
    v_bfe_u32 v{t0}, {lane}, 4, 1
    v_lshl_add_u32 v{dst}, v{t0}, {gshift}, v{dst}
    v_and_b32 v{t0}, 1, {lane}
    v_lshl_add_u32 v{dst}, v{t0}, 4, v{dst}
    v_bfe_u32 v{t0}, {lane}, 1, 1
    v_lshl_add_u32 v{dst}, v{t0}, 3, v{dst}
    v_add_u32 v{dst}, s38, v{dst}
    """)

def dma_list(s_src, s_dst, vl16):
    out = []
    for j in range(7):
        out.append(f's_mov_b32 m0, s{s_dst}\ns_add_u32 s{s_dst}, s{s_dst}, 4096\nbuffer_load_dwordx4 v{vl16}, {SRD}, s{s_src} offen sc1 lds\ns_add_u32 s{s_src}, s{s_src}, 4096')
    return out

def unpk(lst):
    out = []
    for x in lst:
        if callable(x) or not x.startswith('v_pk_'): out.append(x); continue
        m = re.match(r'v_pk_(\w+)_f32 (.*?)(?: op_sel_hi:\[([\d,]+)\])?$', x)
        op, ops, sel = m.group(1), split_ops(m.group(2)), m.group(3)
        sel = [int(v) for v in sel.split(',')] if sel else [1] * (len(ops) - 1)
        def pick(o, hi):
            mm_ = re.match(r'v\[(\d+):', o)
            return f'v{int(mm_.group(1)) + hi}' if mm_ else o
        for h in range(2):
            srcs = [pick(o, h and sel[i]) for i, o in enumerate(ops[1:])]
            if op != 'fma' and not srcs[1].startswith('v'): srcs = srcs[::-1]
            out.append(f'v_{op}_f32 {pick(ops[0], h)}, ' + ', '.join(srcs))
    return out

def cost(s_):
    if callable(s_): return 2
    return 2 if s_.startswith(('v_exp', 'v_rcp', 'v_rsq')) else 1

def stream(a, n, rd, mm, gates=None, side_at=None, depth=3, per=5):
    gates = gates or {}; side_at = side_at or {}
    side = []
    def read(i):
        if i in gates: gates[i]()
        a(rd(i), tag=('fr', i))
    for i in range(min(depth, n)): read(i)
    for i in range(n):
        side += unpk(side_at.get(i, []))
        a.wait_lg(('fr', i))
        ms = mm(i)
        for j, m in enumerate(ms):
            a(m)
            budget = per
            if j == len(ms) - 1 and i + depth < n:
                read(i + depth); budget -= 1
            while side and budget >= cost(side[0]):
                x = side.pop(0); budget -= cost(x)
                x() if callable(x) else a(x)
    return side

def flush_side(a, side):
    for x in side: x() if callable(x) else a(x)

def gate(a, tag):
    def g():
        a.wait_vm(tag); a('s_barrier')
    return g

def role_U(a, stamps=False, D=16):
    st = Stamps(a, stamps)
    W = lambda t, ks: 256 + 112 * t + 4 * ks
    VL16, VFR, VZ, VONE, VST, VFL, VSW, VSR, VO, VFRB, VXNR = 2, 3, 4, 5, 6, 7, 8, 9, 10, 11, 12
    CS = 14
    TMP = 18
    S8 = 20
    FR = 28
    ACC = 48
    RR, NN = 80, 96
    TT = 112
    PK = 144
    XR = 160
    LDS_ST = 2 * XBUF
    S1, S2, S_L, S_S, S_BUF, S_PRE, S_UO, S_X, S_O, S_F = 21, 22, 23, 24, 25, 26, 27, 28, 29, 30
    a(f'''
    s_lshl_b32 s{S_T0}, s{S_ROLE}, 2
    s_add_u32 s{S_T0}, s{S_T0}, s{S_W}
    s_mul_i32 s{S_T2}, s{S_T0}, 57344
    s_add_u32 s{S_T2}, s{S_T2}, {L.WBU}
    v_lshlrev_b32 v{VL16}, 4, {lane}
    ''')
    load_frags(a, [W(t, ks) for t in range(2) for ks in range(28)], VL16, S_T2)
    a(f'''
    s_mul_i32 s{S_T1}, s{S_T0}, 4682
    s_lshr_b32 s{S_T1}, s{S_T1}, 16
    s_mul_i32 s{S_T2}, s{S_T1}, 14
    s_sub_u32 s{S_T2}, s{S_T0}, s{S_T2}
    s_mul_i32 s{S_UO}, s{S_T1}, {2*28672}
    s_lshl_b32 s{S_T2}, s{S_T2}, 11
    s_add_u32 s{S_UO}, s{S_UO}, s{S_T2}
    s_add_u32 s{S_UO}, s{S_UO}, {L.UX}
    s_lshl_b32 s31, s{S_T0}, 2
    s_add_u32 s31, s31, {L.flag(L.FL_U)}
    v_mov_b32 v{VZ}, 0
    v_mov_b32 v{VONE}, 1
    ''')
    perm32_v(a, VFR, V_LANE, TMP)
    xn_pos(a, 13, TMP)
    a(f'''
    v_lshrrev_b32 v{TMP}, 5, {lane}
    v_lshlrev_b32 v{VFR}, 4, v{VFR}
    v_lshl_add_u32 v{VFR}, v{TMP}, 9, v{VFR}
    v_and_b32 v{TMP+1}, 31, {lane}
    v_mov_b32 v{VST}, v{VL16}
    v_min_u32 v{VFL}, 27, {lane}
    v_lshlrev_b32 v{VFL}, 2, v{VFL}
    s_lshl_b32 s{S_T0}, s{S_W}, 8
    s_add_u32 s{S_T0}, s{S_T0}, {LDS_ST}
    v_lshlrev_b32 v{VSW}, 2, v{TMP+1}
    v_add_u32 v{VSW}, s{S_T0}, v{VSW}
    v_lshlrev_b32 v{VSR}, 5, v{TMP}
    v_add_u32 v{VSR}, s{S_T0}, v{VSR}
    v_mov_b32 v{VO}, v{VL16}
    s_lshl_b32 s{S_T0}, s{S_W}, 4
    s_mov_b64 s[32:33], 0xffff
    s_lshl_b64 s[32:33], s[32:33], s{S_T0}
    v_mov_b32 v{FR}, 0x3f803f80
    v_mov_b32 v{FR+1}, 0x3f803f80
    v_mov_b32 v{FR+2}, 0x3f803f80
    v_mov_b32 v{FR+3}, 0x3f803f80
    s_waitcnt vmcnt(0)
    ''')
    for ks in range(28):
        for t in range(2):
            c = f'v[{ACC+16*t}:{ACC+16*t+15}]'
            a(f'v_mfma_f32_32x32x16_bf16 {c}, v[{FR}:{FR+3}], {R(W(t,ks),4)}, {"0" if ks == 0 else c}')
    a(f'''
    v_mov_b32 v{CS}, v{ACC}
    v_mov_b32 v{CS+2}, v{ACC+16}
    s_mov_b32 s{S1}, s{S_LAYER}
    s_mov_b32 s{S2}, s{S_LAYER}
    s_mov_b32 s{S_BUF}, 0
    s_mov_b32 s{S_PRE}, 0
    ''')
    a(f's_mov_b32 s35, 0')
    a(f's_lshl_b32 s36, s{S_W}, 10')
    loop, l2, go, end = [a.newlabel(x) for x in ('U_LOOP', 'U_L2', 'U_GO', 'U_END')]
    a.flush(); a.label(loop); a.vm = []; a.lg = []
    a(f'''
    s_add_u32 s{S_T0}, s{S2}, {D}
    s_min_u32 s{S_T0}, s{S_T0}, 64
    s_cmp_lt_u32 s{S1}, s{S_T0}
    s_cbranch_scc0 {l2}
    s_mov_b32 s{S_L}, 0
    s_mov_b32 s{S_S}, s{S1}
    s_add_u32 s{S1}, s{S1}, 2
    s_branch {go}
    ''')
    a.label(l2)
    a(f'''
    s_cmp_ge_u32 s{S2}, 64
    s_cbranch_scc1 {end}
    s_mov_b32 s{S_L}, 1
    s_mov_b32 s{S_S}, s{S2}
    s_add_u32 s{S2}, s{S2}, 2
    s_lshl_b32 s{S_T3}, s{S_S}, 9
    s_add_u32 s{S_T3}, s{S_T3}, {L.flag(L.FL_X, 0)}
    ''')
    wait_flags(a, S_T3, VFL, TMP, sleep=1)
    a.label(go)
    st()
    a(f'''
    s_lshl_b32 s{S_T2}, s{S_L}, 7
    s_add_u32 s{S_T2}, s{S_T2}, s{S_S}
    s_mul_i32 s{S_X}, s{S_T2}, {L.XN_SZ}
    s_add_u32 s{S_X}, s{S_X}, s36
    s_add_u32 s{S_X}, s{S_X}, {L.XS}
    s_add_u32 s37, s{S_BUF}, s36
    s_lshl_b32 s{S_T3}, s{S_T2}, 11
    s_add_u32 s{S_T3}, s{S_T3}, {L.ST}
    s_cmp_eq_u32 s{S_PRE}, 1
    ''')
    nd = a.newlabel('U_ND')
    a.br(f's_cbranch_scc1 {nd}')
    for j, d in enumerate(dma_list(S_X, 37, VL16)): a(d, tag=('d', j))
    a.label(nd)
    a(f'buffer_load_dwordx4 v[{S8}:{S8+3}], v{VST}, {SRD}, s{S_T3} offen sc1')
    a(f'buffer_load_dwordx4 v[{S8+4}:{S8+7}], v{VST}, {SRD}, s{S_T3} offen offset:1024 sc1', tag='st')
    a(f'''
    v_add_u32 v{VFRB}, s{S_BUF}, v{VFR}
    s_lshl_b32 s{S_T0}, s{S_ROLE}, 10
    s_add_u32 s{S_T1}, s{S_T0}, s{S_BUF}
    v_add_u32 v{VXNR}, s{S_T1}, v{VL16}
    s_lshl_b32 s{S_T2}, s{S_L}, 6
    s_add_u32 s{S_T2}, s{S_T2}, s{S_S}
    s_mul_i32 s{S_O}, s{S_T2}, {L.UX_SZ}
    s_add_u32 s{S_O}, s{S_O}, s{S_UO}
    s_lshl_b32 s{S_F}, s{S_T2}, 9
    s_add_u32 s{S_F}, s{S_F}, s31
    s_mul_i32 s34, s{S_T2}, {L.XN_SZ}
    s_add_u32 s34, s34, s{S_T0}
    s_add_u32 s34, s34, {L.XN}
    s_mov_b32 s{S_STEP}, s{S_T2}
    s_xor_b32 s{S_BUF}, s{S_BUF}, {XBUF}
    s_add_u32 s{S_T0}, s{S2}, {D}
    s_min_u32 s{S_T0}, s{S_T0}, 64
    s_cmp_lt_u32 s{S1}, s{S_T0}
    s_cselect_b32 s38, 1, 0
    s_cselect_b64 vcc, -1, 0
    s_mul_i32 s{S_X}, s{S1}, {L.XN_SZ}
    s_add_u32 s{S_X}, s{S_X}, s36
    s_add_u32 s{S_X}, s{S_X}, {L.XS}
    s_add_u32 s37, s{S_BUF}, s36
    ''')
    rd = lambda ks: f'ds_read_b128 v[{FR+4*(ks%4)}:{FR+4*(ks%4)+3}], v{VFRB} offset:{1024*ks}'
    def mm(ks):
        out = []
        for t in range(2):
            c = f'v[{ACC+16*t}:{ACC+16*t+15}]'
            out.append(f'v_mfma_f32_32x32x16_bf16 {c}, v[{FR+4*(ks%4)}:{FR+4*(ks%4)+3}], {R(W(t,ks),4)}, {"0" if ks == 0 else c}')
        return out
    def g3():
        a.wait_vm(('d', 6)); a('s_barrier')
        a(f's_cmp_eq_u32 s{S_PRE}, 1')
        a.opt_begin('s_cbranch_scc0')
        signal(a, 35, VZ, VONE, wait='')
        a.opt_end()
        a(f's_mov_b32 s{S_PRE}, s38')
    def optdma(d):
        def f():
            a.opt_begin('s_cbranch_vccz'); a(d); a.opt_end()
        return f
    U8 = XR + 4
    sd = {}
    sd[13] = [lambda: a.wait_vm('st')] + stats_ops(S8, TMP) + \
             [lambda: a(f'ds_read_b128 v[{XR}:{XR+3}], v{VXNR}', tag='xr'), f'v_mul_f32 v{S8+2}, v{S8}, v{S8+1}', f'v_sub_f32 v{S8+2}, 0, v{S8+2}', f'ds_write2_b32 v{VSW}, v{S8}, v{S8+2} offset0:0 offset1:32']
    for j in range(2):
        for i in range(2):
            sd[13] += [f'ds_read_b128 v[{RR+8*j+4*i}:{RR+8*j+4*i+3}], v{VSR} offset:{64*j+16*i}',
                       f'ds_read_b128 v[{NN+8*j+4*i}:{NN+8*j+4*i+3}], v{VSR} offset:{128+64*j+16*i}']
    last = sd[13].pop()
    sd[13] += [lambda: a(last, tag='nn'), lambda: a.wait_lg('xr')]
    for i in range(4):
        sd[13] += [f'v_lshlrev_b32 v{U8+2*i}, 16, v{XR+i}', f'v_and_b32 v{U8+2*i+1}, 0xffff0000, v{XR+i}',
                 f'v_pk_fma_f32 v[{U8+2*i}:{U8+2*i+1}], v[{U8+2*i}:{U8+2*i+1}], v[{S8}:{S8+1}], v[{S8+2}:{S8+3}] op_sel_hi:[1,0,0]',
                 f'v_cvt_pk_bf16_f32 v{XR+i}, v{U8+2*i}, v{U8+2*i+1}']
    sd[13] += ['s_mov_b64 exec, s[32:33]\n' + f'buffer_store_dwordx4 v[{XR}:{XR+3}], v13, {SRD}, s34 offen sc1\n' + 's_mov_b64 exec, -1']
    dl = dma_list(S_X, 37, VL16)
    for j in range(7): sd[19 + j] = [optdma(dl[j])]
    sd[22] += [lambda: a.wait_lg('nn')] + [f'v_pk_mul_f32 v[{TT+16*t+i}:{TT+16*t+i+1}], v[{NN+i}:{NN+i+1}], v[{CS+2*t}:{CS+2*t+1}] op_sel_hi:[1,0]' for t in range(2) for i in range(0, 16, 2)]
    st.cyc(0); sd[6] = [lambda: st.cyc(1)]; sd[12] = [lambda: st.cyc(2)]
    left = stream(a, 28, rd, mm, {0: gate(a, ('d', 0)), 4: gate(a, ('d', 1)), 8: gate(a, ('d', 3)), 16: g3}, sd)
    st.cyc(3)
    assert not left, left
    for t in range(2):
        for i in range(0, 16, 2):
            c = ACC + 16 * t + i
            a(f'v_pk_fma_f32 v[{c}:{c+1}], v[{c}:{c+1}], v[{RR+i}:{RR+i+1}], v[{TT+16*t+i}:{TT+16*t+i+1}]')
            a(f'v_cvt_pk_bf16_f32 v{PK+8*t+i//2}, v{c}, v{c+1}')
            if i in (6, 14):
                p = PK + 8 * t + (4 if i == 14 else 0)
                a(f'buffer_store_dwordx4 v[{p}:{p+3}], v{VO}, {SRD}, s{S_O} offen offset:{1024 if i == 14 else 0} sc1')
        if t == 0: a(f's_add_u32 s{S_O}, s{S_O}, 28672')
    st(); st.cyc(4)
    st.flush(4 << 20, TMP, TMP + 1)
    a(f's_mov_b32 s35, s{S_F}')
    a(f's_cmp_eq_u32 s{S_PRE}, 1')
    a(f's_cbranch_scc1 {loop}')
    signal(a, S_F, VZ, VONE)
    a(f's_branch {loop}')
    a.label(end)
    a('s_endpgm')

def role_F1(a, stamps=False, mode='sc1'):
    st = Stamps(a, stamps)
    W = lambda t, ks: 256 + 112 * t + 4 * ks
    VL16, VZ, VONE, VST, VFL, VFRB, VNF = 2, 4, 5, 6, 7, 11, 12
    VTU, VTA, VTS, VTD, VUF, VUR = 13, 14, 15, 16, 17, 10
    TMP = 18; S8 = 20; FR = 28
    ACC = 48
    CS = 80
    EX = 112
    PK = 120
    S_BUF, S_X, S_ST, S_O, S_FI, S_FO = 25, 26, 27, 28, 29, 30
    a(f'''
    s_lshl_b32 s{S_T0}, s{S_ROLE}, 2
    s_add_u32 s{S_T0}, s{S_T0}, s{S_W}
    s_load_dwordx4 s[48:51], s[0:1], 64
    v_lshlrev_b32 v{VL16}, 4, {lane}
    v_lshrrev_b32 v{TMP}, 2, {lane}
    v_mul_u32_u24 v{EX}, 3584, v{TMP}
    v_and_b32 v{TMP}, 3, {lane}
    v_lshl_add_u32 v{EX}, v{TMP}, 4, v{EX}
    s_lshl_b32 s{S_T2}, s{S_T0}, 6
    s_waitcnt lgkmcnt(0)
    s_mov_b32 s40, s48
    s_and_b32 s41, s49, 0xffff
    s_mov_b32 s42, {448*3584}
    s_mov_b32 s43, 0x00020000
    s_mov_b32 s44, s50
    s_and_b32 s45, s51, 0xffff
    s_mov_b32 s46, {448*3584}
    s_mov_b32 s47, 0x00020000
    ''')
    tr_addr(a, EX + 1, TMP, TMP + 1, 6, 10)
    load_w_tr(a, W, lambda ks, p: f'buffer_load_dwordx4 v{EX}, s[{40+4*p}:{43+4*p}], s{S_T2} offen lds' + (f'\ns_add_u32 s{S_T2}, s{S_T2}, {16*3584}' if p else ''), EX + 1, 32, 256)
    a(f'''
    s_mul_i32 s{S_O}, s{S_LAYER}, {64*L.HB_SZ}
    s_lshl_b32 s{S_T1}, s{S_T0}, 11
    s_add_u32 s{S_O}, s{S_O}, s{S_T1}
    s_add_u32 s{S_O}, s{S_O}, {L.HB}
    s_lshl_b32 s{S_T1}, s{S_LAYER}, 15
    s_add_u32 s{S_FI}, s{S_T1}, {L.flag(L.FL_P)}
    s_lshl_b32 s{S_FO}, s{S_T0}, 2
    s_add_u32 s{S_FO}, s{S_FO}, s{S_T1}
    s_add_u32 s{S_FO}, s{S_FO}, {L.flag(L.FL_H)}
    s_mul_i32 s{S_X}, s{S_LAYER}, {128*L.XN_SZ}
    s_add_u32 s{S_X}, s{S_X}, {L.XS + 64*L.XN_SZ}
    s_lshl_b32 s{S_ST}, s{S_LAYER}, 18
    s_add_u32 s{S_ST}, s{S_ST}, {L.ST + 64*L.ST_SZ}
    v_mov_b32 v{VZ}, 0
    v_mov_b32 v{VONE}, 1
    v_lshrrev_b32 v{TMP}, 5, {lane}
    v_and_b32 v{TMP+1}, 31, {lane}
    v_mov_b32 v{VST}, v{VL16}
    v_min_u32 v{VFL}, 27, {lane}
    v_lshlrev_b32 v{VFL}, 2, v{VFL}
    v_mov_b32 v{FR}, 0x3f803f80
    v_mov_b32 v{FR+1}, 0x3f803f80
    v_mov_b32 v{FR+2}, 0x3f803f80
    v_mov_b32 v{FR+3}, 0x3f803f80
    s_mov_b32 s{S_BUF}, 0
    s_mov_b32 s{S_STEP}, 0
    s_waitcnt vmcnt(0)
    ''')
    for ks in range(28):
        for t in range(2):
            c = f'v[{CS+16*t}:{CS+16*t+15}]'
            a(f'v_mfma_f32_32x32x16_bf16 {c}, {R(W(t,ks),4)}, v[{FR}:{FR+3}], {"0" if ks == 0 else c}')
    a(f'''
    s_lshl_b32 s36, s{S_W}, 10
    s_add_u32 s{S_X}, s{S_X}, s36
    s_mov_b64 vcc, 0
    v_mov_b32 v{VNF}, 0
    s_lshl_b32 s{S_T0}, s{S_ROLE}, 2
    s_add_u32 s{S_T0}, s{S_T0}, s{S_W}
    v_lshlrev_b32 v{VTU}, 7, {lane}
    s_mul_i32 s39, s{S_LAYER}, {64*L.UX_SZ}
    s_lshl_b32 s{S_T1}, s{S_T0}, 13
    s_add_u32 s39, s39, s{S_T1}
    s_add_u32 s39, s39, {L.UX + 3*L.UX_SZ}
    v_and_b32 v{VUF}, 3, {lane}
    s_lshl_b32 s{S_T1}, s{S_T0}, 2
    v_add_u32 v{VUF}, s{S_T1}, v{VUF}
    v_mul_u32_u24 v{TMP}, 4682, v{VUF}
    v_lshrrev_b32 v{TMP}, 16, v{TMP}
    v_add_u32 v{TMP+1}, 1, v{TMP}
    v_lshrrev_b32 v{TMP+1}, 1, v{TMP+1}
    v_mul_u32_u24 v{TMP+1}, 14, v{TMP+1}
    v_sub_u32 v{VUF}, v{VUF}, v{TMP+1}
    v_lshlrev_b32 v{VUF}, 2, v{VUF}
    v_add_u32 v{VUF}, {(L.flag(L.FL_U) - L.flag(L.FL_P) + 2*512) & 0xffffffff}, v{VUF}
    v_add_u32 v{VTA}, s{S_O}, v{VTU}
    v_mov_b32 v{VTS}, {L.HB_SZ}
    s_mul_i32 s{S_T1}, s{S_LAYER}, {128*L.XN_SZ}
    s_lshl_b32 s{S_T2}, s{S_T0}, 9
    s_add_u32 s{S_T1}, s{S_T1}, s{S_T2}
    s_add_u32 s{S_T1}, s{S_T1}, {L.XS + 64*L.XN_SZ - 2048}
    v_add_u32 v{TMP}, s{S_T1}, v{VTU}
    v_mov_b32 v{TMP+1}, {L.XN_SZ}
    v_cmp_gt_u32 vcc, 16, {lane}
    v_cndmask_b32 v{VTA}, v{TMP}, v{VTA}, vcc
    v_cndmask_b32 v{VTS}, v{TMP+1}, v{VTS}, vcc
    s_and_b32 s{S_T2}, s{S_T0}, 15
    s_lshl_b32 s{S_T2}, s{S_T2}, 7
    s_add_u32 s{S_T2}, s{S_T2}, s{S_ST}
    v_mov_b32 v{TMP}, s{S_T2}
    v_mov_b32 v{TMP+1}, {L.ST_SZ}
    v_cmp_gt_u32 vcc, 20, {lane}
    v_cndmask_b32 v{VTA}, v{TMP}, v{VTA}, vcc
    v_cndmask_b32 v{VTS}, v{TMP+1}, v{VTS}, vcc
    buffer_load_dword v{VTD}, v{VTA}, {SRD}, 0 offen sc1
    v_add_u32 v{VTA}, v{VTA}, v{VTS}
    buffer_load_dword v{VTD}, v{VTA}, {SRD}, 0 offen sc1
    v_add_u32 v{VTA}, v{VTA}, v{VTS}
    s_mov_b64 vcc, 0
    ''')
    def body(mode):
        loop, nd = a.newlabel('F1_LOOP'), a.newlabel('F1_ND')
        a.flush(); a.label(loop); a.vm = []; a.lg = []
        a(f's_add_u32 s37, s{S_BUF}, s36')
        a.br(f's_cbranch_vccnz {nd}')
        a(f'v_cmp_eq_u32 vcc, 0, v{VNF}')
        a.opt_begin('s_cbranch_vccz')
        wait_flags(a, S_FI, VFL, TMP, sleep=1)
        a.opt_end()
        for j, d in enumerate(dma_list(S_X, 37, VL16)): a(d, tag=('d', j))
        a.label(nd)
        st()
        a(f'buffer_load_dwordx4 v[{S8}:{S8+3}], v{VST}, {SRD}, s{S_ST} offen sc1')
        a(f'buffer_load_dwordx4 v[{S8+4}:{S8+7}], v{VST}, {SRD}, s{S_ST} offen offset:1024 sc1', tag='st')
        a(f'''
        v_add_u32 v{VFRB}, s{S_BUF}, v{VL16}
        s_xor_b32 s{S_BUF}, s{S_BUF}, {XBUF}
        s_add_u32 s37, s{S_BUF}, s36
        s_add_u32 s{S_ST}, s{S_ST}, {L.ST_SZ}
        s_add_u32 s{S_FI}, s{S_FI}, 512
        ''')
        seq = [(k, (0, 1)) for k in range(8)] + [(k, (0,)) for k in range(8, 28)] + [(k, (1,)) for k in range(8, 28)]
        rd = lambda i: f'ds_read_b128 v[{FR+4*(i%4)}:{FR+4*(i%4)+3}], v{VFRB} offset:{1024*seq[i][0]}'
        def mm(i):
            ks, tiles = seq[i]; out = []
            for t in tiles:
                c = f'v[{ACC+16*t}:{ACC+16*t+15}]'
                out.append(f'v_mfma_f32_32x32x16_bf16 {c}, {R(W(t,ks),4)}, v[{FR+4*(i%4)}:{FR+4*(i%4)+3}], {"0" if ks == 0 else c}')
            return out
        sto = stats_ops(S8, TMP) + [f'v_sub_f32 v{S8+2}, 0, v{S8+1}', f'v_mul_f32 v{S8+4}, {hex(f2u(-LOG2E))}, v{S8}', f'v_mov_b32 v{S8+6}, v{TMP+1}']
        def epi(t):
            c = ACC + 16 * t; o = []
            for i in range(0, 16, 2):
                o.append(f'v_pk_fma_f32 v[{c+i}:{c+i+1}], v[{CS+16*t+i}:{CS+16*t+i+1}], v[{S8+2}:{S8+3}], v[{c+i}:{c+i+1}] op_sel_hi:[1,0,1]')
            for i in range(0, 8, 2): o.append(f'v_pk_mul_f32 v[{EX+i}:{EX+i+1}], v[{c+i}:{c+i+1}], v[{S8+4}:{S8+5}] op_sel_hi:[1,0]')
            for i in range(8): o.append(f'v_exp_f32 v{EX+i}, v{EX+i}')
            for i in range(0, 8, 2): o.append(f'v_pk_mul_f32 v[{c+i}:{c+i+1}], v[{c+i}:{c+i+1}], v[{c+8+i}:{c+9+i}]')
            for i in range(0, 8, 2): o.append(f'v_pk_fma_f32 v[{EX+i}:{EX+i+1}], v[{EX+i}:{EX+i+1}], v[{S8+6}:{S8+7}], v[{S8+6}:{S8+7}] op_sel_hi:[1,0,0]')
            for i in range(8): o.append(f'v_rcp_f32 v{EX+i}, v{EX+i}')
            for i in range(0, 8, 2): o.append(f'v_pk_mul_f32 v[{c+i}:{c+i+1}], v[{c+i}:{c+i+1}], v[{EX+i}:{EX+i+1}]')
            for i in range(0, 8, 2): o.append(f'v_cvt_pk_bf16_f32 v{PK+4*t+i//2}, v{c+i}, v{c+i+1}')
            o.append(f'buffer_store_dwordx4 v[{PK+4*t}:{PK+4*t+3}], v{VL16}, {SRD}, s{S_O} offen offset:{1024*t} {mode}')
            return o
        def optdma(d):
            def f():
                a.opt_begin('s_cbranch_vccz'); a(d); a.opt_end()
            return f
        def chk():
            a.wait_vm('nf')
            a(f'v_cmp_eq_u32 vcc, 0, v{VNF}')
            a('s_cmp_eq_u64 vcc, 0')
            a('s_cselect_b64 vcc, -1, 0')
        sd = {13: [lambda: a(f'buffer_load_dword v{VNF}, v{VFL}, {SRD}, s{S_FI} offen sc1', tag='nf'), lambda: a.wait_vm('st')] + sto,
              27: [chk], 31: epi(0)}
        if not mode:
            sd[19] = [f'buffer_load_dword v{VTD}, v{VTA}, {SRD}, 0 offen sc1', f'v_add_u32 v{VTA}, v{VTA}, v{VTS}']
        def utouch():
            a.wait_vm('uf')
            a(f'v_cmp_eq_u32 vcc, 0, v{VUR}')
            a.opt_begin('s_cbranch_vccnz')
            a(f'buffer_load_dword v{VTD}, v{VTU}, {SRD}, s39 offen sc1')
            a.opt_end()
            a(f's_add_u32 s39, s39, {L.UX_SZ}')
        sd[13] = [lambda: a(f'v_add_u32 v{VUR}, s{S_FI}, v{VUF}\nbuffer_load_dword v{VUR}, v{VUR}, {SRD}, 0 offen sc1', tag='uf')] + sd[13]
        sd[26] = [utouch]
        dl = dma_list(S_X, 37, VL16)
        sd[28] = [optdma(dl[0])]; sd[29] = [optdma(dl[1])]; sd[30] = [optdma(dl[2])]
        e0 = epi(0); sd[31] = []
        for j in range(4): sd[31] += e0[10 * j: 10 * j + 10] + [optdma(dl[3 + j])]
        sd[31] += e0[40:]
        left = stream(a, len(seq), rd, mm, {0: gate(a, ('d', 0)), 4: gate(a, ('d', 1)), 8: gate(a, ('d', 3)), 16: gate(a, ('d', 6))}, sd, per=6)
        print('F1 leftover', len(left))
        flush_side(a, left)
        e1 = epi(1)
        flush_side(a, e1[:-1])
        a(f'buffer_load_dword v{VNF}, v{VFL}, {SRD}, s{S_FI} offen sc1')
        a(e1[-1])
        st()
        signal(a, S_FO, VZ, VONE, mode)
        st()
        st.flush(10 << 20, TMP, TMP + 1)
        a(f'''
        s_add_u32 s{S_O}, s{S_O}, {L.HB_SZ}
        s_add_u32 s{S_FO}, s{S_FO}, 512
        s_add_u32 s{S_STEP}, s{S_STEP}, 1
        s_cmp_lt_u32 s{S_STEP}, 64
        s_cbranch_scc1 {loop}
        s_endpgm
        ''')
    mode_split(a, body, TMP)

PH, PQ, PT, PW = 544, 1184, 4736, 9472
def red_setup(a, VRW, VRR, VXO, VSO, TMP, base=0, il=False):
    a(f'''
    v_lshrrev_b32 v{TMP}, 5, {lane}
    v_mul_u32_u24 v{VRW}, {PH}, v{TMP}
    v_and_b32 v{TMP}, 31, {lane}
    v_lshl_add_u32 v{VRW}, v{TMP}, 4, v{VRW}
    s_mul_i32 s{S_T0}, s{S_W}, {PW}
    s_add_u32 s{S_T0}, s{S_T0}, {base}
    v_add_u32 v{VRW}, s{S_T0}, v{VRW}
    v_and_b32 v{TMP}, 1, {lane}
    v_mul_u32_u24 v{VRR}, {PH}, v{TMP}
    v_bfe_u32 v{TMP}, {lane}, 1, 1
    v_mul_u32_u24 v{TMP}, {2*PQ}, v{TMP}
    v_add_u32 v{VRR}, v{VRR}, v{TMP}
    v_bfe_u32 v{TMP}, {lane}, 2, 1
    v_mul_u32_u24 v{TMP}, {PT}, v{TMP}
    v_add_u32 v{VRR}, v{VRR}, v{TMP}
    v_lshrrev_b32 v{TMP}, 3, {lane}
    s_lshl_b32 s{S_T0}, s{S_W}, 3
    v_add_u32 v{TMP}, s{S_T0}, v{TMP}
    v_lshl_add_u32 v{VRR}, v{TMP}, 4, v{VRR}
    v_add_u32 v{VRR}, {base}, v{VRR}
    v_and_b32 v{VXO}, 7, {lane}
    s_lshl_b32 s{S_T0}, s{S_ROLE}, 3
    v_add_u32 v{VXO}, s{S_T0}, v{VXO}
    v_lshlrev_b32 v{VXO}, 9, v{VXO}
    v_lshl_add_u32 v{VXO}, v{TMP}, 4, v{VXO}
    s_lshr_b32 s{S_T1}, s{S_ROLE}, 1
    s_lshl_b32 s{S_T1}, s{S_T1}, 9
    s_and_b32 s{S_T2}, s{S_T0}, 8
    s_add_u32 s{S_T1}, s{S_T1}, s{S_T2}
    v_lshlrev_b32 v{VSO}, 4, v{TMP}
    v_add_u32 v{VSO}, s{S_T1}, v{VSO}
    s_mov_b32 s36, 0x01010101
    s_mov_b32 s37, 0x01010101
    ''')

def red_epilogue(a, ACC, VRW, VRR, XRES, T, store_x, store_st, lds_off=0, extra=(), st=None, il=False):
    extra = list(extra)
    for _ in range(2):
        if extra: extra.pop(0)()
    for t in range(2):
        for rq in range(4):
            a(f'ds_write_b128 v{VRW}, v[{ACC+16*t+4*rq}:{ACC+16*t+4*rq+3}] offset:{lds_off+t*PT+((0,2,1,3)[rq] if il else rq)*PQ}')
            if extra: extra.pop(0)()
    X = ACC
    for x in extra: x()
    a('s_waitcnt lgkmcnt(0)')
    if st: st.cyc(4)
    a('s_barrier')
    if st: st.cyc(5)
    for w in range(4):
        for j in range(2):
            a(f'ds_read_b128 v[{T+8*w+4*j}:{T+8*w+4*j+3}], v{VRR} offset:{lds_off+w*PW+j*PQ}')
    lo = (lambda i: X + i) if il else (lambda i: X + 2 * i)
    hi = (lambda i: X + 4 + i) if il else (lambda i: X + 2 * i + 1)
    for i in range(4):
        a(f'v_lshlrev_b32 v{lo(i)}, 16, v{XRES+i}')
        a(f'v_and_b32 v{hi(i)}, 0xffff0000, v{XRES+i}')
    for w in range(4):
        a(f's_waitcnt lgkmcnt({6-2*w})')
        for i in range(0, 8, 2):
            a(f'v_pk_add_f32 v[{X+i}:{X+i+1}], v[{X+i}:{X+i+1}], v[{T+8*w+i}:{T+8*w+i+1}]')
    for i in range(4): a(f'v_cvt_pk_bf16_f32 v{XRES+i}, v{lo(i)}, v{hi(i)}')
    if st: st.cyc(6)
    store_x(XRES)
    if store_st is None: return
    for i in range(4):
        a(f'v_lshlrev_b32 v{X+2*i}, 16, v{XRES+i}')
        a(f'v_and_b32 v{X+2*i+1}, 0xffff0000, v{XRES+i}')
    a(f'v_pk_add_f32 v[{T}:{T+1}], v[{X}:{X+1}], v[{X+2}:{X+3}]')
    a(f'v_pk_mul_f32 v[{T+2}:{T+3}], v[{X}:{X+1}], v[{X}:{X+1}]')
    a(f'v_pk_add_f32 v[{T+4}:{T+5}], v[{X+4}:{X+5}], v[{X+6}:{X+7}]')
    for i in (2, 4, 6): a(f'v_pk_fma_f32 v[{T+2}:{T+3}], v[{X+i}:{X+i+1}], v[{X+i}:{X+i+1}], v[{T+2}:{T+3}]')
    a(f'v_pk_add_f32 v[{T}:{T+1}], v[{T}:{T+1}], v[{T+4}:{T+5}]')
    a(f'v_add_f32 v{T}, v{T}, v{T+1}')
    a(f'v_add_f32 v{T+1}, v{T+2}, v{T+3}')
    for d in ('quad_perm:[1,0,3,2]', 'quad_perm:[2,3,0,1]', 'row_half_mirror'):
        for r in (T, T + 1): a(f'v_add_f32_dpp v{r}, v{r}, v{r} {d} row_mask:0xf bank_mask:0xf')
    a('s_mov_b64 exec, s[36:37]')
    store_st(T)
    a('s_mov_b64 exec, -1')

def role_F2(a, stamps=False, mode='sc1'):
    st = Stamps(a, stamps)
    W = lambda t, kk: 256 + 112 * t + 4 * kk
    VL16, VZ, VONE, VFL, VRW, VRR, VXO, VSO, VOUT = 2, 4, 5, 7, 8, 9, 10, 11, 12
    TMP = 18; XRES = 20; ACC = 48; T = 80; H = 112
    S_H, S_XI, S_XO, S_SO, S_FI, S_FO = 25, 26, 27, 28, 29, 30
    OSRD = 's[40:43]'
    a(f'''
    s_load_dwordx4 s[48:51], s[0:1], 80
    s_lshl_b32 s{S_T0}, s{S_ROLE}, 2
    s_add_u32 s{S_T0}, s{S_T0}, s{S_W}
    v_lshlrev_b32 v{VL16}, 4, {lane}
    v_lshrrev_b32 v{TMP}, 3, {lane}
    v_mul_u32_u24 v{H}, 896, v{TMP}
    v_and_b32 v{TMP}, 7, {lane}
    v_lshl_add_u32 v{H}, v{TMP}, 4, v{H}
    s_mul_i32 s{S_T2}, s{S_W}, {448*896}
    s_lshl_b32 s{S_T1}, s{S_ROLE}, 7
    s_add_u32 s{S_T2}, s{S_T2}, s{S_T1}
    s_waitcnt lgkmcnt(0)
    s_mov_b32 s44, s48
    s_and_b32 s45, s49, 0xffff
    s_mov_b32 s46, {1792*896}
    s_mov_b32 s47, 0x00020000
    s_mov_b32 s40, s50
    s_and_b32 s41, s51, 0xffff
    s_mov_b32 s42, {2048*896}
    s_mov_b32 s43, 0x00020000
    ''')
    tr_addr(a, H + 1, TMP, TMP + 1, 7, 5)
    load_w_tr(a, W, lambda ks, p: f'buffer_load_dwordx4 v{H}, s[44:47], s{S_T2} offen lds\ns_add_u32 s{S_T2}, s{S_T2}, {8*896}', H + 1, 64, 512)
    a(f'''
    s_mul_i32 s{S_H}, s{S_LAYER}, {64*L.HB_SZ}
    s_mul_i32 s{S_T1}, s{S_W}, 28672
    s_add_u32 s{S_H}, s{S_H}, s{S_T1}
    s_add_u32 s{S_H}, s{S_H}, {L.HB}
    s_lshl_b32 s{S_T1}, s{S_LAYER}, 15
    s_mul_i32 s{S_FI}, s{S_W}, 56
    s_add_u32 s{S_FI}, s{S_FI}, s{S_T1}
    s_add_u32 s{S_FI}, s{S_FI}, {L.flag(L.FL_H)}
    s_lshl_b32 s{S_FO}, s{S_T0}, 2
    s_add_u32 s{S_FO}, s{S_FO}, s{S_T1}
    s_add_u32 s{S_FO}, s{S_FO}, {L.flag(L.FL_X)}
    s_mul_i32 s{S_XI}, s{S_LAYER}, {128*L.XN_SZ}
    s_add_u32 s{S_XI}, s{S_XI}, {L.XS + 64*L.XN_SZ}
    s_mov_b32 s{S_XO}, {L.XS + 128*L.XN_SZ}
    s_mov_b32 s{S_SO}, {L.ST + 128*L.ST_SZ}
    v_mov_b32 v{VZ}, 0
    v_mov_b32 v{VONE}, 1
    v_min_u32 v{VFL}, 13, {lane}
    v_lshlrev_b32 v{VFL}, 2, v{VFL}
    s_mov_b32 s{S_STEP}, 0
    s_mov_b32 s35, 0
    ''')
    red_setup(a, VRW, VRR, VXO, VSO, TMP)
    a(f'''
    v_mul_u32_u24 v{VOUT}, 896, v{TMP}
    v_and_b32 v{TMP}, 7, {lane}
    v_add_u32 v{TMP}, s{S_T0}, v{TMP}
    v_lshl_add_u32 v{VOUT}, v{TMP}, 4, v{VOUT}
    ''')
    loop, fin, nxt = a.newlabel('F2_LOOP'), a.newlabel('F2_FIN'), a.newlabel('F2_NXT')
    VNF = 13
    AH = 12
    a(f'v_mov_b32 v{VNF}, 0')
    a('s_mov_b64 vcc, 0')
    def ldt(kk):
        x = f'buffer_load_dwordx4 v[{H+4*kk}:{H+4*kk+3}], v{VL16}, {SRD}, s{S_H} offen offset:{(kk % 4) * 1024} sc1'
        if kk % 4 == 3: x += f'\ns_add_u32 s{S_H}, s{S_H}, {4096 if kk < 27 else L.HB_SZ - 6 * 4096}'
        return x
    def ld(kk): a(ldt(kk), tag=('h', kk))
    nd = a.newlabel('F2_ND')
    a(f's_mov_b32 s31, {4*PW}')
    a('s_mov_b32 s32, 0')
    a.flush(); a.label(loop); a.vm = []; a.lg = []
    a.br(f's_cbranch_vccnz {nd}')
    wait_flags(a, S_FI, VFL, TMP, sleep=1)
    for kk in range(AH): ld(kk)
    a.label(nd)
    st(); st.cyc(0)
    a(f's_add_u32 s{S_FI}, s{S_FI}, 512')
    for kk in range(28):
        a.wait_vm(('h', kk))
        if kk == 0: st.cyc(1)
        if kk == AH:
            st.cyc(2)
            a('s_cmp_eq_u32 s32, 1')
            a.opt_begin('s_cbranch_scc0')
            signal(a, 33, VZ, VONE, 'sc1', wait='')
            a.opt_end()
            a('s_mov_b32 s32, 0')
        for t in range(2):
            c = f'v[{ACC+16*t}:{ACC+16*t+15}]'
            a(f'v_mfma_f32_32x32x16_bf16 {c}, {R(W(t,kk),4)}, v[{H+4*kk}:{H+4*kk+3}], {"0" if kk == 0 else c}')
            if t == 0:
                if kk + AH < 28: ld(kk + AH)
                elif kk + AH == 28: a(f'buffer_load_dwordx4 v[{XRES}:{XRES+3}], v{VXO}, {SRD}, s{S_XI} offen sc1')
                elif kk == 21: a(f'buffer_load_dword v{VNF}, v{VFL}, {SRD}, s{S_FI} offen sc1')
    st.cyc(3)
    a('s_waitcnt vmcnt(0)')
    a(f'v_cmp_eq_u32 vcc, 0, v{VNF}')
    a('s_cmp_eq_u64 vcc, 0')
    a('s_cselect_b64 vcc, -1, 0')
    def optld(kk):
        def f():
            a.opt_begin('s_cbranch_vccz'); a(ldt(kk)); a.opt_end()
        return f
    def sx(r):
        a(f's_cmp_eq_u32 s{S_LAYER}, 1')
        a(f's_cbranch_scc1 {fin}')
        a(f'buffer_store_dwordx4 v[{r}:{r+3}], v{VXO}, {SRD}, s{S_XO} offen sc1')
    red_epilogue(a, ACC, VRW, VRR, XRES, T, sx, lambda r: a(f'buffer_store_dwordx2 v[{r}:{r+1}], v{VSO}, {SRD}, s{S_SO} offen sc1'),
                 extra=[optld(kk) for kk in range(AH)], st=st)
    st()
    a('s_mov_b32 s32, 1')
    a(f's_mov_b32 s33, s{S_FO}')
    a(f's_cmp_eq_u32 s{S_STEP}, 63')
    a('s_cselect_b64 vcc, 0, vcc')
    a.br(f's_cbranch_vccnz {nxt}')
    a('s_mov_b32 s32, 0')
    signal(a, S_FO, VZ, VONE, 'sc1')
    a(f's_branch {nxt}')
    a.label(fin)
    a(f'buffer_store_dwordx4 v[{XRES}:{XRES+3}], v{VOUT}, {OSRD}, s35 offen')
    if stamps: st.n -= 1; st()
    a.label(nxt)
    st()
    st.flush(12 << 20, TMP, TMP + 1)
    a(f'''
    v_add_u32 v{VRW}, s31, v{VRW}
    v_add_u32 v{VRR}, s31, v{VRR}
    s_sub_u32 s31, 0, s31
    s_add_u32 s35, s35, {32*896}
    s_add_u32 s{S_XI}, s{S_XI}, {L.XN_SZ}
    s_add_u32 s{S_XO}, s{S_XO}, {L.XN_SZ}
    s_add_u32 s{S_SO}, s{S_SO}, {L.ST_SZ}
    s_add_u32 s{S_FO}, s{S_FO}, 512
    s_add_u32 s{S_STEP}, s{S_STEP}, 1
    s_cmp_lt_u32 s{S_STEP}, 64
    s_cbranch_scc1 {loop}
    s_endpgm
    ''')

def role_PU(a, stamps=False, mode='sc1'):
    st = Stamps(a, stamps)
    VL16, VZ, VONE, VFU, VRW, VRR, VXO, VSO, VUX, VUM, VFT, VFM = 2, 4, 5, 7, 8, 9, 10, 11, 12, 13, 14, 15
    TMP = 18; XRES = 20; ACC = 48; T = 80
    UF = lambda t, k: 112 + 40 * t + 4 * k
    PF = lambda k: 192 + 4 * k
    S_UX, S_UM, S_PX, S_XI, S_XO, S_SO, S_FL, S_FO = 21, 22, 23, 24, 25, 26, 27, 28
    a(f'''
    v_lshlrev_b32 v{VL16}, 4, {lane}
    v_mov_b32 v{VZ}, 0
    v_mov_b32 v{VONE}, 1
    ''')
    red_setup(a, VRW, VRR, VXO, VSO, TMP, il=True)
    a(f'''
    v_mov_b32 v{VUX}, v{VL16}
    v_and_b32 v{VUM}, 15, {lane}
    v_lshlrev_b32 v{VUM}, 4, v{VUM}
    v_bfe_u32 v{TMP}, {lane}, 4, 1
    v_lshl_add_u32 v{VUM}, v{TMP}, 10, v{VUM}
    v_lshrrev_b32 v{TMP}, 5, {lane}
    v_lshl_add_u32 v{VUM}, v{TMP}, 8, v{VUM}
    v_and_b32 v{VFU}, 1, {lane}
    v_mul_u32_u24 v{VFU}, 14, v{VFU}
    v_bfe_u32 v{TMP}, {lane}, 1, 1
    v_add_u32 v{VFU}, v{VFU}, v{TMP}
    s_mul_i32 s{S_T0}, s{S_W}, 28
    s_lshl_b32 s{S_T1}, s{S_ROLE}, 1
    s_add_u32 s{S_T0}, s{S_T0}, s{S_T1}
    v_add_u32 v{VFU}, s{S_T0}, v{VFU}
    v_lshlrev_b32 v{VFU}, 2, v{VFU}
    v_add_u32 v{VFU}, {L.flag(L.FL_U)}, v{VFU}
    ; T flags: 16w + (l&15)
    v_and_b32 v{VFT}, 15, {lane}
    s_lshl_b32 s{S_T0}, s{S_W}, 4
    v_add_u32 v{VFT}, s{S_T0}, v{VFT}
    v_lshlrev_b32 v{VFT}, 2, v{VFT}
    v_add_u32 v{VFT}, {L.flag(L.FL_T)}, v{VFT}
    v_and_b32 v{VFM}, 1, {lane}
    v_add_u32 v{VFM}, s{S_T1}, v{VFM}
    v_lshlrev_b32 v{VFM}, 2, v{VFM}
    v_add_u32 v{VFM}, s{S_W}, v{VFM}
    v_lshlrev_b32 v{VFM}, 2, v{VFM}
    v_add_u32 v{VFM}, {L.flag(L.FL_UM)}, v{VFM}
    s_lshl_b32 s{S_FL}, s{S_LAYER}, 15
    s_lshl_b32 s{S_T0}, s{S_ROLE}, 2
    s_add_u32 s{S_T0}, s{S_T0}, s{S_W}
    s_lshl_b32 s{S_FO}, s{S_T0}, 2
    s_add_u32 s{S_FO}, s{S_FO}, s{S_FL}
    s_add_u32 s{S_FO}, s{S_FO}, {L.flag(L.FL_P)}
    s_mul_i32 s{S_UX}, s{S_LAYER}, {64*L.UX_SZ}
    s_mul_i32 s{S_T0}, s{S_W}, {4*28672}
    s_add_u32 s{S_UX}, s{S_UX}, s{S_T0}
    s_lshl_b32 s{S_T0}, s{S_ROLE}, 12
    s_add_u32 s{S_UX}, s{S_UX}, s{S_T0}
    s_add_u32 s{S_UX}, s{S_UX}, {L.UX}
    s_mul_i32 s{S_UM}, s{S_LAYER}, {64*L.UM_SZ}
    s_lshl_b32 s{S_T0}, s{S_ROLE}, 14
    s_add_u32 s{S_UM}, s{S_UM}, s{S_T0}
    s_lshl_b32 s{S_T0}, s{S_W}, 11
    s_add_u32 s{S_UM}, s{S_UM}, s{S_T0}
    s_add_u32 s{S_UM}, s{S_UM}, {L.UM}
    s_mul_i32 s{S_PX}, s{S_LAYER}, {64*L.PX_SZ}
    s_mul_i32 s{S_T0}, s{S_W}, 10240
    s_add_u32 s{S_PX}, s{S_PX}, s{S_T0}
    s_add_u32 s{S_PX}, s{S_PX}, {L.PX}
    s_mul_i32 s{S_XI}, s{S_LAYER}, {128*L.XN_SZ}
    s_add_u32 s{S_XI}, s{S_XI}, {L.XS}
    s_add_u32 s{S_XO}, s{S_XI}, {64*L.XN_SZ}
    s_lshl_b32 s{S_SO}, s{S_LAYER}, 18
    s_add_u32 s{S_SO}, s{S_SO}, {L.ST + 64*L.ST_SZ}
    s_mov_b32 s{S_STEP}, 0
    ''')
    VFA, VNF = 16, 17
    UXF = lambda b, t, k: 256 + 64 * b + 32 * t + 4 * k
    XR = lambda b: 24 + 4 * b
    UM4 = lambda t, kk2: 112 + 8 * t + 4 * kk2
    a(f'''
    v_add_u32 v{VFA}, 512, v{VFU}
    v_cmp_gt_u32 vcc, 32, {lane}
    v_cndmask_b32 v{VFA}, v{VFA}, v{VFT}, vcc
    v_mov_b32 v{VNF}, 0
    v_add_u32 v32, {4*PW}, v{VRW}
    v_add_u32 v33, {4*PW}, v{VRR}
    ''')
    def ux_list(b):
        out = []
        for hh in range(4):
            for t in range(2):
                for kh in range(2):
                    x = f'buffer_load_dwordx4 {R(UXF(b, t, 2*hh+kh), 4)}, v{VUX}, {SRD}, s{S_UX} offen offset:{2048*t+1024*kh} sc1'
                    if t == 1 and kh == 1: x += f'\ns_add_u32 s{S_UX}, s{S_UX}, {28672 if hh < 3 else L.UX_SZ - 3*28672}'
                    out.append(x)
        out.append(f'buffer_load_dwordx4 v[{XR(b)}:{XR(b)+3}], v{VXO}, {SRD}, s{S_XI} offen sc1\ns_add_u32 s{S_XI}, s{S_XI}, {L.XN_SZ}')
        return out
    a(f'''
    v_and_b32 v{VFM}, 3, {lane}
    v_lshlrev_b32 v{VFM}, 2, v{VFM}
    v_add_u32 v{VFM}, {L.flag(L.FL_U) + 448}, v{VFM}
    v_cndmask_b32 v{VFM}, v{VFM}, v{VFU}, vcc
    ''')
    wait_flags(a, S_FL, VFM, TMP)
    for x in ux_list(0): a(x)
    a('s_mov_b32 s30, 0')
    def p_list():
        out = []
        for k in range(10):
            x = f'buffer_load_dwordx4 v[{PF(k)}:{PF(k)+3}], v{VL16}, {SRD}, s{S_PX} offen offset:{(k % 4) * 1024} sc1'
            if k % 4 == 3: x += f'\ns_add_u32 s{S_PX}, s{S_PX}, 4096'
            if k == 9: x += f'\ns_add_u32 s{S_PX}, s{S_PX}, {L.PX_SZ - 8192}'
            out.append(x)
        return out
    uml = [f'buffer_load_dwordx4 v[{UM4(t,kk2)}:{UM4(t,kk2)+3}], v{VUM}, {SRD}, s{S_UM if t == 0 else 29} offen offset:{512*kk2} sc1' for kk2 in range(2) for t in range(2)]
    a(f's_add_u32 s29, s{S_UM}, 8192')
    def body(mode):
        loop = a.newlabel('PU_LOOP')
        a.flush(); a.label(loop)
        for b in range(2):
            a.vm = []; a.lg = []
            nd = a.newlabel('PU_ND')
            a('s_cmp_eq_u32 s30, 1')
            a.br(f's_cbranch_scc1 {nd}')
            wait_flags(a, S_FL, VFA, TMP, sleep=1)
            for k, x in enumerate(p_list()): a(x, tag=('p', k))
            for x in uml: a(x, tag='m')
            a.label(nd)
            st(); st.cyc(0)
            a(f's_add_u32 s{S_FL}, s{S_FL}, 512')
            if b == 0:
                a(f's_cmp_eq_u32 s{S_STEP}, 62')
                a.opt_begin('s_cbranch_scc0')
                a(f'v_mov_b32 v{VFA}, v{VFT}')
                a.opt_end()
            ux = ux_list(1 - b)
            for k in range(10):
                if k < 8: a.wait_vm(('p', k))
                if k == 0: st.cyc(1)
                if k == 8:
                    st.cyc(2)
                    a.wait_vm('m')
                    check(a, range(112, 128), TMP)
                    a.opt_begin('s_cbranch_vccz')
                    poll(a, uml, range(112, 128), TMP, sleep=1)
                    a.opt_end()
                    a(f's_add_u32 s{S_UM}, s{S_UM}, {L.UM_SZ}')
                    a(f's_add_u32 s29, s29, {L.UM_SZ}')
                    a(f'buffer_load_dword v{VNF}, v{VFA}, {SRD}, s{S_FL} offen sc1', tag='nf')
                for t in range(2):
                    c = f'v[{ACC+16*t}:{ACC+16*t+15}]'
                    u = R(UXF(b, t, k), 4) if k < 8 else f'v[{UM4(t,k-8)}:{UM4(t,k-8)+3}]'
                    a(f'v_mfma_f32_32x32x16_bf16 {c}, {u}, v[{PF(k)}:{PF(k)+3}], {"0" if k == 0 else c}')
                    if t == 0: a(ux.pop(0))
            st(); st.cyc(3)
            def sx(r):
                a(f'buffer_store_dwordx4 v[{r}:{r+3}], v{VXO}, {SRD}, s{S_XO} offen {mode}')
            red_epilogue(a, ACC, (VRW, 32)[b], (VRR, 33)[b], XR(b), T, sx,
                         lambda r: a(f'buffer_store_dwordx2 v[{r}:{r+1}], v{VSO}, {SRD}, s{S_SO} offen {mode}', tag='so'),
                         extra=[(lambda x=x: a(x)) for x in ux], st=st, il=True)
            st()
            a.wait_vm('nf')
            cold, join = a.newlabel('PU_COLD'), a.newlabel('PU_JOIN')
            a(f'v_cmp_eq_u32 vcc, 0, v{VNF}')
            a('s_mov_b32 s30, 0')
            a.br(f's_cbranch_vccnz {cold}')
            a('s_mov_b32 s30, 1')
            pl = p_list() + uml
            for x in pl[:6]: a(x)
            signal(a, S_FO, VZ, VONE, mode, wait='s_waitcnt vmcnt(6)')
            for x in pl[6:]: a(x)
            a.br(f's_branch {join}')
            a.label(cold)
            signal(a, S_FO, VZ, VONE, mode)
            a.label(join)
            st(); st.cyc(7)
            st.flush(8 << 20, TMP, TMP + 1)
            a(f'''
            s_add_u32 s{S_XO}, s{S_XO}, {L.XN_SZ}
            s_add_u32 s{S_SO}, s{S_SO}, {L.ST_SZ}
            s_add_u32 s{S_FO}, s{S_FO}, 512
            s_add_u32 s{S_STEP}, s{S_STEP}, 1
            ''')
        a(f'''
        s_cmp_lt_u32 s{S_STEP}, 64
        s_cbranch_scc1 {loop}
        s_endpgm
        ''')
    mode_split(a, body, TMP)

def role_T(a, stamps=False):
    st = Stamps(a, stamps)
    WR = [256 + 4 * i for i in range(64)] + [120 + 4 * i for i in range(34)]
    W = lambda t, ks: WR[14 * t + ks]
    ACC = lambda tt, t: 0 + 28 * tt + 4 * t
    TB = lambda tt, kk: 56 + 14 * tt + 4 * kk
    FR = 84
    VL16, VFB, VHB, VHB3, VMA, VMA3, VSXW, VSXR, VSMW, VSMR, VPX, VPM, VFL, VZ, VONE, VROW = range(96, 112)
    TMP = 112
    SX = lambda c: 0 + 4 * c
    HF = 12
    SM = lambda tt: 28 + 4 * tt
    MF = 36
    XV = 50
    RS = 144
    LDS_SX = 2 * XBUF
    LDS_SM = LDS_SX + 4 * 32 * RS
    S_XN, S_MX, S_PX, S_FI, S_FO, S_ZERO = 21, 22, 23, 24, 25, 26
    a(f'''
    s_and_b32 s27, s{S_ROLE}, 15
    s_lshr_b32 s{S_STEP}, s{S_ROLE}, 4
    s_lshl_b32 s{S_T0}, s27, 2
    s_add_u32 s{S_T0}, s{S_T0}, s{S_W}
    s_mul_i32 s{S_T2}, s{S_T0}, 100352
    s_add_u32 s{S_T2}, s{S_T2}, {L.WAT}
    v_lshlrev_b32 v{VL16}, 4, {lane}
    ''')
    load_frags(a, WR, VL16, S_T2)
    q, c = TMP, TMP + 1
    a(f'''
    s_lshl_b32 s{S_T1}, s{S_LAYER}, 6
    s_add_u32 s{S_T1}, s{S_T1}, s{S_STEP}
    s_mul_i32 s{S_XN}, s{S_T1}, {L.XN_SZ}
    s_add_u32 s{S_XN}, s{S_XN}, {L.XN}
    s_mul_i32 s{S_MX}, s{S_T1}, {L.MEM_SZ}
    s_add_u32 s{S_MX}, s{S_MX}, {L.MEMX}
    s_mul_i32 s{S_PX}, s{S_T1}, {L.PX_SZ}
    s_add_u32 s{S_PX}, s{S_PX}, {L.PX}
    s_lshl_b32 s{S_FI}, s{S_T1}, 9
    s_lshl_b32 s{S_FO}, s{S_T0}, 2
    s_add_u32 s{S_FO}, s{S_FO}, s{S_FI}
    s_add_u32 s{S_FO}, s{S_FO}, {L.flag(L.FL_T)}
    s_add_u32 s{S_FI}, s{S_FI}, {L.flag(L.FL_U)}
    s_mov_b32 s{S_ZERO}, 0
    v_mov_b32 v{VZ}, 0
    v_mov_b32 v{VONE}, 1
    v_min_u32 v{VFL}, 55, {lane}
    v_lshlrev_b32 v{VFL}, 3, v{VFL}
    v_lshrrev_b32 v{q}, 4, {lane}
    v_and_b32 v{c}, 15, {lane}
    v_and_b32 v{TMP+6}, 1, {lane}
    v_lshlrev_b32 v{TMP+6}, 4, v{TMP+6}
    v_bfe_u32 v{TMP+7}, {lane}, 1, 3
    v_add_u32 v{TMP+6}, v{TMP+6}, v{TMP+7}
    v_lshlrev_b32 v{VFB}, 9, v{q}
    v_lshl_add_u32 v{VFB}, v{TMP+6}, 4, v{VFB}
    s_mul_i32 s{S_T1}, s{S_W}, 14
    s_lshl_b32 s{S_T2}, s{S_T1}, 9
    v_add_u32 v{VHB}, s{S_T2}, v{VFB}
    v_lshrrev_b32 v{TMP+2}, 5, {lane}
    v_add_u32 v{TMP+2}, s{S_T1}, v{TMP+2}
    v_add_u32 v{TMP+2}, 12, v{TMP+2}
    v_and_b32 v{TMP+3}, 1, v{q}
    v_lshlrev_b32 v{VHB3}, 9, v{TMP+2}
    v_lshl_add_u32 v{VHB3}, v{TMP+6}, 4, v{VHB3}
    v_lshl_add_u32 v{VHB3}, v{TMP+3}, 3, v{VHB3}
    v_and_b32 v{TMP+4}, 7, {lane}
    v_add_u32 v{VMA}, s{S_T1}, v{q}
    v_lshlrev_b32 v{VMA}, 7, v{VMA}
    v_lshl_add_u32 v{VMA}, v{TMP+4}, 4, v{VMA}
    v_lshlrev_b32 v{VMA3}, 7, v{TMP+2}
    v_lshl_add_u32 v{VMA3}, v{TMP+4}, 4, v{VMA3}
    v_lshl_add_u32 v{VMA3}, v{TMP+3}, 3, v{VMA3}
    s_mul_i32 s{S_T2}, s{S_W}, {32*RS}
    s_add_u32 s{S_T2}, s{S_T2}, {LDS_SX}
    v_mul_u32_u24 v{VSXW}, {RS}, v{c}
    v_lshl_add_u32 v{VSXW}, v{q}, 4, v{VSXW}
    v_add_u32 v{VSXW}, s{S_T2}, v{VSXW}
    s_lshl_b32 s{S_T2}, s{S_W}, 10
    s_add_u32 s{S_T2}, s{S_T2}, {LDS_SM}
    v_lshlrev_b32 v{VSMW}, 5, v{c}
    v_lshl_add_u32 v{VSMW}, v{TMP+3}, 4, v{VSMW}
    v_add_u32 v{VSMW}, s{S_T2}, v{VSMW}
    v_lshrrev_b32 v{VROW}, 3, {lane}
    s_lshl_b32 s{S_T2}, s{S_W}, 3
    v_add_u32 v{VROW}, s{S_T2}, v{VROW}
    v_mul_u32_u24 v{VSXR}, {RS}, v{VROW}
    v_lshl_add_u32 v{VSXR}, v{TMP+4}, 4, v{VSXR}
    v_add_u32 v{VSXR}, {LDS_SX}, v{VSXR}
    v_lshlrev_b32 v{VSMR}, 5, v{VROW}
    v_lshl_add_u32 v{VSMR}, v{TMP+4}, 2, v{VSMR}
    v_add_u32 v{VSMR}, {LDS_SM}, v{VSMR}
    v_lshrrev_b32 v{TMP+5}, 1, v{TMP+4}
    v_lshlrev_b32 v{VPM}, 9, v{TMP+5}
    v_lshl_add_u32 v{VPM}, v{VROW}, 4, v{VPM}
    v_and_b32 v{TMP+5}, 1, {lane}
    v_lshl_add_u32 v{VPX}, v{TMP+5}, 3, v{VPM}
    s_lshr_b32 s{S_T1}, s27, 2
    s_mul_i32 s{S_T1}, s{S_T1}, 10240
    s_and_b32 s{S_T2}, s27, 3
    s_lshl_b32 s{S_T3}, s{S_T2}, 11
    s_add_u32 s{S_T3}, s{S_T3}, s{S_T1}
    v_add_u32 v{VPX}, s{S_T3}, v{VPX}
    s_lshl_b32 s{S_T3}, s{S_T2}, 2
    s_add_u32 s{S_T3}, s{S_T3}, s{S_T1}
    s_add_u32 s{S_T3}, s{S_T3}, 8192
    v_add_u32 v{VPM}, s{S_T3}, v{VPM}
    v_lshlrev_b32 v{TMP+5}, 2, v{TMP+4}
    v_sub_u32 v{VROW}, v{VROW}, v{TMP+5}
    v_cmp_le_i32 s[40:41], 0, v{VROW}
    v_cmp_le_i32 s[42:43], 1, v{VROW}
    v_cmp_le_i32 s[44:45], 2, v{VROW}
    v_cmp_le_i32 s[46:47], 3, v{VROW}
    v_mov_b32 v{VROW}, 0xf149f2ca
    s_mov_b32 s48, 0x55555555
    s_mov_b32 s49, 0x55555555
    s_mov_b32 s52, {XBUF}
    ''')
    a(f'''
    s_lshl_b32 s36, s{S_W}, 10
    s_add_u32 s{S_XN}, s{S_XN}, s36
    s_mov_b64 vcc, 0
    ''')
    loop, nd = a.newlabel('T_LOOP'), a.newlabel('T_ND')
    NF = TMP + 6
    a.flush(); a.label(loop); a.vm = []; a.lg = []
    a(f's_add_u32 s37, s{S_ZERO}, s36')
    a.br(f's_cbranch_vccnz {nd}')
    wait_flags(a, S_FI, VFL, TMP, width=2, sleep=1)
    for j, d in enumerate(dma_list(S_XN, 37, VL16)): a(d, tag=('d', j))
    a(f's_add_u32 s{S_XN}, s{S_XN}, {L.XN_SZ}')
    a.label(nd)
    st()
    a(f'''
    s_xor_b32 s{S_ZERO}, s{S_ZERO}, {XBUF}
    s_add_u32 s37, s{S_ZERO}, s36
    s_add_u32 s{S_FI}, s{S_FI}, 1024
    ''')
    seq = [(tt, ks) for tt in range(2) for ks in range(14)]
    rd = lambda i: f'ds_read_b128 v[{FR+4*(i%3)}:{FR+4*(i%3)+3}], v{VFB} offset:{2048*seq[i][1]+128*seq[i][0]}'
    def cvt(tt):
        o = []
        for kk in range(3):
            for p in range(2):
                c = ACC(tt, 2 * kk + p)
                o += [f'v_cvt_pk_bf16_f32 v{TB(tt,kk)+2*p}, v{c}, v{c+1}', f'v_cvt_pk_bf16_f32 v{TB(tt,kk)+2*p+1}, v{c+2}, v{c+3}']
        c = ACC(tt, 6)
        o += [f'v_cvt_pk_bf16_f32 v{TB(tt,3)}, v{c}, v{c+1}', f'v_cvt_pk_bf16_f32 v{TB(tt,3)+1}, v{c+2}, v{c+3}']
        return o
    def mm(i):
        tt, ks = seq[i]; out = []
        for t in range(7):
            c = f'v[{ACC(tt,t)}:{ACC(tt,t)+3}]'
            out.append(f'v_mfma_f32_16x16x32_bf16 {c}, {R(W(t,ks),4)}, v[{FR+4*(i%3)}:{FR+4*(i%3)+3}], {"0" if ks == 0 else c}')
        return out
    def optdma(d):
        def f():
            a.opt_begin('s_cbranch_vccz'); a(d); a.opt_end()
        return f
    def chk():
        a.wait_vm('nf')
        a(f'v_min_u32 v{NF}, v{NF}, v{NF+1}')
        a(f'v_cmp_eq_u32 vcc, 0, v{NF}')
        a('s_cmp_eq_u64 vcc, 0')
        a('s_cselect_b64 vcc, -1, 0')
    dl = dma_list(S_XN, 37, VL16); dl[6] += f'\ns_add_u32 s{S_XN}, s{S_XN}, {L.XN_SZ}'
    sd = {8: [lambda: a(f'buffer_load_dwordx2 v[{NF}:{NF+1}], v{VFL}, {SRD}, s{S_FI} offen sc1', tag='nf')], 15: cvt(0), 20: [chk]}
    for j in range(7): sd[21 + j] = [optdma(dl[j])]
    st.cyc(0); sd[7] = [lambda: st.cyc(1)]; sd[14] = [lambda: st.cyc(2)]
    def g6():
        a.wait_vm(('d', 6)); a('s_barrier')
        a.opt_begin('s_cbranch_vccz')
        signal(a, 53, VZ, VONE, wait='')
        a.opt_end()
    left = stream(a, 28, rd, mm, {0: gate(a, ('d', 0)), 2: gate(a, ('d', 1)), 4: gate(a, ('d', 3)), 8: g6}, sd, depth=2, per=2)
    st.cyc(3)
    assert not left
    a('s_mov_b64 s[50:51], vcc')
    def hrd(kk):
        h = HF + 8 * (kk % 2)
        if kk < 3: return [f'ds_read_b128 v[{h+4*jt}:{h+4*jt+3}], v{VHB} offset:{2048*kk+128*jt}' for jt in range(2)]
        return [f'ds_read_b64 v[{h+4*jt}:{h+4*jt+1}], v{VHB3} offset:{128*jt}' for jt in range(2)]
    mloads = [f'buffer_load_dwordx4 v[{MF+4*kk}:{MF+4*kk+3}], v{VMA}, {SRD}, s{S_MX} offen offset:{512*kk} sc1' for kk in range(3)] + \
             [f'buffer_load_dwordx2 v[{MF+12}:{MF+13}], v{VMA3}, {SRD}, s{S_MX} offen sc1']
    for s_ in hrd(0) + hrd(1): a(s_)
    for s_ in cvt(1): a(s_)
    for s_ in mloads: a(s_)
    for kk in range(4):
        a(f's_waitcnt lgkmcnt({2 if kk < 3 else 0})')
        h = HF + 8 * (kk % 2)
        for ci, (jt, tt) in enumerate(((0, 0), (0, 1), (1, 1))):
            c = f'v[{SX(ci)}:{SX(ci)+3}]'; cin = '0' if kk == 0 else c
            if kk < 3: a(f'v_mfma_f32_16x16x32_bf16 {c}, v[{h+4*jt}:{h+4*jt+3}], v[{TB(tt,kk)}:{TB(tt,kk)+3}], {cin}')
            else: a(f'v_mfma_f32_16x16x16_bf16 {c}, v[{h+4*jt}:{h+4*jt+1}], v[{TB(tt,kk)}:{TB(tt,kk)+1}], {cin}')
        if kk < 2:
            for s_ in hrd(kk + 2): a(s_)
    for ci, (jt, tt) in enumerate(((0, 0), (0, 1), (1, 1))):
        a(f'ds_write_b128 v{VSXW}, v[{SX(ci)}:{SX(ci)+3}] offset:{16*RS*tt+64*jt}')
    a('s_waitcnt lgkmcnt(0)'); a('s_barrier')
    for w in range(4): a(f'ds_read_b128 v[{HF+4*w}:{HF+4*w+3}], v{VSXR} offset:{32*RS*w}')
    a('s_waitcnt lgkmcnt(2)')
    for i in (0, 2): a(f'v_pk_add_f32 v[{XV+i}:{XV+i+1}], v[{HF+i}:{HF+i+1}], v[{HF+4+i}:{HF+5+i}]')
    a('s_waitcnt lgkmcnt(0)')
    for i in (0, 2): a(f'v_pk_add_f32 v[{HF+8+i}:{HF+9+i}], v[{HF+8+i}:{HF+9+i}], v[{HF+12+i}:{HF+13+i}]')
    for i in (0, 2): a(f'v_pk_add_f32 v[{XV+i}:{XV+i+1}], v[{XV+i}:{XV+i+1}], v[{HF+8+i}:{HF+9+i}]')
    for r in range(4): a(f'v_cndmask_b32 v{XV+r}, v{VROW}, v{XV+r}, s[{40+2*r}:{41+2*r}]')
    a(f'v_max3_f32 v{XV+4}, v{XV}, v{XV+1}, v{XV+2}')
    a(f'v_max_f32 v{XV+4}, v{XV+4}, v{XV+3}')
    st(); st.cyc(4)
    a('s_waitcnt vmcnt(0)')
    check(a, range(MF, MF + 14), TMP)
    a.opt_begin('s_cbranch_vccz')
    poll(a, mloads, range(MF, MF + 14), TMP, sleep=1)
    a.opt_end()
    st()
    for kk in range(4):
        for tt in range(2):
            c = f'v[{SM(tt)}:{SM(tt)+3}]'; cin = '0' if kk == 0 else c
            if kk < 3: a(f'v_mfma_f32_16x16x32_bf16 {c}, v[{MF+4*kk}:{MF+4*kk+3}], v[{TB(tt,kk)}:{TB(tt,kk)+3}], {cin}')
            else: a(f'v_mfma_f32_16x16x16_bf16 {c}, v[{MF+12}:{MF+13}], v[{TB(tt,kk)}:{TB(tt,kk)+1}], {cin}')
    for tt in range(2): a(f'ds_write_b128 v{VSMW}, v[{SM(tt)}:{SM(tt)+3}] offset:{512*tt}')
    M, X5 = TMP, TMP + 2
    a(f'''
    s_waitcnt lgkmcnt(0)
    s_barrier
    ds_read2st64_b32 v[{X5}:{X5+1}], v{VSMR} offset0:0 offset1:4
    ds_read2st64_b32 v[{X5+2}:{X5+3}], v{VSMR} offset0:8 offset1:12
    s_waitcnt lgkmcnt(0)
    v_pk_add_f32 v[{X5}:{X5+1}], v[{X5}:{X5+1}], v[{X5+2}:{X5+3}]
    v_add_f32 v{X5}, v{X5}, v{X5+1}
    v_max_f32 v{M}, v{XV+4}, v{X5}
    ''')
    D3 = ('quad_perm:[1,0,3,2]', 'quad_perm:[2,3,0,1]', 'row_half_mirror')
    for d in D3: a(f'v_max_f32_dpp v{M}, v{M}, v{M} {d} row_mask:0xf bank_mask:0xf')
    a(f'''
    v_sub_f32 v{X5}, v{X5}, v{M}
    v_pk_add_f32 v[{XV}:{XV+1}], v[{XV}:{XV+1}], v[{M}:{M+1}] op_sel_hi:[1,0] neg_lo:[0,1] neg_hi:[0,1]
    v_pk_add_f32 v[{XV+2}:{XV+3}], v[{XV+2}:{XV+3}], v[{M}:{M+1}] op_sel_hi:[1,0] neg_lo:[0,1] neg_hi:[0,1]
    v_exp_f32 v{X5}, v{X5}
    v_exp_f32 v{XV}, v{XV}
    v_exp_f32 v{XV+1}, v{XV+1}
    v_exp_f32 v{XV+2}, v{XV+2}
    v_exp_f32 v{XV+3}, v{XV+3}
    v_add_f32 v{M}, v{X5}, v{XV}
    v_add_f32 v{M}, v{M}, v{XV+1}
    v_add_f32 v{M}, v{M}, v{XV+2}
    v_add_f32 v{M}, v{M}, v{XV+3}
    ''')
    for d in D3: a(f'v_add_f32_dpp v{M}, v{M}, v{M} {d} row_mask:0xf bank_mask:0xf')
    a(f'''
    v_rcp_f32 v{M}, v{M}
    v_mul_f32 v{X5}, v{X5}, v{M}
    v_pk_mul_f32 v[{XV}:{XV+1}], v[{XV}:{XV+1}], v[{M}:{M+1}] op_sel_hi:[1,0]
    v_pk_mul_f32 v[{XV+2}:{XV+3}], v[{XV+2}:{XV+3}], v[{M}:{M+1}] op_sel_hi:[1,0]
    v_mov_b32_dpp v{X5+1}, v{X5} quad_perm:[1,0,3,2] row_mask:0xf bank_mask:0xf
    v_cvt_pk_bf16_f32 v{XV}, v{XV}, v{XV+1}
    v_cvt_pk_bf16_f32 v{XV+1}, v{XV+2}, v{XV+3}
    v_cvt_pk_bf16_f32 v{X5}, v{X5}, v{X5+1}
    buffer_store_dwordx2 v[{XV}:{XV+1}], v{VPX}, {SRD}, s{S_PX} offen sc1
    s_mov_b64 exec, s[48:49]
    buffer_store_dword v{X5}, v{VPM}, {SRD}, s{S_PX} offen sc1
    s_mov_b64 exec, -1
    ''')
    st()
    a(f's_mov_b32 s53, s{S_FO}')
    a(f's_cmp_ge_u32 s{S_STEP}, 62')
    a('s_cselect_b64 s[50:51], 0, s[50:51]')
    a('s_cmp_eq_u64 s[50:51], 0')
    a.opt_begin('s_cbranch_scc0')
    signal(a, S_FO, VZ, VONE)
    a.opt_end()
    st()
    st.flush(6 << 20, TMP, TMP + 1)
    a(f'''
    s_mov_b64 vcc, s[50:51]
    v_xor_b32 v{VFB}, {XBUF}, v{VFB}
    v_add_u32 v{VHB}, s52, v{VHB}
    v_add_u32 v{VHB3}, s52, v{VHB3}
    s_sub_u32 s52, 0, s52
    s_add_u32 s{S_MX}, s{S_MX}, {2*L.MEM_SZ}
    s_add_u32 s{S_PX}, s{S_PX}, {2*L.PX_SZ}
    s_add_u32 s{S_FO}, s{S_FO}, 1024
    s_add_u32 s{S_STEP}, s{S_STEP}, 2
    s_cmp_lt_u32 s{S_STEP}, 64
    s_cbranch_scc1 {loop}
    s_endpgm
    ''')

def helper_touch(a):
    loop, go, end = a.newlabel('HT'), a.newlabel('HT_GO'), a.newlabel('HT_END')
    a(f'''
    s_cmp_lg_u32 s{S_W}, 0
    s_cbranch_scc1 {end}
    v_lshlrev_b32 v2, 7, {lane}
    v_mov_b32 v3, 0
    s_mul_i32 s21, s{S_LAYER}, {64*L.HB_SZ}
    s_add_u32 s21, s21, {L.HB}
    s_mul_i32 s22, s{S_LAYER}, {128*L.XN_SZ}
    s_add_u32 s22, s22, {L.XS + 64*L.XN_SZ}
    s_lshl_b32 s23, s{S_LAYER}, 18
    s_add_u32 s23, s23, {L.ST + 64*L.ST_SZ}
    s_lshl_b32 s24, s{S_LAYER}, 15
    s_add_u32 s24, s24, {L.flag(L.FL_T)}
    s_mov_b32 s{S_STEP}, 0
    ''')
    def body(mode):
        if mode: a('s_endpgm'); return
        a.label(loop)
        a(f's_cmp_lt_u32 s{S_STEP}, 1')
        a(f's_cbranch_scc1 {go}')
        wait_flags(a, 24, 3, 4, sleep=4)
        a('s_add_u32 s24, s24, 512')
        a.label(go)
        a(f'buffer_load_dword v5, v2, {SRD}, s23 offen sc1')
        a(f's_add_u32 s23, s23, {L.ST_SZ}')
        for i in range(4):
            a(f'buffer_load_dword v5, v2, {SRD}, s22 offen sc1')
            a(f's_add_u32 s22, s22, {8192 if i < 3 else 4096}')
        for i in range(14):
            a(f'buffer_load_dword v5, v2, {SRD}, s21 offen sc1')
            a('s_add_u32 s21, s21, 8192')
        a(f'''
        s_add_u32 s{S_STEP}, s{S_STEP}, 1
        s_cmp_lt_u32 s{S_STEP}, 64
        s_cbranch_scc1 {loop}
        s_endpgm
        ''')
    mode_split(a, body, 4)
    a.label(end)
    a('s_endpgm')
```

```python
from common import *

def poll2(a, mk, bases, nreg, tmp, consume, gap=2):
    lab = a.newlabel('PP'); n = len(mk(bases[0]))
    a('s_waitcnt vmcnt(0)')
    for l in mk(bases[0]): a(l)
    a(f's_sleep {gap}')
    a.label(lab)
    for l in mk(bases[1]): a(l)
    a(f's_waitcnt vmcnt({n})')
    check(a, range(bases[0], bases[0] + nreg), tmp)
    a.br(f's_cbranch_vccz {lab}_d0')
    for l in mk(bases[0]): a(l)
    a(f's_sub_u32 s{S_ABORT}, s{S_ABORT}, 1')
    a(f's_cbranch_scc1 {lab}_abort')
    a(f's_waitcnt vmcnt({n})')
    check(a, range(bases[1], bases[1] + nreg), tmp)
    a.br(f's_cbranch_vccnz {lab}')
    a.label(lab + '_d1')
    consume(bases[1])
    a.br(f's_branch {lab}_j')
    h = list(a.hist)
    a.label(lab + '_d0'); a.hist = []
    consume(bases[0])
    a.label(lab + '_j')
    a.deferred.append(f'{lab}_abort:\n    s_mov_b32 s{S_ABORT}, 0\n    s_waitcnt vmcnt(0)\n    s_branch {lab}_d1\n')


def prog_gate(a, vreg, vz, s_prog, s_need):
    lab = a.newlabel('PG')
    a.label(lab)
    a(f'v_readfirstlane_b32 s{S_T0}, v{vreg}')
    a(f's_cmp_gt_u32 s{S_T0}, s{s_need}')
    a(f's_cbranch_scc0 {lab}_slow')
    a.label(lab + '_ok')
    a.deferred.append(f"""{lab}_slow:
    buffer_load_dword v{vreg}, v{vz}, {SRD}, s{s_prog} offen sc1
    s_sub_u32 s{S_ABORT}, s{S_ABORT}, 1
    s_cbranch_scc1 {lab}_ab
    s_waitcnt vmcnt(0)
    s_branch {lab}
{lab}_ab:
    s_mov_b32 s{S_ABORT}, 0
    s_waitcnt vmcnt(0)
    s_branch {lab}_ok
""")

def load_weights(a, groups, voff, soff):
    for g, r in enumerate(groups):
        for p in range(2):
            o = (g * 2048 + p * 1024) % 4096
            a(f'buffer_load_dwordx4 {R(r + 4 * p, 4)}, v{voff}, {SRD}, s{soff} offen offset:{o}')
        if g % 2 == 1: a(f's_add_u32 s{soff}, s{soff}, 4096')

def gather_mem_setup(a, v_g0):
    a(f'''
    s_lshl_b32 s{S_T0}, s{S_W}, 10
    s_cmp_eq_u32 s{S_W}, 3
    s_cselect_b32 s33, 3, 4
    s_lshl_b32 s33, s33, 10
    v_lshlrev_b32 v{v_g0}, 4, v{V_LANE}
    v_add_u32 v{v_g0}, s{S_T0}, v{v_g0}
    ''')

def gather_mem(a, st, G, VG0, S_MEM, TMP, LDS_MEM, VPROG):
    a(f's_add_u32 s34, s{S_MEM}, s33')
    st()
    poll(a, [f'buffer_load_dword v{VPROG}, off, {SRD}, s35 sc1',
             f'buffer_load_dwordx4 v[{G}:{G+3}], v{VG0}, {SRD}, s{S_MEM} offen sc1',
             f'buffer_load_dwordx4 v[{G+4}:{G+7}], v{VG0}, {SRD}, s34 offen sc1'], range(G, G + 8), TMP)
    st()
    a(f'''
    ds_write_b128 v{VG0}, v[{G}:{G+3}] offset:{LDS_MEM}
    ds_write_b128 v{VG0}, v[{G+4}:{G+7}] offset:{LDS_MEM+4096}
    s_waitcnt lgkmcnt(0)
    s_barrier
    ''')

def gather_mem2(a, st, G0, G1, VG0, S_MEM, TMP, LDS_MEM, extra=()):
    a(f's_add_u32 s34, s{S_MEM}, s33')
    a('s_waitcnt vmcnt(0)')
    st()
    mk = lambda G: [f'buffer_load_dwordx4 v[{G}:{G+3}], v{VG0}, {SRD}, s{S_MEM} offen sc1',
                    f'buffer_load_dwordx4 v[{G+4}:{G+7}], v{VG0}, {SRD}, s34 offen sc1']
    def cons(G):
        a(f'ds_write_b128 v{VG0}, v[{G}:{G+3}] offset:{LDS_MEM}')
        a(f'ds_write_b128 v{VG0}, v[{G+4}:{G+7}] offset:{LDS_MEM+4096}')
    poll2(a, mk, [G0, G1], 8, TMP, cons)
    st()
    a('s_waitcnt lgkmcnt(0)')
    a('s_barrier')

def gtile(n): return 4 * n if n < 4 else 16 + 3 * (n - 4) - 1

def chain_A(a, stamps=False):
    lane = f'v{V_LANE}'
    LDS_MEM, LDS_TI, LDS_PG = 0, 8192, 16384
    S_MEM, S_PB, S_XN, S_TU, S_TX = 21, 22, 23, 24, 25
    MEMF, ACC, G0, G1 = 0, 28, 40, 48
    VG0, VIDX, VMF, VTW, VPGA, TMP, VPGV = 56, 57, 58, 59, 60, 61, 62
    w0 = a.newlabel('CA_W0')
    def common_setup(WG, ntile):
        a(f'''
        s_mul_i32 s{S_T2}, s{S_ROLE}, 401408
        s_mul_i32 s{S_T0}, s{S_W}, 14336
        s_add_u32 s26, s{S_T2}, s{S_T0}
        s_add_u32 s26, s26, {L.WAC}
        v_lshlrev_b32 v{TMP}, 4, {lane}
        ''')
        for n in range(ntile):
            a(f's_add_u32 s{S_T2}, s26, {gtile(n) * 14336}')
            load_weights(a, WG[7 * n: 7 * n + 7], TMP, S_T2)
        gather_mem_setup(a, VG0)
        q, c, t = 2, 3, 4
        a(f'''
        v_lshrrev_b32 v{q}, 4, {lane}
        v_and_b32 v{c}, 15, {lane}
        v_and_b32 v{VIDX}, 2, {lane}
        v_cmp_eq_u32 vcc, 2, v{VIDX}
        v_mov_b32 v{VIDX}, 0x44444444
        v_mov_b32 v{VMF}, 0xeeeeeeee
        v_cndmask_b32 v{VIDX}, v{VIDX}, v{VMF}, vcc
        v_and_b32 v{VMF}, 2, {lane}
        v_lshlrev_b32 v{VMF}, 6, v{VMF}
        v_lshl_add_u32 v{VMF}, v{q}, 8, v{VMF}
        v_bfe_u32 v{t}, {lane}, 2, 2
        v_lshl_add_u32 v{VMF}, v{t}, 5, v{VMF}
        v_lshlrev_b32 v{VTW}, 6, v{t}
        v_and_b32 v{t}, 1, {lane}
        v_lshl_add_u32 v{VMF}, v{t}, 4, v{VMF}
        v_lshl_add_u32 v{VTW}, v{t}, 5, v{VTW}
        v_lshl_add_u32 v{VTW}, v{q}, 3, v{VTW}
        v_bfe_u32 v{t}, {lane}, 1, 1
        v_lshl_add_u32 v{VTW}, v{t}, 2, v{VTW}
        s_lshl_b32 s{S_T0}, s{S_W}, 8
        s_add_u32 s{S_T0}, s{S_T0}, {LDS_TI}
        v_add_u32 v{VTW}, s{S_T0}, v{VTW}
        s_lshl_b32 s{S_T0}, s{S_W}, 8
        s_add_u32 s{S_T0}, s{S_T0}, {LDS_PG}
        v_lshl_add_u32 v{VPGA}, {lane}, 2, s{S_T0}
        v_mov_b32 v{VPGV}, 0
        ds_write_b32 v{VPGA}, v{VPGV}
        s_mul_i32 s30, s{S_LAYER}, {4*L.MEM_SZ}
        s_add_u32 s30, s30, {L.MEML}
        s_mov_b32 s{S_STEP}, 0
        ''')
    def acc(n): return ACC + 4 * (n % 3)
    def zero(r): return [f'v_mov_b64 v[{r+i}:{r+i+1}], 0' for i in (0, 2)]
    def post(n, pk=False):
        c = acc(n)
        if pk: return [f'v_pk_add_f32 v[{c}:{c+1}], v[{c}:{c+1}], v[{c+2}:{c+3}]', f'v_cvt_pk_bf16_f32 v{c}, v{c}, v{c+1}',
                f'ds_write_b32 v{VTW}, v{c} offset:{256*gtile(n)}']
        return [f'v_add_f32 v{c}, v{c}, v{c+2}', f'v_add_f32 v{c+1}, v{c+1}, v{c+3}', f'v_cvt_pk_bf16_f32 v{c}, v{c}, v{c+1}',
                f'ds_write_b32 v{VTW}, v{c} offset:{256*gtile(n)}']
    BAR = 's_waitcnt lgkmcnt(0)\ns_barrier'
    def step_head(st, extra_loads=()):
        a(f'''
        s_and_b32 s{S_T0}, s{S_STEP}, 3
        s_mul_i32 s{S_T1}, s{S_T0}, {L.MEM_SZ}
        s_add_u32 s{S_MEM}, s{S_T1}, s30
        ''')
        for n in range(3):
            for s_ in zero(acc(n)): a(s_)
        gather_mem2(a, st, G0, G1, VG0, S_MEM, TMP, LDS_MEM, extra_loads)
        for ks in range(7): a(f'ds_read_b128 v[{MEMF+4*ks}:{MEMF+4*ks+3}], v{VMF} offset:{LDS_MEM+1024*ks}')
        for x in extra_loads: a(x)
    def tsm(WG, n, ks):
        c = acc(n)
        return f'v_smfmac_f32_16x16x64_bf16 v[{c}:{c+3}], v[{MEMF+4*ks}:{MEMF+4*ks+3}], {R(WG[7*n+ks],8)}, v{VIDX}'
    def t_phase(WG, ntile, extra=None):
        for ks in range(7):
            a(f's_waitcnt lgkmcnt({6-ks})' if not stamps or ks == 0 else 's_waitcnt lgkmcnt(0)')
            a(tsm(WG, 0, ks)); a(tsm(WG, 1, ks))
        PG = [f'v_add_u32 v{VPGV}, 1, v{VPGV}', f'ds_write_b32 v{VPGA}, v{VPGV}'] if ntile == 8 else []
        NOP = ['s_nop 0']
        for n in range(2, ntile):
            if n == 2:
                p0, p1, z = post(0), post(1), zero(acc(3))
                side = {0: ['s_nop 1'] + PG[:1], 1: ['s_nop 1'] + p0[:1], 2: p0[1:2], 3: p0[2:], 4: z[:1] + p1[:1], 5: z[1:] + p1[1:2], 6: p1[2:]}
            else:
                z = zero(acc(n + 1)) if n + 1 < ntile else NOP * 2
                sig = n in (3, 4, 6, 7); p = post(n - 1)
                side = {0: NOP + z[:1], 1: NOP + z[1:], 2: NOP + p[:1], 3: p[1:2], 4: p[2:] + (PG[1:] if sig else []), 5: PG[:1] if sig else []}
            for ks in range(7):
                a(tsm(WG, n, ks))
                for s_ in side.get(ks, []): a(s_)
                if extra: extra(n, ks)
    a(f's_cmp_eq_u32 s{S_W}, 0')
    a(f's_cbranch_scc1 {w0}')
    WG = [256 + 8 * g for g in range(32)] + [64 + 8 * g for g in range(24)]
    common_setup(WG, 8)
    st = Stamps(a, stamps)
    loop = a.newlabel('CA_LOOP')
    a.flush(); a.label(loop)
    step_head(st)
    t_phase(WG, 8)
    for s_ in post(7, True): a(s_)
    a(f'ds_write_b32 v{VPGA}, v{VPGV}')
    st()
    st.flush(0, G0, G0 + 1)
    a(f'''
    s_add_u32 s{S_STEP}, s{S_STEP}, 1
    s_cmp_lt_u32 s{S_STEP}, 63
    s_cbranch_scc1 {loop}
    s_endpgm
    ''')
    a.label(w0)
    WG0 = [256 + 8 * g for g in range(28)]
    XF = lambda g, jt: 144 + 16 * g + 8 * jt
    TB = lambda g: 64 + 4 * (g % 4)
    MH = lambda g: 80 + 8 * (g % 4)
    SA = lambda jt: 112 + 4 * jt
    VTR, VMH, VXA, VP0, VPM, VPROG, VZ, VTX = 124, 125, 126, 127, 128, 129, 130, 131
    M, T2, PGR = 132, 134, 136
    common_setup(WG0, 4)
    q, c, t = 2, 3, 4
    a(f'''
    v_min_u32 v{VPGA}, 2, {lane}
    v_mul_u32_u24 v{VPGA}, 260, v{VPGA}
    v_add_u32 v{VPGA}, {LDS_PG + 256}, v{VPGA}
    v_lshlrev_b32 v{VTR}, 8, v{q}
    v_lshl_add_u32 v{VTR}, v{c}, 3, v{VTR}
    v_add_u32 v{VTR}, {LDS_TI}, v{VTR}
    v_and_b32 v{t}, 7, {lane}
    v_lshlrev_b32 v{VMH}, 7, v{q}
    v_lshl_add_u32 v{VMH}, v{t}, 4, v{VMH}
    v_lshlrev_b32 v{VXA}, 9, v{q}
    v_lshl_add_u32 v{VXA}, v{c}, 4, v{VXA}
    s_lshr_b32 s{S_T0}, s{S_ROLE}, 2
    s_mul_i32 s{S_T0}, s{S_T0}, 2560
    s_bfe_u32 s{S_T1}, s{S_ROLE}, 0x10001
    s_and_b32 s{S_T2}, s{S_ROLE}, 1
    v_bfe_u32 v{VP0}, {lane}, 3, 1
    v_lshlrev_b32 v{VP0}, 8, v{VP0}
    v_lshl_add_u32 v{VP0}, v{q}, 6, v{VP0}
    v_and_b32 v{t}, 1, {lane}
    v_lshl_add_u32 v{VP0}, v{t}, 5, v{VP0}
    v_bfe_u32 v{t}, {lane}, 1, 2
    v_lshl_add_u32 v{VP0}, v{t}, 2, v{VP0}
    s_lshl_b32 s{S_T3}, s{S_T1}, 10
    s_add_u32 s{S_T3}, s{S_T3}, s{S_T0}
    s_lshl_b32 s27, s{S_T2}, 9
    s_add_u32 s{S_T3}, s{S_T3}, s27
    v_add_u32 v{VP0}, s{S_T3}, v{VP0}
    v_lshlrev_b32 v{VPM}, 7, v{t}
    v_lshl_add_u32 v{VPM}, v{q}, 5, v{VPM}
    v_bfe_u32 v{t}, {lane}, 3, 1
    v_lshl_add_u32 v{VPM}, v{t}, 3, v{VPM}
    s_lshl_b32 s{S_T3}, s{S_T2}, 4
    s_lshl_b32 s27, s{S_T1}, 2
    s_add_u32 s{S_T3}, s{S_T3}, s27
    s_add_u32 s{S_T3}, s{S_T3}, s{S_T0}
    s_add_u32 s{S_T3}, s{S_T3}, 2048
    v_add_u32 v{VPM}, s{S_T3}, v{VPM}
    s_mul_i32 s31, s{S_LAYER}, {4*L.PB_SZ}
    s_add_u32 s31, s31, {L.PB}
    s_mul_i32 s{S_XN}, s{S_LAYER}, {64*L.XN_SZ}
    s_add_u32 s{S_XN}, s{S_XN}, {L.XN}
    v_min_u32 v{VTX}, 13, {lane}
    v_lshlrev_b32 v{VTX}, 7, v{VTX}
    s_mul_i32 s{S_TX}, s{S_ROLE}, 1792
    s_add_u32 s{S_TX}, s{S_TX}, s{S_XN}
    s_add_u32 s{S_TX}, s{S_TX}, {2*L.XN_SZ}
    s_mov_b32 s28, 0xff00ff00
    s_mov_b32 s29, 0xff00ff00
    s_mov_b32 s36, 0x55555555
    s_mov_b32 s37, 0x55555555
    s_lshl_b32 s35, s{S_LAYER}, 15
    s_add_u32 s35, s35, {L.flag(L.FL_PROG) + 128}
    v_mov_b32 v{VPROG}, 0
    v_mov_b32 v{VZ}, 0
    ''')
    def xld(g):
        out = []
        for jt in range(2):
            for p in range(2):
                r = XF(g, jt) + 4 * p
                out.append(f'buffer_load_dwordx4 v[{r}:{r+3}], v{VXA}, {SRD}, s{S_XN} offen offset:{2048*p+256*jt} sc1')
        out[-1] += f'\ns_add_u32 s{S_XN}, s{S_XN}, 4096'
        return out
    prog_gate(a, VPROG, VZ, 35, S_STEP)
    for g in range(7):
        for s_ in xld(g): a(s_)
    def body(st_flag):
        st = Stamps(a, stamps)
        loop = a.newlabel('CA0_LOOP')
        a.flush(); a.label(loop); a.lg = []; a.vm = []
        a(f'''
        s_and_b32 s{S_T0}, s{S_STEP}, 3
        s_mul_i32 s{S_T1}, s{S_T0}, {L.PB_SZ}
        s_add_u32 s{S_PB}, s{S_T1}, s31
        s_add_u32 s{S_T0}, s{S_STEP}, 3
        s_and_b32 s{S_T0}, s{S_T0}, 3
        s_mul_i32 s{S_T1}, s{S_T0}, {L.PB_SZ}
        s_add_u32 s32, s{S_T1}, s31
        ''')
        for jt in range(3):
            for s_ in zero(SA(jt)): a(s_)
        step_head(st, [f'buffer_load_dword v{VPROG}, off, {SRD}, s35 sc1'])
        a(f's_add_u32 s{S_STEP}, s{S_STEP}, 1')
        def mh(g): return [f'ds_read_b128 v[{MH(g)+4*p}:{MH(g)+4*p+3}], v{VMH} offset:{LDS_MEM+1024*g+512*p}' for p in range(2)]
        def tr(g): return [f'ds_read_b64_tr_b16 v[{TB(g)+2*p}:{TB(g)+2*p+1}], v{VTR} offset:{1024*g+128*p}' for p in range(2)]
        def ssm(g):
            return [f'v_smfmac_f32_16x16x64_bf16 v[{SA(jt)}:{SA(jt)+3}], v[{TB(g)}:{TB(g)+3}], v[{(MH(g) if jt == 2 else XF(g, jt))}:{(MH(g) if jt == 2 else XF(g, jt))+7}], v{VIDX}' for jt in range(3)]
        pre = mh(0) + mh(1) + mh(2) + mh(3)
        def issue(gs, first=True):
            if first: a(f'v_add_u32 v{VPGV}, 1, v{VPGV}')
            a(f'ds_read_b32 v{PGR}, v{VPGA}', tag='pg')
            for g in gs:
                for s_ in tr(g): a(s_, tag=('tr', g))
        def chk(gs):
            lab = a.newlabel('CA_PW')
            a.wait_lg('pg')
            a(f'v_cmp_lt_u32 vcc, v{PGR}, v{VPGV}')
            a.br(f's_cbranch_vccnz {lab}')
            a.label(lab + '_ok')
            d = f'{lab}:\n    ds_read_b32 v{PGR}, v{VPGA}\n' + ''.join(f'    {x}\n' for g in gs for x in tr(g))
            d += f'    s_waitcnt lgkmcnt({2*len(gs)})\n    v_cmp_lt_u32 vcc, v{PGR}, v{VPGV}\n    s_cbranch_vccnz {lab}\n    s_branch {lab}_ok\n'
            a.deferred.append(d)
        def extra(n, ks):
            if (n, ks) in ((2, 0), (2, 1), (3, 0), (3, 1)):
                for _ in range(2): a(pre.pop(0))
            if (n, ks) == (3, 2):
                a(f's_waitcnt vmcnt(0)\nv_readfirstlane_b32 s{S_T0}, v{VPROG}')
            if (n, ks) == (3, 5):
                a(f's_cmp_gt_u32 s{S_T0}, s{S_STEP}\ns_cselect_b32 s38, 1, 0')
            if (n, ks) == (3, 6): issue((0, 1, 2))
        t_phase(WG0, 4, extra)
        def optx(g):
            a('s_cmp_eq_u32 s38, 1')
            a.opt_begin('s_cbranch_scc0')
            for s_ in xld(g): a(s_)
            a.opt_end()
        def run(g, side=()):
            a.wait_lg(('tr', g))
            side = list(side)
            for s_ in ssm(g):
                a(s_)
                if side: a(side.pop(0))
        for s_ in post(3, True)[:2]: a(s_)
        chk((0, 1, 2))
        run(0); run(1)
        a.wait_lg(('tr', 2))
        a(post(3, True)[2])
        issue((3,))
        run(2)
        chk((3,))
        run(3)
        for s_ in mh(4) + mh(5) + mh(6): a(s_)
        optx(0)
        issue((4,)); optx(1); chk((4,)); run(4)
        issue((5,)); optx(2); chk((5,))
        a.wait_lg(('tr', 5))
        issue((6,)); run(5); chk((6,)); run(6)
        st()
        E, O, K = SA(0), SA(1), SA(2)
        for r in (E, O, K): a(f'v_pk_add_f32 v[{r}:{r+1}], v[{r}:{r+1}], v[{r+2}:{r+3}]')
        for b in range(2): a(f'v_max3_f32 v{M+b}, v{E+b}, v{O+b}, v{K+b}')
        def red(op):
            for r in (8, 4, 2, 1):
                for b in range(2): a(f'{op}_dpp v{M+b}, v{M+b}, v{M+b} row_ror:{r} row_mask:0xf bank_mask:0xf')
        red('v_max_f32')
        for r in (E, O, K): a(f'v_pk_add_f32 v[{r}:{r+1}], v[{r}:{r+1}], v[{M}:{M+1}] neg_lo:[0,1] neg_hi:[0,1]')
        for r in (E, O, K):
            for b in range(2): a(f'v_exp_f32 v{r+b}, v{r+b}')
        a(f'v_pk_add_f32 v[{M}:{M+1}], v[{E}:{E+1}], v[{O}:{O+1}]')
        a(f'v_pk_fma_f32 v[{M}:{M+1}], v[{K}:{K+1}], 0.5, v[{M}:{M+1}] op_sel_hi:[1,0,1]')
        red('v_add_f32')
        a(f'''
        v_rcp_f32 v{M}, v{M}
        v_rcp_f32 v{M+1}, v{M+1}
        v_pk_mul_f32 v[{K}:{K+1}], v[{K}:{K+1}], v[{M}:{M+1}]
        v_pk_mul_f32 v[{E}:{E+1}], v[{E}:{E+1}], v[{M}:{M+1}]
        v_cndmask_b32 v{K}, v{K}, v{K+1}, s[28:29]
        v_pk_mul_f32 v[{O}:{O+1}], v[{O}:{O+1}], v[{M}:{M+1}]
        v_cvt_pk_bf16_f32 v{E}, v{E}, v{O}
        v_mov_b32_dpp v{K+1}, v{K} quad_perm:[1,0,3,2] row_mask:0xf bank_mask:0xf
        v_min_u32 v{E}, -2, v{E}
        buffer_store_dword v{E}, v{VP0}, {SRD}, s{S_PB} offen {st_flag}
        v_cvt_pk_bf16_f32 v{E+1}, v{E+1}, v{O+1}
        v_cvt_pk_bf16_f32 v{K}, v{K}, v{K+1}
        v_min_u32 v{E+1}, -2, v{E+1}
        buffer_store_dword v{E+1}, v{VP0}, {SRD}, s{S_PB} offen offset:16 {st_flag}
        v_min_u32 v{K}, -2, v{K}
        v_mov_b32 v{M}, -1
        s_mov_b64 exec, s[36:37]
        buffer_store_dword v{K}, v{VPM}, {SRD}, s{S_PB} offen {st_flag}
        buffer_store_dword v{M}, v{VPM}, {SRD}, s32 offen {st_flag}
        s_mov_b64 exec, -1
        buffer_store_dword v{M}, v{VP0}, {SRD}, s32 offen {st_flag}
        buffer_store_dword v{M}, v{VP0}, {SRD}, s32 offen offset:16 {st_flag}
        ''')
        st()
        if stamps: a(f's_sub_u32 s{S_STEP}, s{S_STEP}, 1')
        st.flush(0, G0, G0 + 1)
        if stamps: a(f's_add_u32 s{S_STEP}, s{S_STEP}, 1')
        late = a.newlabel('CA0_LATE')
        a(f'''
        s_cmp_ge_u32 s{S_STEP}, 63
        s_cbranch_scc1 {loop}_end
        s_cmp_eq_u32 s38, 1
        s_cbranch_scc1 {late}
        ''')
        prog_gate(a, VPROG, VZ, 35, S_STEP)
        for g in range(3):
            for s_ in xld(g): a(s_)
        a.label(late)
        for g in (3, 4, 5, 6):
            for s_ in xld(g): a(s_)
        a(f'v_readfirstlane_b32 s{S_T0}, v{VPROG}')
        a(f's_add_u32 s{S_T1}, s{S_STEP}, 1')
        a(f's_cmp_gt_u32 s{S_T0}, s{S_T1}')
        a.opt_begin('s_cbranch_scc0')
        a(f'buffer_load_dword v{T2}, v{VTX}, {SRD}, s{S_TX} offen sc1')
        a.opt_end()
        a(f's_add_u32 s{S_TX}, s{S_TX}, {L.XN_SZ}')
        a(f's_branch {loop}')
        a.label(loop + '_end')
        a('s_endpgm')
    mode_split(a, body, TMP)

def chain_B(a, stamps=False, st_flag=''):
    st = Stamps(a, stamps)
    regs = [256 + 8 * g for g in range(32)] + [128 + 8 * g for g in range(16)]
    WG = {}
    n = 0
    for tl in range(8):
        for ks in range(6):
            WG[(tl, ks)] = regs[n]; n += 1
    ACC = 4
    UXF = 36
    MEMF = 68
    PF = MEMF
    W6 = 96
    UMF = 112
    G = W6
    FACC = ACC
    VG0, VW6, VIDX, VMF, VL16, VUX, VRW, VMST = 120, 121, 122, 123, 124, 125, 126, 127
    TMP, TMP2 = 2, 3
    VRR, VL8 = 0, 1
    LDS_MEM, LDS_RED, LDS_W = 0, 8192, 12288
    S_MEM, S_PB, S_UX, S_UM, S_MX = 21, 22, 23, 24, 25
    lane = f'v{V_LANE}'
    a(f'''
    s_lshl_b32 s{S_T0}, s{S_ROLE}, 2
    s_add_u32 s{S_T0}, s{S_T0}, s{S_W}
    s_mul_i32 s{S_T0}, s{S_T0}, 114688
    s_add_u32 s{S_T2}, s{S_T0}, {L.WBC}
    v_lshlrev_b32 v{VL16}, 4, {lane}
    s_lshl_b32 s{S_T3}, s{S_W}, 14
    s_add_u32 s{S_T3}, s{S_T3}, {LDS_W}
    ''')
    for tl in range(8):
        for ks in range(7):
            for p in range(2):
                o = (ks * 2048 + p * 1024) % 4096
                if ks < 6:
                    a(f'buffer_load_dwordx4 {R(WG[(tl,ks)] + 4 * p, 4)}, v{VL16}, {SRD}, s{S_T2} offen offset:{o}')
                else:
                    if p == 0: a(f's_mov_b32 m0, s{S_T3}')
                    a(f'buffer_load_dwordx4 v{VL16}, {SRD}, s{S_T2} offen offset:{o} lds')
            if ks % 2 == 1: a(f's_add_u32 s{S_T2}, s{S_T2}, 4096')
        a(f's_add_u32 s{S_T2}, s{S_T2}, 2048')
        a(f's_add_u32 s{S_T3}, s{S_T3}, 2048')
    gather_mem_setup(a, VG0)
    a(f'''
    v_lshrrev_b32 v{TMP}, 4, {lane}
    v_and_b32 v{TMP2}, 15, {lane}
    v_and_b32 v{VIDX}, 2, {lane}
    v_cmp_eq_u32 vcc, 2, v{VIDX}
    v_mov_b32 v{VIDX}, 0x44444444
    v_mov_b32 v{VMF}, 0xeeeeeeee
    v_cndmask_b32 v{VIDX}, v{VIDX}, v{VMF}, vcc
    v_and_b32 v{VMF}, 2, {lane}
    v_lshlrev_b32 v{VMF}, 6, v{VMF}
    v_lshl_add_u32 v{VMF}, v{TMP}, 8, v{VMF}
    v_bfe_u32 v{VUX}, {lane}, 2, 2
    v_lshl_add_u32 v{VMF}, v{VUX}, 5, v{VMF}
    v_and_b32 v{VUX}, 1, {lane}
    v_lshl_add_u32 v{VMF}, v{VUX}, 4, v{VMF}
    s_mul_i32 s{S_T0}, s{S_W}, {4*28672}
    s_lshl_b32 s{S_T1}, s{S_ROLE}, 11
    s_add_u32 s{S_T0}, s{S_T0}, s{S_T1}
    v_lshlrev_b32 v{VUX}, 4, v{TMP2}
    v_lshl_add_u32 v{VUX}, v{TMP}, 9, v{VUX}
    v_add_u32 v{VUX}, s{S_T0}, v{VUX}
    s_lshr_b32 s{S_T0}, s{S_W}, 1
    s_lshl_b32 s{S_T0}, s{S_T0}, 10
    s_and_b32 s{S_T1}, s{S_W}, 1
    s_lshl_b32 s{S_T1}, s{S_T1}, 3
    s_add_u32 s{S_T0}, s{S_T0}, s{S_T1}
    s_add_u32 s{S_T0}, s{S_T0}, {LDS_RED}
    v_add_u32 v{VRW}, s{S_T0}, v{VL16}
    v_lshrrev_b32 v{VMST}, 2, v{TMP2}
    v_lshlrev_b32 v{VMST}, 7, v{VMST}
    v_lshl_add_u32 v{VMST}, v{TMP}, 5, v{VMST}
    v_and_b32 v{TMP2}, 3, {lane}
    v_lshl_add_u32 v{VMST}, v{TMP2}, 2, v{VMST}
    s_lshl_b32 s{S_T0}, s{S_ROLE}, 9
    s_lshl_b32 s{S_T1}, s{S_T1}, 1
    s_add_u32 s{S_T0}, s{S_T0}, s{S_T1}
    v_add_u32 v{VMST}, s{S_T0}, v{VMST}
    s_mul_i32 s{S_MX}, s{S_LAYER}, {64*L.MEM_SZ}
    s_add_u32 s{S_MX}, s{S_MX}, {L.MEMX}
    s_mul_i32 s30, s{S_LAYER}, {4*L.MEM_SZ}
    s_add_u32 s30, s30, {L.MEML}
    s_mul_i32 s31, s{S_LAYER}, {4*L.PB_SZ}
    s_mul_i32 s{S_T0}, s{S_W}, 2560
    s_add_u32 s31, s31, s{S_T0}
    s_add_u32 s31, s31, {L.PB}
    s_mul_i32 s{S_UX}, s{S_LAYER}, {64*L.UX_SZ}
    s_add_u32 s{S_UX}, s{S_UX}, {L.UX}
    s_mul_i32 s{S_UM}, s{S_LAYER}, {64*L.UM_SZ}
    s_lshl_b32 s{S_T0}, s{S_ROLE}, 2
    s_add_u32 s{S_T0}, s{S_T0}, s{S_W}
    s_lshl_b32 s{S_T0}, s{S_T0}, 11
    s_add_u32 s{S_UM}, s{S_UM}, s{S_T0}
    s_add_u32 s{S_UM}, s{S_UM}, {L.UM}
    s_lshl_b32 s26, s{S_W}, 14
    s_add_u32 s26, s26, {LDS_W}
    v_add_u32 v{VW6}, s26, v{VL16}
    s_and_b32 s27, s{S_W}, 1
    s_lshl_b32 s27, s27, 11
    s_add_u32 s27, s27, {LDS_RED}
    v_add_u32 v{VRR}, s27, v{VL16}
    v_lshrrev_b32 v{VL8}, 1, v{VL16}
    s_lshl_b32 s35, s{S_LAYER}, 15
    s_lshl_b32 s36, s{S_ROLE}, 2
    s_add_u32 s36, s36, s{S_W}
    s_lshl_b32 s36, s36, 2
    s_add_u32 s36, s36, s35
    s_add_u32 s36, s36, {L.flag(L.FL_UM)}
    s_add_u32 s35, s35, {L.flag(L.FL_PROG)}
    s_mov_b32 s{S_STEP}, 0
    ''')
    def ux_list():
        out = []
        for hp in range(4):
            for ct in range(2):
                r = UXF + 16 * ct + 8 * (hp >> 1) + 4 * (hp & 1)
                l = f'buffer_load_dwordx4 v[{r}:{r+3}], v{VUX}, {SRD}, s{S_UX} offen offset:{256*ct} sc1'
                if ct == 1: l += f'\ns_add_u32 s{S_UX}, s{S_UX}, {28672 if hp < 3 else L.UX_SZ - 3 * 28672}'
                out.append(l)
        return out
    def um_stores():
        a(f'''
        buffer_store_dwordx4 v[{UMF}:{UMF+3}], v{VL16}, {SRD}, s{S_UM} offen sc1
        buffer_store_dwordx4 v[{UMF+4}:{UMF+7}], v{VL16}, {SRD}, s{S_UM} offen offset:1024 sc1
        s_add_u32 s{S_UM}, s{S_UM}, {L.UM_SZ}
        ''')
    def body(st_flag):
        loop = a.newlabel('CB_LOOP'); end = a.newlabel('CB_END'); skip = a.newlabel('CB_SKIP')
        a.flush(); a.label(loop)
        a(f'''
        s_and_b32 s{S_T0}, s{S_STEP}, 3
        s_mul_i32 s{S_T1}, s{S_T0}, {L.MEM_SZ}
        s_add_u32 s{S_MEM}, s{S_T1}, s30
        s_mul_i32 s{S_T1}, s{S_T0}, {L.PB_SZ}
        s_add_u32 s{S_PB}, s{S_T1}, s31
        s_add_u32 s{S_T0}, s{S_STEP}, 1
        s_and_b32 s{S_T0}, s{S_T0}, 3
        s_mul_i32 s{S_T1}, s{S_T0}, {L.MEM_SZ}
        s_add_u32 s28, s{S_T1}, s30
        s_add_u32 s{S_T0}, s{S_STEP}, 3
        s_and_b32 s{S_T0}, s{S_T0}, 3
        s_mul_i32 s{S_T1}, s{S_T0}, {L.MEM_SZ}
        s_add_u32 s29, s{S_T1}, s30
        ''')
        for i in range(0, 32, 2): a(f'v_mov_b64 v[{ACC+i}:{ACC+i+1}], 0')
        gather_mem(a, st, G, VG0, S_MEM, TMP, LDS_MEM, TMP2)
        for ks in range(7): a(f'ds_read_b128 v[{MEMF+4*ks}:{MEMF+4*ks+3}], v{VMF} offset:{LDS_MEM+1024*ks}')
        nx = a.newlabel('CB_NX'); nu = a.newlabel('CB_NU')
        a(f'''
        s_cmp_lg_u32 s{S_ROLE}, 0
        s_cbranch_scc1 {nx}
        s_add_u32 s34, s{S_MX}, s33
        buffer_store_dwordx4 v[{G}:{G+3}], v{VG0}, {SRD}, s{S_MX} offen sc1
        buffer_store_dwordx4 v[{G+4}:{G+7}], v{VG0}, {SRD}, s34 offen sc1
        s_nop 0
        ''')
        a.label(nx)
        a(f'''
        s_cmp_eq_u32 s{S_STEP}, 0
        s_cbranch_scc1 {nu}
        ''')
        um_stores()
        a.label(nu)
        a(f'v_mov_b32 v{TMP}, 0')
        prog_gate(a, TMP2, TMP, 35, S_STEP)
        def w6read(tl):
            r = W6 + 8 * (tl % 2)
            return [f'ds_read_b128 v[{r}:{r+3}], v{VW6} offset:{2048*tl}', f'ds_read_b128 v[{r+4}:{r+7}], v{VW6} offset:{2048*tl+1024}']
        for s_ in w6read(0) + w6read(1): a(s_)
        def pack(tl):
            c = ACC + 4 * tl; hh, ct = tl >> 1, tl & 1
            return [f'v_pk_add_f32 v[{c}:{c+1}], v[{c}:{c+1}], v[{c+2}:{c+3}]', f'v_cvt_pk_bf16_f32 v{UMF+4*ct+hh}, v{c}, v{c+1}', f'v_min_u32 v{UMF+4*ct+hh}, -2, v{UMF+4*ct+hh}']
        uxl = ux_list()
        for ks in range(6):
            if ks < 2: a(f's_waitcnt lgkmcnt({10-ks})')
            for tl in range(8):
                c = ACC + 4 * tl
                a(f'v_smfmac_f32_16x16x64_bf16 v[{c}:{c+3}], v[{MEMF+4*ks}:{MEMF+4*ks+3}], {R(WG[(tl,ks)],8)}, v{VIDX}')
                if tl in (1, 5) and uxl: a(uxl.pop(0))
            if 1 <= ks <= 4:
                a('s_waitcnt lgkmcnt(0)')
                for j in range(2):
                    tl = [2, 3, 4, 5, 0, 1, 6, 7][2 * (ks - 1) + j] if False else 2 * (ks - 1) + j
                    c = ACC + 4 * tl; r = W6 + 8 * j
                    a(f'v_smfmac_f32_16x16x64_bf16 v[{c}:{c+3}], v[{MEMF+24}:{MEMF+27}], v[{r}:{r+7}], v{VIDX}')
                if ks < 4:
                    for s_ in w6read(2 * ks) + w6read(2 * ks + 1): a(s_)
        for tl in range(8):
            for s_ in pack(tl): a(s_)
        a(f'''
        s_cmp_eq_u32 s{S_STEP}, 63
        s_cbranch_scc1 {end}
        ''')
        for i in range(0, 8, 2): a(f'v_mov_b64 v[{FACC+i}:{FACC+i+1}], 0')
        st()
        mk = lambda P: [f'buffer_load_dwordx4 v[{P}:{P+3}], v{VL16}, {SRD}, s{S_PB} offen sc1',
                 f'buffer_load_dwordx4 v[{P+4}:{P+7}], v{VL16}, {SRD}, s{S_PB} offen offset:1024 sc1',
                 f'buffer_load_dwordx2 v[{P+8}:{P+9}], v{VL8}, {SRD}, s{S_PB} offen offset:2048 sc1']
        def cons(PF):
            for m in range(2):
                for ct in range(2):
                    a(f'v_smfmac_f32_16x16x64_bf16 v[{FACC+4*ct}:{FACC+4*ct+3}], v[{PF+4*m}:{PF+4*m+3}], v[{UXF+16*ct+8*m}:{UXF+16*ct+8*m+7}], v{VIDX}')
            for ct in range(2):
                a(f'v_smfmac_f32_16x16x32_bf16 v[{FACC+4*ct}:{FACC+4*ct+3}], v[{PF+8}:{PF+9}], v[{UMF+4*ct}:{UMF+4*ct+3}], v{VIDX}')
        poll2(a, mk, [PF, PF + 12], 10, TMP, cons)
        st()
        T = ACC + 8
        a(f'''
        v_mov_b32 v{TMP}, -1
        s_cmp_ge_u32 s{S_W}, 2
        v_add_f32 v{T}, v{FACC}, v{FACC+2}
        v_add_f32 v{T+2}, v{FACC+1}, v{FACC+3}
        v_add_f32 v{T+1}, v{FACC+4}, v{FACC+6}
        v_add_f32 v{T+3}, v{FACC+5}, v{FACC+7}
        ds_write2st64_b64 v{VRW}, v[{T}:{T+1}], v[{T+2}:{T+3}] offset0:0 offset1:4
        s_waitcnt lgkmcnt(0)
        s_barrier
        s_cbranch_scc1 {skip}
        ds_read_b128 v[{T}:{T+3}], v{VRR}
        ds_read_b128 v[{T+4}:{T+7}], v{VRR} offset:1024
        s_waitcnt lgkmcnt(1)
        v_pk_add_f32 v[{T}:{T+1}], v[{T}:{T+1}], v[{T+2}:{T+3}]
        s_waitcnt lgkmcnt(0)
        v_pk_add_f32 v[{T+4}:{T+5}], v[{T+4}:{T+5}], v[{T+6}:{T+7}]
        v_pk_add_f32 v[{T}:{T+1}], v[{T}:{T+1}], v[{T+4}:{T+5}]
        v_cvt_pk_bf16_f32 v{T}, v{T}, v{T+1}
        v_min_u32 v{T}, -2, v{T}
        buffer_store_dword v{T}, v{VMST}, {SRD}, s28 offen {st_flag}
        buffer_store_dword v{TMP}, v{VMST}, {SRD}, s29 offen {st_flag}
        ''')
        a.label(skip)
        st()
        st.flush(2 << 20, TMP, TMP2)
        a(f'''
        s_add_u32 s{S_MX}, s{S_MX}, {L.MEM_SZ}
        s_add_u32 s{S_STEP}, s{S_STEP}, 1
        s_branch {loop}
        ''')
        a.label(end)
        um_stores()
        a('s_endpgm')
    mode_split(a, body, TMP)

def helper_prog(a):
    a(f'''
    s_cmp_eq_u32 s{S_W}, 0
    s_cselect_b32 s{S_T0}, 59, 55
    s_cselect_b32 s{S_T1}, 0, {L.flag(L.FL_XN) - L.flag(L.FL_U)}
    v_min_u32 v2, s{S_T0}, v{V_LANE}
    v_lshlrev_b32 v2, 3, v2
    v_mov_b32 v3, 0
    s_lshl_b32 s21, s{S_LAYER}, 15
    s_lshl_b32 s{S_T0}, s{S_W}, 7
    s_add_u32 s22, s21, s{S_T0}
    s_add_u32 s22, s22, {L.flag(L.FL_PROG)}
    s_add_u32 s21, s21, s{S_T1}
    s_add_u32 s21, s21, {L.flag(L.FL_U)}
    s_mov_b32 s{S_STEP}, 0
    ''')
    def body(st_flag):
        loop = a.newlabel('HP')
        a.label(loop)
        wait_flags(a, 21, 2, 4, width=2, sleep=1)
        a(f'''
        s_add_u32 s{S_STEP}, s{S_STEP}, 1
        s_add_u32 s21, s21, 512
        v_mov_b32 v6, s{S_STEP}
        s_mov_b64 exec, 1
        buffer_store_dword v6, v3, {SRD}, s22 offen {st_flag}
        s_mov_b64 exec, -1
        s_cmp_lt_u32 s{S_STEP}, 64
        s_cbranch_scc1 {loop}
        s_endpgm
        ''')
    mode_split(a, body, 4)

def helper_touch(a):
    loop = a.newlabel('WX')
    a(f'''
    v_min_u32 v2, 55, v{V_LANE}
    v_lshlrev_b32 v2, 7, v2
    v_and_b32 v3, 1, v{V_LANE}
    v_mul_u32_u24 v3, {L.MEM_SZ}, v3
    s_mul_i32 s22, s{S_LAYER}, {64*L.MEM_SZ}
    s_add_u32 s22, s22, {L.MEMX}
    s_lshl_b32 s23, s{S_LAYER}, 15
    s_add_u32 s23, s23, {L.flag(L.FL_PROG)}
    s_mul_i32 s{S_T2}, s{S_LAYER}, {64*L.UX_SZ}
    s_add_u32 s{S_T2}, s{S_T2}, {L.UX + L.UX_SZ + 57344}
    s_mov_b32 s{S_STEP}, 1
    ''')
    for i in range(5):
        a(f'''
        s_add_u32 s{S_T0}, s21, {4*i+12}
        s_min_u32 s{S_T0}, s{S_T0}, 31
        s_lshr_b32 s{S_T1}, s{S_T0}, 3
        s_mul_i32 s{S_T1}, s{S_T1}, 114688
        s_and_b32 s{S_T0}, s{S_T0}, 7
        s_mul_i32 s{S_T0}, s{S_T0}, 7168
        s_add_u32 s{S_T0}, s{S_T0}, s{S_T1}
        s_add_u32 s{26+i}, s{S_T0}, s{S_T2}
        ''')
    a.label(loop)
    a(f'''
    s_sleep 2
    buffer_load_dword v8, v3, {SRD}, s22 offen sc1
    buffer_load_dword v9, off, {SRD}, s23 sc1
    s_sub_u32 s{S_ABORT}, s{S_ABORT}, 1
    s_cbranch_scc1 {loop}_end
    s_waitcnt vmcnt(0)
    v_readfirstlane_b32 s24, v9
    v_readlane_b32 s25, v8, 0
    v_readlane_b32 s31, v8, 1
    s_cmp_lg_u32 s31, -1
    s_cbranch_scc1 {loop}_skip
    s_cmp_gt_u32 s24, s{S_STEP}
    s_cbranch_scc0 {loop}
    s_cmp_eq_u32 s25, -1
    s_cbranch_scc1 {loop}
    ''')
    for i in range(5): a(f'buffer_load_dword v4, v2, {SRD}, s{26+i} offen sc1')
    a.label(loop + '_skip')
    for i in range(5): a(f's_add_u32 s{26+i}, s{26+i}, {L.UX_SZ}')
    a(f'''
    s_add_u32 s22, s22, {L.MEM_SZ}
    s_add_u32 s{S_STEP}, s{S_STEP}, 1
    s_cmp_lt_u32 s{S_STEP}, 63
    s_cbranch_scc1 {loop}
    ''')
    a.label(loop + '_end')
    a('s_endpgm')

def filler(a):
    loop = a.newlabel('FILL')
    a(f'''
    v_lshlrev_b32 v2, 4, v{V_LANE}
    v_mov_b32 v4, -1
    v_mov_b32 v5, -1
    v_mov_b32 v6, -1
    v_mov_b32 v7, -1
    v_mov_b32 v8, 1
    s_mul_i32 s22, s{S_W}, 28672
    s_add_u32 s22, s22, {L.UM}
    s_lshl_b32 s23, s{S_W}, 2
    s_add_u32 s23, s23, {L.flag(L.FL_U) + 448}
    ''')
    a.label(loop)
    a(f'''
    s_lshr_b32 s27, s21, 1
    s_cmp_lt_u32 s27, 10
    s_cbranch_scc1 {loop}_go
    s_sub_u32 s28, s27, 10
    s_mul_i32 s28, s28, {L.MEM_SZ}
    s_add_u32 s28, s28, {L.MEMX}
    ''')
    a.label(loop + '_w')
    a(f'''
    buffer_load_dword v9, off, {SRD}, s28 sc1
    s_sub_u32 s{S_ABORT}, s{S_ABORT}, 1
    s_cbranch_scc1 {loop}_ab
    s_waitcnt vmcnt(0)
    v_cmp_eq_u32 vcc, -1, v9
    s_cbranch_vccz {loop}_go
    s_sleep 16
    s_branch {loop}_w
    ''')
    a.label(loop + '_ab')
    a(f's_mov_b32 s{S_ABORT}, 0')
    a.label(loop + '_go')
    a('s_and_b32 s28, s21, 1')
    a('s_lshl_b32 s28, s28, 6')
    a('s_add_u32 s28, s28, s27')
    a(f's_mul_i32 s24, s28, {L.UM_SZ}')
    a('s_add_u32 s24, s24, s22')
    for i in range(28):
        a(f'buffer_store_dwordx4 v[4:7], v2, {SRD}, s24 offen offset:{(i % 4) * 1024} sc1')
        if i % 4 == 3: a('s_add_u32 s24, s24, 4096')
    a(f'''
    s_lshl_b32 s24, s28, 9
    s_add_u32 s24, s24, s23
    s_sub_u32 s25, s24, {512 - 16}
    s_cmp_eq_u32 s27, 0
    s_cselect_b32 s26, {64*512}, 0
    s_add_u32 s25, s25, s26
    s_waitcnt vmcnt(0)
    s_mov_b64 exec, 1
    buffer_store_dword v8, off, {SRD}, s24 sc1
    buffer_store_dword v8, off, {SRD}, s25 sc1
    s_mov_b64 exec, -1
    s_add_u32 s21, s21, 8
    s_cmp_lt_u32 s21, 128
    s_cbranch_scc1 {loop}
    s_endpgm
    ''')
```

```python
from common import *
import chain, workers

def mega(stamps=False, mask=0xff, static=True, fast=True):
    a = Asm(); a.deferred = []
    common_prologue(a)
    mode = '' if fast else 'sc1'
    REG = L.flag(7)
    if stamps: wg_stamp(a, 2, 10, 0)
    a(f'''
    s_cmp_ge_u32 s2, 256
    s_cbranch_scc1 M_EXIT
    s_mov_b32 s52, 0x20202020
    s_mov_b32 s53, 0x1c1c2020
    s_cmp_lg_u32 s{S_W}, 0
    s_cbranch_scc1 M_WAITROLE
    s_getreg_b32 s3, hwreg(HW_REG_XCC_ID, 0, 3)
    s_mov_b64 exec, 1
    v_mov_b32 v2, 1
    s_lshl_b32 s{S_T0}, s3, 9
    s_add_u32 s{S_T0}, s{S_T0}, {REG}
    buffer_atomic_add v2, off, {SRD}, s{S_T0} sc0 sc1
    s_lshl_b32 s{S_T3}, s3, 3
    s_lshr_b64 s[54:55], s[52:53], s{S_T3}
    s_and_b32 s{S_NEED}, s54, 0xff
    s_waitcnt vmcnt(0)
    v_readfirstlane_b32 s{S_ROLE}, v2
    s_and_b32 s{S_ROLE}, s{S_ROLE}, 0xffff
    s_mov_b64 exec, -1
    s_cmp_lt_u32 s{S_ROLE}, s{S_NEED}
    s_cbranch_scc1 M_GOTROLE
    v_and_b32 v3, 7, v{V_LANE}
    v_lshlrev_b32 v4, 3, v3
    v_lshrrev_b64 v[4:5], v4, s[52:53]
    v_and_b32 v4, 0xff, v4
    v_lshlrev_b32 v3, 9, v3
    s_mov_b32 s{S_T1}, {REG}
    s_mov_b32 s{S_T2}, 60
M_SURP:
    buffer_load_dword v5, v3, {SRD}, s{S_T1} offen sc1
    s_waitcnt vmcnt(0)
    v_and_b32 v5, 0xffff, v5
    v_cmp_lt_u32 vcc, v5, v4
    s_mov_b32 s3, 8
    s_cbranch_vccz M_GOTROLE
    s_sleep 8
    s_sub_u32 s{S_T2}, s{S_T2}, 1
    s_cbranch_scc0 M_SURP
    s_mov_b32 s{S_T2}, 0
    s_ff1_i32_b32 s3, vcc_lo
    s_mov_b64 exec, 1
    v_mov_b32 v2, 0x10001
    s_lshl_b32 s{S_T0}, s3, 9
    s_add_u32 s{S_T0}, s{S_T0}, {REG}
    buffer_atomic_add v2, off, {SRD}, s{S_T0} sc0 sc1
    s_lshl_b32 s{S_T3}, s3, 3
    s_lshr_b64 s[54:55], s[52:53], s{S_T3}
    s_and_b32 s{S_NEED}, s54, 0xff
    s_waitcnt vmcnt(0)
    v_readfirstlane_b32 s{S_ROLE}, v2
    s_and_b32 s{S_ROLE}, s{S_ROLE}, 0xffff
    s_mov_b64 exec, -1
    s_cmp_lt_u32 s{S_ROLE}, s{S_NEED}
    s_cbranch_scc0 M_SURP
M_GOTROLE:
    s_lshl_b32 s{S_T0}, s3, 16
    s_or_b32 s{S_T0}, s{S_T0}, s{S_ROLE}
    v_mov_b32 v2, s{S_T0}
    v_mov_b32 v3, 0
    ds_write_b32 v3, v2
    s_waitcnt lgkmcnt(0)
M_WAITROLE:
    s_barrier
    v_mov_b32 v3, 0
    ds_read_b32 v2, v3
    s_waitcnt lgkmcnt(0)
    v_readfirstlane_b32 s{S_T0}, v2
    s_barrier
    s_lshr_b32 s3, s{S_T0}, 16
    s_and_b32 s{S_ROLE}, s{S_T0}, 0xffff
    s_cmp_ge_u32 s3, 8
    s_cbranch_scc1 M_EXIT
    s_mov_b32 s101, s{S_T0}
    s_lshl_b32 s{S_T3}, s3, 3
    s_lshr_b64 s[54:55], s[52:53], s{S_T3}
    s_and_b32 s{S_NEED}, s54, 0xff
    s_lshl_b32 s{S_GRP}, s3, 9
    s_add_u32 s{S_GRP}, s{S_GRP}, {REG}
    s_and_b32 s{S_LAYER}, s3, 1
    s_lshr_b32 s{S_T0}, 0x8a, s3
    s_and_b32 s{S_T0}, s{S_T0}, 1
    s_cbranch_scc0 M_NOHOLD
    s_mov_b32 s{S_T1}, {L.MEMX}
M_HOLD:
    s_sleep 8
    buffer_load_dword v2, off, {SRD}, s{S_T1} sc1
    s_sub_u32 s{S_ABORT}, s{S_ABORT}, 1
    s_cbranch_scc1 M_HOLDAB
    s_waitcnt vmcnt(0)
    v_cmp_eq_u32 vcc, -1, v2
    s_cbranch_vccnz M_HOLD
    s_branch M_NOHOLD
M_HOLDAB:
    s_mov_b32 s{S_ABORT}, 0
M_NOHOLD:
    s_lshl_b32 s59, s{S_LAYER}, 20
    s_lshr_b32 s3, s3, 1
    s_cmp_eq_u32 s3, 1
    s_cbranch_scc1 M_T
    s_cmp_eq_u32 s3, 2
    s_cbranch_scc1 M_U
    s_cmp_eq_u32 s3, 3
    s_cbranch_scc1 M_PFF
    s_mov_b32 s21, s{S_W}
    s_cmp_eq_u32 s{S_ROLE}, 31
    s_cbranch_scc1 M_HT
    s_add_u32 s21, s{S_W}, 3
    s_cmp_eq_u32 s{S_ROLE}, 30
    s_cbranch_scc1 M_HP
    s_cmp_ge_u32 s{S_ROLE}, 16
    s_cbranch_scc1 M_CB
    ''')
    chain.chain_A(a, stamps)
    a.label('M_CB'); a(f's_sub_u32 s{S_ROLE}, s{S_ROLE}, 16'); chain.chain_B(a, stamps)
    a.label('M_HP'); a(f's_cmp_ge_u32 s{S_W}, 2'); a('s_cbranch_scc1 M_EXIT'); chain.helper_prog(a)
    a.label('M_HT'); chain.helper_touch(a)
    a.label('M_T'); workers.role_T(a, stamps)
    a.label('M_U')
    a(f's_cmp_ge_u32 s{S_ROLE}, 28'); a('s_cbranch_scc1 M_FILL')
    workers.role_U(a, stamps)
    a.label('M_FILL')
    a(f's_sub_u32 s21, s{S_ROLE}, 28'); a('s_lshl_b32 s21, s21, 1'); a(f's_add_u32 s21, s21, s{S_LAYER}')
    chain.filler(a)
    a.label('M_PFF')
    a(f'''
    s_cmp_ge_u32 s{S_ROLE}, 28
    s_cbranch_scc1 M_EXIT
    s_cmp_ge_u32 s{S_ROLE}, 21
    s_cbranch_scc1 M_F2
    s_cmp_ge_u32 s{S_ROLE}, 14
    s_cbranch_scc1 M_PU
    ''')
    workers.role_F1(a, stamps)
    a.label('M_PU'); a(f's_sub_u32 s{S_ROLE}, s{S_ROLE}, 14'); workers.role_PU(a, stamps)
    a.label('M_F2'); a(f's_sub_u32 s{S_ROLE}, s{S_ROLE}, 21'); workers.role_F2(a, stamps)
    a.label('M_EXIT')
    a('s_endpgm')
    if stamps:
        a.lines = [('    s_branch M_FIN' if l.strip() == 's_endpgm' else l) for l in a.lines]
        a.lines[-1] = '    s_endpgm'
        a.label('M_FIN'); a('s_mov_b64 exec, -1'); wg_stamp(a, 4, 10, 0)
        a('v_mov_b32 v10, s101'); a(f'buffer_store_dword v10, off, {SRD}, s100 offset:8'); a('s_endpgm')
    for d in a.deferred: a.raw(d)
    return kernel_wrap('mega_kernel', a.text())

HDR = '.amdgcn_target "amdgcn-amd-amdhsa--gfx950"\n'
if __name__ == '__main__':
    for nm, kw in (('mega', {}), ('mega_st', dict(stamps=True))):
        open(f'work/{nm}.s', 'w').write('; @launch grid=(256,1,1) block=(256,1,1) lds=98304\n' + HDR + mega(**kw))
```

```python
from common import *
lane = f'v{V_LANE}'
WBYTES = 448 * 4096 * 2

def prep(stamps=False):
    a = Asm(); a.deferred = []; a.nlabel = 5000
    a('''
    s_cmp_ge_u32 s2, 256
    s_cbranch_scc1 P_EXIT
    s_load_dwordx8 s[24:31], s[0:1], 16
    s_load_dwordx4 s[32:35], s[0:1], 0
    ''')
    common_prologue(a)
    if stamps: wg_stamp(a, 0, 132, 0)
    a(f'''
    s_and_b32 s3, s2, 7
    s_lshr_b32 s21, s2, 3
    s_cmp_ge_u32 s21, 28
    s_cbranch_scc1 P_MISC
    ; pair = x*4 + i/7 ; cb = i%7
    s_mul_i32 s22, s21, 37
    s_lshr_b32 s22, s22, 8
    s_mul_i32 s23, s22, 7
    s_sub_u32 s23, s21, s23
    s_lshl_b32 s3, s3, 2
    s_add_u32 s22, s22, s3
    s_and_b32 s36, s22, 15
    s_lshr_b32 s37, s22, 4
    s_cmp_eq_u32 s37, 0
    s_cselect_b32 s40, s24, s28
    s_cselect_b32 s41, s25, s29
    s_cselect_b32 s44, s26, s30
    s_cselect_b32 s45, s27, s31
    s_and_b32 s41, s41, 0xffff
    s_and_b32 s45, s45, 0xffff
    s_mov_b32 s42, {WBYTES}
    s_mov_b32 s43, 0x00020000
    s_mov_b32 s46, {WBYTES}
    s_mov_b32 s47, 0x00020000
    ''')
    H, M, CB = 36, 37, 23
    LS, RS_ = 's[40:43]', 's[44:47]'
    VSRC, VA, V1A, V1B, V2, VSC = 2, 4, 12, 13, 14, 16
    T = 18
    RF = 24
    FR = 88
    ACC = 104
    PK = 120
    LDS_R = 131072
    def dma_rows(srd, sbase, ldsbase_s, natural, tag=None):
        for i in range(8):
            rowi = (2 * i) if natural else (16 * ((i >> 1) & 1) + 4 * (i >> 2) + 2 * (i & 1))
            a(f'v_xor_b32 v{T}, {32 * i}, v{VSRC}')
            a(f's_add_u32 s{S_T1}, s{sbase}, {rowi * 8192}')
            a(f's_add_u32 m0, s{ldsbase_s}, {1024 * i}')
            a(f'buffer_load_dwordx4 v{T}, {srd}, s{S_T1} offen lds', tag=tag)
    a(f'''
    ; VSRC = (l>>5)*8192 + ((p ^ (l>>5)) * 16)
    v_lshrrev_b32 v{T}, 5, {lane}
    v_and_b32 v{T+1}, 31, {lane}
    v_xor_b32 v{VSRC}, v{T+1}, v{T}
    v_lshlrev_b32 v{VSRC}, 4, v{VSRC}
    v_lshl_add_u32 v{VSRC}, v{T}, 13, v{VSRC}
    s_lshr_b32 s{S_T0}, s{S_W}, 1
    s_lshl_b32 s48, s{S_T0}, 5
    s_and_b32 s{S_T1}, s{S_W}, 1
    s_lshl_b32 s{S_T2}, s{S_T1}, 3
    s_add_u32 s48, s48, s{S_T2}
    s_lshl_b32 s48, s48, 13
    s_lshl_b32 s{S_T2}, s{H}, 9
    s_add_u32 s48, s48, s{S_T2}
    s_lshl_b32 s49, s{S_W}, 13
    s_add_u32 s50, s49, {LDS_R}
    s_cmp_eq_u32 s{M}, 1
    s_cbranch_scc1 P_RB
    s_lshl_b32 s51, s{CB}, 6
    s_lshl_b32 s{S_T3}, s{S_W}, 4
    s_add_u32 s51, s51, s{S_T3}
    s_lshl_b32 s51, s51, 13
    s_add_u32 s51, s51, s{S_T2}
    ''')
    dma_rows(RS_, 51, 50, True)
    a('s_branch P_RDONE')
    a.label('P_RB')
    a(f'''
    v_lshrrev_b32 v{T}, 3, {lane}
    v_mul_u32_u24 v{T}, 896, v{T}
    v_and_b32 v{T+2}, 7, {lane}
    v_lshl_add_u32 v{T}, v{T+2}, 4, v{T}
    s_lshl_b32 s51, s{H}, 8
    s_lshl_b32 s{S_T3}, s{S_W}, 6
    s_add_u32 s51, s51, s{S_T3}
    s_mul_i32 s51, s51, 896
    s_lshl_b32 s{S_T3}, s{CB}, 7
    s_add_u32 s51, s51, s{S_T3}
    ''')
    for i in range(8):
        a(f's_add_u32 m0, s50, {1024 * i}')
        a(f'buffer_load_dwordx4 v{T}, {RS_}, s51 offen lds')
        a(f's_add_u32 s51, s51, {8 * 896}')
    a.label('P_RDONE')
    a.vm = ['r']
    def left(j):
        a(f's_add_u32 s55, s49, {(j % 4) * 32768}')
        dma_rows(LS, 48, 55, False, tag=('c', j))
        a(f's_add_u32 s48, s48, {64 * 8192}')
    for j in range(4): left(j)
    a(f'''
    v_lshrrev_b32 v{T}, 5, {lane}
    v_and_b32 v{T+1}, 31, {lane}
    v_and_b32 v{T+2}, 15, {lane}
    v_xor_b32 v{T+2}, v{T+2}, v{T}
    v_lshlrev_b32 v{T+2}, 4, v{T+2}
    v_lshl_add_u32 v{T+2}, v{T+1}, 9, v{T+2}
    ''')
    for k in range(8): a(f'v_xor_b32 v{VA+k}, {32*k}, v{T+2}')
    a(f'''
    s_and_b32 s{S_T1}, s{S_W}, 1
    s_lshr_b32 s{S_T0}, s{S_W}, 1
    s_lshl_b32 s{S_T2}, s{CB}, 1
    s_add_u32 s{S_T2}, s{S_T2}, s{S_T1}
    s_cmp_eq_u32 s{M}, 1
    s_cbranch_scc1 P_OB
    s_lshl_b32 s{S_T3}, s{S_T2}, 5
    v_add_u32 v{T+2}, s{S_T3}, v{T+1}
    v_lshrrev_b32 v{V2}, 4, v{T+2}
    v_mul_u32_u24 v{V2}, 14336, v{V2}
    v_and_b32 v{T+3}, 15, v{T+2}
    v_lshl_add_u32 v{V2}, v{T+3}, 4, v{V2}
    ; WAT
    v_mul_u32_u24 v{T+3}, 586, v{T+2}
    v_lshrrev_b32 v{T+3}, 16, v{T+3}
    v_mul_u32_u24 v{T+4}, 112, v{T+3}
    v_sub_u32 v{T+4}, v{T+2}, v{T+4}
    v_lshrrev_b32 v{V1A}, 5, v{T+4}
    v_lshlrev_b32 v{V1A}, 1, v{V1A}
    v_bfe_u32 v{T+5}, v{T+4}, 2, 1
    v_add_u32 v{V1B}, v{V1A}, v{T+5}
    v_cmp_gt_u32 vcc, 96, v{T+4}
    v_cndmask_b32 v{V1A}, v{V1A}, v{V1B}, vcc
    v_mad_u32_u24 v{V1A}, v{T+3}, 7, v{V1A}
    v_mul_u32_u24 v{V1A}, 14336, v{V1A}
    v_bfe_u32 v{T+5}, v{T+4}, 3, 2
    v_lshlrev_b32 v{T+5}, 2, v{T+5}
    v_and_b32 v{V1B}, 3, v{T+4}
    v_add_u32 v{T+5}, v{T+5}, v{V1B}
    v_and_b32 v{V1B}, 15, v{T+4}
    v_cndmask_b32 v{T+5}, v{V1B}, v{T+5}, vcc
    v_lshl_add_u32 v{V1A}, v{T+5}, 4, v{V1A}
    v_lshl_add_u32 v{V1A}, v{T}, 9, v{V1A}
    v_add_u32 v{V1B}, 256, v{V1A}
    s_mul_i32 s52, s{H}, 401408
    s_lshl_b32 s{S_T3}, s{S_T0}, 10
    s_add_u32 s52, s52, s{S_T3}
    s_add_u32 s53, s52, {L.WAC}
    s_add_u32 s52, s52, {L.WAT}
    s_mov_b32 s54, 2048
    v_mov_b32 v{VSC}, {hex(f2u(1.4426950408889634/16))}
    s_branch P_ODONE
    ''')
    a.label('P_OB')
    a(f'''
    v_lshrrev_b32 v{T+2}, 4, v{T+1}
    v_and_b32 v{T+3}, 15, v{T+1}
    v_mul_u32_u24 v{V2}, 14336, v{T+2}
    v_lshl_add_u32 v{V2}, v{T+3}, 4, v{V2}
    s_lshl_b32 s53, s{S_T2}, 4
    s_add_u32 s53, s53, s{H}
    s_mul_i32 s53, s53, 28672
    s_lshl_b32 s{S_T3}, s{S_T0}, 10
    s_add_u32 s53, s53, s{S_T3}
    s_add_u32 s53, s53, {L.WBC}
    v_lshl_add_u32 v{V1A}, v{T+2}, 4, v{T+3}
    v_lshlrev_b32 v{V1A}, 4, v{V1A}
    v_lshl_add_u32 v{V1A}, v{T}, 10, v{V1A}
    v_add_u32 v{V1B}, 512, v{V1A}
    s_lshr_b32 s52, s{H}, 1
    s_mul_i32 s52, s52, 14
    s_add_u32 s52, s52, s{S_T2}
    s_lshl_b32 s52, s52, 1
    s_and_b32 s{S_T3}, s{H}, 1
    s_add_u32 s52, s52, s{S_T3}
    s_mul_i32 s52, s52, 28672
    s_lshl_b32 s{S_T3}, s{S_T0}, 11
    s_add_u32 s52, s52, s{S_T3}
    s_add_u32 s52, s52, {L.WBU}
    s_mov_b32 s54, 4096
    v_mov_b32 v{VSC}, 1.0
    ''')
    a.label('P_ODONE')
    a(f'''
    v_lshl_add_u32 v{V2}, v{T}, 9, v{V2}
    s_waitcnt vmcnt(32)
    s_barrier
    s_cmp_eq_u32 s{M}, 1
    s_cbranch_scc1 P_FB
    s_lshl_b32 s{S_T3}, s{S_T1}, 14
    s_add_u32 s{S_T3}, s{S_T3}, {LDS_R}
    ''')
    for k in range(8):
        a(f'v_add_u32 v{T+2}, s{S_T3}, v{VA+k}')
        a(f'ds_read_b128 v[{RF+4*k}:{RF+4*k+3}], v{T+2}')
        a(f'ds_read_b128 v[{RF+32+4*k}:{RF+32+4*k+3}], v{T+2} offset:256')
    a('s_branch P_FDONE')
    a.label('P_FB')
    a(f'''
    v_bfe_u32 v{T+2}, {lane}, 2, 2
    v_lshl_add_u32 v{T+2}, v{T}, 3, v{T+2}
    v_lshlrev_b32 v{T+2}, 7, v{T+2}
    v_bfe_u32 v{T+3}, {lane}, 4, 1
    v_lshl_add_u32 v{T+2}, v{T+3}, 5, v{T+2}
    v_and_b32 v{T+3}, 3, {lane}
    v_lshl_add_u32 v{T+2}, v{T+3}, 3, v{T+2}
    s_lshl_b32 s{S_T3}, s{S_T1}, 6
    s_add_u32 s{S_T3}, s{S_T3}, {LDS_R}
    v_add_u32 v{T+2}, s{S_T3}, v{T+2}
    ''')
    for ks in range(16):
        a(f'ds_read_b64_tr_b16 v[{RF+4*ks}:{RF+4*ks+1}], v{T+2} offset:{2048*ks}')
        a(f'ds_read_b64_tr_b16 v[{RF+4*ks+2}:{RF+4*ks+3}], v{T+2} offset:{2048*ks+512}')
    a(f'''
    v_and_b32 v{T+2}, 15, {lane}
    v_lshlrev_b32 v{T+2}, 3, v{T+2}
    v_bfe_u32 v{T+3}, {lane}, 4, 1
    v_lshl_add_u32 v{T+2}, v{T+3}, 2, v{T+2}
    v_lshl_add_u32 v{T+2}, v{T}, 7, v{T+2}
    s_waitcnt lgkmcnt(0)
    ''')
    for i in range(64): a(f'ds_bpermute_b32 v{RF+i}, v{T+2}, v{RF+i}')
    a.label('P_FDONE')
    a(f's_lshl_b32 s{S_T3}, s{S_T0}, 14')
    for k in range(8): a(f'v_add_u32 v{VA+k}, s{S_T3}, v{VA+k}')
    a('s_waitcnt lgkmcnt(0)')
    VB = 136
    for k in range(8): a(f'v_add_u32 v{VB+k}, 65536, v{VA+k}')
    for j in range(7):
        buf = (j & 1) * 32768
        va = VB if (j % 4) >= 2 else VA
        a.wait_vm(('c', j))
        a('s_barrier')
        if stamps: a(f's_memrealtime s[{60+2*j}:{61+2*j}]')
        if 1 <= j <= 3: left(j + 3)
        rd = lambda ks: f'ds_read_b128 v[{FR+4*(ks%4)}:{FR+4*(ks%4)+3}], v{va+(ks&7)} offset:{buf+256*(ks>>3)}'
        for ks in range(3): a(rd(ks))
        c = f'v[{ACC}:{ACC+15}]'
        for ks in range(16):
            a(f's_waitcnt lgkmcnt({min(2, 15-ks)})')
            a(f'v_mfma_f32_32x32x16_bf16 {c}, v[{FR+4*(ks%4)}:{FR+4*(ks%4)+3}], v[{RF+4*ks}:{RF+4*ks+3}], {"0" if ks == 0 else c}')
            if ks + 3 < 16: a(rd(ks + 3))
        for i in range(8): a(f'v_pk_mul_f32 v[{ACC+2*i}:{ACC+2*i+1}], v[{ACC+2*i}:{ACC+2*i+1}], v[{VSC}:{VSC+1}] op_sel_hi:[1,0]')
        pos2 = {0: 0, 4: 1, 1: 2, 5: 3, 2: 4, 6: 5, 3: 6, 7: 7}
        for i in range(8):
            a(f'v_cvt_pk_bf16_f32 v{PK+i}, v{ACC+2*i}, v{ACC+2*i+1}')
            a(f'v_cvt_pk_bf16_f32 v{PK+8+pos2[i]}, v{ACC+2*i}, v{ACC+2*i+1}')
        a(f'''
        buffer_store_dwordx4 v[{PK}:{PK+3}], v{V1A}, {SRD}, s52 offen sc1
        buffer_store_dwordx4 v[{PK+4}:{PK+7}], v{V1B}, {SRD}, s52 offen sc1
        buffer_store_dwordx4 v[{PK+8}:{PK+11}], v{V2}, {SRD}, s53 offen sc1
        buffer_store_dwordx4 v[{PK+12}:{PK+15}], v{V2}, {SRD}, s53 offen offset:256 sc1
        s_add_u32 s52, s52, s54
        s_add_u32 s53, s53, 2048
        ''')
    if stamps:
        a('s_memrealtime s[74:75]')
        a('s_waitcnt vmcnt(0)'); wg_stamp(a, 1, 132, 0)
        a(f's_lshl_b32 s100, s2, 6'); a(f's_add_u32 s100, s100, {L.DBG + (15 << 20)}')
        for j in range(8):
            a(f'v_mov_b32 v132, s{60+2*j}'); a(f'buffer_store_dword v132, off, {SRD}, s100 offset:{4*j}')
    a('s_endpgm')
    a.label('P_MISC')
    X, U, Q = 24, 88, 96
    VI, VO, VS = 2, 3, 4
    a(f'''
    ; j = (i-28)*8 + x
    s_sub_u32 s21, s21, 28
    s_lshl_b32 s21, s21, 3
    s_add_u32 s21, s21, s3
    s_mov_b32 s40, s32
    s_and_b32 s41, s33, 0xffff
    s_mov_b32 s42, {2048*896}
    s_mov_b32 s43, 0x00020000
    s_mov_b32 s44, s34
    s_and_b32 s45, s35, 0xffff
    s_mov_b32 s46, 7168
    s_mov_b32 s47, 0x00020000
    v_lshrrev_b32 v{T}, 3, v0
    v_and_b32 v{T+1}, 7, v0
    v_mul_u32_u24 v{VI}, 896, v{T}
    v_lshl_add_u32 v{VI}, v{T+1}, 4, v{VI}
    v_lshlrev_b32 v{VO}, 9, v{T+1}
    v_lshl_add_u32 v{VO}, v{T}, 4, v{VO}
    v_lshlrev_b32 v{VS}, 4, v{T}
    s_mul_i32 s22, s21, {2*28672}
    s_add_u32 s23, s22, 28672
    ''')
    for sg in range(2):
        for c in range(7):
            r = X + 4 * (7 * sg + c)
            a(f'buffer_load_dwordx4 v[{r}:{r+3}], v{VI}, s[40:43], s{22+sg} offen offset:{128*c}')
    nS = (L.SENT_BYTES - 65536) // 32 // 4096 + 1
    a(f'''
    v_lshlrev_b32 v5, 4, v0
    v_mov_b32 v8, -1
    v_mov_b32 v9, -1
    v_mov_b32 v10, -1
    v_mov_b32 v11, -1
    v_mov_b64 v[12:13], 0
    v_mov_b64 v[14:15], 0
    s_mul_i32 s48, s21, {nS*4096}
    s_add_u32 s48, s48, {L.PB}
    ''')
    for i in range(nS):
        a(f'buffer_store_dwordx4 v[8:11], v5, {SRD}, s48 offen'); a('s_add_u32 s48, s48, 4096')
    assert L.PB + 32 * nS * 4096 <= L.FLAGS
    a(f's_lshl_b32 s48, s21, 15'); a(f's_add_u32 s48, s48, {L.FLAGS}')
    for i in range(8):
        a(f'buffer_store_dwordx4 v[12:15], v5, {SRD}, s48 offen'); a('s_add_u32 s48, s48, 4096')
    a(f's_mul_i32 s48, s21, 12288'); a(f's_add_u32 s48, s48, {L.ST + 64*L.ST_SZ}')
    for i in range(3):
        a(f'buffer_store_dwordx4 v[12:15], v5, {SRD}, s48 offen'); a('s_add_u32 s48, s48, 4096')
    a(f'''
    s_cmp_ge_u32 s21, 2
    s_cbranch_scc1 P_NOMEM
    s_mul_i32 s48, s21, {4*L.MEM_SZ}
    s_add_u32 s48, s48, {L.MEML}
    v_mul_u32_u24 v6, 896, v{T+1}
    v_lshl_add_u32 v6, v{T}, 4, v6
    buffer_load_dwordx4 v[{U}:{U+3}], v6, s[44:47], 0 offen
    buffer_load_dwordx4 v[{U+4}:{U+7}], v6, s[44:47], 0 offen offset:512
    s_add_u32 s49, s48, {L.MEM_SZ}
    ''')
    for i in range(5):
        a(f'buffer_store_dwordx4 v[8:11], v5, {SRD}, s49 offen'); a('s_add_u32 s49, s49, 4096')
    a(f'''
    v_cmp_gt_u32 vcc, 64, v0
    s_and_saveexec_b64 s[50:51], vcc
    s_cbranch_execz P_M1
    buffer_store_dwordx4 v[8:11], v5, {SRD}, s49 offen
    ''')
    a.label('P_M1')
    a(f'''
    s_mov_b64 exec, s[50:51]
    s_waitcnt vmcnt(0)
    ''')
    for i in range(8): a(f'v_min_u32 v{U+i}, -2, v{U+i}')
    a(f'''
    buffer_store_dwordx4 v[{U}:{U+3}], v5, {SRD}, s48 offen
    s_add_u32 s48, s48, 4096
    v_cmp_gt_u32 vcc, 192, v0
    s_and_saveexec_b64 s[50:51], vcc
    s_cbranch_execz P_M2
    buffer_store_dwordx4 v[{U+4}:{U+7}], v5, {SRD}, s48 offen
    ''')
    a.label('P_M2')
    a('s_mov_b64 exec, s[50:51]')
    a.label('P_NOMEM')
    a(f'''
    s_waitcnt vmcnt(0)
    s_add_u32 s22, s22, {L.XS}
    s_lshl_b32 s23, s21, 12
    s_add_u32 s23, s23, {L.ST}
    s_mov_b32 s36, 0x01010101
    s_mov_b32 s37, 0x01010101
    ''')
    for sg in range(2):
        for c in range(7):
            r = X + 4 * (7 * sg + c)
            a(f'buffer_store_dwordx4 v[{r}:{r+3}], v{VO}, {SRD}, s22 offen')
            a('s_add_u32 s22, s22, 4096')
            for i in range(4):
                a(f'v_lshlrev_b32 v{U+2*i}, 16, v{r+i}')
                a(f'v_and_b32 v{U+2*i+1}, 0xffff0000, v{r+i}')
            a(f'v_pk_add_f32 v[{Q}:{Q+1}], v[{U}:{U+1}], v[{U+2}:{U+3}]')
            a(f'v_pk_mul_f32 v[{Q+2}:{Q+3}], v[{U}:{U+1}], v[{U}:{U+1}]')
            a(f'v_pk_add_f32 v[{Q+4}:{Q+5}], v[{U+4}:{U+5}], v[{U+6}:{U+7}]')
            for i in (2, 4, 6): a(f'v_pk_fma_f32 v[{Q+2}:{Q+3}], v[{U+i}:{U+i+1}], v[{U+i}:{U+i+1}], v[{Q+2}:{Q+3}]')
            a(f'v_pk_add_f32 v[{Q}:{Q+1}], v[{Q}:{Q+1}], v[{Q+4}:{Q+5}]')
            a(f'v_add_f32 v{Q+6}, v{Q}, v{Q+1}')
            a(f'v_add_f32 v{Q+7}, v{Q+2}, v{Q+3}')
            for d in ('quad_perm:[1,0,3,2]', 'quad_perm:[2,3,0,1]', 'row_half_mirror'):
                for q in (Q + 6, Q + 7): a(f'v_add_f32_dpp v{q}, v{q}, v{q} {d} row_mask:0xf bank_mask:0xf')
            a('s_mov_b64 exec, s[36:37]')
            a(f'buffer_store_dwordx2 v[{Q+6}:{Q+7}], v{VS}, {SRD}, s23 offen offset:{2048*sg+512*(c>>1)+8*(c&1)}')
            if c == 6: a(f'buffer_store_dwordx2 v[12:13], v{VS}, {SRD}, s23 offen offset:{2048*sg+1536+8}')
            a('s_mov_b64 exec, -1')
    if stamps:
        a('s_waitcnt vmcnt(0)'); wg_stamp(a, 1, 132, 0)
    a.label('P_EXIT')
    a('s_endpgm')
    for d in a.deferred: a.raw(d)
    return kernel_wrap('prep_kernel', a.text(), vgpr=144, accum=144)

if __name__ == '__main__':
    open('prep.s', 'w').write('; @launch grid=(256,1,1) block=(256,1,1) lds=98304\n.amdgcn_target "amdgcn-amd-amdhsa--gfx950"\n' + prep())
```

```python
from common import *
lane = f'v{V_LANE}'
LOG2E = 1.4426950408889634
XBUF = 28672
FQ = 176

def x_dma(a, s_src, s_buf, vl16):
    a(f's_lshl_b32 s{S_T0}, s{S_W}, 10')
    a(f's_add_u32 s{S_T1}, s{S_T0}, s{s_buf}')
    a(f's_add_u32 s{S_T0}, s{S_T0}, s{s_src}')
    for j in range(7):
        a(f's_mov_b32 m0, s{S_T1}')
        if j < 6: a(f's_add_u32 s{S_T1}, s{S_T1}, 4096')
        a(f'buffer_load_dwordx4 v{vl16}, {SRD}, s{S_T0} offen sc1 lds')
        if j < 6: a(f's_add_u32 s{S_T0}, s{S_T0}, 4096')

def perm32_v(a, dst, src, tmp):
    a(f'''
    v_and_b32 v{dst}, 0x13, v{src}
    v_and_b32 v{tmp}, 4, v{src}
    v_lshl_or_b32 v{dst}, v{tmp}, 1, v{dst}
    v_and_b32 v{tmp}, 8, v{src}
    v_lshrrev_b32 v{tmp}, 1, v{tmp}
    v_or_b32 v{dst}, v{dst}, v{tmp}
    ''')

def xn_pos(a, dst, tmp):
    a(f'''
    v_and_b32 v{dst}, 32, {lane}
    v_lshlrev_b32 v{dst}, 4, v{dst}
    v_and_b32 v{tmp}, 1, {lane}
    v_lshl_add_u32 v{dst}, v{tmp}, 8, v{dst}
    v_bfe_u32 v{tmp}, {lane}, 1, 4
    v_lshl_add_u32 v{dst}, v{tmp}, 4, v{dst}
    ''')

def load_w_tr(a, W, dma, vtr, toff, hoff):
    def issue(k0, k1):
        for ks in range(k0, k1):
            for p in range(2):
                a(f's_add_u32 m0, s38, {(ks % 20) * 2048 + p * 1024}')
                a(dma(ks, p))
    def read(k0, k1):
        for ks in range(k0, k1):
            for t in range(2):
                for hf in range(2):
                    a(f'ds_read_b64_tr_b16 {R(W(t, ks) + 2 * hf, 2)}, v{vtr} offset:{(ks % 20) * 2048 + t * toff + hf * hoff}')
        a('s_waitcnt lgkmcnt(0)')
    issue(0, 20)
    a('s_waitcnt vmcnt(20)'); read(0, 10)
    issue(20, 28)
    a('s_waitcnt vmcnt(16)'); read(10, 20)
    a('s_waitcnt vmcnt(0)'); read(20, 28)
    a('s_barrier')

def tr_addr(a, dst, t0, t1, rowshift, gshift):
    a(f"""
    s_mul_i32 s38, s{S_W}, 40960
    v_lshrrev_b32 v{t0}, 5, {lane}
    v_bfe_u32 v{t1}, {lane}, 2, 2
    v_lshl_add_u32 v{dst}, v{t0}, 3, v{t1}
    v_lshlrev_b32 v{dst}, {rowshift}, v{dst}
    v_bfe_u32 v{t0}, {lane}, 4, 1
    v_lshl_add_u32 v{dst}, v{t0}, {gshift}, v{dst}
    v_and_b32 v{t0}, 1, {lane}
    v_lshl_add_u32 v{dst}, v{t0}, 4, v{dst}
    v_bfe_u32 v{t0}, {lane}, 1, 1
    v_lshl_add_u32 v{dst}, v{t0}, 3, v{dst}
    v_add_u32 v{dst}, s38, v{dst}
    """)

def dma_list(s_src, s_dst, vl16):
    out = []
    for j in range(7):
        out.append(f's_mov_b32 m0, s{s_dst}\ns_add_u32 s{s_dst}, s{s_dst}, 4096\nbuffer_load_dwordx4 v{vl16}, {SRD}, s{s_src} offen sc1 lds\ns_add_u32 s{s_src}, s{s_src}, 4096')
    return out

def unpk(lst):
    out = []
    for x in lst:
        if callable(x) or not x.startswith('v_pk_'): out.append(x); continue
        m = re.match(r'v_pk_(\w+)_f32 (.*?)(?: op_sel_hi:\[([\d,]+)\])?$', x)
        op, ops, sel = m.group(1), split_ops(m.group(2)), m.group(3)
        sel = [int(v) for v in sel.split(',')] if sel else [1] * (len(ops) - 1)
        def pick(o, hi):
            mm_ = re.match(r'v\[(\d+):', o)
            return f'v{int(mm_.group(1)) + hi}' if mm_ else o
        for h in range(2):
            srcs = [pick(o, h and sel[i]) for i, o in enumerate(ops[1:])]
            if op != 'fma' and not srcs[1].startswith('v'): srcs = srcs[::-1]
            out.append(f'v_{op}_f32 {pick(ops[0], h)}, ' + ', '.join(srcs))
    return out

def cost(s_):
    if callable(s_): return 2
    if '\n' in s_: return 2
    return 2 if s_.startswith(('v_exp', 'v_rcp', 'v_rsq')) else 1

def stream(a, n, rd, mm, gates=None, side_at=None, depth=3, per=5):
    gates = gates or {}; side_at = side_at or {}
    side = []
    def read(i):
        if i in gates: gates[i]()
        a(rd(i), tag=('fr', i))
    nr = min(depth, n, 3)
    for i in range(nr): read(i)
    for i in range(n):
        side += unpk(side_at.get(i, []))
        a.wait_lg(('fr', i))
        ms = mm(i)
        for j, m in enumerate(ms):
            a(m)
            budget = per
            lim = i + depth + (1 if j == len(ms) - 1 else 0)
            if nr < min(n, lim) and (j == len(ms) - 1 or depth > 3):
                read(nr); nr += 1; budget -= 1
            while side and budget >= cost(side[0]):
                x = side.pop(0); budget -= cost(x)
                x() if callable(x) else a(x)
    return side

def flush_side(a, side):
    for x in side: x() if callable(x) else a(x)

def gate(a, tag):
    def g():
        a.wait_vm(tag); a('s_barrier')
    return g

def role_U(a, stamps=False, D=16):
    st = Stamps(a, stamps)
    W = lambda t, ks: 256 + 112 * t + 4 * ks
    VL16, VFR, VZ, VONE, VST, VFL, VSW, VSR, VO, VFRB, VXNR = 2, 3, 4, 5, 6, 7, 8, 9, 10, 11, 12
    CS = 14
    TMP = 18
    S8 = 20
    FR = 28
    ACC = 48
    RR, NN = 80, 96
    TT = 112
    PK = 144
    XR = 160
    LDS_ST = 2 * XBUF
    S1, S2, S_L, S_S, S_BUF, S_PRE, S_UO, S_X, S_O, S_F = 21, 22, 23, 24, 25, 26, 27, 28, 29, 30
    a(f'''
    s_lshl_b32 s{S_T0}, s{S_ROLE}, 2
    s_add_u32 s{S_T0}, s{S_T0}, s{S_W}
    s_mul_i32 s{S_T2}, s{S_T0}, 57344
    s_add_u32 s{S_T2}, s{S_T2}, {L.WBU}
    v_lshlrev_b32 v{VL16}, 4, {lane}
    ''')
    load_frags(a, [W(t, ks) for t in range(2) for ks in range(28)], VL16, S_T2)
    a(f'''
    s_mul_i32 s{S_T1}, s{S_T0}, 4682
    s_lshr_b32 s{S_T1}, s{S_T1}, 16
    s_mul_i32 s{S_T2}, s{S_T1}, 14
    s_sub_u32 s{S_T2}, s{S_T0}, s{S_T2}
    s_mul_i32 s{S_UO}, s{S_T1}, {2*28672}
    s_lshl_b32 s{S_T2}, s{S_T2}, 11
    s_add_u32 s{S_UO}, s{S_UO}, s{S_T2}
    s_add_u32 s{S_UO}, s{S_UO}, {L.UX}
    s_lshl_b32 s31, s{S_T0}, 2
    s_add_u32 s31, s31, {L.flag(L.FL_U)}
    v_mov_b32 v{VZ}, 0
    v_mov_b32 v{VONE}, 1
    ''')
    perm32_v(a, VFR, V_LANE, TMP)
    xn_pos(a, 13, TMP)
    a(f'''
    v_lshrrev_b32 v{TMP}, 5, {lane}
    v_lshlrev_b32 v{VFR}, 4, v{VFR}
    v_lshl_add_u32 v{VFR}, v{TMP}, 9, v{VFR}
    v_and_b32 v{TMP+1}, 31, {lane}
    v_mov_b32 v{VST}, v{VL16}
    v_min_u32 v{VFL}, 27, {lane}
    v_lshlrev_b32 v{VFL}, 2, v{VFL}
    s_lshl_b32 s{S_T0}, s{S_W}, 8
    s_add_u32 s{S_T0}, s{S_T0}, {LDS_ST}
    v_lshlrev_b32 v{VSW}, 2, v{TMP+1}
    v_add_u32 v{VSW}, s{S_T0}, v{VSW}
    v_lshlrev_b32 v{VSR}, 5, v{TMP}
    v_add_u32 v{VSR}, s{S_T0}, v{VSR}
    v_mov_b32 v{VO}, v{VL16}
    s_lshl_b32 s{S_T0}, s{S_W}, 4
    s_mov_b64 s[32:33], 0xffff
    s_lshl_b64 s[32:33], s[32:33], s{S_T0}
    v_mov_b32 v{FR}, 0x3f803f80
    v_mov_b32 v{FR+1}, 0x3f803f80
    v_mov_b32 v{FR+2}, 0x3f803f80
    v_mov_b32 v{FR+3}, 0x3f803f80
    s_waitcnt vmcnt(0)
    ''')
    for ks in range(28):
        for t in range(2):
            c = f'v[{ACC+16*t}:{ACC+16*t+15}]'
            a(f'v_mfma_f32_32x32x16_bf16 {c}, v[{FR}:{FR+3}], {R(W(t,ks),4)}, {"0" if ks == 0 else c}')
    a(f'''
    v_mov_b32 v{CS}, v{ACC}
    v_mov_b32 v{CS+2}, v{ACC+16}
    s_mov_b32 s{S1}, s{S_LAYER}
    s_mov_b32 s{S2}, s{S_LAYER}
    s_mov_b32 s{S_BUF}, 0
    s_mov_b32 s{S_PRE}, 0
    ''')
    VNF = 12
    a(f'''
    s_lshl_b32 s36, s{S_W}, 10
    s_lshl_b32 s41, s{S_ROLE}, 10
    s_mov_b32 s35, 0
    ''')
    pick = f'''
    s_add_u32 s{S_T0}, s{S2}, {D}
    s_min_u32 s{S_T0}, s{S_T0}, 64
    s_cmp_lt_u32 s{S1}, s{S_T0}
    s_cselect_b32 s{S_L}, 0, 1
    s_cselect_b32 s{S_S}, s{S1}, s{S2}
    s_cselect_b32 s{S_T0}, 2, 0
    s_add_u32 s{S1}, s{S1}, s{S_T0}
    s_lshl_b32 s{S_T0}, s{S_L}, 1
    s_add_u32 s{S2}, s{S2}, s{S_T0}
    s_lshl_b32 s{S_T2}, s{S_L}, 7
    s_add_u32 s{S_T2}, s{S_T2}, s{S_S}
    s_mul_i32 s40, s{S_T2}, {L.XN_SZ}
    s_add_u32 s40, s40, {L.XS}
    s_add_u32 s{S_X}, s40, s36
    s_add_u32 s40, s40, s41
    s_add_u32 s37, s{S_BUF}, s36
    s_lshl_b32 s39, s{S_T2}, 11
    s_add_u32 s39, s39, {L.ST}
    s_lshl_b32 s42, s{S_S}, 9
    s_add_u32 s42, s42, {L.flag(L.FL_X, 0)}
    '''.strip().split('\n')
    pick = [x.strip() for x in pick]
    def loads():
        out = [(f'buffer_load_dwordx4 v[{S8}:{S8+3}], v{VST}, {SRD}, s39 offen sc1', None),
               (f'buffer_load_dwordx4 v[{S8+4}:{S8+7}], v{VST}, {SRD}, s39 offen offset:1024 sc1', None),
               (f's_mov_b64 exec, s[32:33]\nbuffer_load_dwordx4 v[{XR}:{XR+3}], v{VL16}, {SRD}, s40 offen sc1\ns_mov_b64 exec, -1', 'st')]
        return out + [(d, ('d', j)) for j, d in enumerate(dma_list(S_X, 37, VL16))]
    cold, warm, end, cw = [a.newlabel(x) for x in ('U_COLD', 'U_WARM', 'U_END', 'U_CW')]
    K0 = 10
    seq = [(k, (0, 1)) for k in range(K0)] + [(k, (0,)) for k in range(K0, 28)] + [(k, (1,)) for k in range(K0, 28)]
    rd = lambda i: f'ds_read_b128 v[{FQ+4*(i%8)}:{FQ+4*(i%8)+3}], v{VFRB} offset:{1024*seq[i][0]}'
    def mm(i):
        ks, tiles = seq[i]; out = []
        for t in tiles:
            c = f'v[{ACC+16*t}:{ACC+16*t+15}]'
            out.append(f'v_mfma_f32_32x32x16_bf16 {c}, v[{FQ+4*(i%8)}:{FQ+4*(i%8)+3}], {R(W(t,ks),4)}, {"0" if ks == 0 else c}')
        return out
    U8 = XR + 4
    def task(is_warm):
        st(); st.cyc(0)
        a(f'''
        v_add_u32 v{VFRB}, s{S_BUF}, v{VFR}
        s_xor_b32 s{S_BUF}, s{S_BUF}, {XBUF}
        s_lshl_b32 s{S_T2}, s{S_L}, 6
        s_add_u32 s{S_STEP}, s{S_T2}, s{S_S}
        ''')
        cur = [f's_mul_i32 s{S_O}, s{S_STEP}, {L.UX_SZ}', f's_add_u32 s{S_O}, s{S_O}, s{S_UO}', f's_lshl_b32 s{S_F}, s{S_STEP}, 9', f's_add_u32 s{S_F}, s{S_F}, s31',
               f's_mul_i32 s34, s{S_STEP}, {L.XN_SZ}', 's_add_u32 s34, s34, s41', f's_add_u32 s34, s34, {L.XN}',
               f's_add_u32 s43, s{S_F}, {L.flag(L.FL_XN) - L.flag(L.FL_U)}']
        sd = {}
        sd[0] = ['\n'.join(cur), lambda: a.wait_vm('st')] + stats_ops(S8, TMP) + \
                [f'v_mul_f32 v{S8+2}, v{S8}, v{S8+1}', f'v_sub_f32 v{S8+2}, 0, v{S8+2}', f'ds_write2_b32 v{VSW}, v{S8}, v{S8+2} offset0:0 offset1:32']
        for i in range(4):
            sd[0] += [f'v_lshlrev_b32 v{U8+2*i}, 16, v{XR+i}', f'v_and_b32 v{U8+2*i+1}, 0xffff0000, v{XR+i}',
                     f'v_pk_fma_f32 v[{U8+2*i}:{U8+2*i+1}], v[{U8+2*i}:{U8+2*i+1}], v[{S8}:{S8+1}], v[{S8+2}:{S8+3}] op_sel_hi:[1,0,0]',
                     f'v_cvt_pk_bf16_f32 v{XR+i}, v{U8+2*i}, v{U8+2*i+1}']
        sd[0] += [lambda: a('s_mov_b64 exec, s[32:33]\n' + f'buffer_store_dwordx4 v[{XR}:{XR+3}], v13, {SRD}, s34 offen sc1\n' + 's_mov_b64 exec, -1', tag='xs')]
        for j in range(2):
            for i in range(2):
                sd[0] += [f'ds_read_b128 v[{RR+8*j+4*i}:{RR+8*j+4*i+3}], v{VSR} offset:{64*j+16*i}',
                          f'ds_read_b128 v[{NN+8*j+4*i}:{NN+8*j+4*i+3}], v{VSR} offset:{128+64*j+16*i}']
        last = sd[0].pop(); sd[0].append(lambda: a(last, tag='nn'))
        sd[8] = ['\n'.join(pick[i:i+4]) for i in range(0, len(pick), 4)] + [lambda: a(f'buffer_load_dword v{VNF}, v{VFL}, {SRD}, s42 offen sc1', tag='nf')]
        sd[11] = [lambda: a.wait_lg('nn')] + [f'v_pk_mul_f32 v[{TT+16*t+i}:{TT+16*t+i+1}], v[{NN+i}:{NN+i+1}], v[{CS+2*t}:{CS+2*t+1}] op_sel_hi:[1,0]' for t in range(2) for i in range(0, 16, 2)]
        if is_warm:
            def prevflag():
                a.wait_vm('us'); signal(a, 35, VZ, VONE, wait='')
            sd[19] = [prevflag]
        def chk():
            a.wait_vm('nf')
            signal(a, 43, VZ, VONE, wait='')
            a(f'''
            v_cmp_eq_u32 vcc, 0, v{VNF}
            s_cmp_eq_u64 vcc, 0
            s_cselect_b32 s{S_PRE}, 1, 0
            s_cmp_eq_u32 s{S_L}, 0
            s_cselect_b32 s{S_PRE}, 1, s{S_PRE}
            s_cmp_ge_u32 s{S_S}, 64
            s_cselect_b32 s{S_PRE}, 0, s{S_PRE}
            s_cmp_eq_u32 s{S_PRE}, 1
            s_cselect_b64 vcc, -1, 0
            ''')
        sd[26] = [chk]
        def opt(d):
            def f():
                a.opt_begin('s_cbranch_vccz'); a(d); a.opt_end()
            return f
        for j, (d, _) in enumerate(loads()): sd[27 + j] = [opt(d)]
        def epi(t):
            o = []
            for i in range(0, 16, 2):
                c = ACC + 16 * t + i
                o.append(f'v_pk_fma_f32 v[{c}:{c+1}], v[{c}:{c+1}], v[{RR+i}:{RR+i+1}], v[{TT+16*t+i}:{TT+16*t+i+1}]')
                o.append(f'v_cvt_pk_bf16_f32 v{PK+8*t+i//2}, v{c}, v{c+1}')
                if i in (6, 14):
                    p = PK + 8 * t + (4 if i == 14 else 0)
                    o.append(f'buffer_store_dwordx4 v[{p}:{p+3}], v{VO}, {SRD}, s{S_O} offen offset:{1024 if i == 14 else 0} sc1')
            return o
        sd[36] += epi(0) + [f's_add_u32 s{S_O}, s{S_O}, 28672']
        left = stream(a, len(seq), rd, mm, {0: gate(a, ('d', 0)), 4: gate(a, ('d', 1)), 8: gate(a, ('d', 3)), 16: gate(a, ('d', 6))}, sd, per=5, depth=7)
        st.cyc(1)
        assert not left, left
        flush_side(a, epi(1))
        st(); st.cyc(2)
        st.flush(4 << 20, TMP, TMP + 1)
        a(f's_mov_b32 s35, s{S_F}')
        a(f's_cbranch_vccnz {warm}')
        a(f'buffer_load_dword v{VNF}, v{VFL}, {SRD}, s42 offen sc1')
        signal(a, S_F, VZ, VONE, wait='s_waitcnt vmcnt(1)')
        a(f'''
        s_cmp_ge_u32 s{S_S}, 64
        s_cbranch_scc1 {end}
        s_waitcnt vmcnt(1)
        v_cmp_eq_u32 vcc, 0, v{VNF}
        ''')
        a.br(f's_cbranch_vccz {cold}')
        a(f's_branch {cw}')
    for x in pick: a(x)
    a(f's_branch {cold}')
    a.label(cw)
    wait_flags(a, 42, VFL, TMP, sleep=1)
    a.label(cold); a.vm = []; a.lg = []
    for d, tg in loads(): a(d, tag=tg)
    task(False)
    a.label(warm); a.lg = []
    a.vm = [tg for _, tg in loads()] + [None, None, None, 'us']
    task(True)
    a.label(end)
    a('s_endpgm')

def role_F1(a, stamps=False, mode='sc1'):
    st = Stamps(a, stamps)
    W = lambda t, ks: 256 + 112 * t + 4 * ks
    VL16, VZ, VONE, VST, VFL, VFRB, VNF = 2, 4, 5, 6, 7, 11, 12
    VTU, VTA, VTS, VTD, VUF, VUR = 13, 14, 15, 16, 17, 10
    TMP = 18; S8 = 20; FR = 28
    ACC = 48
    CS = 80
    EX = 112
    PK = 120
    S_BUF, S_X, S_ST, S_O, S_FI, S_FO = 25, 26, 27, 28, 29, 30
    a(f'''
    s_lshl_b32 s{S_T0}, s{S_ROLE}, 2
    s_add_u32 s{S_T0}, s{S_T0}, s{S_W}
    s_load_dwordx4 s[48:51], s[0:1], 64
    v_lshlrev_b32 v{VL16}, 4, {lane}
    v_lshrrev_b32 v{TMP}, 2, {lane}
    v_mul_u32_u24 v{EX}, 3584, v{TMP}
    v_and_b32 v{TMP}, 3, {lane}
    v_lshl_add_u32 v{EX}, v{TMP}, 4, v{EX}
    s_lshl_b32 s{S_T2}, s{S_T0}, 6
    s_waitcnt lgkmcnt(0)
    s_mov_b32 s40, s48
    s_and_b32 s41, s49, 0xffff
    s_mov_b32 s42, {448*3584}
    s_mov_b32 s43, 0x00020000
    s_mov_b32 s44, s50
    s_and_b32 s45, s51, 0xffff
    s_mov_b32 s46, {448*3584}
    s_mov_b32 s47, 0x00020000
    ''')
    tr_addr(a, EX + 1, TMP, TMP + 1, 6, 10)
    load_w_tr(a, W, lambda ks, p: f'buffer_load_dwordx4 v{EX}, s[{40+4*p}:{43+4*p}], s{S_T2} offen lds' + (f'\ns_add_u32 s{S_T2}, s{S_T2}, {16*3584}' if p else ''), EX + 1, 32, 256)
    a(f'''
    s_mul_i32 s{S_O}, s{S_LAYER}, {64*L.HB_SZ}
    s_lshl_b32 s{S_T1}, s{S_T0}, 11
    s_add_u32 s{S_O}, s{S_O}, s{S_T1}
    s_add_u32 s{S_O}, s{S_O}, {L.HB}
    s_lshl_b32 s{S_T1}, s{S_LAYER}, 15
    s_add_u32 s{S_FI}, s{S_T1}, {L.flag(L.FL_P)}
    s_lshl_b32 s{S_FO}, s{S_T0}, 2
    s_add_u32 s{S_FO}, s{S_FO}, s{S_T1}
    s_add_u32 s{S_FO}, s{S_FO}, {L.flag(L.FL_H)}
    s_mul_i32 s{S_X}, s{S_LAYER}, {128*L.XN_SZ}
    s_add_u32 s{S_X}, s{S_X}, {L.XS + 64*L.XN_SZ}
    s_lshl_b32 s{S_ST}, s{S_LAYER}, 18
    s_add_u32 s{S_ST}, s{S_ST}, {L.ST + 64*L.ST_SZ}
    v_mov_b32 v{VZ}, 0
    v_mov_b32 v{VONE}, 1
    v_lshrrev_b32 v{TMP}, 5, {lane}
    v_and_b32 v{TMP+1}, 31, {lane}
    v_mov_b32 v{VST}, v{VL16}
    v_min_u32 v{VFL}, 27, {lane}
    v_lshlrev_b32 v{VFL}, 2, v{VFL}
    v_mov_b32 v{FR}, 0x3f803f80
    v_mov_b32 v{FR+1}, 0x3f803f80
    v_mov_b32 v{FR+2}, 0x3f803f80
    v_mov_b32 v{FR+3}, 0x3f803f80
    s_mov_b32 s{S_BUF}, 0
    s_mov_b32 s{S_STEP}, 0
    s_waitcnt vmcnt(0)
    ''')
    for ks in range(28):
        for t in range(2):
            c = f'v[{CS+16*t}:{CS+16*t+15}]'
            a(f'v_mfma_f32_32x32x16_bf16 {c}, {R(W(t,ks),4)}, v[{FR}:{FR+3}], {"0" if ks == 0 else c}')
    a(f'''
    s_lshl_b32 s36, s{S_W}, 10
    s_add_u32 s{S_X}, s{S_X}, s36
    s_mov_b64 vcc, 0
    v_mov_b32 v{VNF}, 0
    s_lshl_b32 s{S_T0}, s{S_ROLE}, 2
    s_add_u32 s{S_T0}, s{S_T0}, s{S_W}
    v_lshlrev_b32 v{VTU}, 7, {lane}
    s_mul_i32 s39, s{S_LAYER}, {64*L.UX_SZ}
    s_lshl_b32 s{S_T1}, s{S_T0}, 13
    s_add_u32 s39, s39, s{S_T1}
    s_add_u32 s39, s39, {L.UX + 3*L.UX_SZ}
    v_and_b32 v{VUF}, 3, {lane}
    s_lshl_b32 s{S_T1}, s{S_T0}, 2
    v_add_u32 v{VUF}, s{S_T1}, v{VUF}
    v_mul_u32_u24 v{TMP}, 4682, v{VUF}
    v_lshrrev_b32 v{TMP}, 16, v{TMP}
    v_add_u32 v{TMP+1}, 1, v{TMP}
    v_lshrrev_b32 v{TMP+1}, 1, v{TMP+1}
    v_mul_u32_u24 v{TMP+1}, 14, v{TMP+1}
    v_sub_u32 v{VUF}, v{VUF}, v{TMP+1}
    v_lshlrev_b32 v{VUF}, 2, v{VUF}
    v_add_u32 v{VUF}, {(L.flag(L.FL_U) - L.flag(L.FL_P) + 3*512) & 0xffffffff}, v{VUF}
    v_add_u32 v{VTA}, s{S_O}, v{VTU}
    v_mov_b32 v{VTS}, {L.HB_SZ}
    s_mul_i32 s{S_T1}, s{S_LAYER}, {128*L.XN_SZ}
    s_lshl_b32 s{S_T2}, s{S_T0}, 9
    s_add_u32 s{S_T1}, s{S_T1}, s{S_T2}
    s_add_u32 s{S_T1}, s{S_T1}, {L.XS + 64*L.XN_SZ - 2048}
    v_add_u32 v{TMP}, s{S_T1}, v{VTU}
    v_mov_b32 v{TMP+1}, {L.XN_SZ}
    v_cmp_gt_u32 vcc, 16, {lane}
    v_cndmask_b32 v{VTA}, v{TMP}, v{VTA}, vcc
    v_cndmask_b32 v{VTS}, v{TMP+1}, v{VTS}, vcc
    s_and_b32 s{S_T2}, s{S_T0}, 15
    s_lshl_b32 s{S_T2}, s{S_T2}, 7
    s_add_u32 s{S_T2}, s{S_T2}, s{S_ST}
    v_mov_b32 v{TMP}, s{S_T2}
    v_mov_b32 v{TMP+1}, {L.ST_SZ}
    v_cmp_gt_u32 vcc, 20, {lane}
    v_cndmask_b32 v{VTA}, v{TMP}, v{VTA}, vcc
    v_cndmask_b32 v{VTS}, v{TMP+1}, v{VTS}, vcc
    v_mov_b32 v{VUR}, 0
    buffer_load_dword v{VTD}, v{VTA}, {SRD}, 0 offen sc1
    v_add_u32 v{VTA}, v{VTA}, v{VTS}
    buffer_load_dword v{VTD}, v{VTA}, {SRD}, 0 offen sc1
    v_add_u32 v{VTA}, v{VTA}, v{VTS}
    s_mov_b64 vcc, 0
    ''')
    def body(mode):
        loop, nd = a.newlabel('F1_LOOP'), a.newlabel('F1_ND')
        a.flush(); a.label(loop); a.vm = []; a.lg = []
        a(f's_add_u32 s37, s{S_BUF}, s36')
        a.br(f's_cbranch_vccnz {nd}')
        a(f'v_cmp_eq_u32 vcc, 0, v{VNF}')
        a.opt_begin('s_cbranch_vccz')
        wait_flags(a, S_FI, VFL, TMP, sleep=1)
        a.opt_end()
        for j, d in enumerate(dma_list(S_X, 37, VL16)): a(d, tag=('d', j))
        a.label(nd)
        st()
        a(f'buffer_load_dwordx4 v[{S8}:{S8+3}], v{VST}, {SRD}, s{S_ST} offen sc1')
        a(f'buffer_load_dwordx4 v[{S8+4}:{S8+7}], v{VST}, {SRD}, s{S_ST} offen offset:1024 sc1', tag='st')
        a(f'''
        v_add_u32 v{VFRB}, s{S_BUF}, v{VL16}
        s_xor_b32 s{S_BUF}, s{S_BUF}, {XBUF}
        s_add_u32 s37, s{S_BUF}, s36
        s_add_u32 s{S_ST}, s{S_ST}, {L.ST_SZ}
        s_add_u32 s{S_FI}, s{S_FI}, 512
        ''')
        def touch():
            a(f'''
            v_cmp_eq_u32 vcc, 0, v{VUR}
            s_cmp_eq_u64 vcc, 0
            s_cselect_b32 s{S_T0}, s39, s{S_FI}
            s_cselect_b64 exec, -1, 1
            buffer_load_dword v{VTD}, v{VTU}, {SRD}, s{S_T0} offen sc1
            s_mov_b64 exec, -1
            s_add_u32 s39, s39, {L.UX_SZ}
            ''')
            if not mode: a(f'buffer_load_dword v{VTD}, v{VTA}, {SRD}, 0 offen sc1\nv_add_u32 v{VTA}, v{VTA}, v{VTS}')
        seq = [(k, (0, 1)) for k in range(8)] + [(k, (0,)) for k in range(8, 28)] + [(k, (1,)) for k in range(8, 28)]
        rd = lambda i: f'ds_read_b128 v[{FQ+4*(i%8)}:{FQ+4*(i%8)+3}], v{VFRB} offset:{1024*seq[i][0]}'
        def mm(i):
            ks, tiles = seq[i]; out = []
            for t in tiles:
                c = f'v[{ACC+16*t}:{ACC+16*t+15}]'
                out.append(f'v_mfma_f32_32x32x16_bf16 {c}, {R(W(t,ks),4)}, v[{FQ+4*(i%8)}:{FQ+4*(i%8)+3}], {"0" if ks == 0 else c}')
            return out
        sto = stats_ops(S8, TMP) + [f'v_sub_f32 v{S8+2}, 0, v{S8+1}', f'v_mul_f32 v{S8+4}, {hex(f2u(-LOG2E))}, v{S8}', f'v_mov_b32 v{S8+6}, v{TMP+1}']
        def epi(t):
            c = ACC + 16 * t; o = []
            for i in range(0, 16, 2):
                o.append(f'v_pk_fma_f32 v[{c+i}:{c+i+1}], v[{CS+16*t+i}:{CS+16*t+i+1}], v[{S8+2}:{S8+3}], v[{c+i}:{c+i+1}] op_sel_hi:[1,0,1]')
            for i in range(0, 8, 2): o.append(f'v_pk_mul_f32 v[{EX+i}:{EX+i+1}], v[{c+i}:{c+i+1}], v[{S8+4}:{S8+5}] op_sel_hi:[1,0]')
            for i in range(8): o.append(f'v_exp_f32 v{EX+i}, v{EX+i}')
            for i in range(0, 8, 2): o.append(f'v_pk_mul_f32 v[{c+i}:{c+i+1}], v[{c+i}:{c+i+1}], v[{c+8+i}:{c+9+i}]')
            for i in range(0, 8, 2): o.append(f'v_pk_fma_f32 v[{EX+i}:{EX+i+1}], v[{EX+i}:{EX+i+1}], v[{S8+6}:{S8+7}], v[{S8+6}:{S8+7}] op_sel_hi:[1,0,0]')
            for i in range(8): o.append(f'v_rcp_f32 v{EX+i}, v{EX+i}')
            for i in range(0, 8, 2): o.append(f'v_pk_mul_f32 v[{c+i}:{c+i+1}], v[{c+i}:{c+i+1}], v[{EX+i}:{EX+i+1}]')
            for i in range(0, 8, 2): o.append(f'v_cvt_pk_bf16_f32 v{PK+4*t+i//2}, v{c+i}, v{c+i+1}')
            o.append(f'buffer_store_dwordx4 v[{PK+4*t}:{PK+4*t+3}], v{VL16}, {SRD}, s{S_O} offen offset:{1024*t} {mode}')
            return o
        def optdma(d):
            def f():
                a.opt_begin('s_cbranch_vccz'); a(d); a.opt_end()
            return f
        def chk():
            a.wait_vm('nf')
            a(f'v_cmp_eq_u32 vcc, 0, v{VNF}')
            a('s_cmp_eq_u64 vcc, 0')
            a('s_cselect_b64 vcc, -1, 0')
        sd = {13: [lambda: a(f'buffer_load_dword v{VNF}, v{VFL}, {SRD}, s{S_FI} offen sc1', tag='nf'), lambda: a.wait_vm('st')] + sto,
              27: [chk], 31: epi(0)}
        dl = dma_list(S_X, 37, VL16)
        e0 = epi(0)
        sd = {5: [lambda: a.wait_vm('st'), touch] + sto,
              24: [lambda: a(f'buffer_load_dword v{VNF}, v{VFL}, {SRD}, s{S_FI} offen sc1', tag='nf')],
              30: e0[:20] + [chk]}
        for j in range(7): sd[30] += [optdma(dl[j])] + e0[20 + 3 * j: 23 + 3 * j]
        sd[30] += e0[41:]
        left = stream(a, len(seq), rd, mm, {0: gate(a, ('d', 0)), 4: gate(a, ('d', 1)), 8: gate(a, ('d', 3)), 16: gate(a, ('d', 6))}, sd, per=6, depth=7)
        print('F1 leftover', len(left))
        flush_side(a, left)
        e1 = epi(1)
        flush_side(a, e1[:-1])
        a(f'buffer_load_dword v{VNF}, v{VFL}, {SRD}, s{S_FI} offen sc1')
        a(e1[-1])
        st()
        signal(a, S_FO, VZ, VONE, mode)
        a(f'v_add_u32 v{VUR}, s{S_FI}, v{VUF}\nbuffer_load_dword v{VUR}, v{VUR}, {SRD}, 0 offen sc1')
        st()
        st.flush(10 << 20, TMP, TMP + 1)
        a(f'''
        s_add_u32 s{S_O}, s{S_O}, {L.HB_SZ}
        s_add_u32 s{S_FO}, s{S_FO}, 512
        s_add_u32 s{S_STEP}, s{S_STEP}, 1
        s_cmp_lt_u32 s{S_STEP}, 64
        s_cbranch_scc1 {loop}
        s_endpgm
        ''')
    mode_split(a, body, TMP)

PH, PQ, PT, PW = 544, 1184, 4736, 9472
def red_setup(a, VRW, VRR, VXO, VSO, TMP, base=0, il=False):
    a(f'''
    v_lshrrev_b32 v{TMP}, 5, {lane}
    v_mul_u32_u24 v{VRW}, {PH}, v{TMP}
    v_and_b32 v{TMP}, 31, {lane}
    v_lshl_add_u32 v{VRW}, v{TMP}, 4, v{VRW}
    s_mul_i32 s{S_T0}, s{S_W}, {PW}
    s_add_u32 s{S_T0}, s{S_T0}, {base}
    v_add_u32 v{VRW}, s{S_T0}, v{VRW}
    v_and_b32 v{TMP}, 1, {lane}
    v_mul_u32_u24 v{VRR}, {PH}, v{TMP}
    v_bfe_u32 v{TMP}, {lane}, 1, 1
    v_mul_u32_u24 v{TMP}, {2*PQ}, v{TMP}
    v_add_u32 v{VRR}, v{VRR}, v{TMP}
    v_bfe_u32 v{TMP}, {lane}, 2, 1
    v_mul_u32_u24 v{TMP}, {PT}, v{TMP}
    v_add_u32 v{VRR}, v{VRR}, v{TMP}
    v_lshrrev_b32 v{TMP}, 3, {lane}
    s_lshl_b32 s{S_T0}, s{S_W}, 3
    v_add_u32 v{TMP}, s{S_T0}, v{TMP}
    v_lshl_add_u32 v{VRR}, v{TMP}, 4, v{VRR}
    v_add_u32 v{VRR}, {base}, v{VRR}
    v_and_b32 v{VXO}, 7, {lane}
    s_lshl_b32 s{S_T0}, s{S_ROLE}, 3
    v_add_u32 v{VXO}, s{S_T0}, v{VXO}
    v_lshlrev_b32 v{VXO}, 9, v{VXO}
    v_lshl_add_u32 v{VXO}, v{TMP}, 4, v{VXO}
    s_lshr_b32 s{S_T1}, s{S_ROLE}, 1
    s_lshl_b32 s{S_T1}, s{S_T1}, 9
    s_and_b32 s{S_T2}, s{S_T0}, 8
    s_add_u32 s{S_T1}, s{S_T1}, s{S_T2}
    v_lshlrev_b32 v{VSO}, 4, v{TMP}
    v_add_u32 v{VSO}, s{S_T1}, v{VSO}
    s_mov_b32 s36, 0x01010101
    s_mov_b32 s37, 0x01010101
    ''')

def red_epilogue(a, ACC, VRW, VRR, XRES, T, store_x, store_st, lds_off=0, extra=(), st=None, il=False):
    extra = list(extra)
    for _ in range(2):
        if extra: extra.pop(0)()
    for t in range(2):
        for rq in range(4):
            a(f'ds_write_b128 v{VRW}, v[{ACC+16*t+4*rq}:{ACC+16*t+4*rq+3}] offset:{lds_off+t*PT+((0,2,1,3)[rq] if il else rq)*PQ}')
            if extra: extra.pop(0)()
    X = ACC
    for x in extra: x()
    a('s_waitcnt lgkmcnt(0)')
    if st: st.cyc(4)
    a('s_barrier')
    if st: st.cyc(5)
    for w in range(4):
        for j in range(2):
            a(f'ds_read_b128 v[{T+8*w+4*j}:{T+8*w+4*j+3}], v{VRR} offset:{lds_off+w*PW+j*PQ}')
    lo = (lambda i: X + i) if il else (lambda i: X + 2 * i)
    hi = (lambda i: X + 4 + i) if il else (lambda i: X + 2 * i + 1)
    for i in range(4):
        a(f'v_lshlrev_b32 v{lo(i)}, 16, v{XRES+i}')
        a(f'v_and_b32 v{hi(i)}, 0xffff0000, v{XRES+i}')
    for w in range(4):
        a(f's_waitcnt lgkmcnt({6-2*w})')
        for i in range(0, 8, 2):
            a(f'v_pk_add_f32 v[{X+i}:{X+i+1}], v[{X+i}:{X+i+1}], v[{T+8*w+i}:{T+8*w+i+1}]')
    for i in range(4): a(f'v_cvt_pk_bf16_f32 v{XRES+i}, v{lo(i)}, v{hi(i)}')
    if st: st.cyc(6)
    store_x(XRES)
    if store_st is None: return
    for i in range(4):
        a(f'v_lshlrev_b32 v{X+2*i}, 16, v{XRES+i}')
        a(f'v_and_b32 v{X+2*i+1}, 0xffff0000, v{XRES+i}')
    a(f'v_pk_add_f32 v[{T}:{T+1}], v[{X}:{X+1}], v[{X+2}:{X+3}]')
    a(f'v_pk_mul_f32 v[{T+2}:{T+3}], v[{X}:{X+1}], v[{X}:{X+1}]')
    a(f'v_pk_add_f32 v[{T+4}:{T+5}], v[{X+4}:{X+5}], v[{X+6}:{X+7}]')
    for i in (2, 4, 6): a(f'v_pk_fma_f32 v[{T+2}:{T+3}], v[{X+i}:{X+i+1}], v[{X+i}:{X+i+1}], v[{T+2}:{T+3}]')
    a(f'v_pk_add_f32 v[{T}:{T+1}], v[{T}:{T+1}], v[{T+4}:{T+5}]')
    a(f'v_add_f32 v{T}, v{T}, v{T+1}')
    a(f'v_add_f32 v{T+1}, v{T+2}, v{T+3}')
    for d in ('quad_perm:[1,0,3,2]', 'quad_perm:[2,3,0,1]', 'row_half_mirror'):
        for r in (T, T + 1): a(f'v_add_f32_dpp v{r}, v{r}, v{r} {d} row_mask:0xf bank_mask:0xf')
    a('s_mov_b64 exec, s[36:37]')
    store_st(T)
    a('s_mov_b64 exec, -1')

def role_F2(a, stamps=False, mode='sc1'):
    st = Stamps(a, stamps)
    W = lambda t, kk: 256 + 112 * t + 4 * kk
    VL16, VZ, VONE, VFL, VRW, VRR, VXO, VSO, VOUT = 2, 4, 5, 7, 8, 9, 10, 11, 12
    TMP = 18; XRES = 20; ACC = 48; T = 80; H = 112
    S_H, S_XI, S_XO, S_SO, S_FI, S_FO = 25, 26, 27, 28, 29, 30
    OSRD = 's[40:43]'
    a(f'''
    s_load_dwordx4 s[48:51], s[0:1], 80
    s_lshl_b32 s{S_T0}, s{S_ROLE}, 2
    s_add_u32 s{S_T0}, s{S_T0}, s{S_W}
    v_lshlrev_b32 v{VL16}, 4, {lane}
    v_lshrrev_b32 v{TMP}, 3, {lane}
    v_mul_u32_u24 v{H}, 896, v{TMP}
    v_and_b32 v{TMP}, 7, {lane}
    v_lshl_add_u32 v{H}, v{TMP}, 4, v{H}
    s_mul_i32 s{S_T2}, s{S_W}, {448*896}
    s_lshl_b32 s{S_T1}, s{S_ROLE}, 7
    s_add_u32 s{S_T2}, s{S_T2}, s{S_T1}
    s_waitcnt lgkmcnt(0)
    s_mov_b32 s44, s48
    s_and_b32 s45, s49, 0xffff
    s_mov_b32 s46, {1792*896}
    s_mov_b32 s47, 0x00020000
    s_mov_b32 s40, s50
    s_and_b32 s41, s51, 0xffff
    s_mov_b32 s42, {2048*896}
    s_mov_b32 s43, 0x00020000
    ''')
    tr_addr(a, H + 1, TMP, TMP + 1, 7, 5)
    load_w_tr(a, W, lambda ks, p: f'buffer_load_dwordx4 v{H}, s[44:47], s{S_T2} offen lds\ns_add_u32 s{S_T2}, s{S_T2}, {8*896}', H + 1, 64, 512)
    a(f'''
    s_mul_i32 s{S_H}, s{S_LAYER}, {64*L.HB_SZ}
    s_mul_i32 s{S_T1}, s{S_W}, 28672
    s_add_u32 s{S_H}, s{S_H}, s{S_T1}
    s_add_u32 s{S_H}, s{S_H}, {L.HB}
    s_lshl_b32 s{S_T1}, s{S_LAYER}, 15
    s_mul_i32 s{S_FI}, s{S_W}, 56
    s_add_u32 s{S_FI}, s{S_FI}, s{S_T1}
    s_add_u32 s{S_FI}, s{S_FI}, {L.flag(L.FL_H)}
    s_lshl_b32 s{S_FO}, s{S_T0}, 2
    s_add_u32 s{S_FO}, s{S_FO}, s{S_T1}
    s_add_u32 s{S_FO}, s{S_FO}, {L.flag(L.FL_X)}
    s_mul_i32 s{S_XI}, s{S_LAYER}, {128*L.XN_SZ}
    s_add_u32 s{S_XI}, s{S_XI}, {L.XS + 64*L.XN_SZ}
    s_mov_b32 s{S_XO}, {L.XS + 128*L.XN_SZ}
    s_mov_b32 s{S_SO}, {L.ST + 128*L.ST_SZ}
    v_mov_b32 v{VZ}, 0
    v_mov_b32 v{VONE}, 1
    v_min_u32 v{VFL}, 13, {lane}
    v_lshlrev_b32 v{VFL}, 2, v{VFL}
    s_mov_b32 s{S_STEP}, 0
    s_mov_b32 s35, 0
    ''')
    red_setup(a, VRW, VRR, VXO, VSO, TMP)
    a(f'''
    v_mul_u32_u24 v{VOUT}, 896, v{TMP}
    v_and_b32 v{TMP}, 7, {lane}
    v_add_u32 v{TMP}, s{S_T0}, v{TMP}
    v_lshl_add_u32 v{VOUT}, v{TMP}, 4, v{VOUT}
    ''')
    loop, fin, nxt = a.newlabel('F2_LOOP'), a.newlabel('F2_FIN'), a.newlabel('F2_NXT')
    VNF = 13
    AH = 12
    a(f'v_mov_b32 v{VNF}, 0')
    a('s_mov_b64 vcc, 0')
    def ldt(kk):
        x = f'buffer_load_dwordx4 v[{H+4*kk}:{H+4*kk+3}], v{VL16}, {SRD}, s{S_H} offen offset:{(kk % 4) * 1024} sc1'
        if kk % 4 == 3: x += f'\ns_add_u32 s{S_H}, s{S_H}, {4096 if kk < 27 else L.HB_SZ - 6 * 4096}'
        return x
    def ld(kk): a(ldt(kk), tag=('h', kk))
    nd = a.newlabel('F2_ND')
    a(f's_mov_b32 s31, {4*PW}')
    a('s_mov_b32 s32, 0')
    a.flush(); a.label(loop); a.vm = []; a.lg = []
    a.br(f's_cbranch_vccnz {nd}')
    wait_flags(a, S_FI, VFL, TMP, sleep=1)
    for kk in range(AH): ld(kk)
    a.label(nd)
    st(); st.cyc(0)
    a(f's_add_u32 s{S_FI}, s{S_FI}, 512')
    for kk in range(28):
        a.wait_vm(('h', kk))
        if kk == 0: st.cyc(1)
        if kk == AH:
            st.cyc(2)
            a('s_cmp_eq_u32 s32, 1')
            a.opt_begin('s_cbranch_scc0')
            signal(a, 33, VZ, VONE, 'sc1', wait='')
            a.opt_end()
            a('s_mov_b32 s32, 0')
        for t in range(2):
            c = f'v[{ACC+16*t}:{ACC+16*t+15}]'
            a(f'v_mfma_f32_32x32x16_bf16 {c}, {R(W(t,kk),4)}, v[{H+4*kk}:{H+4*kk+3}], {"0" if kk == 0 else c}')
            if t == 0:
                if kk + AH < 28: ld(kk + AH)
                elif kk + AH == 28: a(f'buffer_load_dwordx4 v[{XRES}:{XRES+3}], v{VXO}, {SRD}, s{S_XI} offen sc1')
                elif kk == 21: a(f'buffer_load_dword v{VNF}, v{VFL}, {SRD}, s{S_FI} offen sc1')
    st.cyc(3)
    a('s_waitcnt vmcnt(0)')
    a(f'v_cmp_eq_u32 vcc, 0, v{VNF}')
    a('s_cmp_eq_u64 vcc, 0')
    a('s_cselect_b64 vcc, -1, 0')
    def optld(kk):
        def f():
            a.opt_begin('s_cbranch_vccz'); a(ldt(kk)); a.opt_end()
        return f
    def sx(r):
        a(f's_cmp_eq_u32 s{S_LAYER}, 1')
        a(f's_cbranch_scc1 {fin}')
        a(f'buffer_store_dwordx4 v[{r}:{r+3}], v{VXO}, {SRD}, s{S_XO} offen sc1')
    red_epilogue(a, ACC, VRW, VRR, XRES, T, sx, lambda r: a(f'buffer_store_dwordx2 v[{r}:{r+1}], v{VSO}, {SRD}, s{S_SO} offen sc1'),
                 extra=[optld(kk) for kk in range(AH)], st=st)
    st()
    a('s_mov_b32 s32, 1')
    a(f's_mov_b32 s33, s{S_FO}')
    a(f's_cmp_eq_u32 s{S_STEP}, 63')
    a('s_cselect_b64 vcc, 0, vcc')
    a.br(f's_cbranch_vccnz {nxt}')
    a('s_mov_b32 s32, 0')
    signal(a, S_FO, VZ, VONE, 'sc1')
    a(f's_branch {nxt}')
    a.label(fin)
    a(f'buffer_store_dwordx4 v[{XRES}:{XRES+3}], v{VOUT}, {OSRD}, s35 offen')
    if stamps: st.n -= 1; st()
    a.label(nxt)
    st()
    st.flush(12 << 20, TMP, TMP + 1)
    a(f'''
    v_add_u32 v{VRW}, s31, v{VRW}
    v_add_u32 v{VRR}, s31, v{VRR}
    s_sub_u32 s31, 0, s31
    s_add_u32 s35, s35, {32*896}
    s_add_u32 s{S_XI}, s{S_XI}, {L.XN_SZ}
    s_add_u32 s{S_XO}, s{S_XO}, {L.XN_SZ}
    s_add_u32 s{S_SO}, s{S_SO}, {L.ST_SZ}
    s_add_u32 s{S_FO}, s{S_FO}, 512
    s_add_u32 s{S_STEP}, s{S_STEP}, 1
    s_cmp_lt_u32 s{S_STEP}, 64
    s_cbranch_scc1 {loop}
    s_endpgm
    ''')

def role_PU(a, stamps=False, mode='sc1'):
    st = Stamps(a, stamps)
    VL16, VZ, VONE, VFU, VRW, VRR, VXO, VSO, VUX, VUM, VFT, VFM = 2, 4, 5, 7, 8, 9, 10, 11, 12, 13, 14, 15
    TMP = 18; XRES = 20; ACC = 48; T = 80
    UF = lambda t, k: 112 + 40 * t + 4 * k
    PF = lambda k: 192 + 4 * k
    S_UX, S_UM, S_PX, S_XI, S_XO, S_SO, S_FL, S_FO = 21, 22, 23, 24, 25, 26, 27, 28
    a(f'''
    v_lshlrev_b32 v{VL16}, 4, {lane}
    v_mov_b32 v{VZ}, 0
    v_mov_b32 v{VONE}, 1
    ''')
    red_setup(a, VRW, VRR, VXO, VSO, TMP, il=True)
    a(f'''
    v_mov_b32 v{VUX}, v{VL16}
    v_and_b32 v{VUM}, 15, {lane}
    v_lshlrev_b32 v{VUM}, 4, v{VUM}
    v_bfe_u32 v{TMP}, {lane}, 4, 1
    v_lshl_add_u32 v{VUM}, v{TMP}, 10, v{VUM}
    v_lshrrev_b32 v{TMP}, 5, {lane}
    v_lshl_add_u32 v{VUM}, v{TMP}, 8, v{VUM}
    v_and_b32 v{VFU}, 1, {lane}
    v_mul_u32_u24 v{VFU}, 14, v{VFU}
    v_bfe_u32 v{TMP}, {lane}, 1, 1
    v_add_u32 v{VFU}, v{VFU}, v{TMP}
    s_mul_i32 s{S_T0}, s{S_W}, 28
    s_lshl_b32 s{S_T1}, s{S_ROLE}, 1
    s_add_u32 s{S_T0}, s{S_T0}, s{S_T1}
    v_add_u32 v{VFU}, s{S_T0}, v{VFU}
    v_lshlrev_b32 v{VFU}, 2, v{VFU}
    v_add_u32 v{VFU}, {L.flag(L.FL_U)}, v{VFU}
    ; T flags: 16w + (l&15)
    v_and_b32 v{VFT}, 15, {lane}
    s_lshl_b32 s{S_T0}, s{S_W}, 4
    v_add_u32 v{VFT}, s{S_T0}, v{VFT}
    v_lshlrev_b32 v{VFT}, 2, v{VFT}
    v_add_u32 v{VFT}, {L.flag(L.FL_T)}, v{VFT}
    v_and_b32 v{VFM}, 1, {lane}
    v_add_u32 v{VFM}, s{S_T1}, v{VFM}
    v_lshlrev_b32 v{VFM}, 2, v{VFM}
    v_add_u32 v{VFM}, s{S_W}, v{VFM}
    v_lshlrev_b32 v{VFM}, 2, v{VFM}
    v_add_u32 v{VFM}, {L.flag(L.FL_UM)}, v{VFM}
    s_lshl_b32 s{S_FL}, s{S_LAYER}, 15
    s_lshl_b32 s{S_T0}, s{S_ROLE}, 2
    s_add_u32 s{S_T0}, s{S_T0}, s{S_W}
    s_lshl_b32 s{S_FO}, s{S_T0}, 2
    s_add_u32 s{S_FO}, s{S_FO}, s{S_FL}
    s_add_u32 s{S_FO}, s{S_FO}, {L.flag(L.FL_P)}
    s_mul_i32 s{S_UX}, s{S_LAYER}, {64*L.UX_SZ}
    s_mul_i32 s{S_T0}, s{S_W}, {4*28672}
    s_add_u32 s{S_UX}, s{S_UX}, s{S_T0}
    s_lshl_b32 s{S_T0}, s{S_ROLE}, 12
    s_add_u32 s{S_UX}, s{S_UX}, s{S_T0}
    s_add_u32 s{S_UX}, s{S_UX}, {L.UX}
    s_mul_i32 s{S_UM}, s{S_LAYER}, {64*L.UM_SZ}
    s_lshl_b32 s{S_T0}, s{S_ROLE}, 14
    s_add_u32 s{S_UM}, s{S_UM}, s{S_T0}
    s_lshl_b32 s{S_T0}, s{S_W}, 11
    s_add_u32 s{S_UM}, s{S_UM}, s{S_T0}
    s_add_u32 s{S_UM}, s{S_UM}, {L.UM}
    s_mul_i32 s{S_PX}, s{S_LAYER}, {64*L.PX_SZ}
    s_mul_i32 s{S_T0}, s{S_W}, 10240
    s_add_u32 s{S_PX}, s{S_PX}, s{S_T0}
    s_add_u32 s{S_PX}, s{S_PX}, {L.PX}
    s_mul_i32 s{S_XI}, s{S_LAYER}, {128*L.XN_SZ}
    s_add_u32 s{S_XI}, s{S_XI}, {L.XS}
    s_add_u32 s{S_XO}, s{S_XI}, {64*L.XN_SZ}
    s_lshl_b32 s{S_SO}, s{S_LAYER}, 18
    s_add_u32 s{S_SO}, s{S_SO}, {L.ST + 64*L.ST_SZ}
    s_mov_b32 s{S_STEP}, 0
    ''')
    VFA, VNF = 16, 17
    UXF = lambda b, t, k: 256 + 64 * b + 32 * t + 4 * k
    XR = lambda b: 24 + 4 * b
    UM4 = lambda t, kk2: 112 + 8 * t + 4 * kk2
    a(f'''
    v_add_u32 v{VFA}, 512, v{VFU}
    v_cmp_gt_u32 vcc, 32, {lane}
    v_cndmask_b32 v{VFA}, v{VFA}, v{VFT}, vcc
    v_mov_b32 v{VNF}, 0
    v_add_u32 v32, {4*PW}, v{VRW}
    v_add_u32 v33, {4*PW}, v{VRR}
    ''')
    def ux_list(b):
        out = []
        for hh in range(4):
            for t in range(2):
                for kh in range(2):
                    x = f'buffer_load_dwordx4 {R(UXF(b, t, 2*hh+kh), 4)}, v{VUX}, {SRD}, s{S_UX} offen offset:{2048*t+1024*kh} sc1'
                    if t == 1 and kh == 1: x += f'\ns_add_u32 s{S_UX}, s{S_UX}, {28672 if hh < 3 else L.UX_SZ - 3*28672}'
                    out.append(x)
        out.append(f'buffer_load_dwordx4 v[{XR(b)}:{XR(b)+3}], v{VXO}, {SRD}, s{S_XI} offen sc1\ns_add_u32 s{S_XI}, s{S_XI}, {L.XN_SZ}')
        return out
    a(f'''
    v_and_b32 v{VFM}, 3, {lane}
    v_lshlrev_b32 v{VFM}, 2, v{VFM}
    v_add_u32 v{VFM}, {L.flag(L.FL_U) + 448}, v{VFM}
    v_cndmask_b32 v{VFM}, v{VFM}, v{VFU}, vcc
    ''')
    wait_flags(a, S_FL, VFM, TMP)
    for x in ux_list(0): a(x)
    a('s_mov_b32 s30, 0')
    def p_list():
        out = []
        for k in range(10):
            x = f'buffer_load_dwordx4 v[{PF(k)}:{PF(k)+3}], v{VL16}, {SRD}, s{S_PX} offen offset:{(k % 4) * 1024} sc1'
            if k % 4 == 3: x += f'\ns_add_u32 s{S_PX}, s{S_PX}, 4096'
            if k == 9: x += f'\ns_add_u32 s{S_PX}, s{S_PX}, {L.PX_SZ - 8192}'
            out.append(x)
        return out
    uml = [f'buffer_load_dwordx4 v[{UM4(t,kk2)}:{UM4(t,kk2)+3}], v{VUM}, {SRD}, s{S_UM if t == 0 else 29} offen offset:{512*kk2} sc1' for kk2 in range(2) for t in range(2)]
    a(f's_add_u32 s29, s{S_UM}, 8192')
    def body(mode):
        loop = a.newlabel('PU_LOOP')
        a.flush(); a.label(loop)
        for b in range(2):
            a.vm = []; a.lg = []
            nd = a.newlabel('PU_ND')
            a('s_cmp_eq_u32 s30, 1')
            a.br(f's_cbranch_scc1 {nd}')
            wait_flags(a, S_FL, VFA, TMP, sleep=1)
            for k, x in enumerate(p_list()): a(x, tag=('p', k))
            for x in uml: a(x, tag='m')
            a.label(nd)
            st(); st.cyc(0)
            a(f's_add_u32 s{S_FL}, s{S_FL}, 512')
            if b == 0:
                a(f's_cmp_eq_u32 s{S_STEP}, 62')
                a.opt_begin('s_cbranch_scc0')
                a(f'v_mov_b32 v{VFA}, v{VFT}')
                a.opt_end()
            ux = ux_list(1 - b)
            for k in range(10):
                if k < 8: a.wait_vm(('p', k))
                if k == 0: st.cyc(1)
                if k == 8:
                    st.cyc(2)
                    a.wait_vm('m')
                    check(a, range(112, 128), TMP)
                    a.opt_begin('s_cbranch_vccz')
                    poll(a, uml, range(112, 128), TMP, sleep=1)
                    a.opt_end()
                    a(f's_add_u32 s{S_UM}, s{S_UM}, {L.UM_SZ}')
                    a(f's_add_u32 s29, s29, {L.UM_SZ}')
                    a(f'buffer_load_dword v{VNF}, v{VFA}, {SRD}, s{S_FL} offen sc1', tag='nf')
                for t in range(2):
                    c = f'v[{ACC+16*t}:{ACC+16*t+15}]'
                    u = R(UXF(b, t, k), 4) if k < 8 else f'v[{UM4(t,k-8)}:{UM4(t,k-8)+3}]'
                    a(f'v_mfma_f32_32x32x16_bf16 {c}, {u}, v[{PF(k)}:{PF(k)+3}], {"0" if k == 0 else c}')
                    if t == 0: a(ux.pop(0))
            st(); st.cyc(3)
            def sx(r):
                a(f'buffer_store_dwordx4 v[{r}:{r+3}], v{VXO}, {SRD}, s{S_XO} offen {mode}')
            red_epilogue(a, ACC, (VRW, 32)[b], (VRR, 33)[b], XR(b), T, sx,
                         lambda r: a(f'buffer_store_dwordx2 v[{r}:{r+1}], v{VSO}, {SRD}, s{S_SO} offen {mode}', tag='so'),
                         extra=[(lambda x=x: a(x)) for x in ux], st=st, il=True)
            st()
            a.wait_vm('nf')
            cold, join = a.newlabel('PU_COLD'), a.newlabel('PU_JOIN')
            a(f'v_cmp_eq_u32 vcc, 0, v{VNF}')
            a('s_mov_b32 s30, 0')
            a.br(f's_cbranch_vccnz {cold}')
            a('s_mov_b32 s30, 1')
            pl = p_list() + uml
            for x in pl[:6]: a(x)
            signal(a, S_FO, VZ, VONE, mode, wait='s_waitcnt vmcnt(6)')
            for x in pl[6:]: a(x)
            a.br(f's_branch {join}')
            a.label(cold)
            signal(a, S_FO, VZ, VONE, mode)
            a.label(join)
            st(); st.cyc(7)
            st.flush(8 << 20, TMP, TMP + 1)
            a(f'''
            s_add_u32 s{S_XO}, s{S_XO}, {L.XN_SZ}
            s_add_u32 s{S_SO}, s{S_SO}, {L.ST_SZ}
            s_add_u32 s{S_FO}, s{S_FO}, 512
            s_add_u32 s{S_STEP}, s{S_STEP}, 1
            ''')
        a(f'''
        s_cmp_lt_u32 s{S_STEP}, 64
        s_cbranch_scc1 {loop}
        s_endpgm
        ''')
    mode_split(a, body, TMP)

def role_T(a, stamps=False):
    st = Stamps(a, stamps)
    WR = [256 + 4 * i for i in range(64)] + [120 + 4 * i for i in range(34)]
    W = lambda t, ks: WR[14 * t + ks]
    ACC = lambda tt, t: 0 + 28 * tt + 4 * t
    TB = lambda tt, kk: 56 + 14 * tt + 4 * kk
    FR = 84
    VL16, VFB, VHB, VHB3, VMA, VMA3, VSXW, VSXR, VSMW, VSMR, VPX, VPM, VFL, VZ, VONE, VROW = range(96, 112)
    TMP = 112
    SX = lambda c: 0 + 4 * c
    HF = 12
    SM = lambda tt: 28 + 4 * tt
    MF = 36
    XV = 50
    RS = 144
    LDS_SX = 2 * XBUF
    LDS_SM = LDS_SX + 4 * 32 * RS
    S_XN, S_MX, S_PX, S_FI, S_FO, S_ZERO = 21, 22, 23, 24, 25, 26
    a(f'''
    s_and_b32 s27, s{S_ROLE}, 15
    s_lshr_b32 s{S_STEP}, s{S_ROLE}, 4
    s_lshl_b32 s{S_T0}, s27, 2
    s_add_u32 s{S_T0}, s{S_T0}, s{S_W}
    s_mul_i32 s{S_T2}, s{S_T0}, 100352
    s_add_u32 s{S_T2}, s{S_T2}, {L.WAT}
    v_lshlrev_b32 v{VL16}, 4, {lane}
    ''')
    load_frags(a, WR, VL16, S_T2)
    q, c = TMP, TMP + 1
    a(f'''
    s_lshl_b32 s{S_T1}, s{S_LAYER}, 6
    s_add_u32 s{S_T1}, s{S_T1}, s{S_STEP}
    s_mul_i32 s{S_XN}, s{S_T1}, {L.XN_SZ}
    s_add_u32 s{S_XN}, s{S_XN}, {L.XN}
    s_mul_i32 s{S_MX}, s{S_T1}, {L.MEM_SZ}
    s_add_u32 s{S_MX}, s{S_MX}, {L.MEMX}
    s_mul_i32 s{S_PX}, s{S_T1}, {L.PX_SZ}
    s_add_u32 s{S_PX}, s{S_PX}, {L.PX}
    s_lshl_b32 s{S_FI}, s{S_T1}, 9
    s_lshl_b32 s{S_FO}, s{S_T0}, 2
    s_add_u32 s{S_FO}, s{S_FO}, s{S_FI}
    s_add_u32 s{S_FO}, s{S_FO}, {L.flag(L.FL_T)}
    s_add_u32 s{S_FI}, s{S_FI}, {L.flag(L.FL_XN)}
    s_mov_b32 s{S_ZERO}, 0
    v_mov_b32 v{VZ}, 0
    v_mov_b32 v{VONE}, 1
    v_min_u32 v{VFL}, 55, {lane}
    v_lshlrev_b32 v{VFL}, 3, v{VFL}
    v_lshrrev_b32 v{q}, 4, {lane}
    v_and_b32 v{c}, 15, {lane}
    v_and_b32 v{TMP+6}, 1, {lane}
    v_lshlrev_b32 v{TMP+6}, 4, v{TMP+6}
    v_bfe_u32 v{TMP+7}, {lane}, 1, 3
    v_add_u32 v{TMP+6}, v{TMP+6}, v{TMP+7}
    v_lshlrev_b32 v{VFB}, 9, v{q}
    v_lshl_add_u32 v{VFB}, v{TMP+6}, 4, v{VFB}
    s_mul_i32 s{S_T1}, s{S_W}, 14
    s_lshl_b32 s{S_T2}, s{S_T1}, 9
    v_add_u32 v{VHB}, s{S_T2}, v{VFB}
    v_lshrrev_b32 v{TMP+2}, 5, {lane}
    v_add_u32 v{TMP+2}, s{S_T1}, v{TMP+2}
    v_add_u32 v{TMP+2}, 12, v{TMP+2}
    v_and_b32 v{TMP+3}, 1, v{q}
    v_lshlrev_b32 v{VHB3}, 9, v{TMP+2}
    v_lshl_add_u32 v{VHB3}, v{TMP+6}, 4, v{VHB3}
    v_lshl_add_u32 v{VHB3}, v{TMP+3}, 3, v{VHB3}
    v_and_b32 v{TMP+4}, 7, {lane}
    v_add_u32 v{VMA}, s{S_T1}, v{q}
    v_lshlrev_b32 v{VMA}, 7, v{VMA}
    v_lshl_add_u32 v{VMA}, v{TMP+4}, 4, v{VMA}
    v_lshlrev_b32 v{VMA3}, 7, v{TMP+2}
    v_lshl_add_u32 v{VMA3}, v{TMP+4}, 4, v{VMA3}
    v_lshl_add_u32 v{VMA3}, v{TMP+3}, 3, v{VMA3}
    s_mul_i32 s{S_T2}, s{S_W}, {32*RS}
    s_add_u32 s{S_T2}, s{S_T2}, {LDS_SX}
    v_mul_u32_u24 v{VSXW}, {RS}, v{c}
    v_lshl_add_u32 v{VSXW}, v{q}, 4, v{VSXW}
    v_add_u32 v{VSXW}, s{S_T2}, v{VSXW}
    s_lshl_b32 s{S_T2}, s{S_W}, 10
    s_add_u32 s{S_T2}, s{S_T2}, {LDS_SM}
    v_lshlrev_b32 v{VSMW}, 5, v{c}
    v_lshl_add_u32 v{VSMW}, v{TMP+3}, 4, v{VSMW}
    v_add_u32 v{VSMW}, s{S_T2}, v{VSMW}
    v_lshrrev_b32 v{VROW}, 3, {lane}
    s_lshl_b32 s{S_T2}, s{S_W}, 3
    v_add_u32 v{VROW}, s{S_T2}, v{VROW}
    v_mul_u32_u24 v{VSXR}, {RS}, v{VROW}
    v_lshl_add_u32 v{VSXR}, v{TMP+4}, 4, v{VSXR}
    v_add_u32 v{VSXR}, {LDS_SX}, v{VSXR}
    v_lshlrev_b32 v{VSMR}, 5, v{VROW}
    v_lshl_add_u32 v{VSMR}, v{TMP+4}, 2, v{VSMR}
    v_add_u32 v{VSMR}, {LDS_SM}, v{VSMR}
    v_lshrrev_b32 v{TMP+5}, 1, v{TMP+4}
    v_lshlrev_b32 v{VPM}, 9, v{TMP+5}
    v_lshl_add_u32 v{VPM}, v{VROW}, 4, v{VPM}
    v_and_b32 v{TMP+5}, 1, {lane}
    v_lshl_add_u32 v{VPX}, v{TMP+5}, 3, v{VPM}
    s_lshr_b32 s{S_T1}, s27, 2
    s_mul_i32 s{S_T1}, s{S_T1}, 10240
    s_and_b32 s{S_T2}, s27, 3
    s_lshl_b32 s{S_T3}, s{S_T2}, 11
    s_add_u32 s{S_T3}, s{S_T3}, s{S_T1}
    v_add_u32 v{VPX}, s{S_T3}, v{VPX}
    s_lshl_b32 s{S_T3}, s{S_T2}, 2
    s_add_u32 s{S_T3}, s{S_T3}, s{S_T1}
    s_add_u32 s{S_T3}, s{S_T3}, 8192
    v_add_u32 v{VPM}, s{S_T3}, v{VPM}
    v_lshlrev_b32 v{TMP+5}, 2, v{TMP+4}
    v_sub_u32 v{VROW}, v{VROW}, v{TMP+5}
    v_cmp_le_i32 s[40:41], 0, v{VROW}
    v_cmp_le_i32 s[42:43], 1, v{VROW}
    v_cmp_le_i32 s[44:45], 2, v{VROW}
    v_cmp_le_i32 s[46:47], 3, v{VROW}
    v_mov_b32 v{VROW}, 0xf149f2ca
    s_mov_b32 s48, 0x55555555
    s_mov_b32 s49, 0x55555555
    s_mov_b32 s52, {XBUF}
    ''')
    a(f'''
    s_lshl_b32 s36, s{S_W}, 10
    s_add_u32 s{S_XN}, s{S_XN}, s36
    s_mov_b64 vcc, 0
    ''')
    loop, nd = a.newlabel('T_LOOP'), a.newlabel('T_ND')
    NF = TMP + 6
    a.flush(); a.label(loop); a.vm = []; a.lg = []
    a(f's_add_u32 s37, s{S_ZERO}, s36')
    a.br(f's_cbranch_vccnz {nd}')
    wait_flags(a, S_FI, VFL, TMP, width=2, sleep=1)
    for j, d in enumerate(dma_list(S_XN, 37, VL16)): a(d, tag=('d', j))
    a(f's_add_u32 s{S_XN}, s{S_XN}, {L.XN_SZ}')
    a.label(nd)
    st()
    a(f'''
    s_xor_b32 s{S_ZERO}, s{S_ZERO}, {XBUF}
    s_add_u32 s37, s{S_ZERO}, s36
    s_add_u32 s{S_FI}, s{S_FI}, 1024
    ''')
    seq = [(tt, ks) for tt in range(2) for ks in range(14)]
    rd = lambda i: f'ds_read_b128 v[{FR+4*(i%3)}:{FR+4*(i%3)+3}], v{VFB} offset:{2048*seq[i][1]+128*seq[i][0]}'
    def cvt(tt):
        o = []
        for kk in range(3):
            for p in range(2):
                c = ACC(tt, 2 * kk + p)
                o += [f'v_cvt_pk_bf16_f32 v{TB(tt,kk)+2*p}, v{c}, v{c+1}', f'v_cvt_pk_bf16_f32 v{TB(tt,kk)+2*p+1}, v{c+2}, v{c+3}']
        c = ACC(tt, 6)
        o += [f'v_cvt_pk_bf16_f32 v{TB(tt,3)}, v{c}, v{c+1}', f'v_cvt_pk_bf16_f32 v{TB(tt,3)+1}, v{c+2}, v{c+3}']
        return o
    def mm(i):
        tt, ks = seq[i]; out = []
        for t in range(7):
            c = f'v[{ACC(tt,t)}:{ACC(tt,t)+3}]'
            out.append(f'v_mfma_f32_16x16x32_bf16 {c}, {R(W(t,ks),4)}, v[{FR+4*(i%3)}:{FR+4*(i%3)+3}], {"0" if ks == 0 else c}')
        return out
    def optdma(d):
        def f():
            a.opt_begin('s_cbranch_vccz'); a(d); a.opt_end()
        return f
    def chk():
        a.wait_vm('nf')
        a(f'v_min_u32 v{NF}, v{NF}, v{NF+1}')
        a(f'v_cmp_eq_u32 vcc, 0, v{NF}')
        a('s_cmp_eq_u64 vcc, 0')
        a('s_cselect_b64 vcc, -1, 0')
    dl = dma_list(S_XN, 37, VL16); dl[6] += f'\ns_add_u32 s{S_XN}, s{S_XN}, {L.XN_SZ}'
    sd = {8: [lambda: a(f'buffer_load_dwordx2 v[{NF}:{NF+1}], v{VFL}, {SRD}, s{S_FI} offen sc1', tag='nf')], 15: cvt(0), 20: [chk]}
    for j in range(7): sd[21 + j] = [optdma(dl[j])]
    st.cyc(0); sd[7] = [lambda: st.cyc(1)]; sd[14] = [lambda: st.cyc(2)]
    def g6():
        a.wait_vm(('d', 6)); a('s_barrier')
        a.opt_begin('s_cbranch_vccz')
        signal(a, 53, VZ, VONE, wait='')
        a.opt_end()
    left = stream(a, 28, rd, mm, {0: gate(a, ('d', 0)), 2: gate(a, ('d', 1)), 4: gate(a, ('d', 3)), 8: g6}, sd, depth=2, per=2)
    st.cyc(3)
    assert not left
    a('s_mov_b64 s[50:51], vcc')
    def hrd(kk):
        h = HF + 8 * (kk % 2)
        if kk < 3: return [f'ds_read_b128 v[{h+4*jt}:{h+4*jt+3}], v{VHB} offset:{2048*kk+128*jt}' for jt in range(2)]
        return [f'ds_read_b64 v[{h+4*jt}:{h+4*jt+1}], v{VHB3} offset:{128*jt}' for jt in range(2)]
    mloads = [f'buffer_load_dwordx4 v[{MF+4*kk}:{MF+4*kk+3}], v{VMA}, {SRD}, s{S_MX} offen offset:{512*kk} sc1' for kk in range(3)] + \
             [f'buffer_load_dwordx2 v[{MF+12}:{MF+13}], v{VMA3}, {SRD}, s{S_MX} offen sc1']
    for s_ in hrd(0) + hrd(1): a(s_)
    for s_ in cvt(1): a(s_)
    for s_ in mloads: a(s_)
    for kk in range(4):
        a(f's_waitcnt lgkmcnt({2 if kk < 3 else 0})')
        h = HF + 8 * (kk % 2)
        for ci, (jt, tt) in enumerate(((0, 0), (0, 1), (1, 1))):
            c = f'v[{SX(ci)}:{SX(ci)+3}]'; cin = '0' if kk == 0 else c
            if kk < 3: a(f'v_mfma_f32_16x16x32_bf16 {c}, v[{h+4*jt}:{h+4*jt+3}], v[{TB(tt,kk)}:{TB(tt,kk)+3}], {cin}')
            else: a(f'v_mfma_f32_16x16x16_bf16 {c}, v[{h+4*jt}:{h+4*jt+1}], v[{TB(tt,kk)}:{TB(tt,kk)+1}], {cin}')
        if kk < 2:
            for s_ in hrd(kk + 2): a(s_)
    for ci, (jt, tt) in enumerate(((0, 0), (0, 1), (1, 1))):
        a(f'ds_write_b128 v{VSXW}, v[{SX(ci)}:{SX(ci)+3}] offset:{16*RS*tt+64*jt}')
    a('s_waitcnt lgkmcnt(0)'); a('s_barrier')
    for w in range(4): a(f'ds_read_b128 v[{HF+4*w}:{HF+4*w+3}], v{VSXR} offset:{32*RS*w}')
    a('s_waitcnt lgkmcnt(2)')
    for i in (0, 2): a(f'v_pk_add_f32 v[{XV+i}:{XV+i+1}], v[{HF+i}:{HF+i+1}], v[{HF+4+i}:{HF+5+i}]')
    a('s_waitcnt lgkmcnt(0)')
    for i in (0, 2): a(f'v_pk_add_f32 v[{HF+8+i}:{HF+9+i}], v[{HF+8+i}:{HF+9+i}], v[{HF+12+i}:{HF+13+i}]')
    for i in (0, 2): a(f'v_pk_add_f32 v[{XV+i}:{XV+i+1}], v[{XV+i}:{XV+i+1}], v[{HF+8+i}:{HF+9+i}]')
    for r in range(4): a(f'v_cndmask_b32 v{XV+r}, v{VROW}, v{XV+r}, s[{40+2*r}:{41+2*r}]')
    a(f'v_max3_f32 v{XV+4}, v{XV}, v{XV+1}, v{XV+2}')
    a(f'v_max_f32 v{XV+4}, v{XV+4}, v{XV+3}')
    st(); st.cyc(4)
    a('s_waitcnt vmcnt(0)')
    check(a, range(MF, MF + 14), TMP)
    a.opt_begin('s_cbranch_vccz')
    poll(a, mloads, range(MF, MF + 14), TMP, sleep=1)
    a.opt_end()
    st()
    for kk in range(4):
        for tt in range(2):
            c = f'v[{SM(tt)}:{SM(tt)+3}]'; cin = '0' if kk == 0 else c
            if kk < 3: a(f'v_mfma_f32_16x16x32_bf16 {c}, v[{MF+4*kk}:{MF+4*kk+3}], v[{TB(tt,kk)}:{TB(tt,kk)+3}], {cin}')
            else: a(f'v_mfma_f32_16x16x16_bf16 {c}, v[{MF+12}:{MF+13}], v[{TB(tt,kk)}:{TB(tt,kk)+1}], {cin}')
    for tt in range(2): a(f'ds_write_b128 v{VSMW}, v[{SM(tt)}:{SM(tt)+3}] offset:{512*tt}')
    M, X5 = TMP, TMP + 2
    a(f'''
    s_waitcnt lgkmcnt(0)
    s_barrier
    ds_read2st64_b32 v[{X5}:{X5+1}], v{VSMR} offset0:0 offset1:4
    ds_read2st64_b32 v[{X5+2}:{X5+3}], v{VSMR} offset0:8 offset1:12
    s_waitcnt lgkmcnt(0)
    v_pk_add_f32 v[{X5}:{X5+1}], v[{X5}:{X5+1}], v[{X5+2}:{X5+3}]
    v_add_f32 v{X5}, v{X5}, v{X5+1}
    v_max_f32 v{M}, v{XV+4}, v{X5}
    ''')
    D3 = ('quad_perm:[1,0,3,2]', 'quad_perm:[2,3,0,1]', 'row_half_mirror')
    for d in D3: a(f'v_max_f32_dpp v{M}, v{M}, v{M} {d} row_mask:0xf bank_mask:0xf')
    a(f'''
    v_sub_f32 v{X5}, v{X5}, v{M}
    v_pk_add_f32 v[{XV}:{XV+1}], v[{XV}:{XV+1}], v[{M}:{M+1}] op_sel_hi:[1,0] neg_lo:[0,1] neg_hi:[0,1]
    v_pk_add_f32 v[{XV+2}:{XV+3}], v[{XV+2}:{XV+3}], v[{M}:{M+1}] op_sel_hi:[1,0] neg_lo:[0,1] neg_hi:[0,1]
    v_exp_f32 v{X5}, v{X5}
    v_exp_f32 v{XV}, v{XV}
    v_exp_f32 v{XV+1}, v{XV+1}
    v_exp_f32 v{XV+2}, v{XV+2}
    v_exp_f32 v{XV+3}, v{XV+3}
    v_add_f32 v{M}, v{X5}, v{XV}
    v_add_f32 v{M}, v{M}, v{XV+1}
    v_add_f32 v{M}, v{M}, v{XV+2}
    v_add_f32 v{M}, v{M}, v{XV+3}
    ''')
    for d in D3: a(f'v_add_f32_dpp v{M}, v{M}, v{M} {d} row_mask:0xf bank_mask:0xf')
    a(f'''
    v_rcp_f32 v{M}, v{M}
    v_mul_f32 v{X5}, v{X5}, v{M}
    v_pk_mul_f32 v[{XV}:{XV+1}], v[{XV}:{XV+1}], v[{M}:{M+1}] op_sel_hi:[1,0]
    v_pk_mul_f32 v[{XV+2}:{XV+3}], v[{XV+2}:{XV+3}], v[{M}:{M+1}] op_sel_hi:[1,0]
    v_mov_b32_dpp v{X5+1}, v{X5} quad_perm:[1,0,3,2] row_mask:0xf bank_mask:0xf
    v_cvt_pk_bf16_f32 v{XV}, v{XV}, v{XV+1}
    v_cvt_pk_bf16_f32 v{XV+1}, v{XV+2}, v{XV+3}
    v_cvt_pk_bf16_f32 v{X5}, v{X5}, v{X5+1}
    buffer_store_dwordx2 v[{XV}:{XV+1}], v{VPX}, {SRD}, s{S_PX} offen sc1
    s_mov_b64 exec, s[48:49]
    buffer_store_dword v{X5}, v{VPM}, {SRD}, s{S_PX} offen sc1
    s_mov_b64 exec, -1
    ''')
    st()
    a(f's_mov_b32 s53, s{S_FO}')
    a(f's_cmp_ge_u32 s{S_STEP}, 62')
    a('s_cselect_b64 s[50:51], 0, s[50:51]')
    a('s_cmp_eq_u64 s[50:51], 0')
    a.opt_begin('s_cbranch_scc0')
    signal(a, S_FO, VZ, VONE)
    a.opt_end()
    st()
    st.flush(6 << 20, TMP, TMP + 1)
    a(f'''
    s_mov_b64 vcc, s[50:51]
    v_xor_b32 v{VFB}, {XBUF}, v{VFB}
    v_add_u32 v{VHB}, s52, v{VHB}
    v_add_u32 v{VHB3}, s52, v{VHB3}
    s_sub_u32 s52, 0, s52
    s_add_u32 s{S_MX}, s{S_MX}, {2*L.MEM_SZ}
    s_add_u32 s{S_PX}, s{S_PX}, {2*L.PX_SZ}
    s_add_u32 s{S_FO}, s{S_FO}, 1024
    s_add_u32 s{S_STEP}, s{S_STEP}, 2
    s_cmp_lt_u32 s{S_STEP}, 64
    s_cbranch_scc1 {loop}
    s_endpgm
    ''')

def helper_touch(a):
    loop, go, end = a.newlabel('HT'), a.newlabel('HT_GO'), a.newlabel('HT_END')
    a(f'''
    s_cmp_lg_u32 s{S_W}, 0
    s_cbranch_scc1 {end}
    v_lshlrev_b32 v2, 7, {lane}
    v_mov_b32 v3, 0
    s_mul_i32 s21, s{S_LAYER}, {64*L.HB_SZ}
    s_add_u32 s21, s21, {L.HB}
    s_mul_i32 s22, s{S_LAYER}, {128*L.XN_SZ}
    s_add_u32 s22, s22, {L.XS + 64*L.XN_SZ}
    s_lshl_b32 s23, s{S_LAYER}, 18
    s_add_u32 s23, s23, {L.ST + 64*L.ST_SZ}
    s_lshl_b32 s24, s{S_LAYER}, 15
    s_add_u32 s24, s24, {L.flag(L.FL_T)}
    s_mov_b32 s{S_STEP}, 0
    ''')
    def body(mode):
        if mode: a('s_endpgm'); return
        a.label(loop)
        a(f's_cmp_lt_u32 s{S_STEP}, 1')
        a(f's_cbranch_scc1 {go}')
        wait_flags(a, 24, 3, 4, sleep=4)
        a('s_add_u32 s24, s24, 512')
        a.label(go)
        a(f'buffer_load_dword v5, v2, {SRD}, s23 offen sc1')
        a(f's_add_u32 s23, s23, {L.ST_SZ}')
        for i in range(4):
            a(f'buffer_load_dword v5, v2, {SRD}, s22 offen sc1')
            a(f's_add_u32 s22, s22, {8192 if i < 3 else 4096}')
        for i in range(14):
            a(f'buffer_load_dword v5, v2, {SRD}, s21 offen sc1')
            a('s_add_u32 s21, s21, 8192')
        a(f'''
        s_add_u32 s{S_STEP}, s{S_STEP}, 1
        s_cmp_lt_u32 s{S_STEP}, 64
        s_cbranch_scc1 {loop}
        s_endpgm
        ''')
    mode_split(a, body, 4)
    a.label(end)
    a('s_endpgm')
```

```python
from common import *

def poll2(a, mk, bases, nreg, tmp, consume, gap=2):
    lab = a.newlabel('PP'); n = len(mk(bases[0]))
    a('s_waitcnt vmcnt(0)')
    for l in mk(bases[0]): a(l)
    a(f's_sleep {gap}')
    a.label(lab)
    for l in mk(bases[1]): a(l)
    a(f's_waitcnt vmcnt({n})')
    check(a, range(bases[0], bases[0] + nreg), tmp)
    a.br(f's_cbranch_vccz {lab}_d0')
    for l in mk(bases[0]): a(l)
    a(f's_sub_u32 s{S_ABORT}, s{S_ABORT}, 1')
    a(f's_cbranch_scc1 {lab}_abort')
    a(f's_waitcnt vmcnt({n})')
    check(a, range(bases[1], bases[1] + nreg), tmp)
    a.br(f's_cbranch_vccnz {lab}')
    a.label(lab + '_d1')
    consume(bases[1])
    a.br(f's_branch {lab}_j')
    h = list(a.hist)
    a.label(lab + '_d0'); a.hist = []
    consume(bases[0])
    a.label(lab + '_j')
    a.deferred.append(f'{lab}_abort:\n    s_mov_b32 s{S_ABORT}, 0\n    s_waitcnt vmcnt(0)\n    s_branch {lab}_d1\n')


def prog_gate(a, vreg, vz, s_prog, s_need):
    lab = a.newlabel('PG')
    a.label(lab)
    a(f'v_readfirstlane_b32 s{S_T0}, v{vreg}')
    a(f's_cmp_gt_u32 s{S_T0}, s{s_need}')
    a(f's_cbranch_scc0 {lab}_slow')
    a.label(lab + '_ok')
    a.deferred.append(f"""{lab}_slow:
    buffer_load_dword v{vreg}, v{vz}, {SRD}, s{s_prog} offen sc1
    s_sub_u32 s{S_ABORT}, s{S_ABORT}, 1
    s_cbranch_scc1 {lab}_ab
    s_waitcnt vmcnt(0)
    s_branch {lab}
{lab}_ab:
    s_mov_b32 s{S_ABORT}, 0
    s_waitcnt vmcnt(0)
    s_branch {lab}_ok
""")

def load_weights(a, groups, voff, soff):
    for g, r in enumerate(groups):
        for p in range(2):
            o = (g * 2048 + p * 1024) % 4096
            a(f'buffer_load_dwordx4 {R(r + 4 * p, 4)}, v{voff}, {SRD}, s{soff} offen offset:{o}')
        if g % 2 == 1: a(f's_add_u32 s{soff}, s{soff}, 4096')

def gather_mem_setup(a, v_g0):
    a(f'''
    s_lshl_b32 s{S_T0}, s{S_W}, 10
    s_cmp_eq_u32 s{S_W}, 3
    s_cselect_b32 s33, 3, 4
    s_lshl_b32 s33, s33, 10
    v_lshlrev_b32 v{v_g0}, 4, v{V_LANE}
    v_add_u32 v{v_g0}, s{S_T0}, v{v_g0}
    ''')

def gather_mem(a, st, G, VG0, S_MEM, TMP, LDS_MEM, VPROG):
    a(f's_add_u32 s34, s{S_MEM}, s33')
    st()
    poll(a, [f'buffer_load_dword v{VPROG}, off, {SRD}, s35 sc1',
             f'buffer_load_dwordx4 v[{G}:{G+3}], v{VG0}, {SRD}, s{S_MEM} offen sc1',
             f'buffer_load_dwordx4 v[{G+4}:{G+7}], v{VG0}, {SRD}, s34 offen sc1'], range(G, G + 8), TMP)
    st()
    a(f'''
    ds_write_b128 v{VG0}, v[{G}:{G+3}] offset:{LDS_MEM}
    ds_write_b128 v{VG0}, v[{G+4}:{G+7}] offset:{LDS_MEM+4096}
    s_waitcnt lgkmcnt(0)
    s_barrier
    ''')

def gather_mem2(a, st, G0, G1, VG0, S_MEM, TMP, LDS_MEM, extra=()):
    a(f's_add_u32 s34, s{S_MEM}, s33')
    a('s_waitcnt vmcnt(0)')
    st()
    mk = lambda G: [f'buffer_load_dwordx4 v[{G}:{G+3}], v{VG0}, {SRD}, s{S_MEM} offen sc1',
                    f'buffer_load_dwordx4 v[{G+4}:{G+7}], v{VG0}, {SRD}, s34 offen sc1']
    def cons(G):
        a(f'ds_write_b128 v{VG0}, v[{G}:{G+3}] offset:{LDS_MEM}')
        a(f'ds_write_b128 v{VG0}, v[{G+4}:{G+7}] offset:{LDS_MEM+4096}')
    poll2(a, mk, [G0, G1], 8, TMP, cons)
    st()
    a('s_waitcnt lgkmcnt(0)')
    a('s_barrier')

def gtile(n): return 4 * n if n < 4 else 16 + 3 * (n - 4) - 1

def chain_A(a, stamps=False):
    lane = f'v{V_LANE}'
    LDS_MEM, LDS_TI, LDS_PG = 0, 8192, 16384
    S_MEM, S_PB, S_XN, S_TU, S_TX = 21, 22, 23, 24, 25
    MEMF, ACC, G0, G1 = 0, 28, 40, 48
    VG0, VIDX, VMF, VTW, VPGA, TMP, VPGV = 56, 57, 58, 59, 60, 61, 62
    w0 = a.newlabel('CA_W0')
    def common_setup(WG, ntile):
        a(f'''
        s_mul_i32 s{S_T2}, s{S_ROLE}, 401408
        s_mul_i32 s{S_T0}, s{S_W}, 14336
        s_add_u32 s26, s{S_T2}, s{S_T0}
        s_add_u32 s26, s26, {L.WAC}
        v_lshlrev_b32 v{TMP}, 4, {lane}
        ''')
        for n in range(ntile):
            a(f's_add_u32 s{S_T2}, s26, {gtile(n) * 14336}')
            load_weights(a, WG[7 * n: 7 * n + 7], TMP, S_T2)
        gather_mem_setup(a, VG0)
        q, c, t = 2, 3, 4
        a(f'''
        v_lshrrev_b32 v{q}, 4, {lane}
        v_and_b32 v{c}, 15, {lane}
        v_and_b32 v{VIDX}, 2, {lane}
        v_cmp_eq_u32 vcc, 2, v{VIDX}
        v_mov_b32 v{VIDX}, 0x44444444
        v_mov_b32 v{VMF}, 0xeeeeeeee
        v_cndmask_b32 v{VIDX}, v{VIDX}, v{VMF}, vcc
        v_and_b32 v{VMF}, 2, {lane}
        v_lshlrev_b32 v{VMF}, 6, v{VMF}
        v_lshl_add_u32 v{VMF}, v{q}, 8, v{VMF}
        v_bfe_u32 v{t}, {lane}, 2, 2
        v_lshl_add_u32 v{VMF}, v{t}, 5, v{VMF}
        v_lshlrev_b32 v{VTW}, 6, v{t}
        v_and_b32 v{t}, 1, {lane}
        v_lshl_add_u32 v{VMF}, v{t}, 4, v{VMF}
        v_lshl_add_u32 v{VTW}, v{t}, 5, v{VTW}
        v_lshl_add_u32 v{VTW}, v{q}, 3, v{VTW}
        v_bfe_u32 v{t}, {lane}, 1, 1
        v_lshl_add_u32 v{VTW}, v{t}, 2, v{VTW}
        s_lshl_b32 s{S_T0}, s{S_W}, 8
        s_add_u32 s{S_T0}, s{S_T0}, {LDS_TI}
        v_add_u32 v{VTW}, s{S_T0}, v{VTW}
        s_lshl_b32 s{S_T0}, s{S_W}, 8
        s_add_u32 s{S_T0}, s{S_T0}, {LDS_PG}
        v_lshl_add_u32 v{VPGA}, {lane}, 2, s{S_T0}
        v_mov_b32 v{VPGV}, 0
        ds_write_b32 v{VPGA}, v{VPGV}
        s_mul_i32 s30, s{S_LAYER}, {4*L.MEM_SZ}
        s_add_u32 s30, s30, {L.MEML}
        s_mov_b32 s{S_STEP}, 0
        ''')
    def acc(n): return ACC + 4 * (n % 3)
    def zero(r): return [f'v_mov_b64 v[{r+i}:{r+i+1}], 0' for i in (0, 2)]
    def post(n, pk=False):
        c = acc(n)
        if pk: return [f'v_pk_add_f32 v[{c}:{c+1}], v[{c}:{c+1}], v[{c+2}:{c+3}]', f'v_cvt_pk_bf16_f32 v{c}, v{c}, v{c+1}',
                f'ds_write_b32 v{VTW}, v{c} offset:{256*gtile(n)}']
        return [f'v_add_f32 v{c}, v{c}, v{c+2}', f'v_add_f32 v{c+1}, v{c+1}, v{c+3}', f'v_cvt_pk_bf16_f32 v{c}, v{c}, v{c+1}',
                f'ds_write_b32 v{VTW}, v{c} offset:{256*gtile(n)}']
    BAR = 's_waitcnt lgkmcnt(0)\ns_barrier'
    def step_head(st, extra_loads=()):
        a(f'''
        s_and_b32 s{S_T0}, s{S_STEP}, 3
        s_mul_i32 s{S_T1}, s{S_T0}, {L.MEM_SZ}
        s_add_u32 s{S_MEM}, s{S_T1}, s30
        ''')
        for n in range(3):
            for s_ in zero(acc(n)): a(s_)
        gather_mem2(a, st, G0, G1, VG0, S_MEM, TMP, LDS_MEM, extra_loads)
        for ks in range(7): a(f'ds_read_b128 v[{MEMF+4*ks}:{MEMF+4*ks+3}], v{VMF} offset:{LDS_MEM+1024*ks}')
        for x in extra_loads: a(x)
    def tsm(WG, n, ks):
        c = acc(n)
        return f'v_smfmac_f32_16x16x64_bf16 v[{c}:{c+3}], v[{MEMF+4*ks}:{MEMF+4*ks+3}], {R(WG[7*n+ks],8)}, v{VIDX}'
    def t_phase(WG, ntile, extra=None):
        for ks in range(7):
            a(f's_waitcnt lgkmcnt({6-ks})' if not stamps or ks == 0 else 's_waitcnt lgkmcnt(0)')
            a(tsm(WG, 0, ks)); a(tsm(WG, 1, ks))
        PG = [f'v_add_u32 v{VPGV}, 1, v{VPGV}', f'ds_write_b32 v{VPGA}, v{VPGV}'] if ntile == 8 else []
        NOP = ['s_nop 0']
        for n in range(2, ntile):
            if n == 2:
                p0, p1, z = post(0), post(1), zero(acc(3))
                side = {0: ['s_nop 1'] + PG[:1], 1: ['s_nop 1'] + p0[:1], 2: p0[1:2], 3: p0[2:], 4: z[:1] + p1[:1], 5: z[1:] + p1[1:2], 6: p1[2:]}
            else:
                z = zero(acc(n + 1)) if n + 1 < ntile else NOP * 2
                sig = n in (3, 4, 6, 7); p = post(n - 1)
                side = {0: NOP + z[:1], 1: NOP + z[1:], 2: NOP + p[:1], 3: p[1:2], 4: p[2:] + (PG[1:] if sig else []), 5: PG[:1] if sig else []}
            for ks in range(7):
                a(tsm(WG, n, ks))
                for s_ in side.get(ks, []): a(s_)
                if extra: extra(n, ks)
    a(f's_cmp_eq_u32 s{S_W}, 0')
    a(f's_cbranch_scc1 {w0}')
    WG = [256 + 8 * g for g in range(32)] + [64 + 8 * g for g in range(24)]
    common_setup(WG, 8)
    st = Stamps(a, stamps)
    loop = a.newlabel('CA_LOOP')
    a.flush(); a.label(loop)
    step_head(st)
    t_phase(WG, 8)
    for s_ in post(7, True): a(s_)
    a(f'ds_write_b32 v{VPGA}, v{VPGV}')
    st()
    st.flush(0, G0, G0 + 1)
    a(f'''
    s_add_u32 s{S_STEP}, s{S_STEP}, 1
    s_cmp_lt_u32 s{S_STEP}, 63
    s_cbranch_scc1 {loop}
    s_endpgm
    ''')
    a.label(w0)
    WG0 = [256 + 8 * g for g in range(28)]
    XF = lambda g, jt: 144 + 16 * g + 8 * jt
    TB = lambda g: 64 + 4 * (g % 4)
    MH = lambda g: 80 + 8 * (g % 4)
    SA = lambda jt: 112 + 4 * jt
    VTR, VMH, VXA, VP0, VPM, VPROG, VZ, VTX = 124, 125, 126, 127, 128, 129, 130, 131
    M, T2, PGR = 132, 134, 136
    common_setup(WG0, 4)
    q, c, t = 2, 3, 4
    a(f'''
    v_min_u32 v{VPGA}, 2, {lane}
    v_mul_u32_u24 v{VPGA}, 260, v{VPGA}
    v_add_u32 v{VPGA}, {LDS_PG + 256}, v{VPGA}
    v_lshlrev_b32 v{VTR}, 8, v{q}
    v_lshl_add_u32 v{VTR}, v{c}, 3, v{VTR}
    v_add_u32 v{VTR}, {LDS_TI}, v{VTR}
    v_and_b32 v{t}, 7, {lane}
    v_lshlrev_b32 v{VMH}, 7, v{q}
    v_lshl_add_u32 v{VMH}, v{t}, 4, v{VMH}
    v_lshlrev_b32 v{VXA}, 9, v{q}
    v_lshl_add_u32 v{VXA}, v{c}, 4, v{VXA}
    s_lshr_b32 s{S_T0}, s{S_ROLE}, 2
    s_mul_i32 s{S_T0}, s{S_T0}, 2560
    s_bfe_u32 s{S_T1}, s{S_ROLE}, 0x10001
    s_and_b32 s{S_T2}, s{S_ROLE}, 1
    v_bfe_u32 v{VP0}, {lane}, 3, 1
    v_lshlrev_b32 v{VP0}, 8, v{VP0}
    v_lshl_add_u32 v{VP0}, v{q}, 6, v{VP0}
    v_and_b32 v{t}, 1, {lane}
    v_lshl_add_u32 v{VP0}, v{t}, 5, v{VP0}
    v_bfe_u32 v{t}, {lane}, 1, 2
    v_lshl_add_u32 v{VP0}, v{t}, 2, v{VP0}
    s_lshl_b32 s{S_T3}, s{S_T1}, 10
    s_add_u32 s{S_T3}, s{S_T3}, s{S_T0}
    s_lshl_b32 s27, s{S_T2}, 9
    s_add_u32 s{S_T3}, s{S_T3}, s27
    v_add_u32 v{VP0}, s{S_T3}, v{VP0}
    v_lshlrev_b32 v{VPM}, 7, v{t}
    v_lshl_add_u32 v{VPM}, v{q}, 5, v{VPM}
    v_bfe_u32 v{t}, {lane}, 3, 1
    v_lshl_add_u32 v{VPM}, v{t}, 3, v{VPM}
    s_lshl_b32 s{S_T3}, s{S_T2}, 4
    s_lshl_b32 s27, s{S_T1}, 2
    s_add_u32 s{S_T3}, s{S_T3}, s27
    s_add_u32 s{S_T3}, s{S_T3}, s{S_T0}
    s_add_u32 s{S_T3}, s{S_T3}, 2048
    v_add_u32 v{VPM}, s{S_T3}, v{VPM}
    s_mul_i32 s31, s{S_LAYER}, {4*L.PB_SZ}
    s_add_u32 s31, s31, {L.PB}
    s_mul_i32 s{S_XN}, s{S_LAYER}, {64*L.XN_SZ}
    s_add_u32 s{S_XN}, s{S_XN}, {L.XN}
    v_min_u32 v{VTX}, 13, {lane}
    v_lshlrev_b32 v{VTX}, 7, v{VTX}
    s_mul_i32 s{S_TX}, s{S_ROLE}, 1792
    s_add_u32 s{S_TX}, s{S_TX}, s{S_XN}
    s_add_u32 s{S_TX}, s{S_TX}, {2*L.XN_SZ}
    s_mov_b32 s28, 0xff00ff00
    s_mov_b32 s29, 0xff00ff00
    s_mov_b32 s36, 0x55555555
    s_mov_b32 s37, 0x55555555
    s_lshl_b32 s35, s{S_LAYER}, 15
    s_add_u32 s35, s35, {L.flag(L.FL_PROG) + 128}
    v_mov_b32 v{VPROG}, 0
    v_mov_b32 v{VZ}, 0
    ''')
    def xld(g):
        out = []
        for jt in range(2):
            for p in range(2):
                r = XF(g, jt) + 4 * p
                out.append(f'buffer_load_dwordx4 v[{r}:{r+3}], v{VXA}, {SRD}, s{S_XN} offen offset:{2048*p+256*jt} sc1')
        out[-1] += f'\ns_add_u32 s{S_XN}, s{S_XN}, 4096'
        return out
    prog_gate(a, VPROG, VZ, 35, S_STEP)
    for g in range(7):
        for s_ in xld(g): a(s_)
    def body(st_flag):
        st = Stamps(a, stamps)
        loop = a.newlabel('CA0_LOOP')
        a.flush(); a.label(loop); a.lg = []; a.vm = []
        a(f'''
        s_and_b32 s{S_T0}, s{S_STEP}, 3
        s_mul_i32 s{S_T1}, s{S_T0}, {L.PB_SZ}
        s_add_u32 s{S_PB}, s{S_T1}, s31
        s_add_u32 s{S_T0}, s{S_STEP}, 3
        s_and_b32 s{S_T0}, s{S_T0}, 3
        s_mul_i32 s{S_T1}, s{S_T0}, {L.PB_SZ}
        s_add_u32 s32, s{S_T1}, s31
        ''')
        for jt in range(3):
            for s_ in zero(SA(jt)): a(s_)
        step_head(st, [f'buffer_load_dword v{VPROG}, off, {SRD}, s35 sc1'])
        a(f's_add_u32 s{S_STEP}, s{S_STEP}, 1')
        def mh(g): return [f'ds_read_b128 v[{MH(g)+4*p}:{MH(g)+4*p+3}], v{VMH} offset:{LDS_MEM+1024*g+512*p}' for p in range(2)]
        def tr(g): return [f'ds_read_b64_tr_b16 v[{TB(g)+2*p}:{TB(g)+2*p+1}], v{VTR} offset:{1024*g+128*p}' for p in range(2)]
        def ssm(g):
            return [f'v_smfmac_f32_16x16x64_bf16 v[{SA(jt)}:{SA(jt)+3}], v[{TB(g)}:{TB(g)+3}], v[{(MH(g) if jt == 2 else XF(g, jt))}:{(MH(g) if jt == 2 else XF(g, jt))+7}], v{VIDX}' for jt in range(3)]
        pre = mh(0) + mh(1) + mh(2) + mh(3)
        def issue(gs, first=True):
            if first: a(f'v_add_u32 v{VPGV}, 1, v{VPGV}')
            a(f'ds_read_b32 v{PGR}, v{VPGA}', tag='pg')
            for g in gs:
                for s_ in tr(g): a(s_, tag=('tr', g))
        def chk(gs):
            lab = a.newlabel('CA_PW')
            a.wait_lg('pg')
            a(f'v_cmp_lt_u32 vcc, v{PGR}, v{VPGV}')
            a.br(f's_cbranch_vccnz {lab}')
            a.label(lab + '_ok')
            d = f'{lab}:\n    ds_read_b32 v{PGR}, v{VPGA}\n' + ''.join(f'    {x}\n' for g in gs for x in tr(g))
            d += f'    s_waitcnt lgkmcnt({2*len(gs)})\n    v_cmp_lt_u32 vcc, v{PGR}, v{VPGV}\n    s_cbranch_vccnz {lab}\n    s_branch {lab}_ok\n'
            a.deferred.append(d)
        def extra(n, ks):
            if (n, ks) in ((2, 0), (2, 1), (3, 0), (3, 1)):
                for _ in range(2): a(pre.pop(0))
            if (n, ks) == (3, 2):
                a(f's_waitcnt vmcnt(0)\nv_readfirstlane_b32 s{S_T0}, v{VPROG}')
            if (n, ks) == (3, 5):
                a(f's_cmp_gt_u32 s{S_T0}, s{S_STEP}\ns_cselect_b32 s38, 1, 0')
            if (n, ks) == (3, 6): issue((0, 1, 2))
        t_phase(WG0, 4, extra)
        def optx(g):
            a('s_cmp_eq_u32 s38, 1')
            a.opt_begin('s_cbranch_scc0')
            for s_ in xld(g): a(s_)
            a.opt_end()
        def run(g, side=()):
            a.wait_lg(('tr', g))
            side = list(side)
            for s_ in ssm(g):
                a(s_)
                if side: a(side.pop(0))
        for s_ in post(3, True)[:2]: a(s_)
        chk((0, 1, 2))
        run(0); run(1)
        a.wait_lg(('tr', 2))
        a(post(3, True)[2])
        issue((3,))
        run(2)
        chk((3,))
        run(3)
        for s_ in mh(4) + mh(5) + mh(6): a(s_)
        optx(0)
        issue((4,)); optx(1); chk((4,)); run(4)
        issue((5,)); optx(2); chk((5,))
        a.wait_lg(('tr', 5))
        issue((6,)); run(5); chk((6,)); run(6)
        st()
        E, O, K = SA(0), SA(1), SA(2)
        for r in (E, O, K): a(f'v_pk_add_f32 v[{r}:{r+1}], v[{r}:{r+1}], v[{r+2}:{r+3}]')
        for b in range(2): a(f'v_max3_f32 v{M+b}, v{E+b}, v{O+b}, v{K+b}')
        def red(op):
            for r in (8, 4, 2, 1):
                for b in range(2): a(f'{op}_dpp v{M+b}, v{M+b}, v{M+b} row_ror:{r} row_mask:0xf bank_mask:0xf')
        red('v_max_f32')
        for r in (E, O, K): a(f'v_pk_add_f32 v[{r}:{r+1}], v[{r}:{r+1}], v[{M}:{M+1}] neg_lo:[0,1] neg_hi:[0,1]')
        for r in (E, O, K):
            for b in range(2): a(f'v_exp_f32 v{r+b}, v{r+b}')
        a(f'v_pk_add_f32 v[{M}:{M+1}], v[{E}:{E+1}], v[{O}:{O+1}]')
        a(f'v_pk_fma_f32 v[{M}:{M+1}], v[{K}:{K+1}], 0.5, v[{M}:{M+1}] op_sel_hi:[1,0,1]')
        red('v_add_f32')
        a(f'''
        v_rcp_f32 v{M}, v{M}
        v_rcp_f32 v{M+1}, v{M+1}
        v_pk_mul_f32 v[{K}:{K+1}], v[{K}:{K+1}], v[{M}:{M+1}]
        v_pk_mul_f32 v[{E}:{E+1}], v[{E}:{E+1}], v[{M}:{M+1}]
        v_cndmask_b32 v{K}, v{K}, v{K+1}, s[28:29]
        v_pk_mul_f32 v[{O}:{O+1}], v[{O}:{O+1}], v[{M}:{M+1}]
        v_cvt_pk_bf16_f32 v{E}, v{E}, v{O}
        v_mov_b32_dpp v{K+1}, v{K} quad_perm:[1,0,3,2] row_mask:0xf bank_mask:0xf
        v_min_u32 v{E}, -2, v{E}
        buffer_store_dword v{E}, v{VP0}, {SRD}, s{S_PB} offen {st_flag}
        v_cvt_pk_bf16_f32 v{E+1}, v{E+1}, v{O+1}
        v_cvt_pk_bf16_f32 v{K}, v{K}, v{K+1}
        v_min_u32 v{E+1}, -2, v{E+1}
        buffer_store_dword v{E+1}, v{VP0}, {SRD}, s{S_PB} offen offset:16 {st_flag}
        v_min_u32 v{K}, -2, v{K}
        v_mov_b32 v{M}, -1
        s_mov_b64 exec, s[36:37]
        buffer_store_dword v{K}, v{VPM}, {SRD}, s{S_PB} offen {st_flag}
        buffer_store_dword v{M}, v{VPM}, {SRD}, s32 offen {st_flag}
        s_mov_b64 exec, -1
        buffer_store_dword v{M}, v{VP0}, {SRD}, s32 offen {st_flag}
        buffer_store_dword v{M}, v{VP0}, {SRD}, s32 offen offset:16 {st_flag}
        ''')
        st()
        if stamps: a(f's_sub_u32 s{S_STEP}, s{S_STEP}, 1')
        st.flush(0, G0, G0 + 1)
        if stamps: a(f's_add_u32 s{S_STEP}, s{S_STEP}, 1')
        late = a.newlabel('CA0_LATE')
        a(f'''
        s_cmp_ge_u32 s{S_STEP}, 63
        s_cbranch_scc1 {loop}_end
        s_cmp_eq_u32 s38, 1
        s_cbranch_scc1 {late}
        ''')
        prog_gate(a, VPROG, VZ, 35, S_STEP)
        for g in range(3):
            for s_ in xld(g): a(s_)
        a.label(late)
        for g in (3, 4, 5, 6):
            for s_ in xld(g): a(s_)
        a(f'v_readfirstlane_b32 s{S_T0}, v{VPROG}')
        a(f's_add_u32 s{S_T1}, s{S_STEP}, 1')
        a(f's_cmp_gt_u32 s{S_T0}, s{S_T1}')
        a.opt_begin('s_cbranch_scc0')
        a(f'buffer_load_dword v{T2}, v{VTX}, {SRD}, s{S_TX} offen sc1')
        a.opt_end()
        a(f's_add_u32 s{S_TX}, s{S_TX}, {L.XN_SZ}')
        a(f's_branch {loop}')
        a.label(loop + '_end')
        a('s_endpgm')
    mode_split(a, body, TMP)

def chain_B(a, stamps=False, st_flag=''):
    st = Stamps(a, stamps)
    regs = [256 + 8 * g for g in range(32)] + [128 + 8 * g for g in range(16)]
    WG = {}
    n = 0
    for tl in range(8):
        for ks in range(6):
            WG[(tl, ks)] = regs[n]; n += 1
    ACC = 4
    UXF = 36
    MEMF = 68
    PF = MEMF
    W6 = 96
    UMF = 112
    G = W6
    FACC = ACC
    VG0, VW6, VIDX, VMF, VL16, VUX, VRW, VMST = 120, 121, 122, 123, 124, 125, 126, 127
    TMP, TMP2 = 2, 3
    VRR, VL8 = 0, 1
    LDS_MEM, LDS_RED, LDS_W = 0, 8192, 12288
    S_MEM, S_PB, S_UX, S_UM, S_MX = 21, 22, 23, 24, 25
    lane = f'v{V_LANE}'
    a(f'''
    s_lshl_b32 s{S_T0}, s{S_ROLE}, 2
    s_add_u32 s{S_T0}, s{S_T0}, s{S_W}
    s_mul_i32 s{S_T0}, s{S_T0}, 114688
    s_add_u32 s{S_T2}, s{S_T0}, {L.WBC}
    v_lshlrev_b32 v{VL16}, 4, {lane}
    s_lshl_b32 s{S_T3}, s{S_W}, 14
    s_add_u32 s{S_T3}, s{S_T3}, {LDS_W}
    ''')
    for tl in range(8):
        for ks in range(7):
            for p in range(2):
                o = (ks * 2048 + p * 1024) % 4096
                if ks < 6:
                    a(f'buffer_load_dwordx4 {R(WG[(tl,ks)] + 4 * p, 4)}, v{VL16}, {SRD}, s{S_T2} offen offset:{o}')
                else:
                    if p == 0: a(f's_mov_b32 m0, s{S_T3}')
                    a(f'buffer_load_dwordx4 v{VL16}, {SRD}, s{S_T2} offen offset:{o} lds')
            if ks % 2 == 1: a(f's_add_u32 s{S_T2}, s{S_T2}, 4096')
        a(f's_add_u32 s{S_T2}, s{S_T2}, 2048')
        a(f's_add_u32 s{S_T3}, s{S_T3}, 2048')
    gather_mem_setup(a, VG0)
    a(f'''
    v_lshrrev_b32 v{TMP}, 4, {lane}
    v_and_b32 v{TMP2}, 15, {lane}
    v_and_b32 v{VIDX}, 2, {lane}
    v_cmp_eq_u32 vcc, 2, v{VIDX}
    v_mov_b32 v{VIDX}, 0x44444444
    v_mov_b32 v{VMF}, 0xeeeeeeee
    v_cndmask_b32 v{VIDX}, v{VIDX}, v{VMF}, vcc
    v_and_b32 v{VMF}, 2, {lane}
    v_lshlrev_b32 v{VMF}, 6, v{VMF}
    v_lshl_add_u32 v{VMF}, v{TMP}, 8, v{VMF}
    v_bfe_u32 v{VUX}, {lane}, 2, 2
    v_lshl_add_u32 v{VMF}, v{VUX}, 5, v{VMF}
    v_and_b32 v{VUX}, 1, {lane}
    v_lshl_add_u32 v{VMF}, v{VUX}, 4, v{VMF}
    s_mul_i32 s{S_T0}, s{S_W}, {4*28672}
    s_lshl_b32 s{S_T1}, s{S_ROLE}, 11
    s_add_u32 s{S_T0}, s{S_T0}, s{S_T1}
    v_lshlrev_b32 v{VUX}, 4, v{TMP2}
    v_lshl_add_u32 v{VUX}, v{TMP}, 9, v{VUX}
    v_add_u32 v{VUX}, s{S_T0}, v{VUX}
    s_lshr_b32 s{S_T0}, s{S_W}, 1
    s_lshl_b32 s{S_T0}, s{S_T0}, 10
    s_and_b32 s{S_T1}, s{S_W}, 1
    s_lshl_b32 s{S_T1}, s{S_T1}, 3
    s_add_u32 s{S_T0}, s{S_T0}, s{S_T1}
    s_add_u32 s{S_T0}, s{S_T0}, {LDS_RED}
    v_add_u32 v{VRW}, s{S_T0}, v{VL16}
    v_lshrrev_b32 v{VMST}, 2, v{TMP2}
    v_lshlrev_b32 v{VMST}, 7, v{VMST}
    v_lshl_add_u32 v{VMST}, v{TMP}, 5, v{VMST}
    v_and_b32 v{TMP2}, 3, {lane}
    v_lshl_add_u32 v{VMST}, v{TMP2}, 2, v{VMST}
    s_lshl_b32 s{S_T0}, s{S_ROLE}, 9
    s_lshl_b32 s{S_T1}, s{S_T1}, 1
    s_add_u32 s{S_T0}, s{S_T0}, s{S_T1}
    v_add_u32 v{VMST}, s{S_T0}, v{VMST}
    s_mul_i32 s{S_MX}, s{S_LAYER}, {64*L.MEM_SZ}
    s_add_u32 s{S_MX}, s{S_MX}, {L.MEMX}
    s_mul_i32 s30, s{S_LAYER}, {4*L.MEM_SZ}
    s_add_u32 s30, s30, {L.MEML}
    s_mul_i32 s31, s{S_LAYER}, {4*L.PB_SZ}
    s_mul_i32 s{S_T0}, s{S_W}, 2560
    s_add_u32 s31, s31, s{S_T0}
    s_add_u32 s31, s31, {L.PB}
    s_mul_i32 s{S_UX}, s{S_LAYER}, {64*L.UX_SZ}
    s_add_u32 s{S_UX}, s{S_UX}, {L.UX}
    s_mul_i32 s{S_UM}, s{S_LAYER}, {64*L.UM_SZ}
    s_lshl_b32 s{S_T0}, s{S_ROLE}, 2
    s_add_u32 s{S_T0}, s{S_T0}, s{S_W}
    s_lshl_b32 s{S_T0}, s{S_T0}, 11
    s_add_u32 s{S_UM}, s{S_UM}, s{S_T0}
    s_add_u32 s{S_UM}, s{S_UM}, {L.UM}
    s_lshl_b32 s26, s{S_W}, 14
    s_add_u32 s26, s26, {LDS_W}
    v_add_u32 v{VW6}, s26, v{VL16}
    s_and_b32 s27, s{S_W}, 1
    s_lshl_b32 s27, s27, 11
    s_add_u32 s27, s27, {LDS_RED}
    v_add_u32 v{VRR}, s27, v{VL16}
    v_lshrrev_b32 v{VL8}, 1, v{VL16}
    s_lshl_b32 s35, s{S_LAYER}, 15
    s_lshl_b32 s36, s{S_ROLE}, 2
    s_add_u32 s36, s36, s{S_W}
    s_lshl_b32 s36, s36, 2
    s_add_u32 s36, s36, s35
    s_add_u32 s36, s36, {L.flag(L.FL_UM)}
    s_add_u32 s35, s35, {L.flag(L.FL_PROG)}
    s_mov_b32 s{S_STEP}, 0
    ''')
    def ux_list():
        out = []
        for hp in range(4):
            for ct in range(2):
                r = UXF + 16 * ct + 8 * (hp >> 1) + 4 * (hp & 1)
                l = f'buffer_load_dwordx4 v[{r}:{r+3}], v{VUX}, {SRD}, s{S_UX} offen offset:{256*ct} sc1'
                if ct == 1: l += f'\ns_add_u32 s{S_UX}, s{S_UX}, {28672 if hp < 3 else L.UX_SZ - 3 * 28672}'
                out.append(l)
        return out
    def um_stores():
        a(f'''
        buffer_store_dwordx4 v[{UMF}:{UMF+3}], v{VL16}, {SRD}, s{S_UM} offen sc1
        buffer_store_dwordx4 v[{UMF+4}:{UMF+7}], v{VL16}, {SRD}, s{S_UM} offen offset:1024 sc1
        s_add_u32 s{S_UM}, s{S_UM}, {L.UM_SZ}
        ''')
    def body(st_flag):
        loop = a.newlabel('CB_LOOP'); end = a.newlabel('CB_END'); skip = a.newlabel('CB_SKIP')
        a.flush(); a.label(loop)
        a(f'''
        s_and_b32 s{S_T0}, s{S_STEP}, 3
        s_mul_i32 s{S_T1}, s{S_T0}, {L.MEM_SZ}
        s_add_u32 s{S_MEM}, s{S_T1}, s30
        s_mul_i32 s{S_T1}, s{S_T0}, {L.PB_SZ}
        s_add_u32 s{S_PB}, s{S_T1}, s31
        s_add_u32 s{S_T0}, s{S_STEP}, 1
        s_and_b32 s{S_T0}, s{S_T0}, 3
        s_mul_i32 s{S_T1}, s{S_T0}, {L.MEM_SZ}
        s_add_u32 s28, s{S_T1}, s30
        s_add_u32 s{S_T0}, s{S_STEP}, 3
        s_and_b32 s{S_T0}, s{S_T0}, 3
        s_mul_i32 s{S_T1}, s{S_T0}, {L.MEM_SZ}
        s_add_u32 s29, s{S_T1}, s30
        ''')
        for i in range(0, 32, 2): a(f'v_mov_b64 v[{ACC+i}:{ACC+i+1}], 0')
        gather_mem(a, st, G, VG0, S_MEM, TMP, LDS_MEM, TMP2)
        for ks in range(7): a(f'ds_read_b128 v[{MEMF+4*ks}:{MEMF+4*ks+3}], v{VMF} offset:{LDS_MEM+1024*ks}')
        nx = a.newlabel('CB_NX'); nu = a.newlabel('CB_NU')
        a(f'''
        s_cmp_lg_u32 s{S_ROLE}, 0
        s_cbranch_scc1 {nx}
        s_add_u32 s34, s{S_MX}, s33
        buffer_store_dwordx4 v[{G}:{G+3}], v{VG0}, {SRD}, s{S_MX} offen sc1
        buffer_store_dwordx4 v[{G+4}:{G+7}], v{VG0}, {SRD}, s34 offen sc1
        s_add_u32 s{S_T0}, s{S_STEP}, 1
        v_mov_b32 v{TMP}, s{S_T0}
        s_mov_b64 exec, 1
        buffer_store_dword v{TMP}, off, {SRD}, s35 offset:384 {st_flag}
        s_mov_b64 exec, -1
        ''')
        a.label(nx)
        a(f'''
        s_cmp_eq_u32 s{S_STEP}, 0
        s_cbranch_scc1 {nu}
        ''')
        um_stores()
        a.label(nu)
        a(f'v_mov_b32 v{TMP}, 0')
        prog_gate(a, TMP2, TMP, 35, S_STEP)
        def w6read(tl):
            r = W6 + 8 * (tl % 2)
            return [f'ds_read_b128 v[{r}:{r+3}], v{VW6} offset:{2048*tl}', f'ds_read_b128 v[{r+4}:{r+7}], v{VW6} offset:{2048*tl+1024}']
        for s_ in w6read(0) + w6read(1): a(s_)
        def pack(tl):
            c = ACC + 4 * tl; hh, ct = tl >> 1, tl & 1
            return [f'v_pk_add_f32 v[{c}:{c+1}], v[{c}:{c+1}], v[{c+2}:{c+3}]', f'v_cvt_pk_bf16_f32 v{UMF+4*ct+hh}, v{c}, v{c+1}', f'v_min_u32 v{UMF+4*ct+hh}, -2, v{UMF+4*ct+hh}']
        uxl = ux_list()
        for ks in range(6):
            if ks < 2: a(f's_waitcnt lgkmcnt({10-ks})')
            for tl in range(8):
                c = ACC + 4 * tl
                a(f'v_smfmac_f32_16x16x64_bf16 v[{c}:{c+3}], v[{MEMF+4*ks}:{MEMF+4*ks+3}], {R(WG[(tl,ks)],8)}, v{VIDX}')
                if tl in (1, 5) and uxl: a(uxl.pop(0))
            if 1 <= ks <= 4:
                a('s_waitcnt lgkmcnt(0)')
                for j in range(2):
                    tl = [2, 3, 4, 5, 0, 1, 6, 7][2 * (ks - 1) + j] if False else 2 * (ks - 1) + j
                    c = ACC + 4 * tl; r = W6 + 8 * j
                    a(f'v_smfmac_f32_16x16x64_bf16 v[{c}:{c+3}], v[{MEMF+24}:{MEMF+27}], v[{r}:{r+7}], v{VIDX}')
                if ks < 4:
                    for s_ in w6read(2 * ks) + w6read(2 * ks + 1): a(s_)
        for tl in range(8):
            for s_ in pack(tl): a(s_)
        a(f'''
        s_cmp_eq_u32 s{S_STEP}, 63
        s_cbranch_scc1 {end}
        ''')
        for i in range(0, 8, 2): a(f'v_mov_b64 v[{FACC+i}:{FACC+i+1}], 0')
        st()
        mk = lambda P: [f'buffer_load_dwordx4 v[{P}:{P+3}], v{VL16}, {SRD}, s{S_PB} offen sc1',
                 f'buffer_load_dwordx4 v[{P+4}:{P+7}], v{VL16}, {SRD}, s{S_PB} offen offset:1024 sc1',
                 f'buffer_load_dwordx2 v[{P+8}:{P+9}], v{VL8}, {SRD}, s{S_PB} offen offset:2048 sc1']
        def cons(PF):
            for m in range(2):
                for ct in range(2):
                    a(f'v_smfmac_f32_16x16x64_bf16 v[{FACC+4*ct}:{FACC+4*ct+3}], v[{PF+4*m}:{PF+4*m+3}], v[{UXF+16*ct+8*m}:{UXF+16*ct+8*m+7}], v{VIDX}')
            for ct in range(2):
                a(f'v_smfmac_f32_16x16x32_bf16 v[{FACC+4*ct}:{FACC+4*ct+3}], v[{PF+8}:{PF+9}], v[{UMF+4*ct}:{UMF+4*ct+3}], v{VIDX}')
        poll2(a, mk, [PF, PF + 12], 10, TMP, cons)
        st()
        T = ACC + 8
        a(f'''
        v_mov_b32 v{TMP}, -1
        s_cmp_ge_u32 s{S_W}, 2
        v_add_f32 v{T}, v{FACC}, v{FACC+2}
        v_add_f32 v{T+2}, v{FACC+1}, v{FACC+3}
        v_add_f32 v{T+1}, v{FACC+4}, v{FACC+6}
        v_add_f32 v{T+3}, v{FACC+5}, v{FACC+7}
        ds_write2st64_b64 v{VRW}, v[{T}:{T+1}], v[{T+2}:{T+3}] offset0:0 offset1:4
        s_waitcnt lgkmcnt(0)
        s_barrier
        s_cbranch_scc1 {skip}
        ds_read_b128 v[{T}:{T+3}], v{VRR}
        ds_read_b128 v[{T+4}:{T+7}], v{VRR} offset:1024
        s_waitcnt lgkmcnt(1)
        v_pk_add_f32 v[{T}:{T+1}], v[{T}:{T+1}], v[{T+2}:{T+3}]
        s_waitcnt lgkmcnt(0)
        v_pk_add_f32 v[{T+4}:{T+5}], v[{T+4}:{T+5}], v[{T+6}:{T+7}]
        v_pk_add_f32 v[{T}:{T+1}], v[{T}:{T+1}], v[{T+4}:{T+5}]
        v_cvt_pk_bf16_f32 v{T}, v{T}, v{T+1}
        v_min_u32 v{T}, -2, v{T}
        buffer_store_dword v{T}, v{VMST}, {SRD}, s28 offen {st_flag}
        buffer_store_dword v{TMP}, v{VMST}, {SRD}, s29 offen {st_flag}
        ''')
        a.label(skip)
        st()
        st.flush(2 << 20, TMP, TMP2)
        a(f'''
        s_add_u32 s{S_MX}, s{S_MX}, {L.MEM_SZ}
        s_add_u32 s{S_STEP}, s{S_STEP}, 1
        s_branch {loop}
        ''')
        a.label(end)
        um_stores()
        a('s_endpgm')
    mode_split(a, body, TMP)

def helper_prog(a, woff=0):
    a(f'''
    s_cmp_eq_u32 s{S_W}, 0
    s_cselect_b32 s{S_T0}, 59, 55
    s_cselect_b32 s{S_T1}, 0, {L.FLXN - L.FLU}
    v_min_u32 v2, s{S_T0}, v{V_LANE}
    v_lshrrev_b32 v3, 2, v2
    v_mul_u32_u24 v3, 12, v3
    v_add_lshl_u32 v2, v2, v3, 3
    v_mov_b32 v3, 0
    s_lshl_b32 s21, s{S_LAYER}, 15
    s_lshl_b32 s{S_T0}, s{S_W}, 7
    s_add_u32 s22, s21, s{S_T0}
    s_add_u32 s22, s22, {L.flag(L.FL_PROG) + woff}
    s_lshl_b32 s21, s21, 2
    s_add_u32 s21, s21, s{S_T1}
    s_add_u32 s21, s21, {L.FLU}
    s_mov_b32 s{S_STEP}, 0
    ''')
    def body(st_flag):
        loop = a.newlabel('HP')
        a.label(loop)
        wait_flags(a, 21, 2, 4, width=2, sleep=1)
        a(f'''
        s_add_u32 s{S_STEP}, s{S_STEP}, 1
        s_add_u32 s21, s21, 2048
        v_mov_b32 v6, s{S_STEP}
        s_mov_b64 exec, 1
        buffer_store_dword v6, v3, {SRD}, s22 offen {st_flag}
        s_mov_b64 exec, -1
        s_cmp_lt_u32 s{S_STEP}, 64
        s_cbranch_scc1 {loop}
        s_endpgm
        ''')
    mode_split(a, body, 4)

def helper_touch(a):
    loop = a.newlabel('WX')
    a(f'''
    v_min_u32 v2, 55, v{V_LANE}
    v_lshlrev_b32 v2, 7, v2
    v_and_b32 v3, 1, v{V_LANE}
    v_mul_u32_u24 v3, {L.MEM_SZ}, v3
    s_mul_i32 s22, s{S_LAYER}, {64*L.MEM_SZ}
    s_add_u32 s22, s22, {L.MEMX}
    s_lshl_b32 s23, s{S_LAYER}, 15
    s_add_u32 s23, s23, {L.flag(L.FL_PROG)}
    s_mul_i32 s{S_T2}, s{S_LAYER}, {64*L.UX_SZ}
    s_add_u32 s{S_T2}, s{S_T2}, {L.UX + L.UX_SZ + 57344}
    s_mov_b32 s{S_STEP}, 1
    ''')
    for i in range(5):
        a(f'''
        s_add_u32 s{S_T0}, s21, {4*i+12}
        s_min_u32 s{S_T0}, s{S_T0}, 31
        s_lshr_b32 s{S_T1}, s{S_T0}, 3
        s_mul_i32 s{S_T1}, s{S_T1}, 114688
        s_and_b32 s{S_T0}, s{S_T0}, 7
        s_mul_i32 s{S_T0}, s{S_T0}, 7168
        s_add_u32 s{S_T0}, s{S_T0}, s{S_T1}
        s_add_u32 s{26+i}, s{S_T0}, s{S_T2}
        ''')
    a.label(loop)
    a(f'''
    s_sleep 2
    buffer_load_dword v8, off, {SRD}, s23 offset:384 sc1
    buffer_load_dword v9, off, {SRD}, s23 sc1
    s_sub_u32 s{S_ABORT}, s{S_ABORT}, 1
    s_cbranch_scc1 {loop}_end
    s_waitcnt vmcnt(0)
    v_readfirstlane_b32 s24, v9
    v_readfirstlane_b32 s25, v8
    s_cmp_gt_u32 s25, s{S_STEP}
    s_cbranch_scc1 {loop}_skip
    s_cmp_gt_u32 s24, s{S_STEP}
    s_cbranch_scc0 {loop}
    s_cmp_lt_u32 s25, s{S_STEP}
    s_cbranch_scc1 {loop}
    ''')
    for i in range(5): a(f'buffer_load_dword v4, v2, {SRD}, s{26+i} offen sc1')
    a.label(loop + '_skip')
    for i in range(5): a(f's_add_u32 s{26+i}, s{26+i}, {L.UX_SZ}')
    a(f'''
    s_add_u32 s22, s22, {L.MEM_SZ}
    s_add_u32 s{S_STEP}, s{S_STEP}, 1
    s_cmp_lt_u32 s{S_STEP}, 63
    s_cbranch_scc1 {loop}
    ''')
    a.label(loop + '_end')
    a('s_endpgm')

def filler(a):
    loop = a.newlabel('FILL')
    a(f'''
    v_lshlrev_b32 v2, 4, v{V_LANE}
    v_mov_b32 v4, -1
    v_mov_b32 v5, -1
    v_mov_b32 v6, -1
    v_mov_b32 v7, -1
    v_mov_b32 v8, 1
    s_mul_i32 s22, s{S_W}, 28672
    s_add_u32 s22, s22, {L.UM}
    s_lshl_b32 s23, s{S_W}, 2
    s_add_u32 s23, s23, {L.FLU + 1792}
    ''')
    a.label(loop)
    a(f'''
    s_lshr_b32 s27, s21, 1
    s_cmp_lt_u32 s27, 10
    s_cbranch_scc1 {loop}_go
    s_sub_u32 s28, s27, 10
    s_mul_i32 s28, s28, {L.MEM_SZ}
    s_add_u32 s28, s28, {L.MEMX}
    ''')
    a.label(loop + '_w')
    a(f'''
    buffer_load_dword v9, off, {SRD}, s28 sc1
    s_sub_u32 s{S_ABORT}, s{S_ABORT}, 1
    s_cbranch_scc1 {loop}_ab
    s_waitcnt vmcnt(0)
    v_cmp_eq_u32 vcc, -1, v9
    s_cbranch_vccz {loop}_go
    s_sleep 16
    s_branch {loop}_w
    ''')
    a.label(loop + '_ab')
    a(f's_mov_b32 s{S_ABORT}, 0')
    a.label(loop + '_go')
    a('s_and_b32 s28, s21, 1')
    a('s_lshl_b32 s28, s28, 6')
    a('s_add_u32 s28, s28, s27')
    a(f's_mul_i32 s24, s28, {L.UM_SZ}')
    a('s_add_u32 s24, s24, s22')
    for i in range(28):
        a(f'buffer_store_dwordx4 v[4:7], v2, {SRD}, s24 offen offset:{(i % 4) * 1024} sc1')
        if i % 4 == 3: a('s_add_u32 s24, s24, 4096')
    a(f'''
    s_lshl_b32 s24, s28, 11
    s_add_u32 s24, s24, s23
    s_sub_u32 s25, s24, {2048 - 16}
    s_cmp_eq_u32 s27, 0
    s_cselect_b32 s26, {64*2048}, 0
    s_add_u32 s25, s25, s26
    s_waitcnt vmcnt(0)
    s_mov_b64 exec, 1
    buffer_store_dword v8, off, {SRD}, s24 sc1
    buffer_store_dword v8, off, {SRD}, s25 sc1
    s_mov_b64 exec, -1
    s_add_u32 s21, s21, 2
    s_cmp_lt_u32 s21, 128
    s_cbranch_scc1 {loop}
    s_endpgm
    ''')
```

```python
from asmlib import *
import layout as L
R = RegFile.r
SRD = 's[8:11]'
S_WS, S_DBG = 4, 6
S_W = 12
S_ROLE = 13
S_LAYER = 14
S_STEP = 15
S_ABORT = 16
S_T0, S_T1, S_T2, S_T3 = 17, 18, 19, 20
V_LANE = 1
POLL_BUDGET = 300000
import os
CYC = bool(os.environ.get('CYC'))

def common_prologue(a):
    a(f'''
    s_load_dwordx2 s[{S_WS}:{S_WS+1}], s[0:1], 104
    s_load_dwordx2 s[{S_DBG}:{S_DBG+1}], s[0:1], 96
    v_lshrrev_b32 v2, 6, v0
    v_and_b32 v{V_LANE}, 63, v0
    v_readfirstlane_b32 s{S_W}, v2
    s_waitcnt lgkmcnt(0)
    s_mov_b32 s8, s{S_WS}
    s_and_b32 s9, s{S_WS+1}, 0xffff
    s_mov_b32 s10, 0x10000000
    s_mov_b32 s11, 0x00020000
    s_mov_b32 s{S_ABORT}, {POLL_BUDGET}
    ''')

def check(a, regs, tmp):
    r = list(regs)
    a(f'v_max3_u32 v{tmp}, v{r[0]}, v{r[1]}, v{r[2]}'); r = r[3:]
    while len(r) >= 2:
        a(f'v_max3_u32 v{tmp}, v{tmp}, v{r[0]}, v{r[1]}'); r = r[2:]
    if r: a(f'v_max_u32 v{tmp}, v{tmp}, v{r[0]}')
    a(f'v_cmp_eq_u32 vcc, -1, v{tmp}')

def poll(a, loads, regs, tmp, sleep=0):
    lab = a.newlabel('POLL'); done = a.newlabel('POLLD')
    if sleep:
        a(f's_branch {lab}_in')
        a.label(lab); a(f's_sleep {sleep}'); a.label(lab + '_in')
    else: a.label(lab)
    for l in loads: a(l)
    a(f's_sub_u32 s{S_ABORT}, s{S_ABORT}, 1')
    a(f's_cbranch_scc1 {done}_abort')
    a('s_waitcnt vmcnt(0)')
    check(a, regs, tmp)
    a.br(f's_cbranch_vccnz {lab}')
    a.label(done)
    a.deferred.append(f'{done}_abort:\n    s_mov_b32 s{S_ABORT}, 0\n    s_waitcnt vmcnt(0)\n    s_branch {done}\n')

def wait_flags(a, soff, voff, tmp, width=1, sleep=2):
    lab = a.newlabel('WF'); done = a.newlabel('WFD')
    a(f's_branch {lab}_in')
    a.label(lab); a(f's_sleep {sleep}'); a.label(lab + '_in')
    if width == 1: a(f'buffer_load_dword v{tmp}, v{voff}, {SRD}, s{soff} offen sc1')
    else: a(f'buffer_load_dwordx2 v[{tmp}:{tmp+1}], v{voff}, {SRD}, s{soff} offen sc1')
    a(f's_sub_u32 s{S_ABORT}, s{S_ABORT}, 1')
    a(f's_cbranch_scc1 {done}_abort')
    a('s_waitcnt vmcnt(0)')
    if width == 2: a(f'v_min_u32 v{tmp}, v{tmp}, v{tmp+1}')
    a(f'v_cmp_eq_u32 vcc, 0, v{tmp}')
    a.br(f's_cbranch_vccnz {lab}')
    a.label(done)
    a.deferred.append(f'{done}_abort:\n    s_mov_b32 s{S_ABORT}, 0\n    s_waitcnt vmcnt(0)\n    s_branch {done}\n')

def signal(a, soff, vzero, vone, mode='sc1', wait='s_waitcnt vmcnt(0)'):
    a(f'''
    {wait}
    s_mov_b64 exec, 1
    buffer_store_dword v{vone}, v{vzero}, {SRD}, s{soff} offen {mode}
    s_mov_b64 exec, -1
    ''')

def load_frags(a, regs, voff, soff, mods=''):
    for i, r in enumerate(regs):
        a(f'buffer_load_dwordx4 {R(r, 4)}, v{voff}, {SRD}, s{soff} offen offset:{(i % 4) * 1024} {mods}')
        if i % 4 == 3: a(f's_add_u32 s{soff}, s{soff}, 4096')

class Stamps:
    def __init__(self, a, on, base=60):
        self.a, self.on, self.base, self.n = a, on, base, 0
    def __call__(self):
        if self.on:
            self.a(f's_memrealtime s[{self.base+2*self.n}:{self.base+2*self.n+1}]'); self.n += 1
    def cyc(self, k):
        if self.on and CYC: self.a(f's_memtime s[{self.base+16+2*k}:{self.base+17+2*k}]'); self.nc = max(getattr(self, 'nc', 0), k + 1)
    def flush(self, role_off, vt, va, sstep=S_STEP):
        if not self.on: return
        a = self.a
        a('s_waitcnt lgkmcnt(0)')
        a(f's_lshl_b32 s{S_T0}, s{S_ROLE}, 2')
        a(f's_add_u32 s{S_T0}, s{S_T0}, s{S_W}')
        a(f's_lshl_b32 s{S_T0}, s{S_T0}, 7')
        a(f's_add_u32 s{S_T0}, s{S_T0}, s{sstep}')
        a(f's_lshl_b32 s{S_T0}, s{S_T0}, 6')
        a(f's_add_u32 s{S_T0}, s{S_T0}, s59')
        a(f's_add_u32 s{S_T0}, s{S_T0}, {L.DBG + role_off}')
        a(f'v_mbcnt_lo_u32_b32 v{va}, -1, 0')
        a(f'v_lshlrev_b32 v{va}, 2, v{va}')
        for i in range(self.n):
            a(f'v_writelane_b32 v{vt}, s{self.base+2*i}, {i}')
        for i in range(getattr(self, 'nc', 0)):
            a(f'v_writelane_b32 v{vt}, s{self.base+16+2*i}, {8+i}')
        a('s_mov_b64 exec, 0xffff')
        a(f'buffer_store_dword v{vt}, v{va}, {SRD}, s{S_T0} offen')
        a('s_mov_b64 exec, -1')
        self.n = 0

def interleave(a, main, side, per=1, start=0):
    side = list(side)
    for i, m in enumerate(main):
        a(m)
        if i >= start:
            for _ in range(per):
                if side: a(side.pop(0))
    return side

def stats_ops(S, T):
    return [
        f'v_pk_add_f32 v[{S}:{S+1}], v[{S}:{S+1}], v[{S+2}:{S+3}]',
        f'v_pk_add_f32 v[{S+4}:{S+5}], v[{S+4}:{S+5}], v[{S+6}:{S+7}]',
        f'v_pk_add_f32 v[{S}:{S+1}], v[{S}:{S+1}], v[{S+4}:{S+5}]',
        f'v_mov_b32 v{T}, v{S}',
        f'v_mov_b32 v{T+1}, v{S+1}',
        f'v_permlane32_swap_b32 v{T}, v{S}',
        f'v_permlane32_swap_b32 v{T+1}, v{S+1}',
        f'v_pk_add_f32 v[{S}:{S+1}], v[{S}:{S+1}], v[{T}:{T+1}]',
        f'v_mul_f32 v{T}, {hex(f2u(1.0/448))}, v{S}',
        f'v_mul_f32 v{T+1}, {hex(f2u(1.0/448))}, v{S+1}',
        f'v_fma_f32 v{T+1}, -v{T}, v{T}, v{T+1}',
        f'v_max_f32 v{T+1}, 0, v{T+1}',
        f'v_add_f32 v{T+1}, {hex(f2u(1e-5))}, v{T+1}',
        f'v_rsq_f32 v{S}, v{T+1}',
        f'v_mov_b32 v{S+1}, v{T}',
    ]

import struct
def f2u(x): return struct.unpack('<I', struct.pack('<f', x))[0]

def kernel_wrap(name, body, vgpr=512, accum=256, sgpr=102):
    return f'''.text
.globl {name}
.p2align 8
.type {name},@function
{name}:
{body}
.section .rodata,"a"
.p2align 6
.amdhsa_kernel {name}
  .amdhsa_next_free_vgpr {vgpr}
  .amdhsa_next_free_sgpr {sgpr}
  .amdhsa_accum_offset {accum}
  .amdhsa_group_segment_fixed_size 0
  .amdhsa_kernarg_size 112
  .amdhsa_user_sgpr_count 2
  .amdhsa_user_sgpr_kernarg_segment_ptr 1
  .amdhsa_system_sgpr_workgroup_id_x 1
.end_amdhsa_kernel
'''

S_GRP = 56
S_NEED = 57
def mode_split(a, body, vt, force_slow=None):
    lab = a.newlabel('MS')
    if force_slow is not None:
        a(f's_cmp_lg_u32 s{force_slow}, 0'); a(f's_cbranch_scc1 {lab}_slow')
    a.flush()
    a.label(lab)
    a(f"""
    buffer_load_dword v{vt}, off, {SRD}, s{S_GRP} sc1
    s_sub_u32 s{S_ABORT}, s{S_ABORT}, 1
    s_cbranch_scc1 {lab}_ab
    s_waitcnt vmcnt(0)
    v_readfirstlane_b32 s58, v{vt}
    s_and_b32 s{S_T0}, s58, 0xffff
    s_cmp_ge_u32 s{S_T0}, s{S_NEED}
    s_cbranch_scc0 {lab}
    s_lshr_b32 s{S_T0}, s58, 16
    s_cbranch_scc1 {lab}_slow
    """)
    body('')
    a.label(lab + '_ab')
    a(f's_mov_b32 s{S_ABORT}, 0')
    a('s_waitcnt vmcnt(0)')
    a.label(lab + '_slow')
    body('sc1')

def wg_stamp(a, slot, vt, va):
    a(f"""
    s_memrealtime s[96:97]
    s_memtime s[98:99]
    s_lshl_b32 s100, s2, 4
    s_add_u32 s100, s100, {L.DBG + (14 << 20) + slot * 4096}
    s_waitcnt lgkmcnt(0)
    v_mov_b32 v{vt}, s96
    v_mov_b32 v{vt+1}, s98
    buffer_store_dwordx2 v[{vt}:{vt+1}], off, {SRD}, s100
    """)
```

```python
from common import *
import chain, workers

def mega(stamps=False, mask=0xff, static=True, fast=True):
    a = Asm(); a.deferred = []
    common_prologue(a)
    mode = '' if fast else 'sc1'
    REG = L.flag(7)
    if stamps: wg_stamp(a, 2, 10, 0)
    a(f'''
    s_cmp_ge_u32 s2, 256
    s_cbranch_scc1 M_EXIT
    s_mov_b32 s52, 0x20202020
    s_mov_b32 s53, 0x20202020
    s_cmp_lg_u32 s{S_W}, 0
    s_cbranch_scc1 M_WAITROLE
    s_getreg_b32 s3, hwreg(HW_REG_XCC_ID, 0, 3)
    s_mov_b64 exec, 1
    v_mov_b32 v2, 1
    s_lshl_b32 s{S_T0}, s3, 9
    s_add_u32 s{S_T0}, s{S_T0}, {REG}
    buffer_atomic_add v2, off, {SRD}, s{S_T0} sc0 sc1
    s_lshl_b32 s{S_T3}, s3, 3
    s_lshr_b64 s[54:55], s[52:53], s{S_T3}
    s_and_b32 s{S_NEED}, s54, 0xff
    s_waitcnt vmcnt(0)
    v_readfirstlane_b32 s{S_ROLE}, v2
    s_and_b32 s{S_ROLE}, s{S_ROLE}, 0xffff
    s_mov_b64 exec, -1
    s_cmp_lt_u32 s{S_ROLE}, s{S_NEED}
    s_cbranch_scc1 M_GOTROLE
    v_and_b32 v3, 7, v{V_LANE}
    v_lshlrev_b32 v4, 3, v3
    v_lshrrev_b64 v[4:5], v4, s[52:53]
    v_and_b32 v4, 0xff, v4
    v_lshlrev_b32 v3, 9, v3
    s_mov_b32 s{S_T1}, {REG}
    s_mov_b32 s{S_T2}, 60
M_SURP:
    buffer_load_dword v5, v3, {SRD}, s{S_T1} offen sc1
    s_waitcnt vmcnt(0)
    v_and_b32 v5, 0xffff, v5
    v_cmp_lt_u32 vcc, v5, v4
    s_mov_b32 s3, 8
    s_cbranch_vccz M_GOTROLE
    s_sleep 8
    s_sub_u32 s{S_T2}, s{S_T2}, 1
    s_cbranch_scc0 M_SURP
    s_mov_b32 s{S_T2}, 0
    s_ff1_i32_b32 s3, vcc_lo
    s_mov_b64 exec, 1
    v_mov_b32 v2, 0x10001
    s_lshl_b32 s{S_T0}, s3, 9
    s_add_u32 s{S_T0}, s{S_T0}, {REG}
    buffer_atomic_add v2, off, {SRD}, s{S_T0} sc0 sc1
    s_lshl_b32 s{S_T3}, s3, 3
    s_lshr_b64 s[54:55], s[52:53], s{S_T3}
    s_and_b32 s{S_NEED}, s54, 0xff
    s_waitcnt vmcnt(0)
    v_readfirstlane_b32 s{S_ROLE}, v2
    s_and_b32 s{S_ROLE}, s{S_ROLE}, 0xffff
    s_mov_b64 exec, -1
    s_cmp_lt_u32 s{S_ROLE}, s{S_NEED}
    s_cbranch_scc0 M_SURP
M_GOTROLE:
    s_lshl_b32 s{S_T0}, s3, 16
    s_or_b32 s{S_T0}, s{S_T0}, s{S_ROLE}
    v_mov_b32 v2, s{S_T0}
    v_mov_b32 v3, 0
    ds_write_b32 v3, v2
    s_waitcnt lgkmcnt(0)
M_WAITROLE:
    s_barrier
    v_mov_b32 v3, 0
    ds_read_b32 v2, v3
    s_waitcnt lgkmcnt(0)
    v_readfirstlane_b32 s{S_T0}, v2
    s_barrier
    s_lshr_b32 s3, s{S_T0}, 16
    s_and_b32 s{S_ROLE}, s{S_T0}, 0xffff
    s_cmp_ge_u32 s3, 8
    s_cbranch_scc1 M_EXIT
    s_mov_b32 s101, s{S_T0}
    s_lshl_b32 s{S_T3}, s3, 3
    s_lshr_b64 s[54:55], s[52:53], s{S_T3}
    s_and_b32 s{S_NEED}, s54, 0xff
    s_lshl_b32 s{S_GRP}, s3, 9
    s_add_u32 s{S_GRP}, s{S_GRP}, {REG}
    s_and_b32 s{S_LAYER}, s3, 1
    s_lshr_b32 s{S_T0}, 0x8a, s3
    s_and_b32 s{S_T0}, s{S_T0}, 1
    s_cbranch_scc0 M_NOHOLD
    s_mov_b32 s{S_T1}, {L.MEMX}
M_HOLD:
    s_sleep 8
    buffer_load_dword v2, off, {SRD}, s{S_T1} sc1
    s_sub_u32 s{S_ABORT}, s{S_ABORT}, 1
    s_cbranch_scc1 M_HOLDAB
    s_waitcnt vmcnt(0)
    v_cmp_eq_u32 vcc, -1, v2
    s_cbranch_vccnz M_HOLD
    s_branch M_NOHOLD
M_HOLDAB:
    s_mov_b32 s{S_ABORT}, 0
M_NOHOLD:
    s_lshl_b32 s59, s{S_LAYER}, 20
    s_lshr_b32 s3, s3, 1
    s_cmp_eq_u32 s3, 1
    s_cbranch_scc1 M_T
    s_cmp_eq_u32 s3, 2
    s_cbranch_scc1 M_U
    s_cmp_eq_u32 s3, 3
    s_cbranch_scc1 M_PFF
    s_mov_b32 s21, s{S_W}
    s_cmp_eq_u32 s{S_ROLE}, 31
    s_cbranch_scc1 M_HT
    s_add_u32 s21, s{S_W}, 3
    s_cmp_eq_u32 s{S_ROLE}, 30
    s_cbranch_scc1 M_HP
    s_cmp_ge_u32 s{S_ROLE}, 16
    s_cbranch_scc1 M_CB
    ''')
    chain.chain_A(a, stamps)
    a.label('M_CB'); a(f's_sub_u32 s{S_ROLE}, s{S_ROLE}, 16'); chain.chain_B(a, stamps)
    a.label('M_HP'); a(f's_cmp_ge_u32 s{S_W}, 2'); a('s_cbranch_scc1 M_EXIT'); chain.helper_prog(a)
    a.label('M_HT'); chain.helper_touch(a)
    a.label('M_T'); workers.role_T(a, stamps)
    a.label('M_U')
    a(f's_cmp_ge_u32 s{S_ROLE}, 28'); a('s_cbranch_scc1 M_FILL')
    workers.role_U(a, stamps)
    a.label('M_FILL')
    a('s_mov_b32 s51, 1'); a(f's_add_u32 s{S_ROLE}, s{S_ROLE}, 4'); a(f's_cmp_lt_u32 s{S_ROLE}, 35'); a('s_cbranch_scc1 M_PUB')
    a(f's_mov_b32 s21, s{S_LAYER}')
    chain.filler(a)
    a.label('M_PFF')
    a(f'''
    s_mov_b32 s50, s{S_LAYER}
    s_mov_b32 s51, 0
    s_cmp_ge_u32 s{S_ROLE}, 28
    s_cbranch_scc1 M_PUB
    s_cmp_ge_u32 s{S_ROLE}, 21
    s_cbranch_scc1 M_F2
    s_cmp_ge_u32 s{S_ROLE}, 14
    s_cbranch_scc1 M_PU
    ''')
    workers.role_F1(a, stamps)
    a.label('M_PUB'); a(f's_xor_b32 s50, s{S_LAYER}, 1'); a(f's_sub_u32 s{S_ROLE}, s{S_ROLE}, 14')
    a.label('M_PU'); a(f's_sub_u32 s{S_ROLE}, s{S_ROLE}, 14'); workers.role_PU(a, stamps)
    a.label('M_F2'); a(f's_sub_u32 s{S_ROLE}, s{S_ROLE}, 21'); workers.role_F2(a, stamps)
    a.label('M_EXIT')
    a('s_endpgm')
    if stamps:
        a.lines = [('    s_branch M_FIN' if l.strip() == 's_endpgm' else l) for l in a.lines]
        a.lines[-1] = '    s_endpgm'
        a.label('M_FIN'); a('s_mov_b64 exec, -1'); wg_stamp(a, 4, 10, 0)
        a('v_mov_b32 v10, s101'); a(f'buffer_store_dword v10, off, {SRD}, s100 offset:8'); a('s_endpgm')
    for d in a.deferred: a.raw(d)
    return kernel_wrap('mega_kernel', a.text())

HDR = '.amdgcn_target "amdgcn-amd-amdhsa--gfx950"\n'
if __name__ == '__main__':
    for nm, kw in (('mega', {}), ('mega_st', dict(stamps=True))):
        open(f'work/{nm}.s', 'w').write('; @launch grid=(256,1,1) block=(256,1,1) lds=98304\n' + HDR + mega(**kw))
```

```python
from common import *
lane = f'v{V_LANE}'
LOG2E = 1.4426950408889634
XBUF = 28672
FQ = 176

def x_dma(a, s_src, s_buf, vl16):
    a(f's_lshl_b32 s{S_T0}, s{S_W}, 10')
    a(f's_add_u32 s{S_T1}, s{S_T0}, s{s_buf}')
    a(f's_add_u32 s{S_T0}, s{S_T0}, s{s_src}')
    for j in range(7):
        a(f's_mov_b32 m0, s{S_T1}')
        if j < 6: a(f's_add_u32 s{S_T1}, s{S_T1}, 4096')
        a(f'buffer_load_dwordx4 v{vl16}, {SRD}, s{S_T0} offen sc1 lds')
        if j < 6: a(f's_add_u32 s{S_T0}, s{S_T0}, 4096')

def perm32_v(a, dst, src, tmp):
    a(f'''
    v_and_b32 v{dst}, 0x13, v{src}
    v_and_b32 v{tmp}, 4, v{src}
    v_lshl_or_b32 v{dst}, v{tmp}, 1, v{dst}
    v_and_b32 v{tmp}, 8, v{src}
    v_lshrrev_b32 v{tmp}, 1, v{tmp}
    v_or_b32 v{dst}, v{dst}, v{tmp}
    ''')

def xn_pos(a, dst, tmp):
    a(f'''
    v_and_b32 v{dst}, 32, {lane}
    v_lshlrev_b32 v{dst}, 4, v{dst}
    v_and_b32 v{tmp}, 1, {lane}
    v_lshl_add_u32 v{dst}, v{tmp}, 8, v{dst}
    v_bfe_u32 v{tmp}, {lane}, 1, 4
    v_lshl_add_u32 v{dst}, v{tmp}, 4, v{dst}
    ''')

def load_w_tr(a, W, dma, vtr, toff, hoff):
    def issue(k0, k1):
        for ks in range(k0, k1):
            for p in range(2):
                a(f's_add_u32 m0, s38, {(ks % 20) * 2048 + p * 1024}')
                a(dma(ks, p))
    def read(k0, k1):
        for ks in range(k0, k1):
            for t in range(2):
                for hf in range(2):
                    a(f'ds_read_b64_tr_b16 {R(W(t, ks) + 2 * hf, 2)}, v{vtr} offset:{(ks % 20) * 2048 + t * toff + hf * hoff}')
        a('s_waitcnt lgkmcnt(0)')
    issue(0, 20)
    a('s_waitcnt vmcnt(20)'); read(0, 10)
    issue(20, 28)
    a('s_waitcnt vmcnt(16)'); read(10, 20)
    a('s_waitcnt vmcnt(0)'); read(20, 28)
    a('s_barrier')

def tr_addr(a, dst, t0, t1, rowshift, gshift):
    a(f"""
    s_mul_i32 s38, s{S_W}, 40960
    v_lshrrev_b32 v{t0}, 5, {lane}
    v_bfe_u32 v{t1}, {lane}, 2, 2
    v_lshl_add_u32 v{dst}, v{t0}, 3, v{t1}
    v_lshlrev_b32 v{dst}, {rowshift}, v{dst}
    v_bfe_u32 v{t0}, {lane}, 4, 1
    v_lshl_add_u32 v{dst}, v{t0}, {gshift}, v{dst}
    v_and_b32 v{t0}, 1, {lane}
    v_lshl_add_u32 v{dst}, v{t0}, 4, v{dst}
    v_bfe_u32 v{t0}, {lane}, 1, 1
    v_lshl_add_u32 v{dst}, v{t0}, 3, v{dst}
    v_add_u32 v{dst}, s38, v{dst}
    """)

def dma_list(s_src, s_dst, vl16):
    out = []
    for j in range(7):
        out.append(f's_mov_b32 m0, s{s_dst}\ns_add_u32 s{s_dst}, s{s_dst}, 4096\nbuffer_load_dwordx4 v{vl16}, {SRD}, s{s_src} offen sc1 lds\ns_add_u32 s{s_src}, s{s_src}, 4096')
    return out

def unpk(lst):
    out = []
    for x in lst:
        if callable(x) or not x.startswith('v_pk_'): out.append(x); continue
        m = re.match(r'v_pk_(\w+)_f32 (.*?)(?: op_sel_hi:\[([\d,]+)\])?$', x)
        op, ops, sel = m.group(1), split_ops(m.group(2)), m.group(3)
        sel = [int(v) for v in sel.split(',')] if sel else [1] * (len(ops) - 1)
        def pick(o, hi):
            mm_ = re.match(r'v\[(\d+):', o)
            return f'v{int(mm_.group(1)) + hi}' if mm_ else o
        for h in range(2):
            srcs = [pick(o, h and sel[i]) for i, o in enumerate(ops[1:])]
            if op != 'fma' and not srcs[1].startswith('v'): srcs = srcs[::-1]
            out.append(f'v_{op}_f32 {pick(ops[0], h)}, ' + ', '.join(srcs))
    return out

def cost(s_):
    if callable(s_): return 2
    if '\n' in s_: return 2
    return 2 if s_.startswith(('v_exp', 'v_rcp', 'v_rsq')) else 1

def stream(a, n, rd, mm, gates=None, side_at=None, depth=3, per=5, at=None):
    gates = gates or {}; side_at = side_at or {}
    side = []
    def read(i):
        if i in gates: gates[i]()
        a(rd(i), tag=('fr', i))
    nr = min(depth, n, 3)
    for i in range(nr): read(i)
    for i in range(n):
        side += unpk(side_at.get(i, []))
        a.wait_lg(('fr', i))
        ms = mm(i)
        for j, m in enumerate(ms):
            a(m)
            budget = per
            if at and j == 0 and i in at:
                at[i](); budget -= 2
            lim = i + depth + (1 if j == len(ms) - 1 else 0)
            if nr < min(n, lim) and (j == len(ms) - 1 or depth > 3):
                read(nr); nr += 1; budget -= 1
            while side and budget >= cost(side[0]):
                x = side.pop(0); budget -= cost(x)
                x() if callable(x) else a(x)
    return side

def flush_side(a, side):
    for x in side: x() if callable(x) else a(x)

def gate(a, tag):
    def g():
        a.wait_vm(tag); a('s_barrier')
    return g

def role_U(a, stamps=False, D=14):
    st = Stamps(a, stamps)
    W = lambda t, ks: 256 + 112 * t + 4 * ks
    VL16, VFR, VZ, VONE, VST, VFL, VSW, VSR, VO, VFRB, VXNR = 2, 3, 4, 5, 6, 7, 8, 9, 10, 11, 12
    CS = 14
    TMP = 18
    S8 = 20
    FR = 28
    ACC = 48
    RR, NN = 80, 96
    TT = 112
    PK = 144
    XR = 160
    LDS_ST = 2 * XBUF
    S1, S2, S_L, S_S, S_BUF, S_PRE, S_UO, S_X, S_O, S_F = 21, 22, 23, 24, 25, 26, 27, 28, 29, 30
    a(f'''
    s_lshl_b32 s{S_T0}, s{S_ROLE}, 2
    s_add_u32 s{S_T0}, s{S_T0}, s{S_W}
    s_mul_i32 s{S_T2}, s{S_T0}, 57344
    s_add_u32 s{S_T2}, s{S_T2}, {L.WBU}
    v_lshlrev_b32 v{VL16}, 4, {lane}
    ''')
    load_frags(a, [W(t, ks) for t in range(2) for ks in range(28)], VL16, S_T2)
    a(f'''
    s_mul_i32 s{S_T1}, s{S_T0}, 4682
    s_lshr_b32 s{S_T1}, s{S_T1}, 16
    s_mul_i32 s{S_T2}, s{S_T1}, 14
    s_sub_u32 s{S_T2}, s{S_T0}, s{S_T2}
    s_mul_i32 s{S_UO}, s{S_T1}, {2*28672}
    s_lshl_b32 s{S_T2}, s{S_T2}, 11
    s_add_u32 s{S_UO}, s{S_UO}, s{S_T2}
    s_add_u32 s{S_UO}, s{S_UO}, {L.UX}
    s_lshr_b32 s31, s{S_T0}, 3
    s_mul_i32 s31, s31, 24
    s_add_u32 s31, s31, s{S_T0}
    s_lshl_b32 s31, s31, 2
    s_add_u32 s31, s31, {L.FLU}
    v_mov_b32 v{VZ}, 0
    v_mov_b32 v{VONE}, 1
    ''')
    perm32_v(a, VFR, V_LANE, TMP)
    xn_pos(a, 13, TMP)
    a(f'''
    v_lshrrev_b32 v{TMP}, 5, {lane}
    v_lshlrev_b32 v{VFR}, 4, v{VFR}
    v_lshl_add_u32 v{VFR}, v{TMP}, 9, v{VFR}
    v_and_b32 v{TMP+1}, 31, {lane}
    v_mov_b32 v{VST}, v{VL16}
    v_min_u32 v{VFL}, 27, {lane}
    v_lshrrev_b32 v{VZ}, 3, v{VFL}
    v_mul_u32_u24 v{VZ}, 24, v{VZ}
    v_add_lshl_u32 v{VFL}, v{VFL}, v{VZ}, 2
    v_mov_b32 v{VZ}, 0
    s_lshl_b32 s{S_T0}, s{S_W}, 8
    s_add_u32 s{S_T0}, s{S_T0}, {LDS_ST}
    v_lshlrev_b32 v{VSW}, 2, v{TMP+1}
    v_add_u32 v{VSW}, s{S_T0}, v{VSW}
    v_lshlrev_b32 v{VSR}, 5, v{TMP}
    v_add_u32 v{VSR}, s{S_T0}, v{VSR}
    v_mov_b32 v{VO}, v{VL16}
    s_lshl_b32 s{S_T0}, s{S_W}, 4
    s_mov_b64 s[32:33], 0xffff
    s_lshl_b64 s[32:33], s[32:33], s{S_T0}
    v_mov_b32 v{FR}, 0x3f803f80
    v_mov_b32 v{FR+1}, 0x3f803f80
    v_mov_b32 v{FR+2}, 0x3f803f80
    v_mov_b32 v{FR+3}, 0x3f803f80
    s_waitcnt vmcnt(0)
    ''')
    for ks in range(28):
        for t in range(2):
            c = f'v[{ACC+16*t}:{ACC+16*t+15}]'
            a(f'v_mfma_f32_32x32x16_bf16 {c}, v[{FR}:{FR+3}], {R(W(t,ks),4)}, {"0" if ks == 0 else c}')
    a(f'''
    v_mov_b32 v{CS}, v{ACC}
    v_mov_b32 v{CS+2}, v{ACC+16}
    s_mov_b32 s{S1}, s{S_LAYER}
    s_mov_b32 s{S2}, s{S_LAYER}
    s_mov_b32 s{S_BUF}, 0
    s_mov_b32 s{S_PRE}, 0
    ''')
    VNF = 12
    a(f'''
    s_lshl_b32 s36, s{S_W}, 10
    s_lshl_b32 s41, s{S_ROLE}, 10
    s_mov_b32 s35, 0
    ''')
    pick = f'''
    s_add_u32 s{S_T0}, s{S2}, {D}
    s_min_u32 s{S_T0}, s{S_T0}, 64
    s_cmp_lt_u32 s{S1}, s{S_T0}
    s_cselect_b32 s{S_L}, 0, 1
    s_cselect_b32 s{S_S}, s{S1}, s{S2}
    s_cselect_b32 s{S_T0}, 2, 0
    s_add_u32 s{S1}, s{S1}, s{S_T0}
    s_lshl_b32 s{S_T0}, s{S_L}, 1
    s_add_u32 s{S2}, s{S2}, s{S_T0}
    s_lshl_b32 s{S_T2}, s{S_L}, 7
    s_add_u32 s{S_T2}, s{S_T2}, s{S_S}
    s_mul_i32 s40, s{S_T2}, {L.XN_SZ}
    s_add_u32 s40, s40, {L.XS}
    s_add_u32 s{S_X}, s40, s36
    s_add_u32 s40, s40, s41
    s_add_u32 s37, s{S_BUF}, s36
    s_lshl_b32 s39, s{S_T2}, 11
    s_add_u32 s39, s39, {L.ST}
    s_lshl_b32 s42, s{S_S}, 9
    s_add_u32 s42, s42, {L.flag(L.FL_X, 0)}
    '''.strip().split('\n')
    pick = [x.strip() for x in pick]
    def loads():
        out = [(f'buffer_load_dwordx4 v[{S8}:{S8+3}], v{VST}, {SRD}, s39 offen sc1', None),
               (f'buffer_load_dwordx4 v[{S8+4}:{S8+7}], v{VST}, {SRD}, s39 offen offset:1024 sc1', None),
               (f's_mov_b64 exec, s[32:33]\nbuffer_load_dwordx4 v[{XR}:{XR+3}], v{VL16}, {SRD}, s40 offen sc1\ns_mov_b64 exec, -1', 'st')]
        return out + [(d, ('d', j)) for j, d in enumerate(dma_list(S_X, 37, VL16))]
    cold, warm, end, cw = [a.newlabel(x) for x in ('U_COLD', 'U_WARM', 'U_END', 'U_CW')]
    K0 = 6
    seq = [(k, (0, 1)) for k in range(K0)] + [(k, (0,)) for k in range(K0, 28)] + [(k, (1,)) for k in range(K0, 28)]
    rd = lambda i: f'ds_read_b128 v[{FQ+4*(i%8)}:{FQ+4*(i%8)+3}], v{VFRB} offset:{1024*seq[i][0]}'
    def mm(i):
        ks, tiles = seq[i]; out = []
        for t in tiles:
            c = f'v[{ACC+16*t}:{ACC+16*t+15}]'
            out.append(f'v_mfma_f32_32x32x16_bf16 {c}, v[{FQ+4*(i%8)}:{FQ+4*(i%8)+3}], {R(W(t,ks),4)}, {"0" if ks == 0 else c}')
        return out
    U8 = XR + 4
    def task(is_warm):
        st(); st.cyc(0)
        a(f'''
        v_add_u32 v{VFRB}, s{S_BUF}, v{VFR}
        s_xor_b32 s{S_BUF}, s{S_BUF}, {XBUF}
        s_lshl_b32 s{S_T2}, s{S_L}, 6
        s_add_u32 s{S_STEP}, s{S_T2}, s{S_S}
        ''')
        cur = [f's_mul_i32 s{S_O}, s{S_STEP}, {L.UX_SZ}', f's_add_u32 s{S_O}, s{S_O}, s{S_UO}', f's_lshl_b32 s{S_F}, s{S_STEP}, 11', f's_add_u32 s{S_F}, s{S_F}, s31',
               f's_mul_i32 s34, s{S_STEP}, {L.XN_SZ}', 's_add_u32 s34, s34, s41', f's_add_u32 s34, s34, {L.XN}',
               f's_add_u32 s43, s{S_F}, {L.FLXN - L.FLU}']
        sd = {}
        sd[0] = ['\n'.join(cur), lambda: a.wait_vm('st')] + stats_ops(S8, TMP) + \
                [f'v_mul_f32 v{S8+2}, v{S8}, v{S8+1}', f'v_sub_f32 v{S8+2}, 0, v{S8+2}', f'ds_write2_b32 v{VSW}, v{S8}, v{S8+2} offset0:0 offset1:32']
        for i in range(4):
            sd[0] += [f'v_lshlrev_b32 v{U8+2*i}, 16, v{XR+i}', f'v_and_b32 v{U8+2*i+1}, 0xffff0000, v{XR+i}',
                     f'v_pk_fma_f32 v[{U8+2*i}:{U8+2*i+1}], v[{U8+2*i}:{U8+2*i+1}], v[{S8}:{S8+1}], v[{S8+2}:{S8+3}] op_sel_hi:[1,0,0]',
                     f'v_cvt_pk_bf16_f32 v{XR+i}, v{U8+2*i}, v{U8+2*i+1}']
        sd[0] += [lambda: a('s_mov_b64 exec, s[32:33]\n' + f'buffer_store_dwordx4 v[{XR}:{XR+3}], v13, {SRD}, s34 offen sc1\n' + 's_mov_b64 exec, -1', tag='xs')]
        for j in range(2):
            for i in range(2):
                sd[0] += [f'ds_read_b128 v[{RR+8*j+4*i}:{RR+8*j+4*i+3}], v{VSR} offset:{64*j+16*i}',
                          f'ds_read_b128 v[{NN+8*j+4*i}:{NN+8*j+4*i+3}], v{VSR} offset:{128+64*j+16*i}']
        last = sd[0].pop(); sd[0].append(lambda: a(last, tag='nn'))
        sd[1] = ['\n'.join(pick[i:i+4]) for i in range(0, len(pick), 4)] + [lambda: a(f'buffer_load_dword v{VNF}, v{VFL}, {SRD}, s42 offen sc1', tag='nf')]
        sd[11] = [lambda: a.wait_lg('nn')] + [f'v_pk_mul_f32 v[{TT+16*t+i}:{TT+16*t+i+1}], v[{NN+i}:{NN+i+1}], v[{CS+2*t}:{CS+2*t+1}] op_sel_hi:[1,0]' for t in range(2) for i in range(0, 16, 2)]
        def chk():
            a.wait_vm('nf')
            signal(a, 43, VZ, VONE, wait='')
            a(f'''
            v_cmp_eq_u32 vcc, 0, v{VNF}
            s_cmp_eq_u64 vcc, 0
            s_cselect_b32 s{S_PRE}, 1, 0
            s_cmp_eq_u32 s{S_L}, 0
            s_cselect_b32 s{S_PRE}, 1, s{S_PRE}
            s_cmp_ge_u32 s{S_S}, 64
            s_cselect_b32 s{S_PRE}, 0, s{S_PRE}
            s_cmp_eq_u32 s{S_PRE}, 1
            s_cselect_b64 vcc, -1, 0
            ''')
        def opt(d):
            def f():
                a.opt_begin('s_cbranch_vccz'); a(d); a.opt_end()
            return f
        at = {27 + 2 * j: opt(d) for j, (d, _) in enumerate(loads())}
        at[26] = chk
        def prevflag():
            a.wait_vm('us'); signal(a, 35, VZ, VONE, wait='')
        if is_warm: at[17] = prevflag
        def epi(t):
            o = []
            for i in range(0, 16, 2):
                c = ACC + 16 * t + i
                o.append(f'v_pk_fma_f32 v[{c}:{c+1}], v[{c}:{c+1}], v[{RR+i}:{RR+i+1}], v[{TT+16*t+i}:{TT+16*t+i+1}]')
                o.append(f'v_cvt_pk_bf16_f32 v{PK+8*t+i//2}, v{c}, v{c+1}')
                if i in (6, 14):
                    p = PK + 8 * t + (4 if i == 14 else 0)
                    o.append(f'buffer_store_dwordx4 v[{p}:{p+3}], v{VO}, {SRD}, s{S_O} offen offset:{1024 if i == 14 else 0} sc1')
            return o
        sd[32] = epi(0) + [f's_add_u32 s{S_O}, s{S_O}, 28672']
        def mm2(i):
            if i in (1, 6, 16, 26, 38): st.cyc({1: 1, 6: 2, 16: 3, 26: 4, 38: 5}[i])
            return mm(i)
        left = stream(a, len(seq), rd, mm2, {0: gate(a, ('d', 0)), 4: gate(a, ('d', 1)), 8: gate(a, ('d', 3)), 16: gate(a, ('d', 6))}, sd, per=4, depth=7, at=at)
        st.cyc(6)
        assert not left, left
        flush_side(a, epi(1))
        st(); st.cyc(7)
        st.flush(4 << 20, TMP, TMP + 1)
        a(f's_mov_b32 s35, s{S_F}')
        a(f's_cbranch_vccnz {warm}')
        a(f'buffer_load_dword v{VNF}, v{VFL}, {SRD}, s42 offen sc1')
        signal(a, S_F, VZ, VONE, wait='s_waitcnt vmcnt(1)')
        a(f'''
        s_cmp_ge_u32 s{S_S}, 64
        s_cbranch_scc1 {end}
        s_waitcnt vmcnt(1)
        v_cmp_eq_u32 vcc, 0, v{VNF}
        ''')
        a.br(f's_cbranch_vccz {cold}')
        a(f's_branch {cw}')
    for x in pick: a(x)
    a(f's_branch {cold}')
    a.label(cw)
    wait_flags(a, 42, VFL, TMP, sleep=1)
    a.label(cold); a.vm = []; a.lg = []
    for d, tg in loads(): a(d, tag=tg)
    task(False)
    a.label(warm); a.lg = []
    a.vm = [tg for _, tg in loads()] + [None, 'us']
    task(True)
    a.label(end)
    a('s_endpgm')

def role_F1(a, stamps=False, mode='sc1'):
    st = Stamps(a, stamps)
    W = lambda t, ks: 256 + 112 * t + 4 * ks
    VL16, VZ, VONE, VST, VFL, VFRB, VNF = 2, 4, 5, 6, 7, 11, 12
    VTU, VTA, VTS, VTD, VUF, VUR = 13, 14, 15, 16, 17, 10
    TMP = 18; S8 = 20; FR = 28
    ACC = 48
    CS = 80
    EX = 112
    PK = 120
    S_BUF, S_X, S_ST, S_O, S_FI, S_FO = 25, 26, 27, 28, 29, 30
    a(f'''
    s_lshl_b32 s{S_T0}, s{S_ROLE}, 2
    s_add_u32 s{S_T0}, s{S_T0}, s{S_W}
    s_load_dwordx4 s[48:51], s[0:1], 64
    v_lshlrev_b32 v{VL16}, 4, {lane}
    v_lshrrev_b32 v{TMP}, 2, {lane}
    v_mul_u32_u24 v{EX}, 3584, v{TMP}
    v_and_b32 v{TMP}, 3, {lane}
    v_lshl_add_u32 v{EX}, v{TMP}, 4, v{EX}
    s_lshl_b32 s{S_T2}, s{S_T0}, 6
    s_waitcnt lgkmcnt(0)
    s_mov_b32 s40, s48
    s_and_b32 s41, s49, 0xffff
    s_mov_b32 s42, {448*3584}
    s_mov_b32 s43, 0x00020000
    s_mov_b32 s44, s50
    s_and_b32 s45, s51, 0xffff
    s_mov_b32 s46, {448*3584}
    s_mov_b32 s47, 0x00020000
    ''')
    tr_addr(a, EX + 1, TMP, TMP + 1, 6, 10)
    load_w_tr(a, W, lambda ks, p: f'buffer_load_dwordx4 v{EX}, s[{40+4*p}:{43+4*p}], s{S_T2} offen lds' + (f'\ns_add_u32 s{S_T2}, s{S_T2}, {16*3584}' if p else ''), EX + 1, 32, 256)
    a(f'''
    s_mul_i32 s{S_O}, s{S_LAYER}, {64*L.HB_SZ}
    s_lshl_b32 s{S_T1}, s{S_T0}, 11
    s_add_u32 s{S_O}, s{S_O}, s{S_T1}
    s_add_u32 s{S_O}, s{S_O}, {L.HB}
    s_lshl_b32 s{S_T1}, s{S_LAYER}, 15
    s_add_u32 s{S_FI}, s{S_T1}, {L.flag(L.FL_P)}
    s_lshl_b32 s{S_FO}, s{S_T0}, 2
    s_add_u32 s{S_FO}, s{S_FO}, s{S_T1}
    s_add_u32 s{S_FO}, s{S_FO}, {L.flag(L.FL_H)}
    s_mul_i32 s{S_X}, s{S_LAYER}, {128*L.XN_SZ}
    s_add_u32 s{S_X}, s{S_X}, {L.XS + 64*L.XN_SZ}
    s_lshl_b32 s{S_ST}, s{S_LAYER}, 18
    s_add_u32 s{S_ST}, s{S_ST}, {L.ST + 64*L.ST_SZ}
    v_mov_b32 v{VZ}, 0
    v_mov_b32 v{VONE}, 1
    v_lshrrev_b32 v{TMP}, 5, {lane}
    v_and_b32 v{TMP+1}, 31, {lane}
    v_mov_b32 v{VST}, v{VL16}
    v_min_u32 v{VFL}, 27, {lane}
    v_lshrrev_b32 v{VZ}, 3, v{VFL}
    v_mul_u32_u24 v{VZ}, 24, v{VZ}
    v_add_lshl_u32 v{VFL}, v{VFL}, v{VZ}, 2
    v_mov_b32 v{VZ}, 0
    v_mov_b32 v{FR}, 0x3f803f80
    v_mov_b32 v{FR+1}, 0x3f803f80
    v_mov_b32 v{FR+2}, 0x3f803f80
    v_mov_b32 v{FR+3}, 0x3f803f80
    s_mov_b32 s{S_BUF}, 0
    s_mov_b32 s{S_STEP}, 0
    s_waitcnt vmcnt(0)
    ''')
    for ks in range(28):
        for t in range(2):
            c = f'v[{CS+16*t}:{CS+16*t+15}]'
            a(f'v_mfma_f32_32x32x16_bf16 {c}, {R(W(t,ks),4)}, v[{FR}:{FR+3}], {"0" if ks == 0 else c}')
    a(f'''
    s_lshl_b32 s36, s{S_W}, 10
    s_add_u32 s{S_X}, s{S_X}, s36
    s_mov_b64 vcc, 0
    s_mov_b32 s42, 0
    v_mov_b32 v{VNF}, 0
    s_lshl_b32 s{S_T0}, s{S_ROLE}, 2
    s_add_u32 s{S_T0}, s{S_T0}, s{S_W}
    v_lshlrev_b32 v{VTU}, 7, {lane}
    s_mul_i32 s39, s{S_LAYER}, {64*L.UX_SZ}
    s_lshl_b32 s{S_T1}, s{S_T0}, 13
    s_add_u32 s39, s39, s{S_T1}
    s_add_u32 s39, s39, {L.UX + 3*L.UX_SZ}
    s_lshl_b32 s44, s{S_LAYER}, 15
    s_add_u32 s44, s44, {L.flag(L.FL_PROG) + 256}
    v_add_u32 v{VTA}, s{S_O}, v{VTU}
    v_mov_b32 v{VTS}, {L.HB_SZ}
    s_mul_i32 s{S_T1}, s{S_LAYER}, {128*L.XN_SZ}
    s_lshl_b32 s{S_T2}, s{S_T0}, 9
    s_add_u32 s{S_T1}, s{S_T1}, s{S_T2}
    s_add_u32 s{S_T1}, s{S_T1}, {L.XS + 64*L.XN_SZ - 2048}
    v_add_u32 v{TMP}, s{S_T1}, v{VTU}
    v_mov_b32 v{TMP+1}, {L.XN_SZ}
    v_cmp_gt_u32 vcc, 16, {lane}
    v_cndmask_b32 v{VTA}, v{TMP}, v{VTA}, vcc
    v_cndmask_b32 v{VTS}, v{TMP+1}, v{VTS}, vcc
    s_and_b32 s{S_T2}, s{S_T0}, 15
    s_lshl_b32 s{S_T2}, s{S_T2}, 7
    s_add_u32 s{S_T2}, s{S_T2}, s{S_ST}
    v_mov_b32 v{TMP}, s{S_T2}
    v_mov_b32 v{TMP+1}, {L.ST_SZ}
    v_cmp_gt_u32 vcc, 20, {lane}
    v_cndmask_b32 v{VTA}, v{TMP}, v{VTA}, vcc
    v_cndmask_b32 v{VTS}, v{TMP+1}, v{VTS}, vcc
    s_cmp_lt_u32 s{S_T0}, 32
    s_cselect_b32 s46, 0xf0000, 0
    s_bitcmp0_b32 s{S_T0}, 3
    s_cselect_b32 s47, 0x100000, 0
    s_or_b32 s46, s46, s47
    s_or_b32 s46, s46, 0xffff
    s_mov_b32 s47, 0
    s_mov_b64 exec, s[46:47]
    buffer_load_dword v{VTD}, v{VTA}, {SRD}, 0 offen sc1
    s_mov_b64 exec, -1
    v_add_u32 v{VTA}, v{VTA}, v{VTS}
    s_mov_b64 exec, s[46:47]
    buffer_load_dword v{VTD}, v{VTA}, {SRD}, 0 offen sc1
    s_mov_b64 exec, -1
    v_add_u32 v{VTA}, v{VTA}, v{VTS}
    s_mov_b64 vcc, 0
    ''')
    def body(mode):
        loop, nd = a.newlabel('F1_LOOP'), a.newlabel('F1_ND')
        a.flush(); a.label(loop); a.vm = []; a.lg = []
        a(f's_add_u32 s37, s{S_BUF}, s36')
        a.br(f's_cbranch_vccnz {nd}')
        a(f'v_cmp_eq_u32 vcc, 0, v{VNF}')
        a.opt_begin('s_cbranch_vccz')
        wait_flags(a, S_FI, VFL, TMP, sleep=1)
        a.opt_end()
        for j, d in enumerate(dma_list(S_X, 37, VL16)): a(d, tag=('d', j))
        a.label(nd)
        st()
        a(f'buffer_load_dwordx4 v[{S8}:{S8+3}], v{VST}, {SRD}, s{S_ST} offen sc1')
        a(f'buffer_load_dwordx4 v[{S8+4}:{S8+7}], v{VST}, {SRD}, s{S_ST} offen offset:1024 sc1', tag='st')
        a(f'''
        v_add_u32 v{VFRB}, s{S_BUF}, v{VL16}
        s_xor_b32 s{S_BUF}, s{S_BUF}, {XBUF}
        s_add_u32 s37, s{S_BUF}, s36
        s_add_u32 s{S_ST}, s{S_ST}, {L.ST_SZ}
        s_add_u32 s{S_FI}, s{S_FI}, 512
        ''')
        def touch():
            if not mode: a(f'''
            s_add_u32 s{S_T0}, s{S_STEP}, s{S_LAYER}
            s_bitcmp0_b32 s{S_T0}, 0
            s_cselect_b64 exec, -1, s[46:47]
            buffer_load_dword v{VTD}, v{VTA}, {SRD}, 0 offen sc1
            s_mov_b64 exec, -1
            v_add_u32 v{VTA}, v{VTA}, v{VTS}''')
        seq = [(k, (0, 1)) for k in range(8)] + [(k, (0,)) for k in range(8, 28)] + [(k, (1,)) for k in range(8, 28)]
        rd = lambda i: f'ds_read_b128 v[{FQ+4*(i%8)}:{FQ+4*(i%8)+3}], v{VFRB} offset:{1024*seq[i][0]}'
        def mm(i):
            ks, tiles = seq[i]; out = []
            for t in tiles:
                c = f'v[{ACC+16*t}:{ACC+16*t+15}]'
                out.append(f'v_mfma_f32_32x32x16_bf16 {c}, {R(W(t,ks),4)}, v[{FQ+4*(i%8)}:{FQ+4*(i%8)+3}], {"0" if ks == 0 else c}')
            return out
        sto = stats_ops(S8, TMP) + [f'v_sub_f32 v{S8+2}, 0, v{S8+1}', f'v_mul_f32 v{S8+4}, {hex(f2u(-LOG2E))}, v{S8}', f'v_mov_b32 v{S8+6}, v{TMP+1}']
        def epi(t):
            c = ACC + 16 * t; o = []
            for i in range(0, 16, 2):
                o.append(f'v_pk_fma_f32 v[{c+i}:{c+i+1}], v[{CS+16*t+i}:{CS+16*t+i+1}], v[{S8+2}:{S8+3}], v[{c+i}:{c+i+1}] op_sel_hi:[1,0,1]')
            for i in range(0, 8, 2): o.append(f'v_pk_mul_f32 v[{EX+i}:{EX+i+1}], v[{c+i}:{c+i+1}], v[{S8+4}:{S8+5}] op_sel_hi:[1,0]')
            for i in range(8): o.append(f'v_exp_f32 v{EX+i}, v{EX+i}')
            for i in range(0, 8, 2): o.append(f'v_pk_mul_f32 v[{c+i}:{c+i+1}], v[{c+i}:{c+i+1}], v[{c+8+i}:{c+9+i}]')
            for i in range(0, 8, 2): o.append(f'v_pk_fma_f32 v[{EX+i}:{EX+i+1}], v[{EX+i}:{EX+i+1}], v[{S8+6}:{S8+7}], v[{S8+6}:{S8+7}] op_sel_hi:[1,0,0]')
            for i in range(8): o.append(f'v_rcp_f32 v{EX+i}, v{EX+i}')
            for i in range(0, 8, 2): o.append(f'v_pk_mul_f32 v[{c+i}:{c+i+1}], v[{c+i}:{c+i+1}], v[{EX+i}:{EX+i+1}]')
            for i in range(0, 8, 2): o.append(f'v_cvt_pk_bf16_f32 v{PK+4*t+i//2}, v{c+i}, v{c+i+1}')
            o.append(f'buffer_store_dwordx4 v[{PK+4*t}:{PK+4*t+3}], v{VL16}, {SRD}, s{S_O} offen offset:{1024*t} {mode}')
            return o
        def optdma(d):
            def f():
                a.opt_begin('s_cbranch_vccz'); a(d); a.opt_end()
            return f
        def chk():
            a.wait_vm('nf')
            a(f'v_cmp_eq_u32 vcc, 0, v{VNF}')
            a('s_cmp_eq_u64 vcc, 0')
            a('s_cselect_b64 vcc, -1, 0')
        sd = {13: [lambda: a(f'buffer_load_dword v{VNF}, v{VFL}, {SRD}, s{S_FI} offen sc1', tag='nf'), lambda: a.wait_vm('st')] + sto,
              27: [chk], 31: epi(0)}
        dl = dma_list(S_X, 37, VL16)
        e0 = epi(0)
        def prevflag():
            a('s_cmp_eq_u32 s42, 1')
            a.opt_begin('s_cbranch_scc0')
            signal(a, 43, VZ, VONE, mode, wait='')
            a.opt_end()
        sd = {6: [lambda: a.wait_vm('st'), prevflag, touch], 8: sto,
              28: [lambda: a(f'buffer_load_dword v{VNF}, v{VFL}, {SRD}, s{S_FI} offen sc1', tag='nf')],
              30: e0}
        at = {38: chk}
        for j in range(5): at[39 + 2 * j] = optdma(dl[j])
        st.cyc(0)
        mm0 = mm
        def mm(i):
            if i in (1, 8, 18, 28, 38): st.cyc({1: 1, 8: 2, 18: 3, 28: 4, 38: 5}[i])
            return mm0(i)
        left = stream(a, len(seq), rd, mm, {0: gate(a, ('d', 0)), 4: gate(a, ('d', 1)), 8: gate(a, ('d', 3)), 16: gate(a, ('d', 6))}, sd, per=6, depth=7, at=at)
        st.cyc(6)
        print('F1 leftover', len(left))
        flush_side(a, left)
        e1 = epi(1)
        flush_side(a, e1[:12] + [optdma(dl[5])] + e1[12:24] + [optdma(dl[6])] + e1[24:-1])
        a(f'buffer_load_dword v{VNF}, v{VFL}, {SRD}, s{S_FI} offen sc1')
        a(e1[-1])
        st(); st.cyc(7)
        a(f'''
        s_mov_b32 s43, s{S_FO}
        s_cmp_eq_u32 s{S_STEP}, 63
        s_cselect_b64 vcc, 0, vcc
        s_mov_b32 s42, 1
        ''')
        a.opt_begin('s_cbranch_vccnz')
        a('s_mov_b32 s42, 0')
        signal(a, S_FO, VZ, VONE, mode)
        a.opt_end()
        st()
        st.flush(10 << 20, TMP, TMP + 1)
        a(f'''
        s_add_u32 s{S_O}, s{S_O}, {L.HB_SZ}
        s_add_u32 s{S_FO}, s{S_FO}, 512
        s_add_u32 s{S_STEP}, s{S_STEP}, 1
        s_cmp_lt_u32 s{S_STEP}, 64
        s_cbranch_scc1 {loop}
        s_endpgm
        ''')
    mode_split(a, body, TMP)

PH, PQ, PT, PW = 544, 1184, 4736, 9472
def red_setup(a, VRW, VRR, VXO, VSO, TMP, base=0, il=False):
    a(f'''
    v_lshrrev_b32 v{TMP}, 5, {lane}
    v_mul_u32_u24 v{VRW}, {PH}, v{TMP}
    v_and_b32 v{TMP}, 31, {lane}
    v_lshl_add_u32 v{VRW}, v{TMP}, 4, v{VRW}
    s_mul_i32 s{S_T0}, s{S_W}, {PW}
    s_add_u32 s{S_T0}, s{S_T0}, {base}
    v_add_u32 v{VRW}, s{S_T0}, v{VRW}
    v_and_b32 v{TMP}, 1, {lane}
    v_mul_u32_u24 v{VRR}, {PH}, v{TMP}
    v_bfe_u32 v{TMP}, {lane}, 1, 1
    v_mul_u32_u24 v{TMP}, {2*PQ}, v{TMP}
    v_add_u32 v{VRR}, v{VRR}, v{TMP}
    v_bfe_u32 v{TMP}, {lane}, 2, 1
    v_mul_u32_u24 v{TMP}, {PT}, v{TMP}
    v_add_u32 v{VRR}, v{VRR}, v{TMP}
    v_lshrrev_b32 v{TMP}, 3, {lane}
    s_lshl_b32 s{S_T0}, s{S_W}, 3
    v_add_u32 v{TMP}, s{S_T0}, v{TMP}
    v_lshl_add_u32 v{VRR}, v{TMP}, 4, v{VRR}
    v_add_u32 v{VRR}, {base}, v{VRR}
    v_and_b32 v{VXO}, 7, {lane}
    s_lshl_b32 s{S_T0}, s{S_ROLE}, 3
    v_add_u32 v{VXO}, s{S_T0}, v{VXO}
    v_lshlrev_b32 v{VXO}, 9, v{VXO}
    v_lshl_add_u32 v{VXO}, v{TMP}, 4, v{VXO}
    s_lshr_b32 s{S_T1}, s{S_ROLE}, 1
    s_lshl_b32 s{S_T1}, s{S_T1}, 9
    s_and_b32 s{S_T2}, s{S_T0}, 8
    s_add_u32 s{S_T1}, s{S_T1}, s{S_T2}
    v_lshlrev_b32 v{VSO}, 4, v{TMP}
    v_add_u32 v{VSO}, s{S_T1}, v{VSO}
    s_mov_b32 s36, 0x01010101
    s_mov_b32 s37, 0x01010101
    ''')

def red_epilogue(a, ACC, VRW, VRR, XRES, T, store_x, store_st, lds_off=0, extra=(), st=None, il=False):
    extra = list(extra)
    for _ in range(2):
        if extra: extra.pop(0)()
    for t in range(2):
        for rq in range(4):
            a(f'ds_write_b128 v{VRW}, v[{ACC+16*t+4*rq}:{ACC+16*t+4*rq+3}] offset:{lds_off+t*PT+((0,2,1,3)[rq] if il else rq)*PQ}')
            if extra: extra.pop(0)()
    X = ACC
    for x in extra: x()
    a('s_waitcnt lgkmcnt(0)')
    if st: st.cyc(4)
    a('s_barrier')
    if st: st.cyc(5)
    for w in range(4):
        for j in range(2):
            a(f'ds_read_b128 v[{T+8*w+4*j}:{T+8*w+4*j+3}], v{VRR} offset:{lds_off+w*PW+j*PQ}')
    lo = (lambda i: X + i) if il else (lambda i: X + 2 * i)
    hi = (lambda i: X + 4 + i) if il else (lambda i: X + 2 * i + 1)
    for i in range(4):
        a(f'v_lshlrev_b32 v{lo(i)}, 16, v{XRES+i}')
        a(f'v_and_b32 v{hi(i)}, 0xffff0000, v{XRES+i}')
    for w in range(4):
        a(f's_waitcnt lgkmcnt({6-2*w})')
        for i in range(0, 8, 2):
            a(f'v_pk_add_f32 v[{X+i}:{X+i+1}], v[{X+i}:{X+i+1}], v[{T+8*w+i}:{T+8*w+i+1}]')
    for i in range(4): a(f'v_cvt_pk_bf16_f32 v{XRES+i}, v{lo(i)}, v{hi(i)}')
    if st: st.cyc(6)
    store_x(XRES)
    if store_st is None: return
    for i in range(4):
        a(f'v_lshlrev_b32 v{X+2*i}, 16, v{XRES+i}')
        a(f'v_and_b32 v{X+2*i+1}, 0xffff0000, v{XRES+i}')
    a(f'v_pk_add_f32 v[{T}:{T+1}], v[{X}:{X+1}], v[{X+2}:{X+3}]')
    a(f'v_pk_mul_f32 v[{T+2}:{T+3}], v[{X}:{X+1}], v[{X}:{X+1}]')
    a(f'v_pk_add_f32 v[{T+4}:{T+5}], v[{X+4}:{X+5}], v[{X+6}:{X+7}]')
    for i in (2, 4, 6): a(f'v_pk_fma_f32 v[{T+2}:{T+3}], v[{X+i}:{X+i+1}], v[{X+i}:{X+i+1}], v[{T+2}:{T+3}]')
    a(f'v_pk_add_f32 v[{T}:{T+1}], v[{T}:{T+1}], v[{T+4}:{T+5}]')
    a(f'v_add_f32 v{T}, v{T}, v{T+1}')
    a(f'v_add_f32 v{T+1}, v{T+2}, v{T+3}')
    for d in ('quad_perm:[1,0,3,2]', 'quad_perm:[2,3,0,1]', 'row_half_mirror'):
        for r in (T, T + 1): a(f'v_add_f32_dpp v{r}, v{r}, v{r} {d} row_mask:0xf bank_mask:0xf')
    a('s_mov_b64 exec, s[36:37]')
    store_st(T)
    a('s_mov_b64 exec, -1')

def red_list(a, ACC, VRW, VRR, XRES, T, store_x, store_st):
    o = []
    for t in range(2):
        for rq in range(4): o.append(f'ds_write_b128 v{VRW}, v[{ACC+16*t+4*rq}:{ACC+16*t+4*rq+3}] offset:{t*PT+rq*PQ}')
    X = ACC
    o += [None] * 3
    o.append('s_waitcnt lgkmcnt(0)\ns_barrier')
    for w in range(4):
        for j in range(2): o.append(f'ds_read_b128 v[{T+8*w+4*j}:{T+8*w+4*j+3}], v{VRR} offset:{w*PW+j*PQ}')
    for i in range(4): o += [f'v_lshlrev_b32 v{X+2*i}, 16, v{XRES+i}', f'v_and_b32 v{X+2*i+1}, 0xffff0000, v{XRES+i}']
    for w in range(4):
        o.append(f's_waitcnt lgkmcnt({6-2*w})')
        for i in range(0, 8, 2): o.append(f'v_pk_add_f32 v[{X+i}:{X+i+1}], v[{X+i}:{X+i+1}], v[{T+8*w+i}:{T+8*w+i+1}]')
    for i in range(4): o.append(f'v_cvt_pk_bf16_f32 v{XRES+i}, v{X+2*i}, v{X+2*i+1}')
    o.append(store_x)
    if store_st is None: return o
    for i in range(4): o += [f'v_lshlrev_b32 v{X+2*i}, 16, v{XRES+i}', f'v_and_b32 v{X+2*i+1}, 0xffff0000, v{XRES+i}']
    o += [f'v_pk_add_f32 v[{T}:{T+1}], v[{X}:{X+1}], v[{X+2}:{X+3}]', f'v_pk_mul_f32 v[{T+2}:{T+3}], v[{X}:{X+1}], v[{X}:{X+1}]',
          f'v_pk_add_f32 v[{T+4}:{T+5}], v[{X+4}:{X+5}], v[{X+6}:{X+7}]']
    for i in (2, 4, 6): o.append(f'v_pk_fma_f32 v[{T+2}:{T+3}], v[{X+i}:{X+i+1}], v[{X+i}:{X+i+1}], v[{T+2}:{T+3}]')
    o += [f'v_pk_add_f32 v[{T}:{T+1}], v[{T}:{T+1}], v[{T+4}:{T+5}]', f'v_add_f32 v{T}, v{T}, v{T+1}', f'v_add_f32 v{T+1}, v{T+2}, v{T+3}']
    for d in ('quad_perm:[1,0,3,2]', 'quad_perm:[2,3,0,1]', 'row_half_mirror'):
        for r in (T, T + 1): o.append(f'v_add_f32_dpp v{r}, v{r}, v{r} {d} row_mask:0xf bank_mask:0xf')
    o.append(store_st)
    return o

def role_F2(a, stamps=False, mode='sc1'):
    st = Stamps(a, stamps)
    W = lambda t, kk: 256 + 112 * t + 4 * kk
    VL16, VZ, VONE, VFL, VRW, VRR, VXO, VSO, VOUT = 2, 4, 5, 7, 8, 9, 10, 11, 12
    TMP = 18; XRES = 20; ACC = 48; T = 80; H = 112
    S_H, S_XI, S_XO, S_SO, S_FI, S_FO = 25, 26, 27, 28, 29, 30
    OSRD = 's[40:43]'
    a(f'''
    s_load_dwordx4 s[48:51], s[0:1], 80
    s_lshl_b32 s{S_T0}, s{S_ROLE}, 2
    s_add_u32 s{S_T0}, s{S_T0}, s{S_W}
    v_lshlrev_b32 v{VL16}, 4, {lane}
    v_lshrrev_b32 v{TMP}, 3, {lane}
    v_mul_u32_u24 v{H}, 896, v{TMP}
    v_and_b32 v{TMP}, 7, {lane}
    v_lshl_add_u32 v{H}, v{TMP}, 4, v{H}
    s_mul_i32 s{S_T2}, s{S_W}, {448*896}
    s_lshl_b32 s{S_T1}, s{S_ROLE}, 7
    s_add_u32 s{S_T2}, s{S_T2}, s{S_T1}
    s_waitcnt lgkmcnt(0)
    s_mov_b32 s44, s48
    s_and_b32 s45, s49, 0xffff
    s_mov_b32 s46, {1792*896}
    s_mov_b32 s47, 0x00020000
    s_mov_b32 s40, s50
    s_and_b32 s41, s51, 0xffff
    s_mov_b32 s42, {2048*896}
    s_mov_b32 s43, 0x00020000
    ''')
    tr_addr(a, H + 1, TMP, TMP + 1, 7, 5)
    load_w_tr(a, W, lambda ks, p: f'buffer_load_dwordx4 v{H}, s[44:47], s{S_T2} offen lds\ns_add_u32 s{S_T2}, s{S_T2}, {8*896}', H + 1, 64, 512)
    a(f'''
    s_mul_i32 s{S_H}, s{S_LAYER}, {64*L.HB_SZ}
    s_mul_i32 s{S_T1}, s{S_W}, 28672
    s_add_u32 s{S_H}, s{S_H}, s{S_T1}
    s_add_u32 s{S_H}, s{S_H}, {L.HB}
    s_lshl_b32 s{S_T1}, s{S_LAYER}, 15
    s_mul_i32 s{S_FI}, s{S_W}, 56
    s_add_u32 s{S_FI}, s{S_FI}, s{S_T1}
    s_add_u32 s{S_FI}, s{S_FI}, {L.flag(L.FL_H)}
    s_lshl_b32 s{S_FO}, s{S_T0}, 2
    s_add_u32 s{S_FO}, s{S_FO}, s{S_T1}
    s_add_u32 s{S_FO}, s{S_FO}, {L.flag(L.FL_X)}
    s_lshr_b32 s{S_T1}, s{S_ROLE}, 1
    s_mul_i32 s{S_T1}, s{S_T1}, 96
    s_add_u32 s{S_FO}, s{S_FO}, s{S_T1}
    s_mul_i32 s{S_XI}, s{S_LAYER}, {128*L.XN_SZ}
    s_add_u32 s{S_XI}, s{S_XI}, {L.XS + 64*L.XN_SZ}
    s_mov_b32 s{S_XO}, {L.XS + 128*L.XN_SZ}
    s_mov_b32 s{S_SO}, {L.ST + 128*L.ST_SZ}
    v_mov_b32 v{VZ}, 0
    v_mov_b32 v{VONE}, 1
    v_min_u32 v{VFL}, 13, {lane}
    v_lshlrev_b32 v{VFL}, 2, v{VFL}
    s_mov_b32 s{S_STEP}, 0
    s_mov_b32 s35, 0
    ''')
    red_setup(a, VRW, VRR, VXO, VSO, TMP)
    a(f'''
    v_mul_u32_u24 v{VOUT}, 896, v{TMP}
    v_and_b32 v{TMP}, 7, {lane}
    v_add_u32 v{TMP}, s{S_T0}, v{TMP}
    v_lshl_add_u32 v{VOUT}, v{TMP}, 4, v{VOUT}
    ''')
    VNF = 13
    AH = 12
    AC = (48, 224); XRS = (20, 24); RW = (VRW, 14); RD = (VRR, 15)
    a(f'v_add_u32 v14, {4*PW}, v{VRW}')
    a(f'v_add_u32 v15, {4*PW}, v{VRR}')
    def ldt(kk):
        x = f'buffer_load_dwordx4 v[{H+4*kk}:{H+4*kk+3}], v{VL16}, {SRD}, s{S_H} offen offset:{(kk % 4) * 1024} sc1'
        if kk % 4 == 3: x += f'\ns_add_u32 s{S_H}, s{S_H}, {4096 if kk < 27 else L.HB_SZ - 6 * 4096}'
        return x
    def ld(kk): a(ldt(kk), tag=('h', kk))
    def gen(layer):
        lab = {(k, b): a.newlabel(f'F2_{k}{b}') for k in 'CWP' for b in range(2)}
        def epi(b):
            r = XRS[b]
            if layer == 0:
                sx = lambda: a(f'buffer_store_dwordx4 v[{r}:{r+3}], v{VXO}, {SRD}, s{S_XO} offen sc1\ns_add_u32 s{S_XO}, s{S_XO}, {L.XN_SZ}')
                ss = lambda: a(f's_mov_b64 exec, s[36:37]\nbuffer_store_dwordx2 v[{T}:{T+1}], v{VSO}, {SRD}, s{S_SO} offen sc1\ns_mov_b64 exec, -1\ns_add_u32 s{S_SO}, s{S_SO}, {L.ST_SZ}', tag='so')
            else:
                sx = lambda: a(f'buffer_store_dwordx4 v[{r}:{r+3}], v{VOUT}, {OSRD}, s35 offen\ns_add_u32 s35, s35, {32*896}')
                ss = None
            return red_list(a, AC[b], RW[b], RD[b], r, T, sx, ss)
        def flag():
            if layer == 0:
                a.wait_vm('so'); signal(a, S_FO, VZ, VONE, 'sc1', wait='')
                a(f's_add_u32 s{S_FO}, s{S_FO}, 512')
        def steps(b, k0, k1, side, pre, pend=False):
            for kk in range(k0, k1):
                a.wait_vm(('h', kk))
                if pend and kk == 11: flag()
                for t in range(2):
                    c = f'v[{AC[b]+16*t}:{AC[b]+16*t+15}]'
                    a(f'v_mfma_f32_32x32x16_bf16 {c}, {R(W(t,kk),4)}, v[{H+4*kk}:{H+4*kk+3}], {"0" if kk == 0 else c}')
                    budget = 4
                    if t == 0:
                        budget = 3
                        if kk == 3: a(f'buffer_load_dword v{VNF}, v{VFL}, {SRD}, s{S_FI} offen sc1')
                        if kk == 15: a(f'buffer_load_dwordx4 v[{XRS[b]}:{XRS[b]+3}], v{VXO}, {SRD}, s{S_XI} offen sc1\ns_add_u32 s{S_XI}, s{S_XI}, {L.XN_SZ}')
                        if kk + AH < 28: ld(kk + AH)
                        elif pre: a(ldt(kk + AH - 28), tag=('n', kk + AH - 28))
                        elif kk == 21: a(f'buffer_load_dword v{VNF}, v{VFL}, {SRD}, s{S_FI} offen sc1', tag='nf2')
                    while side and budget > 0:
                        x = side.pop(0)
                        if x is None: break
                        x() if callable(x) else a(x)
                        budget -= 4 if (not callable(x) and x.startswith('ds_write')) else 1
        def main(b, warm, pend=False):
            st()
            a(f's_add_u32 s{S_FI}, s{S_FI}, 512')
            side = [None] * 2 + [y for x in epi(1 - b) for y in (unpk([x]) if x else [x])] if warm else []
            steps(b, 0, 16, side, False, pend)
            np_ = a.newlabel('F2_NP')
            a(f'''
            s_add_u32 s{S_STEP}, s{S_STEP}, 1
            v_cmp_eq_u32 vcc, 0, v{VNF}
            s_cmp_eq_u32 s{S_STEP}, 64
            s_cselect_b64 vcc, -1, vcc
            ''')
            a.br(f's_cbranch_vccnz {np_}')
            state = (list(a.vm), list(a.lg), list(a.hist), st.n)
            def tail(pre):
                sd = list(side)
                steps(b, 16, 28, sd, pre)
                assert not sd
                if warm: flag()
                st()
                if stamps: a(f's_sub_u32 s34, s{S_STEP}, 1')
                st.flush(12 << 20, TMP, TMP + 1, sstep=34)
            tail(True)
            a(f's_branch {lab[("W", 1 - b)]}')
            a.label(np_); a.vm, a.lg, a.hist, st.n = list(state[0]), list(state[1]), list(state[2]), state[3]
            tail(False)
            cold = a.newlabel('F2_CE')
            a.wait_vm('nf2')
            a(f'''
            v_cmp_eq_u32 vcc, 0, v{VNF}
            s_cmp_eq_u32 s{S_STEP}, 64
            s_cselect_b64 vcc, -1, vcc
            ''')
            a.br(f's_cbranch_vccnz {cold}')
            state = (list(a.vm), list(a.lg), list(a.hist))
            k = 0
            for x in [None, None] + epi(b):
                if x: x() if callable(x) else a(x)
                if k < AH: a(ldt(k)); k += 1
            a(f's_branch {lab[("P", 1 - b)]}')
            a.label(cold); a.vm, a.lg, a.hist = state
            for x in epi(b):
                if x: x() if callable(x) else a(x)
            a(f'buffer_load_dword v{VNF}, v{VFL}, {SRD}, s{S_FI} offen sc1', tag='nf')
            flag()
            a(f's_cmp_ge_u32 s{S_STEP}, 64')
            a.opt_begin('s_cbranch_scc0'); a('s_endpgm'); a.opt_end()
            a.wait_vm('nf')
            a(f's_branch {lab[("C", 1 - b)]}')
        a(f'v_mov_b32 v{VNF}, 0')
        for b in range(2):
            a.flush(); a.label(lab[('C', b)]); a.vm = []; a.lg = []
            a(f'v_cmp_eq_u32 vcc, 0, v{VNF}')
            a.opt_begin('s_cbranch_vccz')
            wait_flags(a, S_FI, VFL, TMP, sleep=1)
            a.opt_end()
            for kk in range(AH): ld(kk)
            main(b, False)
            a.label(lab[('W', b)]); a.vm = [('h', kk) for kk in range(AH)]; a.lg = []
            main(b, True)
            a.label(lab[('P', b)]); a.vm = [('h', kk) for kk in range(AH)] + ([None, 'so'] if layer == 0 else [None]); a.lg = []
            main(b, False, True)
    l1 = a.newlabel('F2_L1')
    a(f's_cmp_eq_u32 s{S_LAYER}, 1')
    a(f's_cbranch_scc1 {l1}')
    gen(0)
    a.label(l1)
    gen(1)

def role_PU(a, stamps=False, mode='sc1'):
    st = Stamps(a, stamps)
    VL16, VZ, VONE, VFU, VRW, VRR, VXO, VSO, VUX, VUM, VFT, VFM = 2, 4, 5, 7, 8, 9, 10, 11, 12, 13, 14, 15
    TMP = 18; XRES = 20; ACC = 48; T = 80
    UF = lambda t, k: 112 + 40 * t + 4 * k
    PF = lambda k: 192 + 4 * k
    S_UX, S_UM, S_PX, S_XI, S_XO, S_SO, S_FL, S_FO = 21, 22, 23, 24, 25, 26, 27, 28
    a(f'''
    v_lshlrev_b32 v{VL16}, 4, {lane}
    v_mov_b32 v{VZ}, 0
    v_mov_b32 v{VONE}, 1
    ''')
    red_setup(a, VRW, VRR, VXO, VSO, TMP, il=True)
    a(f'''
    v_mov_b32 v{VUX}, v{VL16}
    v_and_b32 v{VUM}, 15, {lane}
    v_lshlrev_b32 v{VUM}, 4, v{VUM}
    v_bfe_u32 v{TMP}, {lane}, 4, 1
    v_lshl_add_u32 v{VUM}, v{TMP}, 10, v{VUM}
    v_lshrrev_b32 v{TMP}, 5, {lane}
    v_lshl_add_u32 v{VUM}, v{TMP}, 8, v{VUM}
    v_and_b32 v{VFU}, 1, {lane}
    v_mul_u32_u24 v{VFU}, 14, v{VFU}
    v_bfe_u32 v{TMP}, {lane}, 1, 1
    v_add_u32 v{VFU}, v{VFU}, v{TMP}
    s_mul_i32 s{S_T0}, s{S_W}, 28
    s_lshl_b32 s{S_T1}, s{S_ROLE}, 1
    s_add_u32 s{S_T0}, s{S_T0}, s{S_T1}
    v_add_u32 v{VFU}, s{S_T0}, v{VFU}
    v_lshrrev_b32 v{TMP}, 3, v{VFU}
    v_mul_u32_u24 v{TMP}, 24, v{TMP}
    v_add_lshl_u32 v{VFU}, v{VFU}, v{TMP}, 2
    v_add_u32 v{VFU}, {L.FLU}, v{VFU}
    ; T flags: 16w + (l&15)
    v_and_b32 v{VFT}, 15, {lane}
    s_lshl_b32 s{S_T0}, s{S_W}, 5
    v_add_u32 v{VFT}, s{S_T0}, v{VFT}
    v_lshlrev_b32 v{VFT}, 2, v{VFT}
    v_add_u32 v{VFT}, {L.flag(L.FL_T)}, v{VFT}
    v_and_b32 v{VFM}, 1, {lane}
    v_add_u32 v{VFM}, s{S_T1}, v{VFM}
    v_lshlrev_b32 v{VFM}, 2, v{VFM}
    v_add_u32 v{VFM}, s{S_W}, v{VFM}
    v_lshlrev_b32 v{VFM}, 2, v{VFM}
    v_add_u32 v{VFM}, {L.flag(L.FL_UM)}, v{VFM}
    s_lshl_b32 s{S_FL}, s{S_LAYER}, 15
    s_lshl_b32 s{S_T0}, s{S_ROLE}, 2
    s_add_u32 s{S_T0}, s{S_T0}, s{S_W}
    s_lshl_b32 s{S_FO}, s{S_T0}, 2
    s_add_u32 s{S_FO}, s{S_FO}, s{S_FL}
    s_add_u32 s{S_FO}, s{S_FO}, {L.flag(L.FL_P)}
    s_lshr_b32 s{S_T1}, s{S_ROLE}, 1
    s_mul_i32 s{S_T1}, s{S_T1}, 96
    s_add_u32 s{S_FO}, s{S_FO}, s{S_T1}
    s_mul_i32 s{S_UX}, s{S_LAYER}, {64*L.UX_SZ}
    s_mul_i32 s{S_T0}, s{S_W}, {4*28672}
    s_add_u32 s{S_UX}, s{S_UX}, s{S_T0}
    s_lshl_b32 s{S_T0}, s{S_ROLE}, 12
    s_add_u32 s{S_UX}, s{S_UX}, s{S_T0}
    s_add_u32 s{S_UX}, s{S_UX}, {L.UX}
    s_mul_i32 s{S_UM}, s{S_LAYER}, {64*L.UM_SZ}
    s_lshl_b32 s{S_T0}, s{S_ROLE}, 14
    s_add_u32 s{S_UM}, s{S_UM}, s{S_T0}
    s_lshl_b32 s{S_T0}, s{S_W}, 11
    s_add_u32 s{S_UM}, s{S_UM}, s{S_T0}
    s_add_u32 s{S_UM}, s{S_UM}, {L.UM}
    s_mul_i32 s{S_PX}, s{S_LAYER}, {64*L.PX_SZ}
    s_mul_i32 s{S_T0}, s{S_W}, 10240
    s_add_u32 s{S_PX}, s{S_PX}, s{S_T0}
    s_add_u32 s{S_PX}, s{S_PX}, {L.PX}
    s_mul_i32 s{S_XI}, s{S_LAYER}, {128*L.XN_SZ}
    s_add_u32 s{S_XI}, s{S_XI}, {L.XS}
    s_add_u32 s{S_XO}, s{S_XI}, {64*L.XN_SZ}
    s_lshl_b32 s{S_SO}, s{S_LAYER}, 18
    s_add_u32 s{S_SO}, s{S_SO}, {L.ST + 64*L.ST_SZ}
    s_mov_b32 s{S_STEP}, s50
    s_mul_i32 s{S_T0}, s50, {L.UX_SZ}
    s_add_u32 s{S_UX}, s{S_UX}, s{S_T0}
    s_mul_i32 s{S_T0}, s50, {L.UM_SZ}
    s_add_u32 s{S_UM}, s{S_UM}, s{S_T0}
    s_mul_i32 s{S_T0}, s50, {L.PX_SZ}
    s_add_u32 s{S_PX}, s{S_PX}, s{S_T0}
    s_mul_i32 s{S_T0}, s50, {L.XN_SZ}
    s_add_u32 s{S_XI}, s{S_XI}, s{S_T0}
    s_add_u32 s{S_XO}, s{S_XO}, s{S_T0}
    s_mul_i32 s{S_T0}, s50, {L.ST_SZ}
    s_add_u32 s{S_SO}, s{S_SO}, s{S_T0}
    s_lshl_b32 s{S_T0}, s50, 9
    s_add_u32 s{S_FL}, s{S_FL}, s{S_T0}
    s_add_u32 s{S_FO}, s{S_FO}, s{S_T0}
    ''')
    UXF = lambda t, k: 256 + 32 * t + 4 * k
    UM4 = lambda t, kk2: 112 + 8 * t + 4 * kk2
    a(f'''
    v_add_u32 v32, {4*PW}, v{VRW}
    v_add_u32 v33, {4*PW}, v{VRR}
    v_cmp_gt_u32 vcc, 32, {lane}
    v_and_b32 v{VFM}, 3, {lane}
    v_lshlrev_b32 v{VFM}, 2, v{VFM}
    v_add_u32 v{VFM}, {L.FLU + 1792}, v{VFM}
    v_cndmask_b32 v{VFM}, v{VFM}, v{VFU}, vcc
    s_add_u32 s29, s{S_UM}, 8192
    ''')
    uml = [f'buffer_load_dwordx4 v[{UM4(t,kk2)}:{UM4(t,kk2)+3}], v{VUM}, {SRD}, s{S_UM if t == 0 else 29} offen offset:{512*kk2} sc1' for kk2 in range(2) for t in range(2)]
    def body(mode):
        loop = a.newlabel('PU_LOOP')
        a.flush(); a.label(loop)
        for b in range(2):
            a.vm = []; a.lg = []
            a(f's_lshl_b32 s30, s{S_FL}, 2')
            wait_flags(a, 30, VFM, TMP, sleep=2)
            for hh in range(4):
                for t in range(2):
                    for kh in range(2):
                        a(f'buffer_load_dwordx4 {R(UXF(t, 2*hh+kh), 4)}, v{VUX}, {SRD}, s{S_UX} offen offset:{2048*t+1024*kh} sc1')
                a(f's_add_u32 s{S_UX}, s{S_UX}, {28672 if hh < 3 else 2*L.UX_SZ - 3*28672}')
            a(f'buffer_load_dwordx4 v[{XRES}:{XRES+3}], v{VXO}, {SRD}, s{S_XI} offen sc1')
            a(f's_add_u32 s{S_XI}, s{S_XI}, {2*L.XN_SZ}')
            wait_flags(a, S_FL, VFT, TMP, sleep=1)
            st()
            order = [0, 1, 2, 3, 'm', 4, 5, 6, 7, 8, 9]
            def pld(k):
                if k == 'm':
                    for x in uml: a(x, tag='m')
                    return
                a(f'buffer_load_dwordx4 v[{PF(k)}:{PF(k)+3}], v{VL16}, {SRD}, s{S_PX} offen offset:{(k % 4) * 1024} sc1', tag=('p', k))
                if k % 4 == 3: a(f's_add_u32 s{S_PX}, s{S_PX}, 4096')
            for k in range(10): pld(k)
            pld('m')
            a(f's_add_u32 s{S_PX}, s{S_PX}, {2*L.PX_SZ - 8192}')
            a(f's_add_u32 s{S_FL}, s{S_FL}, 1024')
            for k in range(10):
                if k < 8: a.wait_vm(('p', k))
                if k == 8:
                    a.wait_vm('m')
                    check(a, range(112, 128), TMP)
                    a.opt_begin('s_cbranch_vccz')
                    poll(a, uml, range(112, 128), TMP, sleep=1)
                    a.opt_end()
                    a(f's_add_u32 s{S_UM}, s{S_UM}, {2*L.UM_SZ}')
                    a(f's_add_u32 s29, s29, {2*L.UM_SZ}')
                for t in range(2):
                    c = f'v[{ACC+16*t}:{ACC+16*t+15}]'
                    u = R(UXF(t, k), 4) if k < 8 else f'v[{UM4(t,k-8)}:{UM4(t,k-8)+3}]'
                    a(f'v_mfma_f32_32x32x16_bf16 {c}, {u}, v[{PF(k)}:{PF(k)+3}], {"0" if k == 0 else c}')
            st()
            def sx(r):
                a(f'buffer_store_dwordx4 v[{r}:{r+3}], v{VXO}, {SRD}, s{S_XO} offen {mode}')
            red_epilogue(a, ACC, (VRW, 32)[b], (VRR, 33)[b], XRES, T, sx,
                         lambda r: a(f'buffer_store_dwordx2 v[{r}:{r+1}], v{VSO}, {SRD}, s{S_SO} offen {mode}'), il=True)
            st()
            signal(a, S_FO, VZ, VONE, mode)
            st()
            st.flush(8 << 20, TMP, TMP + 1)
            a(f'''
            s_add_u32 s{S_XO}, s{S_XO}, {2*L.XN_SZ}
            s_add_u32 s{S_SO}, s{S_SO}, {2*L.ST_SZ}
            s_add_u32 s{S_FO}, s{S_FO}, 1024
            s_add_u32 s{S_STEP}, s{S_STEP}, 2
            ''')
        a(f'''
        s_cmp_lt_u32 s{S_STEP}, 64
        s_cbranch_scc1 {loop}
        s_endpgm
        ''')
    mode_split(a, body, TMP, force_slow=51)

def role_T(a, stamps=False):
    st = Stamps(a, stamps)
    WR = [256 + 4 * i for i in range(64)] + [120 + 4 * i for i in range(34)]
    W = lambda t, ks: WR[14 * t + ks]
    ACC = lambda tt, t: 0 + 28 * tt + 4 * t
    TB = lambda tt, kk: 56 + 14 * tt + 4 * kk
    FR = 84
    VL16, VFB, VHB, VHB3, VMA, VMA3, VSXW, VSXR, VSMW, VSMR, VPX, VPM, VFL, VZ, VONE, VROW = range(96, 112)
    TMP = 112
    SX = lambda c: 0 + 4 * c
    HF = 12
    SM = lambda tt: 28 + 4 * tt
    MF = 36
    XV = 50
    RS = 144
    LDS_SX = 2 * XBUF
    LDS_SM = LDS_SX + 4 * 32 * RS
    S_XN, S_MX, S_PX, S_FI, S_FO, S_ZERO = 21, 22, 23, 24, 25, 26
    a(f'''
    s_and_b32 s27, s{S_ROLE}, 15
    s_lshr_b32 s{S_STEP}, s{S_ROLE}, 4
    s_lshl_b32 s{S_T0}, s27, 2
    s_add_u32 s{S_T0}, s{S_T0}, s{S_W}
    s_mul_i32 s{S_T2}, s{S_T0}, 100352
    s_add_u32 s{S_T2}, s{S_T2}, {L.WAT}
    v_lshlrev_b32 v{VL16}, 4, {lane}
    ''')
    load_frags(a, WR, VL16, S_T2)
    q, c = TMP, TMP + 1
    a(f'''
    s_lshl_b32 s{S_T1}, s{S_LAYER}, 6
    s_add_u32 s{S_T1}, s{S_T1}, s{S_STEP}
    s_mul_i32 s{S_XN}, s{S_T1}, {L.XN_SZ}
    s_add_u32 s{S_XN}, s{S_XN}, {L.XN}
    s_mul_i32 s{S_MX}, s{S_T1}, {L.MEM_SZ}
    s_add_u32 s{S_MX}, s{S_MX}, {L.MEMX}
    s_mul_i32 s{S_PX}, s{S_T1}, {L.PX_SZ}
    s_add_u32 s{S_PX}, s{S_PX}, {L.PX}
    s_lshl_b32 s{S_FI}, s{S_T1}, 9
    s_lshl_b32 s{S_FO}, s{S_T0}, 2
    s_add_u32 s{S_FO}, s{S_FO}, s{S_FI}
    s_add_u32 s{S_FO}, s{S_FO}, {L.flag(L.FL_T)}
    s_lshr_b32 s{S_T3}, s27, 2
    s_lshl_b32 s{S_T3}, s{S_T3}, 6
    s_add_u32 s{S_FO}, s{S_FO}, s{S_T3}
    s_lshl_b32 s{S_FI}, s{S_FI}, 2
    s_add_u32 s{S_FI}, s{S_FI}, {L.FLXN}
    s_mov_b32 s{S_ZERO}, 0
    v_mov_b32 v{VZ}, 0
    v_mov_b32 v{VONE}, 1
    v_min_u32 v{VFL}, 55, {lane}
    v_lshrrev_b32 v{TMP}, 2, v{VFL}
    v_mul_u32_u24 v{TMP}, 12, v{TMP}
    v_add_lshl_u32 v{VFL}, v{VFL}, v{TMP}, 3
    v_lshrrev_b32 v{q}, 4, {lane}
    v_and_b32 v{c}, 15, {lane}
    v_and_b32 v{TMP+6}, 1, {lane}
    v_lshlrev_b32 v{TMP+6}, 4, v{TMP+6}
    v_bfe_u32 v{TMP+7}, {lane}, 1, 3
    v_add_u32 v{TMP+6}, v{TMP+6}, v{TMP+7}
    v_lshlrev_b32 v{VFB}, 9, v{q}
    v_lshl_add_u32 v{VFB}, v{TMP+6}, 4, v{VFB}
    s_mul_i32 s{S_T1}, s{S_W}, 14
    s_lshl_b32 s{S_T2}, s{S_T1}, 9
    v_add_u32 v{VHB}, s{S_T2}, v{VFB}
    v_lshrrev_b32 v{TMP+2}, 5, {lane}
    v_add_u32 v{TMP+2}, s{S_T1}, v{TMP+2}
    v_add_u32 v{TMP+2}, 12, v{TMP+2}
    v_and_b32 v{TMP+3}, 1, v{q}
    v_lshlrev_b32 v{VHB3}, 9, v{TMP+2}
    v_lshl_add_u32 v{VHB3}, v{TMP+6}, 4, v{VHB3}
    v_lshl_add_u32 v{VHB3}, v{TMP+3}, 3, v{VHB3}
    v_and_b32 v{TMP+4}, 7, {lane}
    v_add_u32 v{VMA}, s{S_T1}, v{q}
    v_lshlrev_b32 v{VMA}, 7, v{VMA}
    v_lshl_add_u32 v{VMA}, v{TMP+4}, 4, v{VMA}
    v_lshlrev_b32 v{VMA3}, 7, v{TMP+2}
    v_lshl_add_u32 v{VMA3}, v{TMP+4}, 4, v{VMA3}
    v_lshl_add_u32 v{VMA3}, v{TMP+3}, 3, v{VMA3}
    s_mul_i32 s{S_T2}, s{S_W}, {32*RS}
    s_add_u32 s{S_T2}, s{S_T2}, {LDS_SX}
    v_mul_u32_u24 v{VSXW}, {RS}, v{c}
    v_lshl_add_u32 v{VSXW}, v{q}, 4, v{VSXW}
    v_add_u32 v{VSXW}, s{S_T2}, v{VSXW}
    s_lshl_b32 s{S_T2}, s{S_W}, 10
    s_add_u32 s{S_T2}, s{S_T2}, {LDS_SM}
    v_lshlrev_b32 v{VSMW}, 5, v{c}
    v_lshl_add_u32 v{VSMW}, v{TMP+3}, 4, v{VSMW}
    v_add_u32 v{VSMW}, s{S_T2}, v{VSMW}
    v_lshrrev_b32 v{VROW}, 3, {lane}
    s_lshl_b32 s{S_T2}, s{S_W}, 3
    v_add_u32 v{VROW}, s{S_T2}, v{VROW}
    v_mul_u32_u24 v{VSXR}, {RS}, v{VROW}
    v_lshl_add_u32 v{VSXR}, v{TMP+4}, 4, v{VSXR}
    v_add_u32 v{VSXR}, {LDS_SX}, v{VSXR}
    v_lshlrev_b32 v{VSMR}, 5, v{VROW}
    v_lshl_add_u32 v{VSMR}, v{TMP+4}, 2, v{VSMR}
    v_add_u32 v{VSMR}, {LDS_SM}, v{VSMR}
    v_lshrrev_b32 v{TMP+5}, 1, v{TMP+4}
    v_lshlrev_b32 v{VPM}, 9, v{TMP+5}
    v_lshl_add_u32 v{VPM}, v{VROW}, 4, v{VPM}
    v_and_b32 v{TMP+5}, 1, {lane}
    v_lshl_add_u32 v{VPX}, v{TMP+5}, 3, v{VPM}
    s_lshr_b32 s{S_T1}, s27, 2
    s_mul_i32 s{S_T1}, s{S_T1}, 10240
    s_and_b32 s{S_T2}, s27, 3
    s_lshl_b32 s{S_T3}, s{S_T2}, 11
    s_add_u32 s{S_T3}, s{S_T3}, s{S_T1}
    v_add_u32 v{VPX}, s{S_T3}, v{VPX}
    s_lshl_b32 s{S_T3}, s{S_T2}, 2
    s_add_u32 s{S_T3}, s{S_T3}, s{S_T1}
    s_add_u32 s{S_T3}, s{S_T3}, 8192
    v_add_u32 v{VPM}, s{S_T3}, v{VPM}
    v_lshlrev_b32 v{TMP+5}, 2, v{TMP+4}
    v_sub_u32 v{VROW}, v{VROW}, v{TMP+5}
    v_cmp_le_i32 s[40:41], 0, v{VROW}
    v_cmp_le_i32 s[42:43], 1, v{VROW}
    v_cmp_le_i32 s[44:45], 2, v{VROW}
    v_cmp_le_i32 s[46:47], 3, v{VROW}
    v_mov_b32 v{VROW}, 0xf149f2ca
    s_mov_b32 s48, 0x55555555
    s_mov_b32 s49, 0x55555555
    s_mov_b32 s52, {XBUF}
    ''')
    a(f'''
    s_lshl_b32 s36, s{S_W}, 10
    s_add_u32 s{S_XN}, s{S_XN}, s36
    s_mov_b64 vcc, 0
    ''')
    loop, nd = a.newlabel('T_LOOP'), a.newlabel('T_ND')
    NF = TMP + 6
    a.flush(); a.label(loop); a.vm = []; a.lg = []
    a(f's_add_u32 s37, s{S_ZERO}, s36')
    a.br(f's_cbranch_vccnz {nd}')
    wait_flags(a, S_FI, VFL, TMP, width=2, sleep=1)
    for j, d in enumerate(dma_list(S_XN, 37, VL16)): a(d, tag=('d', j))
    a(f's_add_u32 s{S_XN}, s{S_XN}, {L.XN_SZ}')
    a.label(nd)
    st()
    a(f'''
    s_xor_b32 s{S_ZERO}, s{S_ZERO}, {XBUF}
    s_add_u32 s37, s{S_ZERO}, s36
    s_add_u32 s{S_FI}, s{S_FI}, 4096
    ''')
    seq = [(tt, ks) for tt in range(2) for ks in range(14)]
    rd = lambda i: f'ds_read_b128 v[{FR+4*(i%3)}:{FR+4*(i%3)+3}], v{VFB} offset:{2048*seq[i][1]+128*seq[i][0]}'
    def cvt(tt):
        o = []
        for kk in range(3):
            for p in range(2):
                c = ACC(tt, 2 * kk + p)
                o += [f'v_cvt_pk_bf16_f32 v{TB(tt,kk)+2*p}, v{c}, v{c+1}', f'v_cvt_pk_bf16_f32 v{TB(tt,kk)+2*p+1}, v{c+2}, v{c+3}']
        c = ACC(tt, 6)
        o += [f'v_cvt_pk_bf16_f32 v{TB(tt,3)}, v{c}, v{c+1}', f'v_cvt_pk_bf16_f32 v{TB(tt,3)+1}, v{c+2}, v{c+3}']
        return o
    def mm(i):
        tt, ks = seq[i]; out = []
        for t in range(7):
            c = f'v[{ACC(tt,t)}:{ACC(tt,t)+3}]'
            out.append(f'v_mfma_f32_16x16x32_bf16 {c}, {R(W(t,ks),4)}, v[{FR+4*(i%3)}:{FR+4*(i%3)+3}], {"0" if ks == 0 else c}')
        return out
    def optdma(d):
        def f():
            a.opt_begin('s_cbranch_vccz'); a(d); a.opt_end()
        return f
    def chk():
        a.wait_vm('nf')
        a(f'v_min_u32 v{NF}, v{NF}, v{NF+1}')
        a(f'v_cmp_eq_u32 vcc, 0, v{NF}')
        a('s_cmp_eq_u64 vcc, 0')
        a('s_cselect_b64 vcc, -1, 0')
    dl = dma_list(S_XN, 37, VL16); dl[6] += f'\ns_add_u32 s{S_XN}, s{S_XN}, {L.XN_SZ}'
    sd = {8: [lambda: a(f'buffer_load_dwordx2 v[{NF}:{NF+1}], v{VFL}, {SRD}, s{S_FI} offen sc1', tag='nf')], 15: cvt(0), 20: [chk]}
    for j in range(7): sd[21 + j] = [optdma(dl[j])]
    st.cyc(0); sd[7] = [lambda: st.cyc(1)]; sd[14] = [lambda: st.cyc(2)]
    def g6():
        a.wait_vm(('d', 6)); a('s_barrier')
        a.opt_begin('s_cbranch_vccz')
        signal(a, 53, VZ, VONE, wait='')
        a.opt_end()
    left = stream(a, 28, rd, mm, {0: gate(a, ('d', 0)), 2: gate(a, ('d', 1)), 4: gate(a, ('d', 3)), 8: g6}, sd, depth=2, per=2)
    st.cyc(3)
    assert not left
    a('s_mov_b64 s[50:51], vcc')
    def hrd(kk):
        h = HF + 8 * (kk % 2)
        if kk < 3: return [f'ds_read_b128 v[{h+4*jt}:{h+4*jt+3}], v{VHB} offset:{2048*kk+128*jt}' for jt in range(2)]
        return [f'ds_read_b64 v[{h+4*jt}:{h+4*jt+1}], v{VHB3} offset:{128*jt}' for jt in range(2)]
    mloads = [f'buffer_load_dwordx4 v[{MF+4*kk}:{MF+4*kk+3}], v{VMA}, {SRD}, s{S_MX} offen offset:{512*kk} sc1' for kk in range(3)] + \
             [f'buffer_load_dwordx2 v[{MF+12}:{MF+13}], v{VMA3}, {SRD}, s{S_MX} offen sc1']
    for s_ in hrd(0) + hrd(1): a(s_)
    for s_ in cvt(1): a(s_)
    for s_ in mloads: a(s_)
    for kk in range(4):
        a(f's_waitcnt lgkmcnt({2 if kk < 3 else 0})')
        h = HF + 8 * (kk % 2)
        for ci, (jt, tt) in enumerate(((0, 0), (0, 1), (1, 1))):
            c = f'v[{SX(ci)}:{SX(ci)+3}]'; cin = '0' if kk == 0 else c
            if kk < 3: a(f'v_mfma_f32_16x16x32_bf16 {c}, v[{h+4*jt}:{h+4*jt+3}], v[{TB(tt,kk)}:{TB(tt,kk)+3}], {cin}')
            else: a(f'v_mfma_f32_16x16x16_bf16 {c}, v[{h+4*jt}:{h+4*jt+1}], v[{TB(tt,kk)}:{TB(tt,kk)+1}], {cin}')
        if kk < 2:
            for s_ in hrd(kk + 2): a(s_)
    for ci, (jt, tt) in enumerate(((0, 0), (0, 1), (1, 1))):
        a(f'ds_write_b128 v{VSXW}, v[{SX(ci)}:{SX(ci)+3}] offset:{16*RS*tt+64*jt}')
    a('s_waitcnt lgkmcnt(0)'); a('s_barrier')
    for w in range(4): a(f'ds_read_b128 v[{HF+4*w}:{HF+4*w+3}], v{VSXR} offset:{32*RS*w}')
    a('s_waitcnt lgkmcnt(2)')
    for i in (0, 2): a(f'v_pk_add_f32 v[{XV+i}:{XV+i+1}], v[{HF+i}:{HF+i+1}], v[{HF+4+i}:{HF+5+i}]')
    a('s_waitcnt lgkmcnt(0)')
    for i in (0, 2): a(f'v_pk_add_f32 v[{HF+8+i}:{HF+9+i}], v[{HF+8+i}:{HF+9+i}], v[{HF+12+i}:{HF+13+i}]')
    for i in (0, 2): a(f'v_pk_add_f32 v[{XV+i}:{XV+i+1}], v[{XV+i}:{XV+i+1}], v[{HF+8+i}:{HF+9+i}]')
    for r in range(4): a(f'v_cndmask_b32 v{XV+r}, v{VROW}, v{XV+r}, s[{40+2*r}:{41+2*r}]')
    a(f'v_max3_f32 v{XV+4}, v{XV}, v{XV+1}, v{XV+2}')
    a(f'v_max_f32 v{XV+4}, v{XV+4}, v{XV+3}')
    st(); st.cyc(4)
    a('s_waitcnt vmcnt(0)')
    check(a, range(MF, MF + 14), TMP)
    a.opt_begin('s_cbranch_vccz')
    poll(a, mloads, range(MF, MF + 14), TMP, sleep=1)
    a.opt_end()
    st()
    for kk in range(4):
        for tt in range(2):
            c = f'v[{SM(tt)}:{SM(tt)+3}]'; cin = '0' if kk == 0 else c
            if kk < 3: a(f'v_mfma_f32_16x16x32_bf16 {c}, v[{MF+4*kk}:{MF+4*kk+3}], v[{TB(tt,kk)}:{TB(tt,kk)+3}], {cin}')
            else: a(f'v_mfma_f32_16x16x16_bf16 {c}, v[{MF+12}:{MF+13}], v[{TB(tt,kk)}:{TB(tt,kk)+1}], {cin}')
    for tt in range(2): a(f'ds_write_b128 v{VSMW}, v[{SM(tt)}:{SM(tt)+3}] offset:{512*tt}')
    M, X5 = TMP, TMP + 2
    a(f'''
    s_waitcnt lgkmcnt(0)
    s_barrier
    ds_read2st64_b32 v[{X5}:{X5+1}], v{VSMR} offset0:0 offset1:4
    ds_read2st64_b32 v[{X5+2}:{X5+3}], v{VSMR} offset0:8 offset1:12
    s_waitcnt lgkmcnt(0)
    v_pk_add_f32 v[{X5}:{X5+1}], v[{X5}:{X5+1}], v[{X5+2}:{X5+3}]
    v_add_f32 v{X5}, v{X5}, v{X5+1}
    v_max_f32 v{M}, v{XV+4}, v{X5}
    ''')
    D3 = ('quad_perm:[1,0,3,2]', 'quad_perm:[2,3,0,1]', 'row_half_mirror')
    for d in D3: a(f'v_max_f32_dpp v{M}, v{M}, v{M} {d} row_mask:0xf bank_mask:0xf')
    a(f'''
    v_sub_f32 v{X5}, v{X5}, v{M}
    v_pk_add_f32 v[{XV}:{XV+1}], v[{XV}:{XV+1}], v[{M}:{M+1}] op_sel_hi:[1,0] neg_lo:[0,1] neg_hi:[0,1]
    v_pk_add_f32 v[{XV+2}:{XV+3}], v[{XV+2}:{XV+3}], v[{M}:{M+1}] op_sel_hi:[1,0] neg_lo:[0,1] neg_hi:[0,1]
    v_exp_f32 v{X5}, v{X5}
    v_exp_f32 v{XV}, v{XV}
    v_exp_f32 v{XV+1}, v{XV+1}
    v_exp_f32 v{XV+2}, v{XV+2}
    v_exp_f32 v{XV+3}, v{XV+3}
    v_add_f32 v{M}, v{X5}, v{XV}
    v_add_f32 v{M}, v{M}, v{XV+1}
    v_add_f32 v{M}, v{M}, v{XV+2}
    v_add_f32 v{M}, v{M}, v{XV+3}
    ''')
    for d in D3: a(f'v_add_f32_dpp v{M}, v{M}, v{M} {d} row_mask:0xf bank_mask:0xf')
    a(f'''
    v_rcp_f32 v{M}, v{M}
    v_mul_f32 v{X5}, v{X5}, v{M}
    v_pk_mul_f32 v[{XV}:{XV+1}], v[{XV}:{XV+1}], v[{M}:{M+1}] op_sel_hi:[1,0]
    v_pk_mul_f32 v[{XV+2}:{XV+3}], v[{XV+2}:{XV+3}], v[{M}:{M+1}] op_sel_hi:[1,0]
    v_mov_b32_dpp v{X5+1}, v{X5} quad_perm:[1,0,3,2] row_mask:0xf bank_mask:0xf
    v_cvt_pk_bf16_f32 v{XV}, v{XV}, v{XV+1}
    v_cvt_pk_bf16_f32 v{XV+1}, v{XV+2}, v{XV+3}
    v_cvt_pk_bf16_f32 v{X5}, v{X5}, v{X5+1}
    buffer_store_dwordx2 v[{XV}:{XV+1}], v{VPX}, {SRD}, s{S_PX} offen sc1
    s_mov_b64 exec, s[48:49]
    buffer_store_dword v{X5}, v{VPM}, {SRD}, s{S_PX} offen sc1
    s_mov_b64 exec, -1
    ''')
    st()
    a(f's_mov_b32 s53, s{S_FO}')
    a(f's_cmp_ge_u32 s{S_STEP}, 62')
    a('s_cselect_b64 s[50:51], 0, s[50:51]')
    a('s_cmp_eq_u64 s[50:51], 0')
    a.opt_begin('s_cbranch_scc0')
    signal(a, S_FO, VZ, VONE)
    a.opt_end()
    st()
    st.flush(6 << 20, TMP, TMP + 1)
    a(f'''
    s_mov_b64 vcc, s[50:51]
    v_xor_b32 v{VFB}, {XBUF}, v{VFB}
    v_add_u32 v{VHB}, s52, v{VHB}
    v_add_u32 v{VHB3}, s52, v{VHB3}
    s_sub_u32 s52, 0, s52
    s_add_u32 s{S_MX}, s{S_MX}, {2*L.MEM_SZ}
    s_add_u32 s{S_PX}, s{S_PX}, {2*L.PX_SZ}
    s_add_u32 s{S_FO}, s{S_FO}, 1024
    s_add_u32 s{S_STEP}, s{S_STEP}, 2
    s_cmp_lt_u32 s{S_STEP}, 64
    s_cbranch_scc1 {loop}
    s_endpgm
    ''')
```

```python
from common import *
import prep2

def poll2(a, mk, bases, nreg, tmp, consume, gap=2):
    lab = a.newlabel('PP'); n = len(mk(bases[0]))
    a('s_waitcnt vmcnt(0)')
    for l in mk(bases[0]): a(l)
    a(f's_sleep {gap}')
    a.label(lab)
    for l in mk(bases[1]): a(l)
    a(f's_waitcnt vmcnt({n})')
    check(a, range(bases[0], bases[0] + nreg), tmp)
    a.br(f's_cbranch_vccz {lab}_d0')
    for l in mk(bases[0]): a(l)
    a(f's_sub_u32 s{S_ABORT}, s{S_ABORT}, 1')
    a(f's_cbranch_scc1 {lab}_abort')
    a(f's_waitcnt vmcnt({n})')
    check(a, range(bases[1], bases[1] + nreg), tmp)
    a.br(f's_cbranch_vccnz {lab}')
    a.label(lab + '_d1')
    consume(bases[1])
    a.br(f's_branch {lab}_j')
    h = list(a.hist)
    a.label(lab + '_d0'); a.hist = []
    consume(bases[0])
    a.label(lab + '_j')
    a.deferred.append(f'{lab}_abort:\n    s_mov_b32 s{S_ABORT}, 0\n    s_waitcnt vmcnt(0)\n    s_branch {lab}_d1\n')


def prog_gate(a, vreg, vz, s_prog, s_need):
    lab = a.newlabel('PG')
    a.label(lab)
    a(f'v_readfirstlane_b32 s{S_T0}, v{vreg}')
    a(f's_cmp_gt_u32 s{S_T0}, s{s_need}')
    a(f's_cbranch_scc0 {lab}_slow')
    a.label(lab + '_ok')
    a.deferred.append(f"""{lab}_slow:
    buffer_load_dword v{vreg}, v{vz}, {SRD}, s{s_prog} offen sc1
    s_sub_u32 s{S_ABORT}, s{S_ABORT}, 1
    s_cbranch_scc1 {lab}_ab
    s_waitcnt vmcnt(0)
    s_branch {lab}
{lab}_ab:
    s_mov_b32 s{S_ABORT}, 0
    s_waitcnt vmcnt(0)
    s_branch {lab}_ok
""")

def load_weights(a, groups, voff, soff):
    for g, r in enumerate(groups):
        for p in range(2):
            o = (g * 2048 + p * 1024) % 4096
            a(f'buffer_load_dwordx4 {R(r + 4 * p, 4)}, v{voff}, {SRD}, s{soff} offen offset:{o}')
        if g % 2 == 1: a(f's_add_u32 s{soff}, s{soff}, 4096')

def gather_mem_setup(a, v_g0):
    a(f'''
    s_lshl_b32 s{S_T0}, s{S_W}, 10
    s_cmp_eq_u32 s{S_W}, 3
    s_cselect_b32 s33, 3, 4
    s_lshl_b32 s33, s33, 10
    v_lshlrev_b32 v{v_g0}, 4, v{V_LANE}
    v_add_u32 v{v_g0}, s{S_T0}, v{v_g0}
    ''')

def gather_mem(a, st, G, VG0, S_MEM, TMP, LDS_MEM, VPROG):
    a(f's_add_u32 s34, s{S_MEM}, s33')
    st()
    poll(a, [f'buffer_load_dword v{VPROG}, off, {SRD}, s35 sc1',
             f'buffer_load_dwordx4 v[{G}:{G+3}], v{VG0}, {SRD}, s{S_MEM} offen sc1',
             f'buffer_load_dwordx4 v[{G+4}:{G+7}], v{VG0}, {SRD}, s34 offen sc1'], range(G, G + 8), TMP)
    st()
    a(f'''
    ds_write_b128 v{VG0}, v[{G}:{G+3}] offset:{LDS_MEM}
    ds_write_b128 v{VG0}, v[{G+4}:{G+7}] offset:{LDS_MEM+4096}
    s_waitcnt lgkmcnt(0)
    s_barrier
    ''')

def gather_mem2(a, st, G0, G1, VG0, S_MEM, TMP, LDS_MEM, extra=()):
    a(f's_add_u32 s34, s{S_MEM}, s33')
    a('s_waitcnt vmcnt(0)')
    st()
    mk = lambda G: [f'buffer_load_dwordx4 v[{G}:{G+3}], v{VG0}, {SRD}, s{S_MEM} offen sc1',
                    f'buffer_load_dwordx4 v[{G+4}:{G+7}], v{VG0}, {SRD}, s34 offen sc1']
    def cons(G):
        a(f'ds_write_b128 v{VG0}, v[{G}:{G+3}] offset:{LDS_MEM}')
        a(f'ds_write_b128 v{VG0}, v[{G+4}:{G+7}] offset:{LDS_MEM+4096}')
        a(f'ds_write2_b32 v63, v{G}, v{G+1} offset0:0 offset1:2')
        a(f'ds_write2_b32 v63, v{G+2}, v{G+3} offset0:32 offset1:34')
        a(f'v_add_u32 v{TMP}, 4096, v63')
        a(f'ds_write2_b32 v{TMP}, v{G+4}, v{G+5} offset0:0 offset1:2')
        a(f'ds_write2_b32 v{TMP}, v{G+6}, v{G+7} offset0:32 offset1:34')
    poll2(a, mk, [G0, G1], 8, TMP, cons)
    st()
    a('s_waitcnt lgkmcnt(4)')
    a('s_barrier')

def gtile(n): return 4 * n if n < 4 else 16 + 3 * (n - 4) - 1

def chain_A(a, stamps=False):
    lane = f'v{V_LANE}'
    LDS_MEM, LDS_TI, LDS_PG, LDS_NI = 0, 8192, 16384, 20480
    S_MEM, S_PB, S_XN, S_TU, S_TX = 21, 22, 23, 24, 25
    MEMF, ACC, G0, G1 = 0, 28, 40, 48
    VG0, VIDX, VMF, VTW, VPGA, TMP, VPGV = 56, 57, 58, 59, 60, 61, 62
    w0 = a.newlabel('CA_W0')
    def common_setup(WG, ntile):
        a(f'''
        s_mul_i32 s{S_T2}, s{S_ROLE}, 401408
        s_mul_i32 s{S_T0}, s{S_W}, 14336
        s_add_u32 s26, s{S_T2}, s{S_T0}
        s_add_u32 s26, s26, {L.WA}
        v_lshlrev_b32 v{TMP}, 4, {lane}
        ''')
        a(f'''
        v_min_u32 v{VG0}, 13, {lane}
        v_lshlrev_b32 v{VG0}, 2, v{VG0}
        s_lshl_b32 s{S_T1}, s{S_ROLE}, 7
        v_add_u32 v{VG0}, s{S_T1}, v{VG0}
        ''')
        prep2.prog_load(a, [[(f's_add_u32 s{S_T3}, s26, {gtile(n)*14336+2048*j}\n' if p == 0 else '') + f'buffer_load_dwordx4 {R(WG[7*n+j]+4*p, 4)}, v{TMP}, {SRD}, s{S_T3} offen offset:{1024*p} sc1'
                             for n in range(ntile) for p in range(2)] for j in range(7)], VG0, VIDX)
        gather_mem_setup(a, VG0)
        q, c, t = 2, 3, 4
        a(f'''
        v_lshrrev_b32 v{q}, 4, {lane}
        v_and_b32 v{c}, 15, {lane}
        v_and_b32 v{VIDX}, 2, {lane}
        v_cmp_eq_u32 vcc, 2, v{VIDX}
        v_mov_b32 v{VIDX}, 0x44444444
        v_mov_b32 v{VMF}, 0xeeeeeeee
        v_cndmask_b32 v{VIDX}, v{VIDX}, v{VMF}, vcc
        v_and_b32 v{VMF}, 2, {lane}
        v_lshlrev_b32 v{VMF}, 6, v{VMF}
        v_lshl_add_u32 v{VMF}, v{q}, 8, v{VMF}
        v_bfe_u32 v{t}, {lane}, 2, 2
        v_lshl_add_u32 v{VMF}, v{t}, 5, v{VMF}
        v_lshlrev_b32 v{VTW}, 6, v{t}
        v_and_b32 v{t}, 1, {lane}
        v_lshl_add_u32 v{VMF}, v{t}, 4, v{VMF}
        v_lshl_add_u32 v{VTW}, v{t}, 5, v{VTW}
        v_lshl_add_u32 v{VTW}, v{q}, 3, v{VTW}
        v_bfe_u32 v{t}, {lane}, 1, 1
        v_lshl_add_u32 v{VTW}, v{t}, 2, v{VTW}
        s_lshl_b32 s{S_T0}, s{S_W}, 8
        s_add_u32 s{S_T0}, s{S_T0}, {LDS_TI}
        v_add_u32 v{VTW}, s{S_T0}, v{VTW}
        v_bfe_u32 v63, v{VG0}, 7, 1
        v_mul_u32_u24 v63, 124, v63
        v_sub_u32 v63, v{VG0}, v63
        v_add_u32 v63, {LDS_NI}, v63
        s_lshl_b32 s{S_T0}, s{S_W}, 8
        s_add_u32 s{S_T0}, s{S_T0}, {LDS_PG}
        v_lshl_add_u32 v{VPGA}, {lane}, 2, s{S_T0}
        v_mov_b32 v{VPGV}, 0
        ds_write_b32 v{VPGA}, v{VPGV}
        s_mul_i32 s30, s{S_LAYER}, {4*L.MEM_SZ}
        s_add_u32 s30, s30, {L.MEML}
        s_mov_b32 s{S_STEP}, 0
        ''')
    def acc(n): return ACC + 4 * (n % 3)
    def zero(r): return [f'v_mov_b64 v[{r+i}:{r+i+1}], 0' for i in (0, 2)]
    def post(n, pk=False):
        c = acc(n)
        if pk: return [f'v_pk_add_f32 v[{c}:{c+1}], v[{c}:{c+1}], v[{c+2}:{c+3}]', f'v_cvt_pk_bf16_f32 v{c}, v{c}, v{c+1}',
                f'ds_write_b32 v{VTW}, v{c} offset:{256*gtile(n)}']
        return [f'v_add_f32 v{c}, v{c}, v{c+2}', f'v_add_f32 v{c+1}, v{c+1}, v{c+3}', f'v_cvt_pk_bf16_f32 v{c}, v{c}, v{c+1}',
                f'ds_write_b32 v{VTW}, v{c} offset:{256*gtile(n)}']
    BAR = 's_waitcnt lgkmcnt(0)\ns_barrier'
    def step_head(st, extra_loads=()):
        a(f'''
        s_and_b32 s{S_T0}, s{S_STEP}, 3
        s_mul_i32 s{S_T1}, s{S_T0}, {L.MEM_SZ}
        s_add_u32 s{S_MEM}, s{S_T1}, s30
        ''')
        for n in range(3):
            for s_ in zero(acc(n)): a(s_)
        gather_mem2(a, st, G0, G1, VG0, S_MEM, TMP, LDS_MEM, extra_loads)
        for ks in range(7): a(f'ds_read_b128 v[{MEMF+4*ks}:{MEMF+4*ks+3}], v{VMF} offset:{LDS_MEM+1024*ks}')
        for x in extra_loads: a(x)
    def tsm(WG, n, ks):
        c = acc(n)
        return f'v_smfmac_f32_16x16x64_bf16 v[{c}:{c+3}], v[{MEMF+4*ks}:{MEMF+4*ks+3}], {R(WG[7*n+ks],8)}, v{VIDX}'
    def t_phase(WG, ntile, extra=None):
        for ks in range(7):
            a(f's_waitcnt lgkmcnt({6-ks})' if not stamps or ks == 0 else 's_waitcnt lgkmcnt(0)')
            a(tsm(WG, 0, ks)); a(tsm(WG, 1, ks))
        PG = [f'v_add_u32 v{VPGV}, 1, v{VPGV}', f'ds_write_b32 v{VPGA}, v{VPGV}'] if ntile == 8 else []
        NOP = ['s_nop 0']
        for n in range(2, ntile):
            if n == 2:
                p0, p1, z = post(0), post(1), zero(acc(3))
                side = {0: ['s_nop 1'] + PG[:1], 1: ['s_nop 1'] + p0[:1], 2: p0[1:2], 3: p0[2:], 4: z[:1] + p1[:1], 5: z[1:] + p1[1:2], 6: p1[2:]}
            else:
                z = zero(acc(n + 1)) if n + 1 < ntile else NOP * 2
                sig = n in (3, 4, 6, 7); p = post(n - 1)
                side = {0: NOP + z[:1], 1: NOP + z[1:], 2: NOP + p[:1], 3: p[1:2], 4: p[2:] + (PG[1:] if sig else []), 5: PG[:1] if sig else []}
            for ks in range(7):
                a(tsm(WG, n, ks))
                for s_ in side.get(ks, []): a(s_)
                if extra: extra(n, ks)
    a(f's_cmp_eq_u32 s{S_W}, 0')
    a(f's_cbranch_scc1 {w0}')
    WG = [256 + 8 * g for g in range(32)] + [64 + 8 * g for g in range(24)]
    common_setup(WG, 8)
    st = Stamps(a, stamps)
    loop = a.newlabel('CA_LOOP')
    a.flush(); a.label(loop)
    step_head(st)
    t_phase(WG, 8)
    for s_ in post(7, True): a(s_)
    a(f'ds_write_b32 v{VPGA}, v{VPGV}')
    st()
    st.flush(0, G0, G0 + 1)
    a(f'''
    s_add_u32 s{S_STEP}, s{S_STEP}, 1
    s_cmp_lt_u32 s{S_STEP}, 63
    s_cbranch_scc1 {loop}
    s_endpgm
    ''')
    a.label(w0)
    WG0 = [256 + 8 * g for g in range(28)]
    XF = lambda g, jt: 144 + 16 * g + 8 * jt
    TB = lambda g: 64 + 4 * (g % 4)
    MH = lambda g: 80 + 8 * (g % 4)
    SA = lambda jt: 112 + 4 * jt
    VTR, VMH, VXA, VP0, VPM, VPROG, VZ, VTX = 124, 125, 126, 127, 128, 129, 130, 131
    M, T2, PGR = 132, 134, 136
    common_setup(WG0, 4)
    q, c, t = 2, 3, 4
    a(f'''
    v_min_u32 v{VPGA}, 2, {lane}
    v_mul_u32_u24 v{VPGA}, 260, v{VPGA}
    v_add_u32 v{VPGA}, {LDS_PG + 256}, v{VPGA}
    v_lshlrev_b32 v{VTR}, 8, v{q}
    v_lshl_add_u32 v{VTR}, v{c}, 3, v{VTR}
    v_add_u32 v{VTR}, {LDS_TI}, v{VTR}
    v_and_b32 v{t}, 7, {lane}
    v_lshlrev_b32 v{VMH}, 7, v{q}
    v_lshl_add_u32 v{VMH}, v{t}, 4, v{VMH}
    v_lshlrev_b32 v{VXA}, 9, v{q}
    v_lshl_add_u32 v{VXA}, v{c}, 4, v{VXA}
    s_lshr_b32 s{S_T0}, s{S_ROLE}, 2
    s_mul_i32 s{S_T0}, s{S_T0}, 2560
    s_bfe_u32 s{S_T1}, s{S_ROLE}, 0x10001
    s_and_b32 s{S_T2}, s{S_ROLE}, 1
    v_bfe_u32 v{VP0}, {lane}, 3, 1
    v_lshlrev_b32 v{VP0}, 8, v{VP0}
    v_lshl_add_u32 v{VP0}, v{q}, 6, v{VP0}
    v_and_b32 v{t}, 1, {lane}
    v_lshl_add_u32 v{VP0}, v{t}, 5, v{VP0}
    v_bfe_u32 v{t}, {lane}, 1, 2
    v_lshl_add_u32 v{VP0}, v{t}, 2, v{VP0}
    s_lshl_b32 s{S_T3}, s{S_T1}, 10
    s_add_u32 s{S_T3}, s{S_T3}, s{S_T0}
    s_lshl_b32 s27, s{S_T2}, 9
    s_add_u32 s{S_T3}, s{S_T3}, s27
    v_add_u32 v{VP0}, s{S_T3}, v{VP0}
    v_lshlrev_b32 v{VPM}, 7, v{t}
    v_lshl_add_u32 v{VPM}, v{q}, 5, v{VPM}
    v_bfe_u32 v{t}, {lane}, 3, 1
    v_lshl_add_u32 v{VPM}, v{t}, 3, v{VPM}
    s_lshl_b32 s{S_T3}, s{S_T2}, 4
    s_lshl_b32 s27, s{S_T1}, 2
    s_add_u32 s{S_T3}, s{S_T3}, s27
    s_add_u32 s{S_T3}, s{S_T3}, s{S_T0}
    s_add_u32 s{S_T3}, s{S_T3}, 2048
    v_add_u32 v{VPM}, s{S_T3}, v{VPM}
    s_mul_i32 s31, s{S_LAYER}, {4*L.PB_SZ}
    s_add_u32 s31, s31, {L.PB}
    s_mul_i32 s{S_XN}, s{S_LAYER}, {64*L.XN_SZ}
    s_add_u32 s{S_XN}, s{S_XN}, {L.XN}
    v_min_u32 v{VTX}, 13, {lane}
    v_lshlrev_b32 v{VTX}, 7, v{VTX}
    s_mul_i32 s{S_TX}, s{S_ROLE}, 1792
    s_add_u32 s{S_TX}, s{S_TX}, s{S_XN}
    s_add_u32 s{S_TX}, s{S_TX}, {2*L.XN_SZ}
    s_mov_b32 s28, 0xff00ff00
    s_mov_b32 s29, 0xff00ff00
    s_mov_b32 s36, 0x55555555
    s_mov_b32 s37, 0x55555555
    s_lshl_b32 s35, s{S_LAYER}, 15
    s_add_u32 s35, s35, {L.flag(L.FL_PROG) + 128}
    v_mov_b32 v{VPROG}, 0
    v_mov_b32 v{VZ}, 0
    ''')
    def xld(g):
        out = []
        for jt in range(2):
            for p in range(2):
                r = XF(g, jt) + 4 * p
                out.append(f'buffer_load_dwordx4 v[{r}:{r+3}], v{VXA}, {SRD}, s{S_XN} offen offset:{2048*p+256*jt} sc1')
        out[-1] += f'\ns_add_u32 s{S_XN}, s{S_XN}, 4096'
        return out
    prog_gate(a, VPROG, VZ, 35, S_STEP)
    for g in range(7):
        for s_ in xld(g): a(s_)
    def body(st_flag):
        st = Stamps(a, stamps)
        loop = a.newlabel('CA0_LOOP')
        a.flush(); a.label(loop); a.lg = []; a.vm = []
        a(f'''
        s_and_b32 s{S_T0}, s{S_STEP}, 3
        s_mul_i32 s{S_T1}, s{S_T0}, {L.PB_SZ}
        s_add_u32 s{S_PB}, s{S_T1}, s31
        s_add_u32 s{S_T0}, s{S_STEP}, 3
        s_and_b32 s{S_T0}, s{S_T0}, 3
        s_mul_i32 s{S_T1}, s{S_T0}, {L.PB_SZ}
        s_add_u32 s32, s{S_T1}, s31
        ''')
        for jt in range(3):
            for s_ in zero(SA(jt)): a(s_)
        step_head(st, [f'buffer_load_dword v{VPROG}, off, {SRD}, s35 sc1'])
        a(f's_add_u32 s{S_STEP}, s{S_STEP}, 1')
        def mh(g): return [f'ds_read_b128 v[{MH(g)+4*p}:{MH(g)+4*p+3}], v{VMH} offset:{LDS_NI+1024*g+512*p}' for p in range(2)]
        def tr(g): return [f'ds_read_b64_tr_b16 v[{TB(g)+2*p}:{TB(g)+2*p+1}], v{VTR} offset:{1024*g+128*p}' for p in range(2)] + (mh(g) if g < 4 else [])
        def ssm(g):
            return [f'v_smfmac_f32_16x16x64_bf16 v[{SA(jt)}:{SA(jt)+3}], v[{TB(g)}:{TB(g)+3}], v[{(MH(g) if jt == 2 else XF(g, jt))}:{(MH(g) if jt == 2 else XF(g, jt))+7}], v{VIDX}' for jt in range(3)]
        pre = mh(0) + mh(1) + mh(2) + mh(3)
        def issue(gs, first=True):
            if first: a(f'v_add_u32 v{VPGV}, 1, v{VPGV}')
            a(f'ds_read_b32 v{PGR}, v{VPGA}', tag='pg')
            for g in gs:
                for s_ in tr(g): a(s_, tag=('tr', g))
        def chk(gs):
            lab = a.newlabel('CA_PW')
            a.wait_lg('pg')
            a(f'v_cmp_lt_u32 vcc, v{PGR}, v{VPGV}')
            a.br(f's_cbranch_vccnz {lab}')
            a.label(lab + '_ok')
            d = f'{lab}:\n    ds_read_b32 v{PGR}, v{VPGA}\n' + ''.join(f'    {x}\n' for g in gs for x in tr(g))
            d += f'    s_waitcnt lgkmcnt({2*len(gs)})\n    v_cmp_lt_u32 vcc, v{PGR}, v{VPGV}\n    s_cbranch_vccnz {lab}\n    s_branch {lab}_ok\n'
            a.deferred.append(d)
        def extra(n, ks):
            if (n, ks) == (3, 2):
                a(f's_waitcnt vmcnt(0)\nv_readfirstlane_b32 s{S_T0}, v{VPROG}')
            if (n, ks) == (3, 5):
                a(f's_cmp_gt_u32 s{S_T0}, s{S_STEP}\ns_cselect_b32 s38, 1, 0')
            if (n, ks) == (3, 6): issue((0, 1, 2))
        t_phase(WG0, 4, extra)
        def optx(g):
            a('s_cmp_eq_u32 s38, 1')
            a.opt_begin('s_cbranch_scc0')
            for s_ in xld(g): a(s_)
            a.opt_end()
        def run(g, side=()):
            a.wait_lg(('tr', g))
            side = list(side)
            for s_ in ssm(g):
                a(s_)
                if side: a(side.pop(0))
        for s_ in post(3, True)[:2]: a(s_)
        chk((0, 1, 2))
        run(0); run(1)
        a.wait_lg(('tr', 2))
        a(post(3, True)[2])
        issue((3,))
        run(2)
        chk((3,))
        run(3)
        for s_ in mh(4) + mh(5) + mh(6): a(s_)
        optx(0)
        issue((4,)); optx(1); chk((4,)); run(4)
        issue((5,)); optx(2); chk((5,))
        a.wait_lg(('tr', 5))
        issue((6,)); run(5); chk((6,)); run(6)
        st()
        E, O, K = SA(0), SA(1), SA(2)
        for r in (E, O, K): a(f'v_pk_add_f32 v[{r}:{r+1}], v[{r}:{r+1}], v[{r+2}:{r+3}]')
        for b in range(2): a(f'v_max3_f32 v{M+b}, v{E+b}, v{O+b}, v{K+b}')
        def red(op):
            for r in (8, 4, 2, 1):
                for b in range(2): a(f'{op}_dpp v{M+b}, v{M+b}, v{M+b} row_ror:{r} row_mask:0xf bank_mask:0xf')
        red('v_max_f32')
        for r in (E, O, K): a(f'v_pk_add_f32 v[{r}:{r+1}], v[{r}:{r+1}], v[{M}:{M+1}] neg_lo:[0,1] neg_hi:[0,1]')
        for r in (E, O, K):
            for b in range(2): a(f'v_exp_f32 v{r+b}, v{r+b}')
        a(f'v_pk_add_f32 v[{M}:{M+1}], v[{E}:{E+1}], v[{O}:{O+1}]')
        a(f'v_pk_fma_f32 v[{M}:{M+1}], v[{K}:{K+1}], 0.5, v[{M}:{M+1}] op_sel_hi:[1,0,1]')
        red('v_add_f32')
        a(f'''
        v_rcp_f32 v{M}, v{M}
        v_rcp_f32 v{M+1}, v{M+1}
        v_pk_mul_f32 v[{K}:{K+1}], v[{K}:{K+1}], v[{M}:{M+1}]
        v_pk_mul_f32 v[{E}:{E+1}], v[{E}:{E+1}], v[{M}:{M+1}]
        v_cndmask_b32 v{K}, v{K}, v{K+1}, s[28:29]
        v_pk_mul_f32 v[{O}:{O+1}], v[{O}:{O+1}], v[{M}:{M+1}]
        v_cvt_pk_bf16_f32 v{E}, v{E}, v{O}
        v_mov_b32_dpp v{K+1}, v{K} quad_perm:[1,0,3,2] row_mask:0xf bank_mask:0xf
        v_min_u32 v{E}, -2, v{E}
        buffer_store_dword v{E}, v{VP0}, {SRD}, s{S_PB} offen {st_flag}
        v_cvt_pk_bf16_f32 v{E+1}, v{E+1}, v{O+1}
        v_cvt_pk_bf16_f32 v{K}, v{K}, v{K+1}
        v_min_u32 v{E+1}, -2, v{E+1}
        buffer_store_dword v{E+1}, v{VP0}, {SRD}, s{S_PB} offen offset:16 {st_flag}
        v_min_u32 v{K}, -2, v{K}
        v_mov_b32 v{M}, -1
        s_mov_b64 exec, s[36:37]
        buffer_store_dword v{K}, v{VPM}, {SRD}, s{S_PB} offen {st_flag}
        buffer_store_dword v{M}, v{VPM}, {SRD}, s32 offen {st_flag}
        s_mov_b64 exec, -1
        buffer_store_dword v{M}, v{VP0}, {SRD}, s32 offen {st_flag}
        buffer_store_dword v{M}, v{VP0}, {SRD}, s32 offen offset:16 {st_flag}
        ''')
        st()
        if stamps: a(f's_sub_u32 s{S_STEP}, s{S_STEP}, 1')
        st.flush(0, G0, G0 + 1)
        if stamps: a(f's_add_u32 s{S_STEP}, s{S_STEP}, 1')
        late = a.newlabel('CA0_LATE')
        a(f'''
        s_cmp_ge_u32 s{S_STEP}, 63
        s_cbranch_scc1 {loop}_end
        s_cmp_eq_u32 s38, 1
        s_cbranch_scc1 {late}
        ''')
        prog_gate(a, VPROG, VZ, 35, S_STEP)
        for g in range(3):
            for s_ in xld(g): a(s_)
        a.label(late)
        for g in (3, 4, 5, 6):
            for s_ in xld(g): a(s_)
        a(f'v_readfirstlane_b32 s{S_T0}, v{VPROG}')
        a(f's_add_u32 s{S_T1}, s{S_STEP}, 1')
        a(f's_cmp_gt_u32 s{S_T0}, s{S_T1}')
        a.opt_begin('s_cbranch_scc0')
        a(f'buffer_load_dword v{T2}, v{VTX}, {SRD}, s{S_TX} offen sc1')
        a.opt_end()
        a(f's_add_u32 s{S_TX}, s{S_TX}, {L.XN_SZ}')
        a(f's_branch {loop}')
        a.label(loop + '_end')
        a('s_endpgm')
    mode_split(a, body, TMP)

def chain_B(a, stamps=False, st_flag=''):
    st = Stamps(a, stamps)
    regs = [256 + 8 * g for g in range(32)] + [128 + 8 * g for g in range(16)]
    WG = {}
    n = 0
    for tl in range(8):
        for ks in range(6):
            WG[(tl, ks)] = regs[n]; n += 1
    ACC = 4
    UXF = 36
    MEMF = 68
    PF = MEMF
    W6 = 96
    UMF = 112
    G = W6
    FACC = ACC
    VG0, VW6, VIDX, VMF, VL16, VUX, VRW, VMST = 120, 121, 122, 123, 124, 125, 126, 127
    TMP, TMP2 = 2, 3
    VRR, VL8 = 0, 1
    LDS_MEM, LDS_RED, LDS_W = 0, 8192, 12288
    S_MEM, S_PB, S_UX, S_UM, S_MX = 21, 22, 23, 24, 25
    lane = f'v{V_LANE}'
    a(f'''
    s_lshl_b32 s{S_T0}, s{S_ROLE}, 2
    s_add_u32 s{S_T0}, s{S_T0}, s{S_W}
    s_mul_i32 s{S_T0}, s{S_W}, 56
    s_add_u32 s{S_T0}, s{S_T0}, s{S_ROLE}
    s_mul_i32 s{S_T0}, s{S_T0}, 28672
    s_add_u32 s{S_T2}, s{S_T0}, {L.WB}
    v_lshrrev_b32 v{VMF}, 4, {lane}
    v_lshlrev_b32 v{VMF}, 9, v{VMF}
    v_and_b32 v{VIDX}, 15, {lane}
    v_lshl_add_u32 v{VMF}, v{VIDX}, 4, v{VMF}
    v_lshlrev_b32 v{VL16}, 4, {lane}
    s_lshl_b32 s{S_T3}, s{S_W}, 14
    s_add_u32 s{S_T3}, s{S_T3}, {LDS_W}
    ''')
    a(f'''
    v_and_b32 v{VG0}, 3, {lane}
    v_lshlrev_b32 v{VG0}, 7, v{VG0}
    s_lshl_b32 s{S_T0}, s{S_W}, 9
    s_lshl_b32 s{S_T1}, s{S_ROLE}, 2
    s_add_u32 s{S_T0}, s{S_T0}, s{S_T1}
    s_add_u32 s{S_T0}, s{S_T0}, {7*2048}
    v_add_u32 v{VG0}, s{S_T0}, v{VG0}
    ''')
    def wl(tl, ks, p):
        base = 401408 * (tl >> 1) + 256 * (tl & 1) + 4096 * ks
        if ks < 6: return (f's_add_u32 s26, s{S_T2}, {base}\n' if p == 0 else '') + f'buffer_load_dwordx4 {R(WG[(tl,ks)] + 4 * p, 4)}, v{VMF}, {SRD}, s26 offen offset:{2048*p} sc1'
        return f's_add_u32 s26, s{S_T2}, {base + 2048*p}\ns_add_u32 m0, s{S_T3}, {2048*tl+1024*p}\nbuffer_load_dwordx4 v{VMF}, {SRD}, s26 offen sc1 lds'
    prep2.prog_load(a, [[wl(tl, j, p) for tl in range(8) for p in range(2)] for j in range(7)], VG0, TMP)
    gather_mem_setup(a, VG0)
    a(f'''
    v_lshrrev_b32 v{TMP}, 4, {lane}
    v_and_b32 v{TMP2}, 15, {lane}
    v_and_b32 v{VIDX}, 2, {lane}
    v_cmp_eq_u32 vcc, 2, v{VIDX}
    v_mov_b32 v{VIDX}, 0x44444444
    v_mov_b32 v{VMF}, 0xeeeeeeee
    v_cndmask_b32 v{VIDX}, v{VIDX}, v{VMF}, vcc
    v_and_b32 v{VMF}, 2, {lane}
    v_lshlrev_b32 v{VMF}, 6, v{VMF}
    v_lshl_add_u32 v{VMF}, v{TMP}, 8, v{VMF}
    v_bfe_u32 v{VUX}, {lane}, 2, 2
    v_lshl_add_u32 v{VMF}, v{VUX}, 5, v{VMF}
    v_and_b32 v{VUX}, 1, {lane}
    v_lshl_add_u32 v{VMF}, v{VUX}, 4, v{VMF}
    s_mul_i32 s{S_T0}, s{S_W}, {4*28672}
    s_lshl_b32 s{S_T1}, s{S_ROLE}, 11
    s_add_u32 s{S_T0}, s{S_T0}, s{S_T1}
    v_lshlrev_b32 v{VUX}, 4, v{TMP2}
    v_lshl_add_u32 v{VUX}, v{TMP}, 9, v{VUX}
    v_add_u32 v{VUX}, s{S_T0}, v{VUX}
    s_lshr_b32 s{S_T0}, s{S_W}, 1
    s_lshl_b32 s{S_T0}, s{S_T0}, 10
    s_and_b32 s{S_T1}, s{S_W}, 1
    s_lshl_b32 s{S_T1}, s{S_T1}, 3
    s_add_u32 s{S_T0}, s{S_T0}, s{S_T1}
    s_add_u32 s{S_T0}, s{S_T0}, {LDS_RED}
    v_add_u32 v{VRW}, s{S_T0}, v{VL16}
    v_lshrrev_b32 v{VMST}, 3, v{TMP2}
    v_lshlrev_b32 v{VMST}, 8, v{VMST}
    v_lshl_add_u32 v{VMST}, v{TMP}, 5, v{VMST}
    v_and_b32 v{TMP2}, 1, {lane}
    v_lshl_add_u32 v{VMST}, v{TMP2}, 7, v{VMST}
    v_bfe_u32 v{TMP2}, {lane}, 1, 2
    v_lshl_add_u32 v{VMST}, v{TMP2}, 2, v{VMST}
    s_lshl_b32 s{S_T0}, s{S_ROLE}, 9
    s_lshl_b32 s{S_T1}, s{S_T1}, 1
    s_add_u32 s{S_T0}, s{S_T0}, s{S_T1}
    v_add_u32 v{VMST}, s{S_T0}, v{VMST}
    s_mul_i32 s{S_MX}, s{S_LAYER}, {64*L.MEM_SZ}
    s_add_u32 s{S_MX}, s{S_MX}, {L.MEMX}
    s_mul_i32 s30, s{S_LAYER}, {4*L.MEM_SZ}
    s_add_u32 s30, s30, {L.MEML}
    s_mul_i32 s31, s{S_LAYER}, {4*L.PB_SZ}
    s_mul_i32 s{S_T0}, s{S_W}, 2560
    s_add_u32 s31, s31, s{S_T0}
    s_add_u32 s31, s31, {L.PB}
    s_mul_i32 s{S_UX}, s{S_LAYER}, {64*L.UX_SZ}
    s_add_u32 s{S_UX}, s{S_UX}, {L.UX}
    s_mul_i32 s{S_UM}, s{S_LAYER}, {64*L.UM_SZ}
    s_lshl_b32 s{S_T0}, s{S_ROLE}, 2
    s_add_u32 s{S_T0}, s{S_T0}, s{S_W}
    s_lshl_b32 s{S_T0}, s{S_T0}, 11
    s_add_u32 s{S_UM}, s{S_UM}, s{S_T0}
    s_add_u32 s{S_UM}, s{S_UM}, {L.UM}
    s_lshl_b32 s26, s{S_W}, 14
    s_add_u32 s26, s26, {LDS_W}
    v_add_u32 v{VW6}, s26, v{VL16}
    s_and_b32 s27, s{S_W}, 1
    s_lshl_b32 s27, s27, 11
    s_add_u32 s27, s27, {LDS_RED}
    v_add_u32 v{VRR}, s27, v{VL16}
    v_lshrrev_b32 v{VL8}, 1, v{VL16}
    s_lshl_b32 s35, s{S_LAYER}, 15
    s_lshl_b32 s36, s{S_ROLE}, 2
    s_add_u32 s36, s36, s{S_W}
    s_lshl_b32 s36, s36, 2
    s_add_u32 s36, s36, s35
    s_add_u32 s36, s36, {L.flag(L.FL_UM)}
    s_add_u32 s35, s35, {L.flag(L.FL_PROG)}
    s_mov_b32 s{S_STEP}, 0
    ''')
    def ux_list():
        out = []
        for hp in range(4):
            for ct in range(2):
                r = UXF + 16 * ct + 8 * (hp >> 1) + 4 * (hp & 1)
                l = f'buffer_load_dwordx4 v[{r}:{r+3}], v{VUX}, {SRD}, s{S_UX} offen offset:{256*ct} sc1'
                if ct == 1: l += f'\ns_add_u32 s{S_UX}, s{S_UX}, {28672 if hp < 3 else L.UX_SZ - 3 * 28672}'
                out.append(l)
        return out
    def um_stores():
        a(f'''
        buffer_store_dwordx4 v[{UMF}:{UMF+3}], v{VL16}, {SRD}, s{S_UM} offen sc1
        buffer_store_dwordx4 v[{UMF+4}:{UMF+7}], v{VL16}, {SRD}, s{S_UM} offen offset:1024 sc1
        s_add_u32 s{S_UM}, s{S_UM}, {L.UM_SZ}
        ''')
    def body(st_flag):
        loop = a.newlabel('CB_LOOP'); end = a.newlabel('CB_END'); skip = a.newlabel('CB_SKIP')
        a.flush(); a.label(loop)
        a(f'''
        s_and_b32 s{S_T0}, s{S_STEP}, 3
        s_mul_i32 s{S_T1}, s{S_T0}, {L.MEM_SZ}
        s_add_u32 s{S_MEM}, s{S_T1}, s30
        s_mul_i32 s{S_T1}, s{S_T0}, {L.PB_SZ}
        s_add_u32 s{S_PB}, s{S_T1}, s31
        s_add_u32 s{S_T0}, s{S_STEP}, 1
        s_and_b32 s{S_T0}, s{S_T0}, 3
        s_mul_i32 s{S_T1}, s{S_T0}, {L.MEM_SZ}
        s_add_u32 s28, s{S_T1}, s30
        s_add_u32 s{S_T0}, s{S_STEP}, 3
        s_and_b32 s{S_T0}, s{S_T0}, 3
        s_mul_i32 s{S_T1}, s{S_T0}, {L.MEM_SZ}
        s_add_u32 s29, s{S_T1}, s30
        ''')
        for i in range(0, 32, 2): a(f'v_mov_b64 v[{ACC+i}:{ACC+i+1}], 0')
        gather_mem(a, st, G, VG0, S_MEM, TMP, LDS_MEM, TMP2)
        for ks in range(7): a(f'ds_read_b128 v[{MEMF+4*ks}:{MEMF+4*ks+3}], v{VMF} offset:{LDS_MEM+1024*ks}')
        nx = a.newlabel('CB_NX'); nu = a.newlabel('CB_NU')
        a(f'''
        s_cmp_lg_u32 s{S_ROLE}, 0
        s_cbranch_scc1 {nx}
        s_add_u32 s34, s{S_MX}, s33
        v_bfe_u32 v{TMP}, v{VG0}, 7, 1
        v_mul_u32_u24 v{TMP}, 120, v{TMP}
        v_sub_u32 v{TMP}, v{VG0}, v{TMP}
        ds_read2_b32 v[{G}:{G+1}], v{TMP} offset0:0 offset1:32
        ds_read2_b32 v[{G+2}:{G+3}], v{TMP} offset0:1 offset1:33
        v_add_u32 v{TMP}, 4096, v{TMP}
        ds_read2_b32 v[{G+4}:{G+5}], v{TMP} offset0:0 offset1:32
        ds_read2_b32 v[{G+6}:{G+7}], v{TMP} offset0:1 offset1:33
        s_waitcnt lgkmcnt(0)
        buffer_store_dwordx4 v[{G}:{G+3}], v{VG0}, {SRD}, s{S_MX} offen sc1
        buffer_store_dwordx4 v[{G+4}:{G+7}], v{VG0}, {SRD}, s34 offen sc1
        s_add_u32 s{S_T0}, s{S_STEP}, 1
        v_mov_b32 v{TMP}, s{S_T0}
        s_mov_b64 exec, 1
        buffer_store_dword v{TMP}, off, {SRD}, s35 offset:384 {st_flag}
        s_mov_b64 exec, -1
        ''')
        a.label(nx)
        a(f'''
        s_cmp_eq_u32 s{S_STEP}, 0
        s_cbranch_scc1 {nu}
        ''')
        um_stores()
        a.label(nu)
        a(f'v_mov_b32 v{TMP}, 0')
        prog_gate(a, TMP2, TMP, 35, S_STEP)
        def w6read(tl):
            r = W6 + 8 * (tl % 2)
            return [f'ds_read_b128 v[{r}:{r+3}], v{VW6} offset:{2048*tl}', f'ds_read_b128 v[{r+4}:{r+7}], v{VW6} offset:{2048*tl+1024}']
        for s_ in w6read(0) + w6read(1): a(s_)
        def pack(tl):
            c = ACC + 4 * tl; hh, ct = tl >> 1, tl & 1
            return [f'v_pk_add_f32 v[{c}:{c+1}], v[{c}:{c+1}], v[{c+2}:{c+3}]', f'v_cvt_pk_bf16_f32 v{UMF+4*ct+hh}, v{c}, v{c+1}', f'v_min_u32 v{UMF+4*ct+hh}, -2, v{UMF+4*ct+hh}']
        uxl = ux_list()
        for ks in range(6):
            if ks < 2: a(f's_waitcnt lgkmcnt({10-ks})')
            for tl in range(8):
                c = ACC + 4 * tl
                a(f'v_smfmac_f32_16x16x64_bf16 v[{c}:{c+3}], v[{MEMF+4*ks}:{MEMF+4*ks+3}], {R(WG[(tl,ks)],8)}, v{VIDX}')
                if tl in (1, 5) and uxl: a(uxl.pop(0))
            if 1 <= ks <= 4:
                a('s_waitcnt lgkmcnt(0)')
                for j in range(2):
                    tl = [2, 3, 4, 5, 0, 1, 6, 7][2 * (ks - 1) + j] if False else 2 * (ks - 1) + j
                    c = ACC + 4 * tl; r = W6 + 8 * j
                    a(f'v_smfmac_f32_16x16x64_bf16 v[{c}:{c+3}], v[{MEMF+24}:{MEMF+27}], v[{r}:{r+7}], v{VIDX}')
                if ks < 4:
                    for s_ in w6read(2 * ks) + w6read(2 * ks + 1): a(s_)
        for tl in range(8):
            for s_ in pack(tl): a(s_)
        a(f'''
        s_cmp_eq_u32 s{S_STEP}, 63
        s_cbranch_scc1 {end}
        ''')
        for i in range(0, 8, 2): a(f'v_mov_b64 v[{FACC+i}:{FACC+i+1}], 0')
        st()
        mk = lambda P: [f'buffer_load_dwordx4 v[{P}:{P+3}], v{VL16}, {SRD}, s{S_PB} offen sc1',
                 f'buffer_load_dwordx4 v[{P+4}:{P+7}], v{VL16}, {SRD}, s{S_PB} offen offset:1024 sc1',
                 f'buffer_load_dwordx2 v[{P+8}:{P+9}], v{VL8}, {SRD}, s{S_PB} offen offset:2048 sc1']
        def cons(PF):
            for m in range(2):
                for ct in range(2):
                    a(f'v_smfmac_f32_16x16x64_bf16 v[{FACC+4*ct}:{FACC+4*ct+3}], v[{PF+4*m}:{PF+4*m+3}], v[{UXF+16*ct+8*m}:{UXF+16*ct+8*m+7}], v{VIDX}')
            for ct in range(2):
                a(f'v_smfmac_f32_16x16x32_bf16 v[{FACC+4*ct}:{FACC+4*ct+3}], v[{PF+8}:{PF+9}], v[{UMF+4*ct}:{UMF+4*ct+3}], v{VIDX}')
        poll2(a, mk, [PF, PF + 12], 10, TMP, cons)
        st()
        T = ACC + 8
        a(f'''
        v_mov_b32 v{TMP}, -1
        s_cmp_ge_u32 s{S_W}, 2
        v_add_f32 v{T}, v{FACC}, v{FACC+2}
        v_add_f32 v{T+2}, v{FACC+1}, v{FACC+3}
        v_add_f32 v{T+1}, v{FACC+4}, v{FACC+6}
        v_add_f32 v{T+3}, v{FACC+5}, v{FACC+7}
        ds_write2st64_b64 v{VRW}, v[{T}:{T+1}], v[{T+2}:{T+3}] offset0:0 offset1:4
        s_waitcnt lgkmcnt(0)
        s_barrier
        s_cbranch_scc1 {skip}
        ds_read_b128 v[{T}:{T+3}], v{VRR}
        ds_read_b128 v[{T+4}:{T+7}], v{VRR} offset:1024
        s_waitcnt lgkmcnt(1)
        v_pk_add_f32 v[{T}:{T+1}], v[{T}:{T+1}], v[{T+2}:{T+3}]
        s_waitcnt lgkmcnt(0)
        v_pk_add_f32 v[{T+4}:{T+5}], v[{T+4}:{T+5}], v[{T+6}:{T+7}]
        v_pk_add_f32 v[{T}:{T+1}], v[{T}:{T+1}], v[{T+4}:{T+5}]
        v_cvt_pk_bf16_f32 v{T}, v{T}, v{T+1}
        v_min_u32 v{T}, -2, v{T}
        buffer_store_dword v{T}, v{VMST}, {SRD}, s28 offen {st_flag}
        buffer_store_dword v{TMP}, v{VMST}, {SRD}, s29 offen {st_flag}
        ''')
        a.label(skip)
        st()
        st.flush(2 << 20, TMP, TMP2)
        a(f'''
        s_add_u32 s{S_MX}, s{S_MX}, {L.MEM_SZ}
        s_add_u32 s{S_STEP}, s{S_STEP}, 1
        s_branch {loop}
        ''')
        a.label(end)
        um_stores()
        a('s_endpgm')
    mode_split(a, body, TMP)

def helper_prog(a, woff=0):
    a(f'''
    s_cmp_eq_u32 s{S_W}, 0
    s_cselect_b32 s{S_T0}, 59, 55
    s_cselect_b32 s{S_T1}, 0, {L.FLXN - L.FLU}
    v_min_u32 v2, s{S_T0}, v{V_LANE}
    v_lshrrev_b32 v3, 2, v2
    v_mul_u32_u24 v3, 12, v3
    v_add_lshl_u32 v2, v2, v3, 3
    v_mov_b32 v3, 0
    s_lshl_b32 s21, s{S_LAYER}, 15
    s_lshl_b32 s{S_T0}, s{S_W}, 7
    s_add_u32 s22, s21, s{S_T0}
    s_add_u32 s22, s22, {L.flag(L.FL_PROG) + woff}
    s_lshl_b32 s21, s21, 2
    s_add_u32 s21, s21, s{S_T1}
    s_add_u32 s21, s21, {L.FLU}
    s_mov_b32 s{S_STEP}, 0
    ''')
    def body(st_flag):
        loop = a.newlabel('HP')
        a.label(loop)
        wait_flags(a, 21, 2, 4, width=2, sleep=1)
        a(f'''
        s_add_u32 s{S_STEP}, s{S_STEP}, 1
        s_add_u32 s21, s21, 2048
        v_mov_b32 v6, s{S_STEP}
        s_mov_b64 exec, 1
        buffer_store_dword v6, v3, {SRD}, s22 offen {st_flag}
        s_mov_b64 exec, -1
        s_cmp_lt_u32 s{S_STEP}, 64
        s_cbranch_scc1 {loop}
        s_endpgm
        ''')
    mode_split(a, body, 4)

def helper_touch(a):
    loop = a.newlabel('WX')
    a(f'''
    v_min_u32 v2, 55, v{V_LANE}
    v_lshlrev_b32 v2, 7, v2
    v_and_b32 v3, 1, v{V_LANE}
    v_mul_u32_u24 v3, {L.MEM_SZ}, v3
    s_mul_i32 s22, s{S_LAYER}, {64*L.MEM_SZ}
    s_add_u32 s22, s22, {L.MEMX}
    s_lshl_b32 s23, s{S_LAYER}, 15
    s_add_u32 s23, s23, {L.flag(L.FL_PROG)}
    s_mul_i32 s{S_T2}, s{S_LAYER}, {64*L.UX_SZ}
    s_add_u32 s{S_T2}, s{S_T2}, {L.UX + L.UX_SZ + 57344}
    s_mov_b32 s{S_STEP}, 1
    ''')
    for i in range(5):
        a(f'''
        s_add_u32 s{S_T0}, s21, {4*i+12}
        s_min_u32 s{S_T0}, s{S_T0}, 31
        s_lshr_b32 s{S_T1}, s{S_T0}, 3
        s_mul_i32 s{S_T1}, s{S_T1}, 114688
        s_and_b32 s{S_T0}, s{S_T0}, 7
        s_mul_i32 s{S_T0}, s{S_T0}, 7168
        s_add_u32 s{S_T0}, s{S_T0}, s{S_T1}
        s_add_u32 s{26+i}, s{S_T0}, s{S_T2}
        ''')
    a.label(loop)
    a(f'''
    s_sleep 2
    buffer_load_dword v8, off, {SRD}, s23 offset:384 sc1
    buffer_load_dword v9, off, {SRD}, s23 sc1
    s_sub_u32 s{S_ABORT}, s{S_ABORT}, 1
    s_cbranch_scc1 {loop}_end
    s_waitcnt vmcnt(0)
    v_readfirstlane_b32 s24, v9
    v_readfirstlane_b32 s25, v8
    s_cmp_gt_u32 s25, s{S_STEP}
    s_cbranch_scc1 {loop}_skip
    s_cmp_gt_u32 s24, s{S_STEP}
    s_cbranch_scc0 {loop}
    s_cmp_lt_u32 s25, s{S_STEP}
    s_cbranch_scc1 {loop}
    ''')
    for i in range(5): a(f'buffer_load_dword v4, v2, {SRD}, s{26+i} offen sc1')
    a.label(loop + '_skip')
    for i in range(5): a(f's_add_u32 s{26+i}, s{26+i}, {L.UX_SZ}')
    a(f'''
    s_add_u32 s22, s22, {L.MEM_SZ}
    s_add_u32 s{S_STEP}, s{S_STEP}, 1
    s_cmp_lt_u32 s{S_STEP}, 63
    s_cbranch_scc1 {loop}
    ''')
    a.label(loop + '_end')
    a('s_endpgm')

def filler(a):
    loop = a.newlabel('FILL')
    a(f'''
    v_lshlrev_b32 v2, 4, v{V_LANE}
    v_mov_b32 v4, -1
    v_mov_b32 v5, -1
    v_mov_b32 v6, -1
    v_mov_b32 v7, -1
    v_mov_b32 v8, 1
    s_mul_i32 s22, s{S_W}, 28672
    s_add_u32 s22, s22, {L.UM}
    s_lshl_b32 s23, s{S_W}, 2
    s_add_u32 s23, s23, {L.FLU + 1792}
    ''')
    a.label(loop)
    a(f'''
    s_lshr_b32 s27, s21, 1
    s_cmp_lt_u32 s27, 10
    s_cbranch_scc1 {loop}_go
    s_sub_u32 s28, s27, 10
    s_mul_i32 s28, s28, {L.MEM_SZ}
    s_add_u32 s28, s28, {L.MEMX}
    ''')
    a.label(loop + '_w')
    a(f'''
    buffer_load_dword v9, off, {SRD}, s28 sc1
    s_sub_u32 s{S_ABORT}, s{S_ABORT}, 1
    s_cbranch_scc1 {loop}_ab
    s_waitcnt vmcnt(0)
    v_cmp_eq_u32 vcc, -1, v9
    s_cbranch_vccz {loop}_go
    s_sleep 16
    s_branch {loop}_w
    ''')
    a.label(loop + '_ab')
    a(f's_mov_b32 s{S_ABORT}, 0')
    a.label(loop + '_go')
    a('s_and_b32 s28, s21, 1')
    a('s_lshl_b32 s28, s28, 6')
    a('s_add_u32 s28, s28, s27')
    a(f's_mul_i32 s24, s28, {L.UM_SZ}')
    a('s_add_u32 s24, s24, s22')
    for i in range(28):
        a(f'buffer_store_dwordx4 v[4:7], v2, {SRD}, s24 offen offset:{(i % 4) * 1024} sc1')
        if i % 4 == 3: a('s_add_u32 s24, s24, 4096')
    a(f'''
    s_lshl_b32 s24, s28, 11
    s_add_u32 s24, s24, s23
    s_sub_u32 s25, s24, {2048 - 16}
    s_cmp_eq_u32 s27, 0
    s_cselect_b32 s26, {64*2048}, 0
    s_add_u32 s25, s25, s26
    s_waitcnt vmcnt(0)
    s_mov_b64 exec, 1
    buffer_store_dword v8, off, {SRD}, s24 sc1
    buffer_store_dword v8, off, {SRD}, s25 sc1
    s_mov_b64 exec, -1
    s_add_u32 s21, s21, 2
    s_cmp_lt_u32 s21, 128
    s_cbranch_scc1 {loop}
    s_endpgm
    ''')
```

```python
from asmlib import *
import layout as L
R = RegFile.r
SRD = 's[8:11]'
S_WS, S_DBG = 4, 6
S_W = 12
S_ROLE = 13
S_LAYER = 14
S_STEP = 15
S_ABORT = 16
S_T0, S_T1, S_T2, S_T3 = 17, 18, 19, 20
V_LANE = 1
POLL_BUDGET = 300000
import os
CYC = bool(os.environ.get('CYC'))

def common_prologue(a):
    a(f'''
    s_load_dwordx2 s[{S_WS}:{S_WS+1}], s[0:1], 104
    s_load_dwordx2 s[{S_DBG}:{S_DBG+1}], s[0:1], 96
    v_lshrrev_b32 v2, 6, v0
    v_and_b32 v{V_LANE}, 63, v0
    v_readfirstlane_b32 s{S_W}, v2
    s_waitcnt lgkmcnt(0)
    s_mov_b32 s8, s{S_WS}
    s_and_b32 s9, s{S_WS+1}, 0xffff
    s_mov_b32 s10, 0x10000000
    s_mov_b32 s11, 0x00020000
    s_mov_b32 s{S_ABORT}, {POLL_BUDGET}
    s_mov_b32 s92, s{S_DBG}
    s_and_b32 s93, s{S_DBG+1}, 0xffff
    s_mov_b32 s94, 256
    s_mov_b32 s95, 0x00020000
    ''')

def check(a, regs, tmp):
    r = list(regs)
    a(f'v_max3_u32 v{tmp}, v{r[0]}, v{r[1]}, v{r[2]}'); r = r[3:]
    while len(r) >= 2:
        a(f'v_max3_u32 v{tmp}, v{tmp}, v{r[0]}, v{r[1]}'); r = r[2:]
    if r: a(f'v_max_u32 v{tmp}, v{tmp}, v{r[0]}')
    a(f'v_cmp_eq_u32 vcc, -1, v{tmp}')

def poll(a, loads, regs, tmp, sleep=0):
    lab = a.newlabel('POLL'); done = a.newlabel('POLLD')
    if sleep:
        a(f's_branch {lab}_in')
        a.label(lab); a(f's_sleep {sleep}'); a.label(lab + '_in')
    else: a.label(lab)
    for l in loads: a(l)
    a(f's_sub_u32 s{S_ABORT}, s{S_ABORT}, 1')
    a(f's_cbranch_scc1 {done}_abort')
    a('s_waitcnt vmcnt(0)')
    check(a, regs, tmp)
    a.br(f's_cbranch_vccnz {lab}')
    a.label(done)
    a.deferred.append(f'{done}_abort:\n    s_mov_b32 s{S_ABORT}, 0\n    s_waitcnt vmcnt(0)\n    s_branch {done}\n')

def wait_flags(a, soff, voff, tmp, width=1, sleep=2):
    lab = a.newlabel('WF'); done = a.newlabel('WFD')
    a(f's_branch {lab}_in')
    a.label(lab); a(f's_sleep {sleep}'); a.label(lab + '_in')
    if width == 1: a(f'buffer_load_dword v{tmp}, v{voff}, {SRD}, s{soff} offen sc1')
    else: a(f'buffer_load_dwordx2 v[{tmp}:{tmp+1}], v{voff}, {SRD}, s{soff} offen sc1')
    a(f's_sub_u32 s{S_ABORT}, s{S_ABORT}, 1')
    a(f's_cbranch_scc1 {done}_abort')
    a('s_waitcnt vmcnt(0)')
    if width == 2: a(f'v_min_u32 v{tmp}, v{tmp}, v{tmp+1}')
    a(f'v_cmp_eq_u32 vcc, 0, v{tmp}')
    a.br(f's_cbranch_vccnz {lab}')
    a.label(done)
    a.deferred.append(f'{done}_abort:\n    s_mov_b32 s{S_ABORT}, 0\n    s_waitcnt vmcnt(0)\n    s_branch {done}\n')

def signal(a, soff, vzero, vone, mode='sc1', wait='s_waitcnt vmcnt(0)'):
    a(f'''
    {wait}
    s_mov_b64 exec, 1
    buffer_store_dword v{vone}, v{vzero}, {SRD}, s{soff} offen {mode}
    s_mov_b64 exec, -1
    ''')

def load_frags(a, regs, voff, soff, mods=''):
    for i, r in enumerate(regs):
        a(f'buffer_load_dwordx4 {R(r, 4)}, v{voff}, {SRD}, s{soff} offen offset:{(i % 4) * 1024} {mods}')
        if i % 4 == 3: a(f's_add_u32 s{soff}, s{soff}, 4096')

class Stamps:
    def __init__(self, a, on, base=60):
        self.a, self.on, self.base, self.n = a, on, base, 0
    def __call__(self):
        if self.on:
            self.a(f's_memrealtime s[{self.base+2*self.n}:{self.base+2*self.n+1}]'); self.n += 1
    def cyc(self, k):
        if self.on and CYC: self.a(f's_memtime s[{self.base+16+2*k}:{self.base+17+2*k}]'); self.nc = max(getattr(self, 'nc', 0), k + 1)
    def flush(self, role_off, vt, va, sstep=S_STEP):
        if not self.on: return
        a = self.a
        a('s_waitcnt lgkmcnt(0)')
        a(f's_lshl_b32 s{S_T0}, s{S_ROLE}, 2')
        a(f's_add_u32 s{S_T0}, s{S_T0}, s{S_W}')
        a(f's_lshl_b32 s{S_T0}, s{S_T0}, 7')
        a(f's_add_u32 s{S_T0}, s{S_T0}, s{sstep}')
        a(f's_lshl_b32 s{S_T0}, s{S_T0}, 6')
        a(f's_add_u32 s{S_T0}, s{S_T0}, s59')
        a(f's_add_u32 s{S_T0}, s{S_T0}, {L.DBG + role_off}')
        a(f'v_mbcnt_lo_u32_b32 v{va}, -1, 0')
        a(f'v_lshlrev_b32 v{va}, 2, v{va}')
        for i in range(self.n):
            a(f'v_writelane_b32 v{vt}, s{self.base+2*i}, {i}')
        for i in range(getattr(self, 'nc', 0)):
            a(f'v_writelane_b32 v{vt}, s{self.base+16+2*i}, {8+i}')
        a('s_mov_b64 exec, 0xffff')
        a(f'buffer_store_dword v{vt}, v{va}, {SRD}, s{S_T0} offen')
        a('s_mov_b64 exec, -1')
        self.n = 0

def interleave(a, main, side, per=1, start=0):
    side = list(side)
    for i, m in enumerate(main):
        a(m)
        if i >= start:
            for _ in range(per):
                if side: a(side.pop(0))
    return side

def stats_ops(S, T):
    return [
        f'v_pk_add_f32 v[{S}:{S+1}], v[{S}:{S+1}], v[{S+2}:{S+3}]',
        f'v_pk_add_f32 v[{S+4}:{S+5}], v[{S+4}:{S+5}], v[{S+6}:{S+7}]',
        f'v_pk_add_f32 v[{S}:{S+1}], v[{S}:{S+1}], v[{S+4}:{S+5}]',
        f'v_mov_b32 v{T}, v{S}',
        f'v_mov_b32 v{T+1}, v{S+1}',
        f'v_permlane32_swap_b32 v{T}, v{S}',
        f'v_permlane32_swap_b32 v{T+1}, v{S+1}',
        f'v_pk_add_f32 v[{S}:{S+1}], v[{S}:{S+1}], v[{T}:{T+1}]',
        f'v_mul_f32 v{T}, {hex(f2u(1.0/448))}, v{S}',
        f'v_mul_f32 v{T+1}, {hex(f2u(1.0/448))}, v{S+1}',
        f'v_fma_f32 v{T+1}, -v{T}, v{T}, v{T+1}',
        f'v_max_f32 v{T+1}, 0, v{T+1}',
        f'v_add_f32 v{T+1}, {hex(f2u(1e-5))}, v{T+1}',
        f'v_rsq_f32 v{S}, v{T+1}',
        f'v_mov_b32 v{S+1}, v{T}',
    ]

import struct
def f2u(x): return struct.unpack('<I', struct.pack('<f', x))[0]

def kernel_wrap(name, body, vgpr=512, accum=256, sgpr=102):
    return f'''.text
.globl {name}
.p2align 8
.type {name},@function
{name}:
{body}
.section .rodata,"a"
.p2align 6
.amdhsa_kernel {name}
  .amdhsa_next_free_vgpr {vgpr}
  .amdhsa_next_free_sgpr {sgpr}
  .amdhsa_accum_offset {accum}
  .amdhsa_group_segment_fixed_size 0
  .amdhsa_kernarg_size 112
  .amdhsa_user_sgpr_count 2
  .amdhsa_user_sgpr_kernarg_segment_ptr 1
  .amdhsa_system_sgpr_workgroup_id_x 1
.end_amdhsa_kernel
'''

S_GRP = 56
S_NEED = 57
def mode_split(a, body, vt, force_slow=None):
    lab = a.newlabel('MS')
    if force_slow is not None:
        a(f's_cmp_lg_u32 s{force_slow}, 0'); a(f's_cbranch_scc1 {lab}_slow')
    a.flush()
    a.label(lab)
    a(f"""
    buffer_load_dword v{vt}, off, s[92:95], s{S_GRP} sc1
    s_sub_u32 s{S_ABORT}, s{S_ABORT}, 1
    s_cbranch_scc1 {lab}_ab
    s_waitcnt vmcnt(0)
    v_readfirstlane_b32 s58, v{vt}
    s_and_b32 s{S_T0}, s58, 0xffff
    s_cmp_ge_u32 s{S_T0}, s{S_NEED}
    s_cbranch_scc0 {lab}
    s_lshr_b32 s{S_T0}, s58, 16
    s_cbranch_scc1 {lab}_slow
    """)
    body('')
    a.label(lab + '_ab')
    a(f's_mov_b32 s{S_ABORT}, 0')
    a('s_waitcnt vmcnt(0)')
    a.label(lab + '_slow')
    body('sc1')

def wg_stamp(a, slot, vt, va):
    a(f"""
    s_memrealtime s[96:97]
    s_memtime s[98:99]
    s_lshl_b32 s100, s2, 4
    s_add_u32 s100, s100, {L.DBG + (14 << 20) + slot * 4096}
    s_waitcnt lgkmcnt(0)
    v_mov_b32 v{vt}, s96
    v_mov_b32 v{vt+1}, s98
    buffer_store_dwordx2 v[{vt}:{vt+1}], off, {SRD}, s100
    """)
```

```python
import numpy as np
NSEG = 64
MB = 1 << 20
WAC = 0
WBC = 7 * MB
WAT = 14 * MB
WBU = 21 * MB
WF1 = 28 * MB
WF2 = 32 * MB
MEM_SZ, PB_SZ, XN_SZ, UX_SZ, UM_SZ, PX_SZ, HB_SZ, ST_SZ = 7168, 10240, 28672, 458752, 114688, 40960, 114688, 2048
MEML = 34 * MB
PB = MEML + 65536
MEMX = MEML + 65536 + 98304
SENT_BYTES = 65536 + 98304 + 917504
FLAGS = 36 * MB
FL_U, FL_T, FL_XN, FL_P, FL_H, FL_X, FL_PROG = 0, 1, 2, 3, 4, 5, 6
FLAG_BYTES = 8 * 2 * 64 * 512
def flag(kind, layer=0, s=0): return FLAGS + ((kind * 2 + layer) * 64 + s) * 512
ST = 37 * MB + MB // 2
XN = 38 * MB
XS = 42 * MB
PX = 52 * MB
UM = 58 * MB
HB = 74 * MB
UX = 96 * MB
DBG = 200 * MB

def bf16(x):
    u = np.ascontiguousarray(x, np.float32).view(np.uint32)
    return ((u + 0x7fff + ((u >> 16) & 1)) >> 16).astype(np.uint16)
def f32(u): return (u.astype(np.uint32) << 16).view(np.float32)

def amap(k):
    return 16 * (k >> 4) + 8 * ((k >> 1) & 1) + 2 * ((k >> 2) & 3) + (k & 1)
def perm32(r):
    return 16 * (r >> 4) + 8 * ((r >> 2) & 1) + 4 * ((r >> 3) & 1) + (r & 3)

L64 = np.arange(64); E8 = np.arange(8)
def smf_bfrag_rows():
    p = np.arange(2)[:, None, None]; l = L64[None, :, None]; e = E8[None, None, :]
    return amap(32 * p + 8 * (l >> 4) + e)

def pack_WAC(A):
    ar = smf_bfrag_rows(); c = (L64 & 15)[None, :, None]
    out = np.empty((16, 4, 7, 7, 2, 64, 8), A.dtype)
    for w in range(4):
        for t in range(7):
            for ks in range(7):
                out[:, w, t, ks] = A[:, 64 * ks + ar, 112 * w + 16 * t + c]
    return out

def pack_WBC(B):
    ar = smf_bfrag_rows(); c = (L64 & 15)[None, :, None]
    out = np.empty((14, 4, 4, 2, 7, 2, 64, 8), B.dtype)
    for cu in range(14):
        for ct in range(2):
            for ks in range(7):
                out[cu, :, :, ct, ks] = B[:, 64 * ks + ar, 32 * cu + 2 * c + ct].reshape(4, 4, 2, 64, 8)
    return out

def wat_col(w, t, rho):
    if t == 6: return 112 * w + 96 + rho
    return 112 * w + 32 * (t >> 1) + 8 * (rho >> 2) + 4 * (t & 1) + (rho & 3)
def pack_WAT(A):
    out = np.empty((16, 4, 7, 14, 64, 8), A.dtype)
    q = (L64 >> 4)[:, None]; rho = (L64 & 15)[:, None]
    for w in range(4):
        for t in range(7):
            for ks in range(14):
                out[:, w, t, ks] = A[:, 32 * ks + 8 * q + E8[None, :], wat_col(w, t, rho)]
    return out

POS2COL = np.array([32 * (p >> 5) + 2 * (p & 15) + ((p >> 4) & 1) for p in range(448)])
def pack_WBU(B):
    out = np.empty((8, 14, 2, 28, 64, 8), B.dtype)
    hi = (L64 >> 5)[:, None]; c = (L64 & 31)[:, None]
    for cu in range(14):
        for ks in range(28):
            out[:, cu, :, ks] = B[:, 16 * ks + 8 * hi + E8[None, :], POS2COL[32 * cu + c]].reshape(8, 2, 64, 8)
    return out
def pack_WF1(wg, wu):
    out = np.empty((112, 28, 64, 8), wg.dtype)
    hi = (L64 >> 5)[:, None]; rho = (L64 & 31)[:, None]
    f = perm32(rho & 15)
    for phi in range(112):
        for ks in range(28):
            k = 16 * ks + 8 * hi + E8[None, :]
            out[phi, ks] = np.where(rho < 16, wg[k, 16 * phi + f], wu[k, 16 * phi + f])
    return out
def pack_WF2(wd):
    out = np.empty((7, 4, 2, 28, 64, 8), wd.dtype)
    hi = (L64 >> 5)[:, None]; rho = (L64 & 31)[:, None]
    for c in range(7):
        for w in range(4):
            for ct2 in range(2):
                for kk in range(28):
                    out[c, w, ct2, kk] = wd[16 * (28 * w + kk) + 8 * hi + E8[None, :], 64 * c + 32 * ct2 + perm32(rho)]
    return out

def pack_G(x):
    T = x.shape[0]
    return np.ascontiguousarray(x.reshape(T, -1, 8).transpose(1, 0, 2))
def unpack_G(g, T):
    return np.ascontiguousarray(g.reshape(-1, T, 8).transpose(1, 0, 2)).reshape(T, -1)

def pack_UX(U):
    V = U[:, :, POS2COL].reshape(16, 4, 8, 14, 32)
    return np.ascontiguousarray(V.transpose(0, 3, 1, 4, 2))
def pack_UM(Um):
    out = np.empty((14, 4, 2, 64, 4, 2), Um.dtype)
    q = L64 >> 4; c = L64 & 15
    for cu in range(14):
        for w in range(4):
            for ct in range(2):
                for hh in range(4):
                    for b in range(2):
                        out[cu, w, ct, :, hh, b] = Um[4 * w + hh, 2 * q + b, 32 * cu + 2 * c + ct]
    return out
def pack_PX(P):
    out = np.empty((4, 10, 2, 32, 8), P.dtype)
    for w in range(4):
        for hh in range(4):
            for kh in range(2):
                for hi in range(2):
                    out[w, 2 * hh + kh, hi] = P[4 * w + hh, 8:, 8 + 16 * kh + 8 * hi: 16 + 16 * kh + 8 * hi]
            for kk2 in range(2):
                for hi in range(2):
                    q = 2 * kk2 + hi
                    out[w, 8 + kk2, hi, :, 2 * hh: 2 * hh + 2] = P[4 * w + hh, 8:, 2 * q: 2 * q + 2]
    return out
def pack_ST(x):
    out = np.zeros((32, 8, 2), np.float32)
    v = x.reshape(32, 7, 64).astype(np.float64)
    out[:, :7, 0] = v.sum(-1); out[:, :7, 1] = (v * v).sum(-1)
    return out

FL_UM = FL_XN
FLU = FLAGS + FLAG_BYTES
FLXN = FLU + 128 * 2048
FW = FLXN + 128 * 2048
ZERO_BYTES = 32 * 9 * 4096
assert FW + 2*7*16*128 <= FLAGS + ZERO_BYTES
assert FLAGS + ZERO_BYTES <= ST and ST + 256 * ST_SZ <= XN
WA, WB = WAC, WBC
def pack_WA(A):
    return np.ascontiguousarray(A.reshape(16, 14, 4, 8, 28, 16).transpose(0, 4, 1, 2, 5, 3))
def pack_WB(B):
    return np.ascontiguousarray(B[:, :, POS2COL].reshape(16, 56, 8, 14, 32).transpose(0, 3, 1, 4, 2))
```

```python
from common import *
import chain, workers, prep2

XMAP = hex(int(os.environ.get('XMAP', '65742130'), 16))
def mega(name, stamps=False, fast=True):
    a = Asm(); a.deferred = []
    common_prologue(a)
    mode = '' if fast else 'sc1'
    REG = L.flag(7)
    if stamps: wg_stamp(a, 2, 10, 0)
    a(f'''
    s_cmp_ge_u32 s2, 256
    s_cbranch_scc1 M_EXIT
    s_mov_b32 s52, 0x20202020
    s_mov_b32 s53, 0x20202020
    s_cmp_lg_u32 s{S_W}, 0
    s_cbranch_scc1 M_WAITROLE
    s_getreg_b32 s3, hwreg(HW_REG_XCC_ID, 0, 3)
    s_lshl_b32 s3, s3, 2
    s_lshr_b32 s3, {XMAP}, s3
    s_and_b32 s3, s3, 7
    s_mov_b64 exec, 1
    v_mov_b32 v2, 1
    s_lshl_b32 s{S_T0}, s3, 5
    buffer_atomic_add v2, off, s[92:95], s{S_T0} sc0 sc1
    s_lshl_b32 s{S_T3}, s3, 3
    s_lshr_b64 s[54:55], s[52:53], s{S_T3}
    s_and_b32 s{S_NEED}, s54, 0xff
    s_waitcnt vmcnt(0)
    v_readfirstlane_b32 s{S_ROLE}, v2
    s_and_b32 s{S_ROLE}, s{S_ROLE}, 0xffff
    s_mov_b64 exec, -1
    s_cmp_lt_u32 s{S_ROLE}, s{S_NEED}
    s_cbranch_scc1 M_GOTROLE
    v_and_b32 v3, 7, v{V_LANE}
    v_lshlrev_b32 v4, 3, v3
    v_lshrrev_b64 v[4:5], v4, s[52:53]
    v_and_b32 v4, 0xff, v4
    v_lshlrev_b32 v3, 5, v3
    s_mov_b32 s{S_T2}, 60
M_SURP:
    buffer_load_dword v5, v3, s[92:95], 0 offen sc1
    s_waitcnt vmcnt(0)
    v_and_b32 v5, 0xffff, v5
    v_cmp_lt_u32 vcc, v5, v4
    s_mov_b32 s3, 8
    s_cbranch_vccz M_GOTROLE
    s_sleep 8
    s_sub_u32 s{S_T2}, s{S_T2}, 1
    s_cbranch_scc0 M_SURP
    s_mov_b32 s{S_T2}, 0
    s_ff1_i32_b32 s3, vcc_lo
    s_mov_b64 exec, 1
    v_mov_b32 v2, 0x10001
    s_lshl_b32 s{S_T0}, s3, 5
    buffer_atomic_add v2, off, s[92:95], s{S_T0} sc0 sc1
    s_lshl_b32 s{S_T3}, s3, 3
    s_lshr_b64 s[54:55], s[52:53], s{S_T3}
    s_and_b32 s{S_NEED}, s54, 0xff
    s_waitcnt vmcnt(0)
    v_readfirstlane_b32 s{S_ROLE}, v2
    s_and_b32 s{S_ROLE}, s{S_ROLE}, 0xffff
    s_mov_b64 exec, -1
    s_cmp_lt_u32 s{S_ROLE}, s{S_NEED}
    s_cbranch_scc0 M_SURP
M_GOTROLE:
    s_lshl_b32 s{S_T0}, s3, 16
    s_or_b32 s{S_T0}, s{S_T0}, s{S_ROLE}
    v_mov_b32 v2, s{S_T0}
    v_mov_b32 v3, 0
    ds_write_b32 v3, v2
    s_waitcnt lgkmcnt(0)
M_WAITROLE:
    s_barrier
    v_mov_b32 v3, 0
    ds_read_b32 v2, v3
    s_waitcnt lgkmcnt(0)
    v_readfirstlane_b32 s{S_T0}, v2
    s_barrier
    s_lshr_b32 s3, s{S_T0}, 16
    s_and_b32 s{S_ROLE}, s{S_T0}, 0xffff
    s_cmp_ge_u32 s3, 8
    s_cbranch_scc1 M_EXIT
    s_mov_b32 s101, s{S_T0}
    s_lshl_b32 s{S_T3}, s3, 3
    s_lshr_b64 s[54:55], s[52:53], s{S_T3}
    s_and_b32 s{S_NEED}, s54, 0xff
    s_lshl_b32 s{S_GRP}, s3, 5
    s_and_b32 s{S_LAYER}, s3, 1
    s_cmp_eq_u32 s3, 0
    s_cbranch_scc1 M_MISC
    s_lshl_b32 s{S_T0}, s3, 2
    s_lshr_b32 s21, 0x3200f1f0, s{S_T0}
    s_lshr_b32 s{S_T1}, 0xca, s3
    s_and_b32 s{S_T1}, s{S_T1}, 1
    s_cbranch_scc0 M_WARM
    ''')
    a(f's_lshr_b32 s21, 0x32001000, s{S_T0}'); a('s_and_b32 s21, s21, 3'); a('s_lshl_b32 s21, s21, 5'); a(f's_add_u32 s21, s21, s{S_ROLE}')
    prep2.gemm(a, stamps)
    if stamps: wg_stamp(a, 1, 10, 0)
    a('s_branch M_PREPD')
    a.label('M_WARM')
    a(f's_lshr_b32 s21, 0x00210000, s{S_T0}'); a('s_and_b32 s21, s21, 3'); a('s_lshl_b32 s21, s21, 5'); a(f's_add_u32 s21, s21, s{S_ROLE}')
    prep2.warm_inputs(a)
    a('s_branch M_NOPREP')
    a.label('M_MISC'); prep2.misc(a, stamps)
    if stamps: wg_stamp(a, 0, 10, 0)
    a.label('M_NOPREP'); prep2.wait_count(a, prep2.D_INIT, 2)
    a.label('M_PREPD')
    a(f'''
    s_lshr_b32 s{S_T0}, 0x8a, s3
    s_and_b32 s{S_T0}, s{S_T0}, 1
    s_cbranch_scc0 M_NOHOLD
    s_mov_b32 s{S_T1}, {L.MEMX}
M_HOLD:
    s_sleep 8
    buffer_load_dword v2, off, {SRD}, s{S_T1} sc1
    s_sub_u32 s{S_ABORT}, s{S_ABORT}, 1
    s_cbranch_scc1 M_HOLDAB
    s_waitcnt vmcnt(0)
    v_cmp_eq_u32 vcc, -1, v2
    s_cbranch_vccnz M_HOLD
    s_branch M_NOHOLD
M_HOLDAB:
    s_mov_b32 s{S_ABORT}, 0
M_NOHOLD:
    s_lshl_b32 s59, s{S_LAYER}, 20
    s_lshr_b32 s3, s3, 1
    s_cmp_eq_u32 s3, 1
    s_cbranch_scc1 M_T
    s_cmp_eq_u32 s3, 2
    s_cbranch_scc1 M_U
    s_cmp_eq_u32 s3, 3
    s_cbranch_scc1 M_PFF
    s_mov_b32 s21, s{S_W}
    s_cmp_eq_u32 s{S_ROLE}, 31
    s_cbranch_scc1 M_HT
    s_add_u32 s21, s{S_W}, 3
    s_cmp_eq_u32 s{S_ROLE}, 30
    s_cbranch_scc1 M_HP
    s_cmp_ge_u32 s{S_ROLE}, 16
    s_cbranch_scc1 M_CB
    ''')
    chain.chain_A(a, stamps)
    a.label('M_CB'); a(f's_sub_u32 s{S_ROLE}, s{S_ROLE}, 16'); chain.chain_B(a, stamps)
    a.label('M_HP'); a(f's_cmp_ge_u32 s{S_W}, 2'); a('s_cbranch_scc1 M_EXIT'); chain.helper_prog(a)
    a.label('M_HT'); chain.helper_touch(a)
    a.label('M_T'); workers.role_T(a, stamps)
    a.label('M_U')
    a(f's_cmp_ge_u32 s{S_ROLE}, 28'); a('s_cbranch_scc1 M_FILL')
    workers.role_U(a, stamps)
    a.label('M_FILL')
    a('s_mov_b32 s51, 1'); a(f's_add_u32 s{S_ROLE}, s{S_ROLE}, 4'); a(f's_cmp_lt_u32 s{S_ROLE}, 35'); a('s_cbranch_scc1 M_PUB')
    a(f's_mov_b32 s21, s{S_LAYER}')
    chain.filler(a)
    a.label('M_PFF')
    a(f'''
    s_mov_b32 s50, s{S_LAYER}
    s_mov_b32 s51, 0
    s_cmp_ge_u32 s{S_ROLE}, 28
    s_cbranch_scc1 M_PUB
    s_cmp_ge_u32 s{S_ROLE}, 21
    s_cbranch_scc1 M_F2
    s_cmp_ge_u32 s{S_ROLE}, 14
    s_cbranch_scc1 M_PU
    ''')
    workers.role_F1(a, stamps)
    a.label('M_PUB'); a(f's_xor_b32 s50, s{S_LAYER}, 1'); a(f's_sub_u32 s{S_ROLE}, s{S_ROLE}, 14')
    a.label('M_PU'); a(f's_sub_u32 s{S_ROLE}, s{S_ROLE}, 14'); workers.role_PU(a, stamps)
    a.label('M_F2'); a(f's_sub_u32 s{S_ROLE}, s{S_ROLE}, 21'); workers.role_F2(a, stamps)
    a.label('M_EXIT')
    a('s_endpgm')
    if stamps:
        a.lines = [('    s_branch M_FIN' if l.strip() == 's_endpgm' else l) for l in a.lines]
        a.lines[-1] = '    s_endpgm'
        a.label('M_FIN'); a('s_mov_b64 exec, -1'); wg_stamp(a, 4, 10, 0)
        a('v_mov_b32 v10, s101'); a(f'buffer_store_dword v10, off, {SRD}, s100 offset:8'); a('s_endpgm')
    for d in a.deferred: a.raw(d)
    return kernel_wrap(name, a.text())

HDR = '.amdgcn_target "amdgcn-amd-amdhsa--gfx950"\n'
if __name__ == '__main__':
    for nm, kw in (('mega', {}), ('mega_st', dict(stamps=True))):
        open(f'work/{nm}.s', 'w').write('; @launch grid=(256,1,1) block=(256,1,1) lds=98304\n' + HDR + mega(**kw))
```

```python
from common import *
lane = f'v{V_LANE}'
WBYTES = 448 * 4096 * 2
DSRD = 's[92:95]'
D_INIT, D_X0 = 16, 144

def arrive(a, off, vt):
    lab = a.newlabel('ARR')
    a(f'''
    s_waitcnt vmcnt(0)
    s_barrier
    s_cmp_lg_u32 s{S_W}, 0
    s_cbranch_scc1 {lab}
    s_mov_b64 exec, 1
    v_mov_b32 v{vt}, 1
    buffer_atomic_add v{vt}, off, {DSRD}, 0 offset:{off} sc1
    s_mov_b64 exec, -1
    ''')
    a.label(lab)

def wait_count(a, off, vt, n=32):
    lab = a.newlabel('WC')
    a(f's_cmp_lg_u32 s{S_W}, 0')
    a(f's_cbranch_scc1 {lab}_d')
    a(f's_branch {lab}_in')
    a.label(lab); a('s_sleep 4'); a.label(lab + '_in')
    a(f'''
    buffer_load_dword v{vt}, off, {DSRD}, 0 offset:{off} sc1
    s_sub_u32 s{S_ABORT}, s{S_ABORT}, 1
    s_cbranch_scc1 {lab}_ab
    s_waitcnt vmcnt(0)
    v_cmp_gt_u32 vcc, {n}, v{vt}
    ''')
    a.br(f's_cbranch_vccnz {lab}')
    a.label(lab + '_d')
    a('s_barrier')
    a.deferred.append(f'{lab}_ab:\n    s_mov_b32 s{S_ABORT}, 0\n    s_waitcnt vmcnt(0)\n    s_branch {lab}_d\n')

def prog_load(a, chunks, vflag, vt):
    assert len(chunks) == 7
    a(f's_mov_b32 s58, {L.FW}')
    a.vm = []
    for j in range(7):
        if j == 0:
            wait_flags(a, 58, vflag, vt, sleep=24)
        else:
            a.wait_vm(('wf', j))
            a(f'v_cmp_eq_u32 vcc, 0, v{vt}')
            a.opt_begin('s_cbranch_vccz')
            wait_flags(a, 58, vflag, vt, sleep=24)
            a.opt_end()
        if j < 6:
            a('s_add_u32 s58, s58, 2048')
            a(f'buffer_load_dword v{vt}, v{vflag}, {SRD}, s58 offen sc1', tag=('wf', j + 1))
        for x in chunks[j]: a(x)

def misc(a, stamps=False):
    T = 18; X, U, Q = 24, 88, 96
    VI, VO, VS = 2, 3, 4
    J = S_ROLE
    a(f'''
    s_load_dwordx4 s[32:35], s[0:1], 0
    v_lshrrev_b32 v{T}, 3, v0
    v_and_b32 v{T+1}, 7, v0
    v_mul_u32_u24 v{VI}, 896, v{T}
    v_lshl_add_u32 v{VI}, v{T+1}, 4, v{VI}
    v_lshlrev_b32 v{VO}, 9, v{T+1}
    v_lshl_add_u32 v{VO}, v{T}, 4, v{VO}
    v_lshlrev_b32 v{VS}, 4, v{T}
    s_mul_i32 s22, s{J}, {2*28672}
    s_add_u32 s23, s22, 28672
    v_lshlrev_b32 v5, 4, v0
    v_mov_b32 v8, -1
    v_mov_b32 v9, -1
    v_mov_b32 v10, -1
    v_mov_b32 v11, -1
    v_mov_b64 v[12:13], 0
    v_mov_b64 v[14:15], 0
    ''')
    nS = (L.SENT_BYTES - 65536) // 32 // 4096 + 1
    a(f's_mul_i32 s48, s{J}, {L.ZERO_BYTES // 32}'); a(f's_add_u32 s48, s48, {L.FLAGS}')
    for i in range(L.ZERO_BYTES // 32 // 4096):
        a(f'buffer_store_dwordx4 v[12:15], v5, {SRD}, s48 offen sc1'); a('s_add_u32 s48, s48, 4096')
    a(f's_mul_i32 s48, s{J}, {nS*4096}'); a(f's_add_u32 s48, s48, {L.PB}')
    for i in range(nS):
        a(f'buffer_store_dwordx4 v[8:11], v5, {SRD}, s48 offen sc1'); a('s_add_u32 s48, s48, 4096')
    assert L.PB + 32 * nS * 4096 <= L.FLAGS
    a(f's_mul_i32 s48, s{J}, 12288'); a(f's_add_u32 s48, s48, {L.ST + 64*L.ST_SZ}')
    for i in range(3):
        a(f'buffer_store_dwordx4 v[12:15], v5, {SRD}, s48 offen sc1'); a('s_add_u32 s48, s48, 4096')
    a(f'''
    s_waitcnt lgkmcnt(0)
    s_mov_b32 s40, s32
    s_and_b32 s41, s33, 0xffff
    s_mov_b32 s42, {2048*896}
    s_mov_b32 s43, 0x00020000
    s_mov_b32 s44, s34
    s_and_b32 s45, s35, 0xffff
    s_mov_b32 s46, 7168
    s_mov_b32 s47, 0x00020000
    ''')
    nm, m1, m2 = a.newlabel('P_NOMEM'), a.newlabel('P_M1'), a.newlabel('P_M2')
    a(f'''
    s_cmp_ge_u32 s{J}, 2
    s_cbranch_scc1 {nm}
    s_mul_i32 s48, s{J}, {4*L.MEM_SZ}
    s_add_u32 s48, s48, {L.MEML}
    v_mul_u32_u24 v6, 896, v{T+1}
    v_lshrrev_b32 v7, 1, v{T}
    v_lshl_add_u32 v6, v7, 5, v6
    v_and_b32 v7, 1, v{T}
    v_lshl_add_u32 v6, v7, 2, v6
    buffer_load_dword v{U}, v6, s[44:47], 0 offen
    buffer_load_dword v{U+1}, v6, s[44:47], 0 offen offset:8
    buffer_load_dword v{U+2}, v6, s[44:47], 0 offen offset:16
    buffer_load_dword v{U+3}, v6, s[44:47], 0 offen offset:24
    buffer_load_dword v{U+4}, v6, s[44:47], 0 offen offset:512
    buffer_load_dword v{U+5}, v6, s[44:47], 0 offen offset:520
    buffer_load_dword v{U+6}, v6, s[44:47], 0 offen offset:528
    buffer_load_dword v{U+7}, v6, s[44:47], 0 offen offset:536
    s_add_u32 s49, s48, {L.MEM_SZ}
    ''')
    for i in range(5):
        a(f'buffer_store_dwordx4 v[8:11], v5, {SRD}, s49 offen sc1'); a('s_add_u32 s49, s49, 4096')
    a(f'''
    s_cmp_lg_u32 s{S_W}, 0
    s_cbranch_scc1 {m1}
    buffer_store_dwordx4 v[8:11], v5, {SRD}, s49 offen sc1
    ''')
    a.label(m1)
    a('s_waitcnt vmcnt(0)')
    for i in range(8): a(f'v_min_u32 v{U+i}, -2, v{U+i}')
    a(f'''
    buffer_store_dwordx4 v[{U}:{U+3}], v5, {SRD}, s48 offen sc1
    s_add_u32 s48, s48, 4096
    s_cmp_eq_u32 s{S_W}, 3
    s_cbranch_scc1 {nm}
    buffer_store_dwordx4 v[{U+4}:{U+7}], v5, {SRD}, s48 offen sc1
    ''')
    a.label(nm)
    arrive(a, D_INIT, 16)
    if stamps: wg_stamp(a, 3, 100, 0)
    for sg in range(2):
        for c in range(7):
            r = X + 4 * (7 * sg + c)
            a(f'buffer_load_dwordx4 v[{r}:{r+3}], v{VI}, s[40:43], s{22+sg} offen offset:{128*c}', tag=('x', sg, c))
    a(f'''
    s_add_u32 s22, s22, {L.XS}
    s_lshl_b32 s23, s{J}, 12
    s_add_u32 s23, s23, {L.ST}
    s_mov_b32 s36, 0x01010101
    s_mov_b32 s37, 0x01010101
    s_waitcnt vmcnt(0)
    ''')
    for sg in range(2):
        for c in range(7):
            r = X + 4 * (7 * sg + c)
            a(f'buffer_store_dwordx4 v[{r}:{r+3}], v{VO}, {SRD}, s22 offen sc1')
            a('s_add_u32 s22, s22, 4096')
            for i in range(4):
                a(f'v_lshlrev_b32 v{U+2*i}, 16, v{r+i}')
                a(f'v_and_b32 v{U+2*i+1}, 0xffff0000, v{r+i}')
            a(f'v_pk_add_f32 v[{Q}:{Q+1}], v[{U}:{U+1}], v[{U+2}:{U+3}]')
            a(f'v_pk_mul_f32 v[{Q+2}:{Q+3}], v[{U}:{U+1}], v[{U}:{U+1}]')
            a(f'v_pk_add_f32 v[{Q+4}:{Q+5}], v[{U+4}:{U+5}], v[{U+6}:{U+7}]')
            for i in (2, 4, 6): a(f'v_pk_fma_f32 v[{Q+2}:{Q+3}], v[{U+i}:{U+i+1}], v[{U+i}:{U+i+1}], v[{Q+2}:{Q+3}]')
            a(f'v_pk_add_f32 v[{Q}:{Q+1}], v[{Q}:{Q+1}], v[{Q+4}:{Q+5}]')
            a(f'v_add_f32 v{Q+6}, v{Q}, v{Q+1}')
            a(f'v_add_f32 v{Q+7}, v{Q+2}, v{Q+3}')
            for d in ('quad_perm:[1,0,3,2]', 'quad_perm:[2,3,0,1]', 'row_half_mirror'):
                for q in (Q + 6, Q + 7): a(f'v_add_f32_dpp v{q}, v{q}, v{q} {d} row_mask:0xf bank_mask:0xf')
            a('s_mov_b64 exec, s[36:37]')
            a(f'buffer_store_dwordx2 v[{Q+6}:{Q+7}], v{VS}, {SRD}, s23 offen offset:{2048*sg+512*(c>>1)+8*(c&1)} sc1')
            if c == 6: a(f'buffer_store_dwordx2 v[12:13], v{VS}, {SRD}, s23 offen offset:{2048*sg+1536+8} sc1')
            a('s_mov_b64 exec, -1')
    arrive(a, D_X0, 16)

def gemm(a, stamps=False):
    H, M, CT = 36, 37, 23
    LS, RS_ = 's[40:43]', 's[44:47]'
    VSRC, VA, V1A, V1B, V2, VSC, VZ, VONE = 2, 4, 12, 13, 14, 16, 3, 15
    T = 18; RF = 24; FR = 88; VB = 120; VC = 128
    ACC = lambda j, rt: 144 + 32 * (j & 1) + 16 * rt
    PK = lambda rt: 208 + 16 * rt
    BUF = [65536, 98304, 131072, 0, 32768, 65536, 98304]
    a(f'''
    s_load_dwordx8 s[24:31], s[0:1], 16
    s_lshr_b32 s22, s21, 2
    s_and_b32 s{H}, s22, 15
    s_lshr_b32 s{M}, s22, 4
    s_and_b32 s{CT}, s21, 3
    s_lshl_b32 s{CT}, s{CT}, 2
    s_add_u32 s{CT}, s{CT}, s{S_W}
    s_min_u32 s38, s{CT}, 13
    v_mov_b32 v{VZ}, 0
    v_mov_b32 v{VONE}, 1
    v_lshrrev_b32 v{T}, 5, {lane}
    v_and_b32 v{T+1}, 31, {lane}
    v_xor_b32 v{VSRC}, v{T+1}, v{T}
    v_lshlrev_b32 v{VSRC}, 4, v{VSRC}
    v_lshl_add_u32 v{VSRC}, v{T}, 13, v{VSRC}
    s_cmp_eq_u32 s{M}, 0
    s_waitcnt lgkmcnt(0)
    s_cselect_b32 s40, s24, s28
    s_cselect_b32 s41, s25, s29
    s_cselect_b32 s44, s26, s30
    s_cselect_b32 s45, s27, s31
    s_and_b32 s41, s41, 0xffff
    s_and_b32 s45, s45, 0xffff
    s_mov_b32 s42, {WBYTES}
    s_mov_b32 s43, 0x00020000
    s_mov_b32 s46, {WBYTES}
    s_mov_b32 s47, 0x00020000
    s_lshr_b32 s{S_T0}, s{S_W}, 1
    s_lshl_b32 s48, s{S_T0}, 5
    s_and_b32 s{S_T1}, s{S_W}, 1
    s_lshl_b32 s{S_T2}, s{S_T1}, 3
    s_add_u32 s48, s48, s{S_T2}
    s_lshl_b32 s48, s48, 13
    s_lshl_b32 s{S_T2}, s{H}, 9
    s_add_u32 s48, s48, s{S_T2}
    s_lshl_b32 s49, s{S_W}, 13
    s_lshl_b32 s50, s{S_W}, 14
    ''')
    def dma_rows(srd, sbase, ldsbase_s, natural, n=8, tag=None):
        for i in range(n):
            rowi = (2 * i) if natural else (16 * ((i >> 1) & 1) + 4 * (i >> 2) + 2 * (i & 1))
            a(f'v_xor_b32 v{T+5}, {32 * (i & 7)}, v{VSRC}')
            a(f's_add_u32 s{S_T1}, s{sbase}, {rowi * 8192}')
            a(f's_add_u32 m0, s{ldsbase_s}, {1024 * i}')
            a(f'buffer_load_dwordx4 v{T+5}, {srd}, s{S_T1} offen lds', tag=tag)
    rb, rdn, ob, odn, fb, fdn = [a.newlabel(x) for x in ('P_RB', 'P_RDONE', 'P_OB', 'P_ODONE', 'P_FB', 'P_FDONE')]
    a(f'''
    s_cmp_eq_u32 s{M}, 1
    s_cbranch_scc1 {rb}
    s_lshl_b32 s51, s38, 18
    s_add_u32 s51, s51, s{S_T2}
    ''')
    dma_rows(RS_, 51, 50, True, n=16)
    a(f's_branch {rdn}')
    a.label(rb)
    a(f'''
    v_lshrrev_b32 v{T+5}, 2, {lane}
    v_mul_u32_u24 v{T+5}, 896, v{T+5}
    v_and_b32 v{T+2}, 3, {lane}
    v_lshl_add_u32 v{T+5}, v{T+2}, 4, v{T+5}
    s_mul_i32 s51, s{H}, {256*896}
    s_lshl_b32 s{S_T3}, s38, 6
    s_add_u32 s51, s51, s{S_T3}
    ''')
    for i in range(16):
        a(f's_add_u32 m0, s50, {1024 * i}')
        a(f'buffer_load_dwordx4 v{T+5}, {RS_}, s51 offen lds')
        a(f's_add_u32 s51, s51, {16 * 896}')
    a.label(rdn)
    a.vm = ['r']
    def left(j):
        a(f's_add_u32 s55, s49, {BUF[j]}')
        dma_rows(LS, 48, 55, False, tag=('c', j))
        a(f's_add_u32 s48, s48, {64 * 8192}')
    for j in range(3): left(j)
    a(f'''
    v_and_b32 v{T+2}, 15, {lane}
    v_xor_b32 v{T+2}, v{T+2}, v{T}
    v_lshlrev_b32 v{T+2}, 4, v{T+2}
    v_lshl_add_u32 v{T+2}, v{T+1}, 9, v{T+2}
    ''')
    for k in range(8): a(f'v_xor_b32 v{VA+k}, {32*k}, v{T+2}')
    for k in range(8): a(f'v_add_u32 v{VB+k}, 65536, v{VA+k}')
    for k in range(8): a(f'v_add_u32 v{VC+k}, 131072, v{VA+k}')
    a(f'''
    s_mul_i32 s39, s{M}, {7*2048}
    s_lshl_b32 s{S_T3}, s{H}, 7
    s_add_u32 s39, s39, s{S_T3}
    s_lshl_b32 s{S_T3}, s{CT}, 2
    s_add_u32 s39, s39, s{S_T3}
    s_add_u32 s39, s39, {L.FW}
    s_cmp_eq_u32 s{M}, 1
    s_cbranch_scc1 {ob}
    s_lshl_b32 s{S_T3}, s38, 5
    v_add_u32 v{T+2}, s{S_T3}, v{T+1}
    v_lshrrev_b32 v{V2}, 4, v{T+2}
    v_mul_u32_u24 v{V2}, 14336, v{V2}
    v_and_b32 v{T+3}, 15, v{T+2}
    v_lshl_add_u32 v{V2}, v{T+3}, 4, v{V2}
    v_lshl_add_u32 v{V1A}, v{T}, 9, v{V2}
    v_add_u32 v{V1B}, 256, v{V1A}
    s_mul_i32 s52, s{H}, 401408
    s_add_u32 s52, s52, {L.WA}
    s_mov_b32 s54, 1024
    v_mov_b32 v{VSC}, {hex(f2u(1.4426950408889634/16))}
    s_branch {odn}
    ''')
    a.label(ob)
    a(f'''
    v_lshlrev_b32 v{V1A}, 4, v{T+1}
    v_lshl_add_u32 v{V1A}, v{T}, 10, v{V1A}
    v_add_u32 v{V1B}, 512, v{V1A}
    s_mul_i32 s52, s{H}, 14
    s_add_u32 s52, s52, s38
    s_mul_i32 s52, s52, 28672
    s_add_u32 s52, s52, {L.WB}
    s_mov_b32 s54, 2048
    v_mov_b32 v{VSC}, 1.0
    ''')
    a.label(odn)
    a(f'''
    s_cmp_ge_u32 s{CT}, 14
    s_cselect_b32 s52, 0x10000000, s52
    s_waitcnt vmcnt(24)
    s_cmp_eq_u32 s{M}, 1
    s_cbranch_scc1 {fb}
    ''')
    for k in range(8):
        a(f'v_add_u32 v{T+2}, s50, v{VA+k}')
        a(f'ds_read_b128 v[{RF+4*k}:{RF+4*k+3}], v{T+2}')
        a(f'ds_read_b128 v[{RF+32+4*k}:{RF+32+4*k+3}], v{T+2} offset:256')
    a(f's_branch {fdn}')
    a.label(fb)
    a(f'''
    v_bfe_u32 v{T+2}, {lane}, 2, 2
    v_lshl_add_u32 v{T+2}, v{T}, 3, v{T+2}
    v_lshlrev_b32 v{T+2}, 6, v{T+2}
    v_bfe_u32 v{T+3}, {lane}, 4, 1
    v_lshl_add_u32 v{T+2}, v{T+3}, 5, v{T+2}
    v_and_b32 v{T+3}, 3, {lane}
    v_lshl_add_u32 v{T+2}, v{T+3}, 3, v{T+2}
    v_add_u32 v{T+2}, s50, v{T+2}
    ''')
    for ks in range(16):
        a(f'ds_read_b64_tr_b16 v[{RF+4*ks}:{RF+4*ks+1}], v{T+2} offset:{1024*ks}')
        a(f'ds_read_b64_tr_b16 v[{RF+4*ks+2}:{RF+4*ks+3}], v{T+2} offset:{1024*ks+256}')
    a(f'''
    v_and_b32 v{T+2}, 15, {lane}
    v_lshlrev_b32 v{T+2}, 3, v{T+2}
    v_bfe_u32 v{T+3}, {lane}, 4, 1
    v_lshl_add_u32 v{T+2}, v{T+3}, 2, v{T+2}
    v_lshl_add_u32 v{T+2}, v{T}, 7, v{T+2}
    s_waitcnt lgkmcnt(0)
    ''')
    for i in range(64): a(f'ds_bpermute_b32 v{RF+i}, v{T+2}, v{RF+i}')
    a.label(fdn)
    a('s_waitcnt lgkmcnt(0)')
    a.lg = []
    pos2 = {0: 0, 4: 1, 1: 2, 5: 3, 2: 4, 6: 5, 3: 6, 7: 7}
    def epi(j):
        o = []
        for rt in range(2):
            c, p = ACC(j, rt), PK(rt)
            for i in range(16): o.append(f'v_mul_f32 v{c+i}, v{c+i}, v{VSC}')
            for i in range(8):
                o.append(f'v_cvt_pk_bf16_f32 v{p+i}, v{c+2*i}, v{c+2*i+1}')
            o += [f'buffer_store_dwordx4 v[{p}:{p+3}], v{V1A}, {SRD}, s52 offen sc1']
            last = f'buffer_store_dwordx4 v[{p+4}:{p+7}], v{V1B}, {SRD}, s52 offen sc1\ns_add_u32 s52, s52, s54'
            o.append(last if rt == 0 else (lambda last=last: a(last, tag=('s', j))))
        return o
    def flag(j):
        a.wait_vm(('s', j))
        if j == 0:
            lab = a.newlabel('GI')
            a.label(lab)
            a(f'v_cmp_gt_u32 vcc, 32, v{T+4}')
            a.br(f's_cbranch_vccnz {lab}_p')
            a.label(lab + '_ok')
            a.deferred.append(f'''{lab}_p:
    s_sleep 4
    buffer_load_dword v{T+4}, off, {DSRD}, 0 offset:{D_INIT} sc1
    s_sub_u32 s{S_ABORT}, s{S_ABORT}, 1
    s_waitcnt vmcnt(0)
    s_cbranch_scc0 {lab}
    s_mov_b32 s{S_ABORT}, 0
    s_branch {lab}_ok
''')
        signal(a, 39, VZ, VONE, wait='')
        a('s_add_u32 s39, s39, 2048')
    from workers import stream, flush_side
    for j in range(7):
        a.wait_vm(('c', j))
        if j == 0:
            a('s_barrier'); left(3); left(4)
        else: a('s_barrier')
        if stamps: a(f's_memrealtime s[{60+2*j}:{61+2*j}]')
        if j == 0: a(f'buffer_load_dword v{T+4}, off, {DSRD}, 0 offset:{D_INIT} sc1')
        if j in (1, 2): left(j + 4)
        base = BUF[j]; va = (VA, VB, VC)[base >> 16]; off = base & 0xffff
        rd = lambda i: f'ds_read_b128 v[{FR+4*(i%8)}:{FR+4*(i%8)+3}], v{va+((i>>1)&7)} offset:{off+16384*(i&1)+256*(i>>4)}'
        def mm(i):
            ks, rt = i >> 1, i & 1
            c = f'v[{ACC(j,rt)}:{ACC(j,rt)+15}]'
            return [f'v_mfma_f32_32x32x16_bf16 {c}, v[{FR+4*(i%8)}:{FR+4*(i%8)+3}], v[{RF+4*ks}:{RF+4*ks+3}], {"0" if ks == 0 else c}']
        sd = {2: epi(j - 1)} if j >= 1 else {}
        lf = stream(a, 32, rd, mm, {}, sd, depth=7, per=5, ramp=6)
        flush_side(a, lf)
        if stamps: a(f's_memrealtime s[{76+2*j}:{77+2*j}]')
        if j >= 1: flag(j - 1)
    flush_side(a, epi(6))
    flag(6)
    if stamps:
        a('s_waitcnt lgkmcnt(0)')
        a(f's_lshl_b32 s100, s2, 6'); a(f's_add_u32 s100, s100, {L.DBG + (15 << 20)}')
        for j in range(15):
            a(f'v_mov_b32 v10, s{60+2*j}'); a(f'buffer_store_dword v10, off, {SRD}, s100 offset:{4*j}')
    a('s_barrier')

def warm_inputs(a):
    a(f'''
    s_load_dwordx8 s[24:31], s[0:1], 16
    s_lshl_b32 s22, s21, 2
    s_add_u32 s22, s22, s{S_W}
    s_mul_i32 s22, s22, {75*128}
    v_lshlrev_b32 v2, 7, {lane}
    v_and_b32 v3, 15, {lane}
    v_lshlrev_b32 v3, 7, v3
    v_add_u32 v3, 8192, v3
    s_mov_b32 s42, {WBYTES}
    s_mov_b32 s43, 0x00020000
    s_waitcnt lgkmcnt(0)
    ''')
    for m in (1, 3, 0, 2):
        a(f's_mov_b32 s40, s{24+2*m}')
        a(f's_and_b32 s41, s{25+2*m}, 0xffff')
        a('buffer_load_dword a255, v2, s[40:43], s22 offen')
        a('buffer_load_dword a255, v3, s[40:43], s22 offen')
```

```python
from common import *
import prep2
lane = f'v{V_LANE}'
LOG2E = 1.4426950408889634
XBUF = 28672
FQ = 176

def x_dma(a, s_src, s_buf, vl16):
    a(f's_lshl_b32 s{S_T0}, s{S_W}, 10')
    a(f's_add_u32 s{S_T1}, s{S_T0}, s{s_buf}')
    a(f's_add_u32 s{S_T0}, s{S_T0}, s{s_src}')
    for j in range(7):
        a(f's_mov_b32 m0, s{S_T1}')
        if j < 6: a(f's_add_u32 s{S_T1}, s{S_T1}, 4096')
        a(f'buffer_load_dwordx4 v{vl16}, {SRD}, s{S_T0} offen sc1 lds')
        if j < 6: a(f's_add_u32 s{S_T0}, s{S_T0}, 4096')

def perm32_v(a, dst, src, tmp):
    a(f'''
    v_and_b32 v{dst}, 0x13, v{src}
    v_and_b32 v{tmp}, 4, v{src}
    v_lshl_or_b32 v{dst}, v{tmp}, 1, v{dst}
    v_and_b32 v{tmp}, 8, v{src}
    v_lshrrev_b32 v{tmp}, 1, v{tmp}
    v_or_b32 v{dst}, v{dst}, v{tmp}
    ''')

def xn_pos(a, dst, tmp):
    a(f'''
    v_and_b32 v{dst}, 32, {lane}
    v_lshlrev_b32 v{dst}, 4, v{dst}
    v_and_b32 v{tmp}, 1, {lane}
    v_lshl_add_u32 v{dst}, v{tmp}, 8, v{dst}
    v_bfe_u32 v{tmp}, {lane}, 1, 4
    v_lshl_add_u32 v{dst}, v{tmp}, 4, v{dst}
    ''')

def load_w_tr(a, W, dma, vtr, toff, hoff):
    def issue(k0, k1):
        for ks in range(k0, k1):
            for p in range(2):
                a(f's_add_u32 m0, s38, {(ks % 20) * 2048 + p * 1024}')
                a(dma(ks, p))
    def read(k0, k1):
        for ks in range(k0, k1):
            for t in range(2):
                for hf in range(2):
                    a(f'ds_read_b64_tr_b16 {R(W(t, ks) + 2 * hf, 2)}, v{vtr} offset:{(ks % 20) * 2048 + t * toff + hf * hoff}')
        a('s_waitcnt lgkmcnt(0)')
    issue(0, 20)
    a('s_waitcnt vmcnt(20)'); read(0, 10)
    issue(20, 28)
    a('s_waitcnt vmcnt(16)'); read(10, 20)
    a('s_waitcnt vmcnt(0)'); read(20, 28)
    a('s_barrier')

def tr_addr(a, dst, t0, t1, rowshift, gshift):
    a(f"""
    s_mul_i32 s38, s{S_W}, 40960
    v_lshrrev_b32 v{t0}, 5, {lane}
    v_bfe_u32 v{t1}, {lane}, 2, 2
    v_lshl_add_u32 v{dst}, v{t0}, 3, v{t1}
    v_lshlrev_b32 v{dst}, {rowshift}, v{dst}
    v_bfe_u32 v{t0}, {lane}, 4, 1
    v_lshl_add_u32 v{dst}, v{t0}, {gshift}, v{dst}
    v_and_b32 v{t0}, 1, {lane}
    v_lshl_add_u32 v{dst}, v{t0}, 4, v{dst}
    v_bfe_u32 v{t0}, {lane}, 1, 1
    v_lshl_add_u32 v{dst}, v{t0}, 3, v{dst}
    v_add_u32 v{dst}, s38, v{dst}
    """)

def dma_list(s_src, s_dst, vl16):
    out = []
    for j in range(7):
        out.append(f's_mov_b32 m0, s{s_dst}\ns_add_u32 s{s_dst}, s{s_dst}, 4096\nbuffer_load_dwordx4 v{vl16}, {SRD}, s{s_src} offen sc1 lds\ns_add_u32 s{s_src}, s{s_src}, 4096')
    return out

def unpk(lst):
    out = []
    for x in lst:
        if callable(x) or not x.startswith('v_pk_'): out.append(x); continue
        m = re.match(r'v_pk_(\w+)_f32 (.*?)(?: op_sel_hi:\[([\d,]+)\])?$', x)
        op, ops, sel = m.group(1), split_ops(m.group(2)), m.group(3)
        sel = [int(v) for v in sel.split(',')] if sel else [1] * (len(ops) - 1)
        def pick(o, hi):
            mm_ = re.match(r'v\[(\d+):', o)
            return f'v{int(mm_.group(1)) + hi}' if mm_ else o
        for h in range(2):
            srcs = [pick(o, h and sel[i]) for i, o in enumerate(ops[1:])]
            if op != 'fma' and not srcs[1].startswith('v'): srcs = srcs[::-1]
            out.append(f'v_{op}_f32 {pick(ops[0], h)}, ' + ', '.join(srcs))
    return out

def cost(s_):
    if callable(s_): return 2
    if '\n' in s_: return 2
    return 2 if s_.startswith(('v_exp', 'v_rcp', 'v_rsq')) else 1

def stream(a, n, rd, mm, gates=None, side_at=None, depth=3, per=5, at=None, ramp=3):
    gates = gates or {}; side_at = side_at or {}
    side = []
    def read(i):
        if i in gates: gates[i]()
        a(rd(i), tag=('fr', i))
    nr = min(depth, n, ramp)
    for i in range(nr): read(i)
    for i in range(n):
        side += unpk(side_at.get(i, []))
        a.wait_lg(('fr', i))
        ms = mm(i)
        for j, m in enumerate(ms):
            a(m)
            budget = per
            if at and j == 0 and i in at:
                at[i](); budget -= 2
            lim = i + depth + (1 if j == len(ms) - 1 else 0)
            if nr < min(n, lim) and (j == len(ms) - 1 or depth > 3):
                read(nr); nr += 1; budget -= 1
            while side and budget >= cost(side[0]):
                x = side.pop(0); budget -= cost(x)
                x() if callable(x) else a(x)
    return side

def flush_side(a, side):
    for x in side: x() if callable(x) else a(x)

def gate(a, tag):
    def g():
        a.wait_vm(tag); a('s_barrier')
    return g

def role_U(a, stamps=False, D=14):
    st = Stamps(a, stamps)
    W = lambda t, ks: 256 + 112 * t + 4 * ks
    VL16, VFR, VZ, VONE, VST, VFL, VSW, VSR, VO, VFRB, VXNR = 2, 3, 4, 5, 6, 7, 8, 9, 10, 11, 12
    CS = 14
    TMP = 18
    S8 = 20
    FR = 28
    ACC = 48
    RR, NN = 80, 96
    TT = 112
    PK = 144
    XR = 160
    LDS_ST = 2 * XBUF
    S1, S2, S_L, S_S, S_BUF, S_PRE, S_UO, S_X, S_O, S_F = 21, 22, 23, 24, 25, 26, 27, 28, 29, 30
    a(f'''
    s_lshl_b32 s{S_T0}, s{S_ROLE}, 2
    s_add_u32 s{S_T0}, s{S_T0}, s{S_W}
    s_mul_i32 s{S_T2}, s{S_T0}, 57344
    s_add_u32 s{S_T2}, s{S_T2}, {L.WBU}
    v_lshlrev_b32 v{VL16}, 4, {lane}
    ''')
    a(f'''
    s_mul_i32 s{S_T1}, s{S_T0}, 4682
    s_lshr_b32 s{S_T1}, s{S_T1}, 16
    s_mul_i32 s{S_T2}, s{S_T1}, 14
    s_sub_u32 s{S_T2}, s{S_T0}, s{S_T2}
    s_mul_i32 s{S_UO}, s{S_T1}, {2*28672}
    s_lshl_b32 s{S_T2}, s{S_T2}, 11
    s_add_u32 s{S_UO}, s{S_UO}, s{S_T2}
    s_add_u32 s{S_UO}, s{S_UO}, {L.UX}
    s_lshr_b32 s31, s{S_T0}, 3
    s_mul_i32 s31, s31, 24
    s_add_u32 s31, s31, s{S_T0}
    s_lshl_b32 s31, s31, 2
    s_add_u32 s31, s31, {L.FLU}
    v_mov_b32 v{VZ}, 0
    v_mov_b32 v{VONE}, 1
    ''')
    a(f'''
    s_mul_i32 s44, s{S_T1}, 14
    s_add_u32 s44, s44, s{S_T0}
    s_mul_i32 s44, s44, 28672
    s_add_u32 s44, s44, {L.WB}
    s_add_u32 s45, s44, 401408
    v_and_b32 v{VFR}, 1, {lane}
    v_lshlrev_b32 v{VFR}, 7, v{VFR}
    s_lshl_b32 s{S_T1}, s{S_T1}, 8
    s_lshr_b32 s{S_T2}, s{S_T2}, 9
    s_add_u32 s{S_T1}, s{S_T1}, s{S_T2}
    s_add_u32 s{S_T1}, s{S_T1}, {7*2048}
    v_add_u32 v{VFR}, s{S_T1}, v{VFR}
    ''')
    prep2.prog_load(a, [[f'buffer_load_dwordx4 {R(W(t, 4*j+i), 4)}, v{VL16}, {SRD}, s{44+t} offen offset:{1024*i} sc1' + (f'\ns_add_u32 s{44+t}, s{44+t}, 4096' if i == 3 else '')
                         for t in range(2) for i in range(4)] for j in range(7)], VFR, TMP)
    prep2.wait_count(a, prep2.D_X0, TMP)
    perm32_v(a, VFR, V_LANE, TMP)
    xn_pos(a, 13, TMP)
    a(f'''
    v_lshrrev_b32 v{TMP}, 5, {lane}
    v_lshlrev_b32 v{VFR}, 4, v{VFR}
    v_lshl_add_u32 v{VFR}, v{TMP}, 9, v{VFR}
    v_and_b32 v{TMP+1}, 31, {lane}
    v_mov_b32 v{VST}, v{VL16}
    v_min_u32 v{VFL}, 27, {lane}
    v_lshrrev_b32 v{VZ}, 3, v{VFL}
    v_mul_u32_u24 v{VZ}, 24, v{VZ}
    v_add_lshl_u32 v{VFL}, v{VFL}, v{VZ}, 2
    v_mov_b32 v{VZ}, 0
    s_lshl_b32 s{S_T0}, s{S_W}, 8
    s_add_u32 s{S_T0}, s{S_T0}, {LDS_ST}
    v_lshlrev_b32 v{VSW}, 2, v{TMP+1}
    v_add_u32 v{VSW}, s{S_T0}, v{VSW}
    v_lshlrev_b32 v{VSR}, 5, v{TMP}
    v_add_u32 v{VSR}, s{S_T0}, v{VSR}
    v_mov_b32 v{VO}, v{VL16}
    s_lshl_b32 s{S_T0}, s{S_W}, 4
    s_mov_b64 s[32:33], 0xffff
    s_lshl_b64 s[32:33], s[32:33], s{S_T0}
    v_mov_b32 v{FR}, 0x3f803f80
    v_mov_b32 v{FR+1}, 0x3f803f80
    v_mov_b32 v{FR+2}, 0x3f803f80
    v_mov_b32 v{FR+3}, 0x3f803f80
    s_waitcnt vmcnt(0)
    ''')
    for ks in range(28):
        for t in range(2):
            c = f'v[{ACC+16*t}:{ACC+16*t+15}]'
            a(f'v_mfma_f32_32x32x16_bf16 {c}, v[{FR}:{FR+3}], {R(W(t,ks),4)}, {"0" if ks == 0 else c}')
    a(f'''
    v_mov_b32 v{CS}, v{ACC}
    v_mov_b32 v{CS+2}, v{ACC+16}
    s_mov_b32 s{S1}, s{S_LAYER}
    s_mov_b32 s{S2}, s{S_LAYER}
    s_mov_b32 s{S_BUF}, 0
    s_mov_b32 s{S_PRE}, 0
    ''')
    VNF = 12
    a(f'''
    s_lshl_b32 s36, s{S_W}, 10
    s_lshl_b32 s41, s{S_ROLE}, 10
    s_mov_b32 s35, 0
    ''')
    pick = f'''
    s_add_u32 s{S_T0}, s{S2}, {D}
    s_min_u32 s{S_T0}, s{S_T0}, 64
    s_cmp_lt_u32 s{S1}, s{S_T0}
    s_cselect_b32 s{S_L}, 0, 1
    s_cselect_b32 s{S_S}, s{S1}, s{S2}
    s_cselect_b32 s{S_T0}, 2, 0
    s_add_u32 s{S1}, s{S1}, s{S_T0}
    s_lshl_b32 s{S_T0}, s{S_L}, 1
    s_add_u32 s{S2}, s{S2}, s{S_T0}
    s_lshl_b32 s{S_T2}, s{S_L}, 7
    s_add_u32 s{S_T2}, s{S_T2}, s{S_S}
    s_mul_i32 s40, s{S_T2}, {L.XN_SZ}
    s_add_u32 s40, s40, {L.XS}
    s_add_u32 s{S_X}, s40, s36
    s_add_u32 s40, s40, s41
    s_add_u32 s37, s{S_BUF}, s36
    s_lshl_b32 s39, s{S_T2}, 11
    s_add_u32 s39, s39, {L.ST}
    s_lshl_b32 s42, s{S_S}, 9
    s_add_u32 s42, s42, {L.flag(L.FL_X, 0)}
    '''.strip().split('\n')
    pick = [x.strip() for x in pick]
    def loads():
        out = [(f'buffer_load_dwordx4 v[{S8}:{S8+3}], v{VST}, {SRD}, s39 offen sc1', None),
               (f'buffer_load_dwordx4 v[{S8+4}:{S8+7}], v{VST}, {SRD}, s39 offen offset:1024 sc1', None),
               (f's_mov_b64 exec, s[32:33]\nbuffer_load_dwordx4 v[{XR}:{XR+3}], v{VL16}, {SRD}, s40 offen sc1\ns_mov_b64 exec, -1', 'st')]
        return out + [(d, ('d', j)) for j, d in enumerate(dma_list(S_X, 37, VL16))]
    cold, warm, end, cw = [a.newlabel(x) for x in ('U_COLD', 'U_WARM', 'U_END', 'U_CW')]
    K0 = 6
    seq = [(k, (0, 1)) for k in range(K0)] + [(k, (0,)) for k in range(K0, 28)] + [(k, (1,)) for k in range(K0, 28)]
    rd = lambda i: f'ds_read_b128 v[{FQ+4*(i%8)}:{FQ+4*(i%8)+3}], v{VFRB} offset:{1024*seq[i][0]}'
    def mm(i):
        ks, tiles = seq[i]; out = []
        for t in tiles:
            c = f'v[{ACC+16*t}:{ACC+16*t+15}]'
            out.append(f'v_mfma_f32_32x32x16_bf16 {c}, v[{FQ+4*(i%8)}:{FQ+4*(i%8)+3}], {R(W(t,ks),4)}, {"0" if ks == 0 else c}')
        return out
    U8 = XR + 4
    def task(is_warm):
        st(); st.cyc(0)
        a(f'''
        v_add_u32 v{VFRB}, s{S_BUF}, v{VFR}
        s_xor_b32 s{S_BUF}, s{S_BUF}, {XBUF}
        s_lshl_b32 s{S_T2}, s{S_L}, 6
        s_add_u32 s{S_STEP}, s{S_T2}, s{S_S}
        ''')
        cur = [f's_mul_i32 s{S_O}, s{S_STEP}, {L.UX_SZ}', f's_add_u32 s{S_O}, s{S_O}, s{S_UO}', f's_lshl_b32 s{S_F}, s{S_STEP}, 11', f's_add_u32 s{S_F}, s{S_F}, s31',
               f's_mul_i32 s34, s{S_STEP}, {L.XN_SZ}', 's_add_u32 s34, s34, s41', f's_add_u32 s34, s34, {L.XN}',
               f's_add_u32 s43, s{S_F}, {L.FLXN - L.FLU}']
        sd = {}
        sd[0] = ['\n'.join(cur), lambda: a.wait_vm('st')] + stats_ops(S8, TMP) + \
                [f'v_mul_f32 v{S8+2}, v{S8}, v{S8+1}', f'v_sub_f32 v{S8+2}, 0, v{S8+2}', f'ds_write2_b32 v{VSW}, v{S8}, v{S8+2} offset0:0 offset1:32']
        for i in range(4):
            sd[0] += [f'v_lshlrev_b32 v{U8+2*i}, 16, v{XR+i}', f'v_and_b32 v{U8+2*i+1}, 0xffff0000, v{XR+i}',
                     f'v_pk_fma_f32 v[{U8+2*i}:{U8+2*i+1}], v[{U8+2*i}:{U8+2*i+1}], v[{S8}:{S8+1}], v[{S8+2}:{S8+3}] op_sel_hi:[1,0,0]',
                     f'v_cvt_pk_bf16_f32 v{XR+i}, v{U8+2*i}, v{U8+2*i+1}']
        sd[0] += [lambda: a('s_mov_b64 exec, s[32:33]\n' + f'buffer_store_dwordx4 v[{XR}:{XR+3}], v13, {SRD}, s34 offen sc1\n' + 's_mov_b64 exec, -1', tag='xs')]
        for j in range(2):
            for i in range(2):
                sd[0] += [f'ds_read_b128 v[{RR+8*j+4*i}:{RR+8*j+4*i+3}], v{VSR} offset:{64*j+16*i}',
                          f'ds_read_b128 v[{NN+8*j+4*i}:{NN+8*j+4*i+3}], v{VSR} offset:{128+64*j+16*i}']
        last = sd[0].pop(); sd[0].append(lambda: a(last, tag='nn'))
        sd[1] = ['\n'.join(pick[i:i+4]) for i in range(0, len(pick), 4)] + [lambda: a(f'buffer_load_dword v{VNF}, v{VFL}, {SRD}, s42 offen sc1', tag='nf')]
        sd[11] = [lambda: a.wait_lg('nn')] + [f'v_pk_mul_f32 v[{TT+16*t+i}:{TT+16*t+i+1}], v[{NN+i}:{NN+i+1}], v[{CS+2*t}:{CS+2*t+1}] op_sel_hi:[1,0]' for t in range(2) for i in range(0, 16, 2)]
        def chk():
            a.wait_vm('nf')
            signal(a, 43, VZ, VONE, wait='')
            a(f'''
            v_cmp_eq_u32 vcc, 0, v{VNF}
            s_cmp_eq_u64 vcc, 0
            s_cselect_b32 s{S_PRE}, 1, 0
            s_cmp_eq_u32 s{S_L}, 0
            s_cselect_b32 s{S_PRE}, 1, s{S_PRE}
            s_cmp_ge_u32 s{S_S}, 64
            s_cselect_b32 s{S_PRE}, 0, s{S_PRE}
            s_cmp_eq_u32 s{S_PRE}, 1
            s_cselect_b64 vcc, -1, 0
            ''')
        def opt(d):
            def f():
                a.opt_begin('s_cbranch_vccz'); a(d); a.opt_end()
            return f
        at = {27 + 2 * j: opt(d) for j, (d, _) in enumerate(loads())}
        at[26] = chk
        def prevflag():
            a.wait_vm('us'); signal(a, 35, VZ, VONE, wait='')
        if is_warm: at[17] = prevflag
        def epi(t):
            o = []
            for i in range(0, 16, 2):
                c = ACC + 16 * t + i
                o.append(f'v_pk_fma_f32 v[{c}:{c+1}], v[{c}:{c+1}], v[{RR+i}:{RR+i+1}], v[{TT+16*t+i}:{TT+16*t+i+1}]')
                o.append(f'v_cvt_pk_bf16_f32 v{PK+8*t+i//2}, v{c}, v{c+1}')
                if i in (6, 14):
                    p = PK + 8 * t + (4 if i == 14 else 0)
                    o.append(f'buffer_store_dwordx4 v[{p}:{p+3}], v{VO}, {SRD}, s{S_O} offen offset:{1024 if i == 14 else 0} sc1')
            return o
        sd[32] = epi(0) + [f's_add_u32 s{S_O}, s{S_O}, 28672']
        def mm2(i):
            if i in (1, 6, 16, 26, 38): st.cyc({1: 1, 6: 2, 16: 3, 26: 4, 38: 5}[i])
            return mm(i)
        left = stream(a, len(seq), rd, mm2, {0: gate(a, ('d', 0)), 4: gate(a, ('d', 1)), 8: gate(a, ('d', 3)), 16: gate(a, ('d', 6))}, sd, per=4, depth=7, at=at)
        st.cyc(6)
        assert not left, left
        flush_side(a, epi(1))
        st(); st.cyc(7)
        st.flush(4 << 20, TMP, TMP + 1)
        a(f's_mov_b32 s35, s{S_F}')
        a(f's_cbranch_vccnz {warm}')
        a(f'buffer_load_dword v{VNF}, v{VFL}, {SRD}, s42 offen sc1')
        signal(a, S_F, VZ, VONE, wait='s_waitcnt vmcnt(1)')
        a(f'''
        s_cmp_ge_u32 s{S_S}, 64
        s_cbranch_scc1 {end}
        s_waitcnt vmcnt(1)
        v_cmp_eq_u32 vcc, 0, v{VNF}
        ''')
        a.br(f's_cbranch_vccz {cold}')
        a(f's_branch {cw}')
    for x in pick: a(x)
    a(f's_branch {cold}')
    a.label(cw)
    wait_flags(a, 42, VFL, TMP, sleep=1)
    a.label(cold); a.vm = []; a.lg = []
    for d, tg in loads(): a(d, tag=tg)
    task(False)
    a.label(warm); a.lg = []
    a.vm = [tg for _, tg in loads()] + [None, 'us']
    task(True)
    a.label(end)
    a('s_endpgm')

def role_F1(a, stamps=False, mode='sc1'):
    st = Stamps(a, stamps)
    W = lambda t, ks: 256 + 112 * t + 4 * ks
    VL16, VZ, VONE, VST, VFL, VFRB, VNF = 2, 4, 5, 6, 7, 11, 12
    VTU, VTA, VTS, VTD, VUF, VUR = 13, 14, 15, 16, 17, 10
    TMP = 18; S8 = 20; FR = 28
    ACC = 48
    CS = 80
    EX = 112
    PK = 120
    S_BUF, S_X, S_ST, S_O, S_FI, S_FO = 25, 26, 27, 28, 29, 30
    a(f'''
    s_lshl_b32 s{S_T0}, s{S_ROLE}, 2
    s_add_u32 s{S_T0}, s{S_T0}, s{S_W}
    s_load_dwordx4 s[48:51], s[0:1], 64
    v_lshlrev_b32 v{VL16}, 4, {lane}
    v_lshrrev_b32 v{TMP}, 2, {lane}
    v_mul_u32_u24 v{EX}, 3584, v{TMP}
    v_and_b32 v{TMP}, 3, {lane}
    v_lshl_add_u32 v{EX}, v{TMP}, 4, v{EX}
    s_lshl_b32 s{S_T2}, s{S_T0}, 6
    s_waitcnt lgkmcnt(0)
    s_mov_b32 s40, s48
    s_and_b32 s41, s49, 0xffff
    s_mov_b32 s42, {448*3584}
    s_mov_b32 s43, 0x00020000
    s_mov_b32 s44, s50
    s_and_b32 s45, s51, 0xffff
    s_mov_b32 s46, {448*3584}
    s_mov_b32 s47, 0x00020000
    ''')
    tr_addr(a, EX + 1, TMP, TMP + 1, 6, 10)
    load_w_tr(a, W, lambda ks, p: f'buffer_load_dwordx4 v{EX}, s[{40+4*p}:{43+4*p}], s{S_T2} offen lds' + (f'\ns_add_u32 s{S_T2}, s{S_T2}, {16*3584}' if p else ''), EX + 1, 32, 256)
    a(f'''
    s_mul_i32 s{S_O}, s{S_LAYER}, {64*L.HB_SZ}
    s_lshl_b32 s{S_T1}, s{S_T0}, 11
    s_add_u32 s{S_O}, s{S_O}, s{S_T1}
    s_add_u32 s{S_O}, s{S_O}, {L.HB}
    s_lshl_b32 s{S_T1}, s{S_LAYER}, 15
    s_add_u32 s{S_FI}, s{S_T1}, {L.flag(L.FL_P)}
    s_lshl_b32 s{S_FO}, s{S_T0}, 2
    s_add_u32 s{S_FO}, s{S_FO}, s{S_T1}
    s_add_u32 s{S_FO}, s{S_FO}, {L.flag(L.FL_H)}
    s_mul_i32 s{S_X}, s{S_LAYER}, {128*L.XN_SZ}
    s_add_u32 s{S_X}, s{S_X}, {L.XS + 64*L.XN_SZ}
    s_lshl_b32 s{S_ST}, s{S_LAYER}, 18
    s_add_u32 s{S_ST}, s{S_ST}, {L.ST + 64*L.ST_SZ}
    v_mov_b32 v{VZ}, 0
    v_mov_b32 v{VONE}, 1
    v_lshrrev_b32 v{TMP}, 5, {lane}
    v_and_b32 v{TMP+1}, 31, {lane}
    v_mov_b32 v{VST}, v{VL16}
    v_min_u32 v{VFL}, 27, {lane}
    v_lshrrev_b32 v{VZ}, 3, v{VFL}
    v_mul_u32_u24 v{VZ}, 24, v{VZ}
    v_add_lshl_u32 v{VFL}, v{VFL}, v{VZ}, 2
    v_mov_b32 v{VZ}, 0
    v_mov_b32 v{FR}, 0x3f803f80
    v_mov_b32 v{FR+1}, 0x3f803f80
    v_mov_b32 v{FR+2}, 0x3f803f80
    v_mov_b32 v{FR+3}, 0x3f803f80
    s_mov_b32 s{S_BUF}, 0
    s_mov_b32 s{S_STEP}, 0
    s_waitcnt vmcnt(0)
    ''')
    for ks in range(28):
        for t in range(2):
            c = f'v[{CS+16*t}:{CS+16*t+15}]'
            a(f'v_mfma_f32_32x32x16_bf16 {c}, {R(W(t,ks),4)}, v[{FR}:{FR+3}], {"0" if ks == 0 else c}')
    a(f'''
    s_lshl_b32 s36, s{S_W}, 10
    s_add_u32 s{S_X}, s{S_X}, s36
    s_mov_b64 vcc, 0
    s_mov_b32 s42, 0
    v_mov_b32 v{VNF}, 0
    s_lshl_b32 s{S_T0}, s{S_ROLE}, 2
    s_add_u32 s{S_T0}, s{S_T0}, s{S_W}
    v_lshlrev_b32 v{VTU}, 7, {lane}
    s_mul_i32 s39, s{S_LAYER}, {64*L.UX_SZ}
    s_lshl_b32 s{S_T1}, s{S_T0}, 13
    s_add_u32 s39, s39, s{S_T1}
    s_add_u32 s39, s39, {L.UX + 3*L.UX_SZ}
    s_lshl_b32 s44, s{S_LAYER}, 15
    s_add_u32 s44, s44, {L.flag(L.FL_PROG) + 256}
    v_add_u32 v{VTA}, s{S_O}, v{VTU}
    v_mov_b32 v{VTS}, {L.HB_SZ}
    s_mul_i32 s{S_T1}, s{S_LAYER}, {128*L.XN_SZ}
    s_lshl_b32 s{S_T2}, s{S_T0}, 9
    s_add_u32 s{S_T1}, s{S_T1}, s{S_T2}
    s_add_u32 s{S_T1}, s{S_T1}, {L.XS + 64*L.XN_SZ - 2048}
    v_add_u32 v{TMP}, s{S_T1}, v{VTU}
    v_mov_b32 v{TMP+1}, {L.XN_SZ}
    v_cmp_gt_u32 vcc, 16, {lane}
    v_cndmask_b32 v{VTA}, v{TMP}, v{VTA}, vcc
    v_cndmask_b32 v{VTS}, v{TMP+1}, v{VTS}, vcc
    s_and_b32 s{S_T2}, s{S_T0}, 15
    s_lshl_b32 s{S_T2}, s{S_T2}, 7
    s_add_u32 s{S_T2}, s{S_T2}, s{S_ST}
    v_mov_b32 v{TMP}, s{S_T2}
    v_mov_b32 v{TMP+1}, {L.ST_SZ}
    v_cmp_gt_u32 vcc, 20, {lane}
    v_cndmask_b32 v{VTA}, v{TMP}, v{VTA}, vcc
    v_cndmask_b32 v{VTS}, v{TMP+1}, v{VTS}, vcc
    s_cmp_lt_u32 s{S_T0}, 32
    s_cselect_b32 s46, 0xf0000, 0
    s_bitcmp0_b32 s{S_T0}, 3
    s_cselect_b32 s47, 0x100000, 0
    s_or_b32 s46, s46, s47
    s_or_b32 s46, s46, 0xffff
    s_mov_b32 s47, 0
    s_mov_b64 exec, s[46:47]
    buffer_load_dword v{VTD}, v{VTA}, {SRD}, 0 offen sc1
    s_mov_b64 exec, -1
    v_add_u32 v{VTA}, v{VTA}, v{VTS}
    s_mov_b64 exec, s[46:47]
    buffer_load_dword v{VTD}, v{VTA}, {SRD}, 0 offen sc1
    s_mov_b64 exec, -1
    v_add_u32 v{VTA}, v{VTA}, v{VTS}
    s_mov_b64 vcc, 0
    ''')
    def body(mode):
        loop, nd = a.newlabel('F1_LOOP'), a.newlabel('F1_ND')
        a.flush(); a.label(loop); a.vm = []; a.lg = []
        a(f's_add_u32 s37, s{S_BUF}, s36')
        a.br(f's_cbranch_vccnz {nd}')
        a(f'v_cmp_eq_u32 vcc, 0, v{VNF}')
        a.opt_begin('s_cbranch_vccz')
        wait_flags(a, S_FI, VFL, TMP, sleep=1)
        a.opt_end()
        for j, d in enumerate(dma_list(S_X, 37, VL16)): a(d, tag=('d', j))
        a.label(nd)
        st()
        a(f'buffer_load_dwordx4 v[{S8}:{S8+3}], v{VST}, {SRD}, s{S_ST} offen sc1')
        a(f'buffer_load_dwordx4 v[{S8+4}:{S8+7}], v{VST}, {SRD}, s{S_ST} offen offset:1024 sc1', tag='st')
        a(f'''
        v_add_u32 v{VFRB}, s{S_BUF}, v{VL16}
        s_xor_b32 s{S_BUF}, s{S_BUF}, {XBUF}
        s_add_u32 s37, s{S_BUF}, s36
        s_add_u32 s{S_ST}, s{S_ST}, {L.ST_SZ}
        s_add_u32 s{S_FI}, s{S_FI}, 512
        ''')
        def touch():
            if not mode: a(f'''
            s_add_u32 s{S_T0}, s{S_STEP}, s{S_LAYER}
            s_bitcmp0_b32 s{S_T0}, 0
            s_cselect_b64 exec, -1, s[46:47]
            buffer_load_dword v{VTD}, v{VTA}, {SRD}, 0 offen sc1
            s_mov_b64 exec, -1
            v_add_u32 v{VTA}, v{VTA}, v{VTS}''')
        seq = [(k, (0, 1)) for k in range(8)] + [(k, (0,)) for k in range(8, 28)] + [(k, (1,)) for k in range(8, 28)]
        rd = lambda i: f'ds_read_b128 v[{FQ+4*(i%8)}:{FQ+4*(i%8)+3}], v{VFRB} offset:{1024*seq[i][0]}'
        def mm(i):
            ks, tiles = seq[i]; out = []
            for t in tiles:
                c = f'v[{ACC+16*t}:{ACC+16*t+15}]'
                out.append(f'v_mfma_f32_32x32x16_bf16 {c}, {R(W(t,ks),4)}, v[{FQ+4*(i%8)}:{FQ+4*(i%8)+3}], {"0" if ks == 0 else c}')
            return out
        sto = stats_ops(S8, TMP) + [f'v_sub_f32 v{S8+2}, 0, v{S8+1}', f'v_mul_f32 v{S8+4}, {hex(f2u(-LOG2E))}, v{S8}', f'v_mov_b32 v{S8+6}, v{TMP+1}']
        def epi(t):
            c = ACC + 16 * t; o = []
            for i in range(0, 16, 2):
                o.append(f'v_pk_fma_f32 v[{c+i}:{c+i+1}], v[{CS+16*t+i}:{CS+16*t+i+1}], v[{S8+2}:{S8+3}], v[{c+i}:{c+i+1}] op_sel_hi:[1,0,1]')
            for i in range(0, 8, 2): o.append(f'v_pk_mul_f32 v[{EX+i}:{EX+i+1}], v[{c+i}:{c+i+1}], v[{S8+4}:{S8+5}] op_sel_hi:[1,0]')
            for i in range(8): o.append(f'v_exp_f32 v{EX+i}, v{EX+i}')
            for i in range(0, 8, 2): o.append(f'v_pk_mul_f32 v[{c+i}:{c+i+1}], v[{c+i}:{c+i+1}], v[{c+8+i}:{c+9+i}]')
            for i in range(0, 8, 2): o.append(f'v_pk_fma_f32 v[{EX+i}:{EX+i+1}], v[{EX+i}:{EX+i+1}], v[{S8+6}:{S8+7}], v[{S8+6}:{S8+7}] op_sel_hi:[1,0,0]')
            for i in range(8): o.append(f'v_rcp_f32 v{EX+i}, v{EX+i}')
            for i in range(0, 8, 2): o.append(f'v_pk_mul_f32 v[{c+i}:{c+i+1}], v[{c+i}:{c+i+1}], v[{EX+i}:{EX+i+1}]')
            for i in range(0, 8, 2): o.append(f'v_cvt_pk_bf16_f32 v{PK+4*t+i//2}, v{c+i}, v{c+i+1}')
            o.append(f'buffer_store_dwordx4 v[{PK+4*t}:{PK+4*t+3}], v{VL16}, {SRD}, s{S_O} offen offset:{1024*t} {mode}')
            return o
        def optdma(d):
            def f():
                a.opt_begin('s_cbranch_vccz'); a(d); a.opt_end()
            return f
        def chk():
            a.wait_vm('nf')
            a(f'v_cmp_eq_u32 vcc, 0, v{VNF}')
            a('s_cmp_eq_u64 vcc, 0')
            a('s_cselect_b64 vcc, -1, 0')
        sd = {13: [lambda: a(f'buffer_load_dword v{VNF}, v{VFL}, {SRD}, s{S_FI} offen sc1', tag='nf'), lambda: a.wait_vm('st')] + sto,
              27: [chk], 31: epi(0)}
        dl = dma_list(S_X, 37, VL16)
        e0 = epi(0)
        def prevflag():
            a('s_cmp_eq_u32 s42, 1')
            a.opt_begin('s_cbranch_scc0')
            signal(a, 43, VZ, VONE, mode, wait='')
            a.opt_end()
        sd = {6: [lambda: a.wait_vm('st'), prevflag, touch], 8: sto,
              28: [lambda: a(f'buffer_load_dword v{VNF}, v{VFL}, {SRD}, s{S_FI} offen sc1', tag='nf')],
              30: e0}
        at = {38: chk}
        for j in range(5): at[39 + 2 * j] = optdma(dl[j])
        st.cyc(0)
        mm0 = mm
        def mm(i):
            if i in (1, 8, 18, 28, 38): st.cyc({1: 1, 8: 2, 18: 3, 28: 4, 38: 5}[i])
            return mm0(i)
        left = stream(a, len(seq), rd, mm, {0: gate(a, ('d', 0)), 4: gate(a, ('d', 1)), 8: gate(a, ('d', 3)), 16: gate(a, ('d', 6))}, sd, per=6, depth=7, at=at)
        st.cyc(6)
        print('F1 leftover', len(left))
        flush_side(a, left)
        e1 = epi(1)
        flush_side(a, e1[:12] + [optdma(dl[5])] + e1[12:24] + [optdma(dl[6])] + e1[24:-1])
        a(f'buffer_load_dword v{VNF}, v{VFL}, {SRD}, s{S_FI} offen sc1')
        a(e1[-1])
        st(); st.cyc(7)
        a(f'''
        s_mov_b32 s43, s{S_FO}
        s_cmp_eq_u32 s{S_STEP}, 63
        s_cselect_b64 vcc, 0, vcc
        s_mov_b32 s42, 1
        ''')
        a.opt_begin('s_cbranch_vccnz')
        a('s_mov_b32 s42, 0')
        signal(a, S_FO, VZ, VONE, mode)
        a.opt_end()
        st()
        st.flush(10 << 20, TMP, TMP + 1)
        a(f'''
        s_add_u32 s{S_O}, s{S_O}, {L.HB_SZ}
        s_add_u32 s{S_FO}, s{S_FO}, 512
        s_add_u32 s{S_STEP}, s{S_STEP}, 1
        s_cmp_lt_u32 s{S_STEP}, 64
        s_cbranch_scc1 {loop}
        s_endpgm
        ''')
    mode_split(a, body, TMP)

PH, PQ, PT, PW = 544, 1184, 4736, 9472
def red_setup(a, VRW, VRR, VXO, VSO, TMP, base=0, il=False):
    a(f'''
    v_lshrrev_b32 v{TMP}, 5, {lane}
    v_mul_u32_u24 v{VRW}, {PH}, v{TMP}
    v_and_b32 v{TMP}, 31, {lane}
    v_lshl_add_u32 v{VRW}, v{TMP}, 4, v{VRW}
    s_mul_i32 s{S_T0}, s{S_W}, {PW}
    s_add_u32 s{S_T0}, s{S_T0}, {base}
    v_add_u32 v{VRW}, s{S_T0}, v{VRW}
    v_and_b32 v{TMP}, 1, {lane}
    v_mul_u32_u24 v{VRR}, {PH}, v{TMP}
    v_bfe_u32 v{TMP}, {lane}, 1, 1
    v_mul_u32_u24 v{TMP}, {2*PQ}, v{TMP}
    v_add_u32 v{VRR}, v{VRR}, v{TMP}
    v_bfe_u32 v{TMP}, {lane}, 2, 1
    v_mul_u32_u24 v{TMP}, {PT}, v{TMP}
    v_add_u32 v{VRR}, v{VRR}, v{TMP}
    v_lshrrev_b32 v{TMP}, 3, {lane}
    s_lshl_b32 s{S_T0}, s{S_W}, 3
    v_add_u32 v{TMP}, s{S_T0}, v{TMP}
    v_lshl_add_u32 v{VRR}, v{TMP}, 4, v{VRR}
    v_add_u32 v{VRR}, {base}, v{VRR}
    v_and_b32 v{VXO}, 7, {lane}
    s_lshl_b32 s{S_T0}, s{S_ROLE}, 3
    v_add_u32 v{VXO}, s{S_T0}, v{VXO}
    v_lshlrev_b32 v{VXO}, 9, v{VXO}
    v_lshl_add_u32 v{VXO}, v{TMP}, 4, v{VXO}
    s_lshr_b32 s{S_T1}, s{S_ROLE}, 1
    s_lshl_b32 s{S_T1}, s{S_T1}, 9
    s_and_b32 s{S_T2}, s{S_T0}, 8
    s_add_u32 s{S_T1}, s{S_T1}, s{S_T2}
    v_lshlrev_b32 v{VSO}, 4, v{TMP}
    v_add_u32 v{VSO}, s{S_T1}, v{VSO}
    s_mov_b32 s36, 0x01010101
    s_mov_b32 s37, 0x01010101
    ''')

def red_epilogue(a, ACC, VRW, VRR, XRES, T, store_x, store_st, lds_off=0, extra=(), st=None, il=False):
    extra = list(extra)
    for _ in range(2):
        if extra: extra.pop(0)()
    for t in range(2):
        for rq in range(4):
            a(f'ds_write_b128 v{VRW}, v[{ACC+16*t+4*rq}:{ACC+16*t+4*rq+3}] offset:{lds_off+t*PT+((0,2,1,3)[rq] if il else rq)*PQ}')
            if extra: extra.pop(0)()
    X = ACC
    for x in extra: x()
    a('s_waitcnt lgkmcnt(0)')
    if st: st.cyc(4)
    a('s_barrier')
    if st: st.cyc(5)
    for w in range(4):
        for j in range(2):
            a(f'ds_read_b128 v[{T+8*w+4*j}:{T+8*w+4*j+3}], v{VRR} offset:{lds_off+w*PW+j*PQ}')
    lo = (lambda i: X + i) if il else (lambda i: X + 2 * i)
    hi = (lambda i: X + 4 + i) if il else (lambda i: X + 2 * i + 1)
    for i in range(4):
        a(f'v_lshlrev_b32 v{lo(i)}, 16, v{XRES+i}')
        a(f'v_and_b32 v{hi(i)}, 0xffff0000, v{XRES+i}')
    for w in range(4):
        a(f's_waitcnt lgkmcnt({6-2*w})')
        for i in range(0, 8, 2):
            a(f'v_pk_add_f32 v[{X+i}:{X+i+1}], v[{X+i}:{X+i+1}], v[{T+8*w+i}:{T+8*w+i+1}]')
    for i in range(4): a(f'v_cvt_pk_bf16_f32 v{XRES+i}, v{lo(i)}, v{hi(i)}')
    if st: st.cyc(6)
    store_x(XRES)
    if store_st is None: return
    for i in range(4):
        a(f'v_lshlrev_b32 v{X+2*i}, 16, v{XRES+i}')
        a(f'v_and_b32 v{X+2*i+1}, 0xffff0000, v{XRES+i}')
    a(f'v_pk_add_f32 v[{T}:{T+1}], v[{X}:{X+1}], v[{X+2}:{X+3}]')
    a(f'v_pk_mul_f32 v[{T+2}:{T+3}], v[{X}:{X+1}], v[{X}:{X+1}]')
    a(f'v_pk_add_f32 v[{T+4}:{T+5}], v[{X+4}:{X+5}], v[{X+6}:{X+7}]')
    for i in (2, 4, 6): a(f'v_pk_fma_f32 v[{T+2}:{T+3}], v[{X+i}:{X+i+1}], v[{X+i}:{X+i+1}], v[{T+2}:{T+3}]')
    a(f'v_pk_add_f32 v[{T}:{T+1}], v[{T}:{T+1}], v[{T+4}:{T+5}]')
    a(f'v_add_f32 v{T}, v{T}, v{T+1}')
    a(f'v_add_f32 v{T+1}, v{T+2}, v{T+3}')
    for d in ('quad_perm:[1,0,3,2]', 'quad_perm:[2,3,0,1]', 'row_half_mirror'):
        for r in (T, T + 1): a(f'v_add_f32_dpp v{r}, v{r}, v{r} {d} row_mask:0xf bank_mask:0xf')
    a('s_mov_b64 exec, s[36:37]')
    store_st(T)
    a('s_mov_b64 exec, -1')

def red_list(a, ACC, VRW, VRR, XRES, T, store_x, store_st):
    o = []
    for t in range(2):
        for rq in range(4): o.append(f'ds_write_b128 v{VRW}, v[{ACC+16*t+4*rq}:{ACC+16*t+4*rq+3}] offset:{t*PT+rq*PQ}')
    X = ACC
    o += [None] * 3
    o.append('s_waitcnt lgkmcnt(0)\ns_barrier')
    for w in range(4):
        for j in range(2): o.append(f'ds_read_b128 v[{T+8*w+4*j}:{T+8*w+4*j+3}], v{VRR} offset:{w*PW+j*PQ}')
    for i in range(4): o += [f'v_lshlrev_b32 v{X+2*i}, 16, v{XRES+i}', f'v_and_b32 v{X+2*i+1}, 0xffff0000, v{XRES+i}']
    for w in range(4):
        o.append(f's_waitcnt lgkmcnt({6-2*w})')
        for i in range(0, 8, 2): o.append(f'v_pk_add_f32 v[{X+i}:{X+i+1}], v[{X+i}:{X+i+1}], v[{T+8*w+i}:{T+8*w+i+1}]')
    for i in range(4): o.append(f'v_cvt_pk_bf16_f32 v{XRES+i}, v{X+2*i}, v{X+2*i+1}')
    o.append(store_x)
    if store_st is None: return o
    for i in range(4): o += [f'v_lshlrev_b32 v{X+2*i}, 16, v{XRES+i}', f'v_and_b32 v{X+2*i+1}, 0xffff0000, v{XRES+i}']
    o += [f'v_pk_add_f32 v[{T}:{T+1}], v[{X}:{X+1}], v[{X+2}:{X+3}]', f'v_pk_mul_f32 v[{T+2}:{T+3}], v[{X}:{X+1}], v[{X}:{X+1}]',
          f'v_pk_add_f32 v[{T+4}:{T+5}], v[{X+4}:{X+5}], v[{X+6}:{X+7}]']
    for i in (2, 4, 6): o.append(f'v_pk_fma_f32 v[{T+2}:{T+3}], v[{X+i}:{X+i+1}], v[{X+i}:{X+i+1}], v[{T+2}:{T+3}]')
    o += [f'v_pk_add_f32 v[{T}:{T+1}], v[{T}:{T+1}], v[{T+4}:{T+5}]', f'v_add_f32 v{T}, v{T}, v{T+1}', f'v_add_f32 v{T+1}, v{T+2}, v{T+3}']
    for d in ('quad_perm:[1,0,3,2]', 'quad_perm:[2,3,0,1]', 'row_half_mirror'):
        for r in (T, T + 1): o.append(f'v_add_f32_dpp v{r}, v{r}, v{r} {d} row_mask:0xf bank_mask:0xf')
    o.append(store_st)
    return o

def role_F2(a, stamps=False, mode='sc1'):
    st = Stamps(a, stamps)
    W = lambda t, kk: 256 + 112 * t + 4 * kk
    VL16, VZ, VONE, VFL, VRW, VRR, VXO, VSO, VOUT = 2, 4, 5, 7, 8, 9, 10, 11, 12
    TMP = 18; XRES = 20; ACC = 48; T = 80; H = 112
    S_H, S_XI, S_XO, S_SO, S_FI, S_FO = 25, 26, 27, 28, 29, 30
    OSRD = 's[40:43]'
    a(f'''
    s_load_dwordx4 s[48:51], s[0:1], 80
    s_lshl_b32 s{S_T0}, s{S_ROLE}, 2
    s_add_u32 s{S_T0}, s{S_T0}, s{S_W}
    v_lshlrev_b32 v{VL16}, 4, {lane}
    v_lshrrev_b32 v{TMP}, 3, {lane}
    v_mul_u32_u24 v{H}, 896, v{TMP}
    v_and_b32 v{TMP}, 7, {lane}
    v_lshl_add_u32 v{H}, v{TMP}, 4, v{H}
    s_mul_i32 s{S_T2}, s{S_W}, {448*896}
    s_lshl_b32 s{S_T1}, s{S_ROLE}, 7
    s_add_u32 s{S_T2}, s{S_T2}, s{S_T1}
    s_waitcnt lgkmcnt(0)
    s_mov_b32 s44, s48
    s_and_b32 s45, s49, 0xffff
    s_mov_b32 s46, {1792*896}
    s_mov_b32 s47, 0x00020000
    s_mov_b32 s40, s50
    s_and_b32 s41, s51, 0xffff
    s_mov_b32 s42, {2048*896}
    s_mov_b32 s43, 0x00020000
    ''')
    tr_addr(a, H + 1, TMP, TMP + 1, 7, 5)
    load_w_tr(a, W, lambda ks, p: f'buffer_load_dwordx4 v{H}, s[44:47], s{S_T2} offen lds\ns_add_u32 s{S_T2}, s{S_T2}, {8*896}', H + 1, 64, 512)
    a(f'''
    s_mul_i32 s{S_H}, s{S_LAYER}, {64*L.HB_SZ}
    s_mul_i32 s{S_T1}, s{S_W}, 28672
    s_add_u32 s{S_H}, s{S_H}, s{S_T1}
    s_add_u32 s{S_H}, s{S_H}, {L.HB}
    s_lshl_b32 s{S_T1}, s{S_LAYER}, 15
    s_mul_i32 s{S_FI}, s{S_W}, 56
    s_add_u32 s{S_FI}, s{S_FI}, s{S_T1}
    s_add_u32 s{S_FI}, s{S_FI}, {L.flag(L.FL_H)}
    s_lshl_b32 s{S_FO}, s{S_T0}, 2
    s_add_u32 s{S_FO}, s{S_FO}, s{S_T1}
    s_add_u32 s{S_FO}, s{S_FO}, {L.flag(L.FL_X)}
    s_lshr_b32 s{S_T1}, s{S_ROLE}, 1
    s_mul_i32 s{S_T1}, s{S_T1}, 96
    s_add_u32 s{S_FO}, s{S_FO}, s{S_T1}
    s_mul_i32 s{S_XI}, s{S_LAYER}, {128*L.XN_SZ}
    s_add_u32 s{S_XI}, s{S_XI}, {L.XS + 64*L.XN_SZ}
    s_mov_b32 s{S_XO}, {L.XS + 128*L.XN_SZ}
    s_mov_b32 s{S_SO}, {L.ST + 128*L.ST_SZ}
    v_mov_b32 v{VZ}, 0
    v_mov_b32 v{VONE}, 1
    v_min_u32 v{VFL}, 13, {lane}
    v_lshlrev_b32 v{VFL}, 2, v{VFL}
    s_mov_b32 s{S_STEP}, 0
    s_mov_b32 s35, 0
    ''')
    red_setup(a, VRW, VRR, VXO, VSO, TMP)
    a(f'''
    v_mul_u32_u24 v{VOUT}, 896, v{TMP}
    v_and_b32 v{TMP}, 7, {lane}
    v_add_u32 v{TMP}, s{S_T0}, v{TMP}
    v_lshl_add_u32 v{VOUT}, v{TMP}, 4, v{VOUT}
    ''')
    VNF = 13
    AH = 12
    AC = (48, 224); XRS = (20, 24); RW = (VRW, 14); RD = (VRR, 15)
    a(f'v_add_u32 v14, {4*PW}, v{VRW}')
    a(f'v_add_u32 v15, {4*PW}, v{VRR}')
    def ldt(kk):
        x = f'buffer_load_dwordx4 v[{H+4*kk}:{H+4*kk+3}], v{VL16}, {SRD}, s{S_H} offen offset:{(kk % 4) * 1024} sc1'
        if kk % 4 == 3: x += f'\ns_add_u32 s{S_H}, s{S_H}, {4096 if kk < 27 else L.HB_SZ - 6 * 4096}'
        return x
    def ld(kk): a(ldt(kk), tag=('h', kk))
    def gen(layer):
        lab = {(k, b): a.newlabel(f'F2_{k}{b}') for k in 'CWP' for b in range(2)}
        def epi(b):
            r = XRS[b]
            if layer == 0:
                sx = lambda: a(f'buffer_store_dwordx4 v[{r}:{r+3}], v{VXO}, {SRD}, s{S_XO} offen sc1\ns_add_u32 s{S_XO}, s{S_XO}, {L.XN_SZ}')
                ss = lambda: a(f's_mov_b64 exec, s[36:37]\nbuffer_store_dwordx2 v[{T}:{T+1}], v{VSO}, {SRD}, s{S_SO} offen sc1\ns_mov_b64 exec, -1\ns_add_u32 s{S_SO}, s{S_SO}, {L.ST_SZ}', tag='so')
            else:
                sx = lambda: a(f'buffer_store_dwordx4 v[{r}:{r+3}], v{VOUT}, {OSRD}, s35 offen\ns_add_u32 s35, s35, {32*896}')
                ss = None
            return red_list(a, AC[b], RW[b], RD[b], r, T, sx, ss)
        def flag():
            if layer == 0:
                a.wait_vm('so'); signal(a, S_FO, VZ, VONE, 'sc1', wait='')
                a(f's_add_u32 s{S_FO}, s{S_FO}, 512')
        def steps(b, k0, k1, side, pre, pend=False):
            for kk in range(k0, k1):
                a.wait_vm(('h', kk))
                if pend and kk == 11: flag()
                for t in range(2):
                    c = f'v[{AC[b]+16*t}:{AC[b]+16*t+15}]'
                    a(f'v_mfma_f32_32x32x16_bf16 {c}, {R(W(t,kk),4)}, v[{H+4*kk}:{H+4*kk+3}], {"0" if kk == 0 else c}')
                    budget = 4
                    if t == 0:
                        budget = 3
                        if kk == 3: a(f'buffer_load_dword v{VNF}, v{VFL}, {SRD}, s{S_FI} offen sc1')
                        if kk == 15: a(f'buffer_load_dwordx4 v[{XRS[b]}:{XRS[b]+3}], v{VXO}, {SRD}, s{S_XI} offen sc1\ns_add_u32 s{S_XI}, s{S_XI}, {L.XN_SZ}')
                        if kk + AH < 28: ld(kk + AH)
                        elif pre: a(ldt(kk + AH - 28), tag=('n', kk + AH - 28))
                        elif kk == 21: a(f'buffer_load_dword v{VNF}, v{VFL}, {SRD}, s{S_FI} offen sc1', tag='nf2')
                    while side and budget > 0:
                        x = side.pop(0)
                        if x is None: break
                        x() if callable(x) else a(x)
                        budget -= 4 if (not callable(x) and x.startswith('ds_write')) else 1
        def main(b, warm, pend=False):
            st()
            a(f's_add_u32 s{S_FI}, s{S_FI}, 512')
            side = [None] * 2 + [y for x in epi(1 - b) for y in (unpk([x]) if x else [x])] if warm else []
            steps(b, 0, 16, side, False, pend)
            np_ = a.newlabel('F2_NP')
            a(f'''
            s_add_u32 s{S_STEP}, s{S_STEP}, 1
            v_cmp_eq_u32 vcc, 0, v{VNF}
            s_cmp_eq_u32 s{S_STEP}, 64
            s_cselect_b64 vcc, -1, vcc
            ''')
            a.br(f's_cbranch_vccnz {np_}')
            state = (list(a.vm), list(a.lg), list(a.hist), st.n)
            def tail(pre):
                sd = list(side)
                steps(b, 16, 28, sd, pre)
                assert not sd
                if warm: flag()
                st()
                if stamps: a(f's_sub_u32 s34, s{S_STEP}, 1')
                st.flush(12 << 20, TMP, TMP + 1, sstep=34)
            tail(True)
            a(f's_branch {lab[("W", 1 - b)]}')
            a.label(np_); a.vm, a.lg, a.hist, st.n = list(state[0]), list(state[1]), list(state[2]), state[3]
            tail(False)
            cold = a.newlabel('F2_CE')
            a.wait_vm('nf2')
            a(f'''
            v_cmp_eq_u32 vcc, 0, v{VNF}
            s_cmp_eq_u32 s{S_STEP}, 64
            s_cselect_b64 vcc, -1, vcc
            ''')
            a.br(f's_cbranch_vccnz {cold}')
            state = (list(a.vm), list(a.lg), list(a.hist))
            k = 0
            for x in [None, None] + epi(b):
                if x: x() if callable(x) else a(x)
                if k < AH: a(ldt(k)); k += 1
            a(f's_branch {lab[("P", 1 - b)]}')
            a.label(cold); a.vm, a.lg, a.hist = state
            for x in epi(b):
                if x: x() if callable(x) else a(x)
            a(f'buffer_load_dword v{VNF}, v{VFL}, {SRD}, s{S_FI} offen sc1', tag='nf')
            flag()
            a(f's_cmp_ge_u32 s{S_STEP}, 64')
            a.opt_begin('s_cbranch_scc0'); a('s_endpgm'); a.opt_end()
            a.wait_vm('nf')
            a(f's_branch {lab[("C", 1 - b)]}')
        a(f'v_mov_b32 v{VNF}, 0')
        for b in range(2):
            a.flush(); a.label(lab[('C', b)]); a.vm = []; a.lg = []
            a(f'v_cmp_eq_u32 vcc, 0, v{VNF}')
            a.opt_begin('s_cbranch_vccz')
            wait_flags(a, S_FI, VFL, TMP, sleep=1)
            a.opt_end()
            for kk in range(AH): ld(kk)
            main(b, False)
            a.label(lab[('W', b)]); a.vm = [('h', kk) for kk in range(AH)]; a.lg = []
            main(b, True)
            a.label(lab[('P', b)]); a.vm = [('h', kk) for kk in range(AH)] + ([None, 'so'] if layer == 0 else [None]); a.lg = []
            main(b, False, True)
    l1 = a.newlabel('F2_L1')
    a(f's_cmp_eq_u32 s{S_LAYER}, 1')
    a(f's_cbranch_scc1 {l1}')
    gen(0)
    a.label(l1)
    gen(1)

def role_PU(a, stamps=False, mode='sc1'):
    st = Stamps(a, stamps)
    VL16, VZ, VONE, VFU, VRW, VRR, VXO, VSO, VUX, VUM, VFT, VFM = 2, 4, 5, 7, 8, 9, 10, 11, 12, 13, 14, 15
    TMP = 18; XRES = 20; ACC = 48; T = 80
    UF = lambda t, k: 112 + 40 * t + 4 * k
    PF = lambda k: 192 + 4 * k
    S_UX, S_UM, S_PX, S_XI, S_XO, S_SO, S_FL, S_FO = 21, 22, 23, 24, 25, 26, 27, 28
    a(f'''
    v_lshlrev_b32 v{VL16}, 4, {lane}
    v_mov_b32 v{VZ}, 0
    v_mov_b32 v{VONE}, 1
    ''')
    red_setup(a, VRW, VRR, VXO, VSO, TMP, il=True)
    a(f'''
    v_mov_b32 v{VUX}, v{VL16}
    v_and_b32 v{VUM}, 15, {lane}
    v_lshlrev_b32 v{VUM}, 4, v{VUM}
    v_bfe_u32 v{TMP}, {lane}, 4, 1
    v_lshl_add_u32 v{VUM}, v{TMP}, 10, v{VUM}
    v_lshrrev_b32 v{TMP}, 5, {lane}
    v_lshl_add_u32 v{VUM}, v{TMP}, 8, v{VUM}
    v_and_b32 v{VFU}, 1, {lane}
    v_mul_u32_u24 v{VFU}, 14, v{VFU}
    v_bfe_u32 v{TMP}, {lane}, 1, 1
    v_add_u32 v{VFU}, v{VFU}, v{TMP}
    s_mul_i32 s{S_T0}, s{S_W}, 28
    s_lshl_b32 s{S_T1}, s{S_ROLE}, 1
    s_add_u32 s{S_T0}, s{S_T0}, s{S_T1}
    v_add_u32 v{VFU}, s{S_T0}, v{VFU}
    v_lshrrev_b32 v{TMP}, 3, v{VFU}
    v_mul_u32_u24 v{TMP}, 24, v{TMP}
    v_add_lshl_u32 v{VFU}, v{VFU}, v{TMP}, 2
    v_add_u32 v{VFU}, {L.FLU}, v{VFU}
    ; T flags: 16w + (l&15)
    v_and_b32 v{VFT}, 15, {lane}
    s_lshl_b32 s{S_T0}, s{S_W}, 5
    v_add_u32 v{VFT}, s{S_T0}, v{VFT}
    v_lshlrev_b32 v{VFT}, 2, v{VFT}
    v_add_u32 v{VFT}, {L.flag(L.FL_T)}, v{VFT}
    v_and_b32 v{VFM}, 1, {lane}
    v_add_u32 v{VFM}, s{S_T1}, v{VFM}
    v_lshlrev_b32 v{VFM}, 2, v{VFM}
    v_add_u32 v{VFM}, s{S_W}, v{VFM}
    v_lshlrev_b32 v{VFM}, 2, v{VFM}
    v_add_u32 v{VFM}, {L.flag(L.FL_UM)}, v{VFM}
    s_lshl_b32 s{S_FL}, s{S_LAYER}, 15
    s_lshl_b32 s{S_T0}, s{S_ROLE}, 2
    s_add_u32 s{S_T0}, s{S_T0}, s{S_W}
    s_lshl_b32 s{S_FO}, s{S_T0}, 2
    s_add_u32 s{S_FO}, s{S_FO}, s{S_FL}
    s_add_u32 s{S_FO}, s{S_FO}, {L.flag(L.FL_P)}
    s_lshr_b32 s{S_T1}, s{S_ROLE}, 1
    s_mul_i32 s{S_T1}, s{S_T1}, 96
    s_add_u32 s{S_FO}, s{S_FO}, s{S_T1}
    s_mul_i32 s{S_UX}, s{S_LAYER}, {64*L.UX_SZ}
    s_mul_i32 s{S_T0}, s{S_W}, {4*28672}
    s_add_u32 s{S_UX}, s{S_UX}, s{S_T0}
    s_lshl_b32 s{S_T0}, s{S_ROLE}, 12
    s_add_u32 s{S_UX}, s{S_UX}, s{S_T0}
    s_add_u32 s{S_UX}, s{S_UX}, {L.UX}
    s_mul_i32 s{S_UM}, s{S_LAYER}, {64*L.UM_SZ}
    s_lshl_b32 s{S_T0}, s{S_ROLE}, 14
    s_add_u32 s{S_UM}, s{S_UM}, s{S_T0}
    s_lshl_b32 s{S_T0}, s{S_W}, 11
    s_add_u32 s{S_UM}, s{S_UM}, s{S_T0}
    s_add_u32 s{S_UM}, s{S_UM}, {L.UM}
    s_mul_i32 s{S_PX}, s{S_LAYER}, {64*L.PX_SZ}
    s_mul_i32 s{S_T0}, s{S_W}, 10240
    s_add_u32 s{S_PX}, s{S_PX}, s{S_T0}
    s_add_u32 s{S_PX}, s{S_PX}, {L.PX}
    s_mul_i32 s{S_XI}, s{S_LAYER}, {128*L.XN_SZ}
    s_add_u32 s{S_XI}, s{S_XI}, {L.XS}
    s_add_u32 s{S_XO}, s{S_XI}, {64*L.XN_SZ}
    s_lshl_b32 s{S_SO}, s{S_LAYER}, 18
    s_add_u32 s{S_SO}, s{S_SO}, {L.ST + 64*L.ST_SZ}
    s_mov_b32 s{S_STEP}, s50
    s_mul_i32 s{S_T0}, s50, {L.UX_SZ}
    s_add_u32 s{S_UX}, s{S_UX}, s{S_T0}
    s_mul_i32 s{S_T0}, s50, {L.UM_SZ}
    s_add_u32 s{S_UM}, s{S_UM}, s{S_T0}
    s_mul_i32 s{S_T0}, s50, {L.PX_SZ}
    s_add_u32 s{S_PX}, s{S_PX}, s{S_T0}
    s_mul_i32 s{S_T0}, s50, {L.XN_SZ}
    s_add_u32 s{S_XI}, s{S_XI}, s{S_T0}
    s_add_u32 s{S_XO}, s{S_XO}, s{S_T0}
    s_mul_i32 s{S_T0}, s50, {L.ST_SZ}
    s_add_u32 s{S_SO}, s{S_SO}, s{S_T0}
    s_lshl_b32 s{S_T0}, s50, 9
    s_add_u32 s{S_FL}, s{S_FL}, s{S_T0}
    s_add_u32 s{S_FO}, s{S_FO}, s{S_T0}
    ''')
    UXF = lambda t, k: 256 + 32 * t + 4 * k
    UM4 = lambda t, kk2: 112 + 8 * t + 4 * kk2
    a(f'''
    v_add_u32 v32, {4*PW}, v{VRW}
    v_add_u32 v33, {4*PW}, v{VRR}
    v_cmp_gt_u32 vcc, 32, {lane}
    v_and_b32 v{VFM}, 3, {lane}
    v_lshlrev_b32 v{VFM}, 2, v{VFM}
    v_add_u32 v{VFM}, {L.FLU + 1792}, v{VFM}
    v_cndmask_b32 v{VFM}, v{VFM}, v{VFU}, vcc
    s_add_u32 s29, s{S_UM}, 8192
    ''')
    uml = [f'buffer_load_dwordx4 v[{UM4(t,kk2)}:{UM4(t,kk2)+3}], v{VUM}, {SRD}, s{S_UM if t == 0 else 29} offen offset:{512*kk2} sc1' for kk2 in range(2) for t in range(2)]
    def body(mode):
        loop = a.newlabel('PU_LOOP')
        a.flush(); a.label(loop)
        for b in range(2):
            a.vm = []; a.lg = []
            a(f's_lshl_b32 s30, s{S_FL}, 2')
            wait_flags(a, 30, VFM, TMP, sleep=2)
            for hh in range(4):
                for t in range(2):
                    for kh in range(2):
                        a(f'buffer_load_dwordx4 {R(UXF(t, 2*hh+kh), 4)}, v{VUX}, {SRD}, s{S_UX} offen offset:{2048*t+1024*kh} sc1')
                a(f's_add_u32 s{S_UX}, s{S_UX}, {28672 if hh < 3 else 2*L.UX_SZ - 3*28672}')
            a(f'buffer_load_dwordx4 v[{XRES}:{XRES+3}], v{VXO}, {SRD}, s{S_XI} offen sc1')
            a(f's_add_u32 s{S_XI}, s{S_XI}, {2*L.XN_SZ}')
            wait_flags(a, S_FL, VFT, TMP, sleep=1)
            st()
            order = [0, 1, 2, 3, 'm', 4, 5, 6, 7, 8, 9]
            def pld(k):
                if k == 'm':
                    for x in uml: a(x, tag='m')
                    return
                a(f'buffer_load_dwordx4 v[{PF(k)}:{PF(k)+3}], v{VL16}, {SRD}, s{S_PX} offen offset:{(k % 4) * 1024} sc1', tag=('p', k))
                if k % 4 == 3: a(f's_add_u32 s{S_PX}, s{S_PX}, 4096')
            for k in range(10): pld(k)
            pld('m')
            a(f's_add_u32 s{S_PX}, s{S_PX}, {2*L.PX_SZ - 8192}')
            a(f's_add_u32 s{S_FL}, s{S_FL}, 1024')
            for k in range(10):
                if k < 8: a.wait_vm(('p', k))
                if k == 8:
                    a.wait_vm('m')
                    check(a, range(112, 128), TMP)
                    a.opt_begin('s_cbranch_vccz')
                    poll(a, uml, range(112, 128), TMP, sleep=1)
                    a.opt_end()
                    a(f's_add_u32 s{S_UM}, s{S_UM}, {2*L.UM_SZ}')
                    a(f's_add_u32 s29, s29, {2*L.UM_SZ}')
                for t in range(2):
                    c = f'v[{ACC+16*t}:{ACC+16*t+15}]'
                    u = R(UXF(t, k), 4) if k < 8 else f'v[{UM4(t,k-8)}:{UM4(t,k-8)+3}]'
                    a(f'v_mfma_f32_32x32x16_bf16 {c}, {u}, v[{PF(k)}:{PF(k)+3}], {"0" if k == 0 else c}')
            st()
            def sx(r):
                a(f'buffer_store_dwordx4 v[{r}:{r+3}], v{VXO}, {SRD}, s{S_XO} offen {mode}')
            red_epilogue(a, ACC, (VRW, 32)[b], (VRR, 33)[b], XRES, T, sx,
                         lambda r: a(f'buffer_store_dwordx2 v[{r}:{r+1}], v{VSO}, {SRD}, s{S_SO} offen {mode}'), il=True)
            st()
            signal(a, S_FO, VZ, VONE, mode)
            st()
            st.flush(8 << 20, TMP, TMP + 1)
            a(f'''
            s_add_u32 s{S_XO}, s{S_XO}, {2*L.XN_SZ}
            s_add_u32 s{S_SO}, s{S_SO}, {2*L.ST_SZ}
            s_add_u32 s{S_FO}, s{S_FO}, 1024
            s_add_u32 s{S_STEP}, s{S_STEP}, 2
            ''')
        a(f'''
        s_cmp_lt_u32 s{S_STEP}, 64
        s_cbranch_scc1 {loop}
        s_endpgm
        ''')
    mode_split(a, body, TMP, force_slow=51)

def role_T(a, stamps=False):
    st = Stamps(a, stamps)
    WR = [256 + 4 * i for i in range(64)] + [120 + 4 * i for i in range(34)]
    W = lambda t, ks: WR[14 * t + ks]
    ACC = lambda tt, t: 0 + 28 * tt + 4 * t
    TB = lambda tt, kk: 56 + 14 * tt + 4 * kk
    FR = 84
    VL16, VFB, VHB, VHB3, VMA, VMA3, VSXW, VSXR, VSMW, VSMR, VPX, VPM, VFL, VZ, VONE, VROW = range(96, 112)
    TMP = 112
    SX = lambda c: 0 + 4 * c
    HF = 12
    SM = lambda tt: 28 + 4 * tt
    MF = 36
    XV = 50
    RS = 144
    LDS_SX = 2 * XBUF
    LDS_SM = LDS_SX + 4 * 32 * RS
    S_XN, S_MX, S_PX, S_FI, S_FO, S_ZERO = 21, 22, 23, 24, 25, 26
    a(f'''
    s_and_b32 s27, s{S_ROLE}, 15
    s_lshr_b32 s{S_STEP}, s{S_ROLE}, 4
    s_lshl_b32 s{S_T0}, s27, 2
    s_add_u32 s{S_T0}, s{S_T0}, s{S_W}
    s_mul_i32 s{S_T2}, s{S_T0}, 100352
    s_add_u32 s{S_T2}, s{S_T2}, {L.WA}
    v_lshlrev_b32 v{VL16}, 4, {lane}
    ''')
    a(f'''
    v_min_u32 v{TMP+1}, 13, {lane}
    v_lshlrev_b32 v{TMP+1}, 2, v{TMP+1}
    s_lshl_b32 s{S_T1}, s27, 7
    v_add_u32 v{TMP+1}, s{S_T1}, v{TMP+1}
    ''')
    a(f'''
    v_bfe_u32 v{VFB}, {lane}, 3, 1
    v_mul_u32_u24 v{VFB}, 14336, v{VFB}
    v_lshrrev_b32 v{TMP}, 4, {lane}
    v_lshl_add_u32 v{VFB}, v{TMP}, 8, v{VFB}
    v_bfe_u32 v{TMP}, {lane}, 2, 1
    v_lshl_add_u32 v{VFB}, v{TMP}, 7, v{VFB}
    v_and_b32 v{TMP}, 3, {lane}
    v_lshl_add_u32 v{VFB}, v{TMP}, 4, v{VFB}
    ''')
    prep2.prog_load(a, [[(f's_add_u32 s{S_T3}, s{S_T2}, {14336*(t&~1)+2048*j}\n' if i == 0 else '') + f'buffer_load_dwordx4 {R(W(t, 2*j+i), 4)}, v{VFB if t < 6 else VL16}, {SRD}, s{S_T3} offen offset:{1024*i+64*(t&1)} sc1'
                         for t in range(7) for i in range(2)] for j in range(7)], TMP + 1, TMP)
    q, c = TMP, TMP + 1
    a(f'''
    s_lshl_b32 s{S_T1}, s{S_LAYER}, 6
    s_add_u32 s{S_T1}, s{S_T1}, s{S_STEP}
    s_mul_i32 s{S_XN}, s{S_T1}, {L.XN_SZ}
    s_add_u32 s{S_XN}, s{S_XN}, {L.XN}
    s_mul_i32 s{S_MX}, s{S_T1}, {L.MEM_SZ}
    s_add_u32 s{S_MX}, s{S_MX}, {L.MEMX}
    s_mul_i32 s{S_PX}, s{S_T1}, {L.PX_SZ}
    s_add_u32 s{S_PX}, s{S_PX}, {L.PX}
    s_lshl_b32 s{S_FI}, s{S_T1}, 9
    s_lshl_b32 s{S_FO}, s{S_T0}, 2
    s_add_u32 s{S_FO}, s{S_FO}, s{S_FI}
    s_add_u32 s{S_FO}, s{S_FO}, {L.flag(L.FL_T)}
    s_lshr_b32 s{S_T3}, s27, 2
    s_lshl_b32 s{S_T3}, s{S_T3}, 6
    s_add_u32 s{S_FO}, s{S_FO}, s{S_T3}
    s_lshl_b32 s{S_FI}, s{S_FI}, 2
    s_add_u32 s{S_FI}, s{S_FI}, {L.FLXN}
    s_mov_b32 s{S_ZERO}, 0
    v_mov_b32 v{VZ}, 0
    v_mov_b32 v{VONE}, 1
    v_min_u32 v{VFL}, 55, {lane}
    v_lshrrev_b32 v{TMP}, 2, v{VFL}
    v_mul_u32_u24 v{TMP}, 12, v{TMP}
    v_add_lshl_u32 v{VFL}, v{VFL}, v{TMP}, 3
    v_lshrrev_b32 v{q}, 4, {lane}
    v_and_b32 v{c}, 15, {lane}
    v_and_b32 v{TMP+6}, 1, {lane}
    v_lshlrev_b32 v{TMP+6}, 4, v{TMP+6}
    v_bfe_u32 v{TMP+7}, {lane}, 1, 3
    v_add_u32 v{TMP+6}, v{TMP+6}, v{TMP+7}
    v_lshlrev_b32 v{VFB}, 9, v{q}
    v_lshl_add_u32 v{VFB}, v{TMP+6}, 4, v{VFB}
    s_mul_i32 s{S_T1}, s{S_W}, 14
    s_lshl_b32 s{S_T2}, s{S_T1}, 9
    v_add_u32 v{VHB}, s{S_T2}, v{VFB}
    v_lshrrev_b32 v{TMP+2}, 5, {lane}
    v_add_u32 v{TMP+2}, s{S_T1}, v{TMP+2}
    v_add_u32 v{TMP+2}, 12, v{TMP+2}
    v_and_b32 v{TMP+3}, 1, v{q}
    v_lshlrev_b32 v{VHB3}, 9, v{TMP+2}
    v_lshl_add_u32 v{VHB3}, v{TMP+6}, 4, v{VHB3}
    v_lshl_add_u32 v{VHB3}, v{TMP+3}, 3, v{VHB3}
    v_and_b32 v{TMP+4}, 7, {lane}
    v_add_u32 v{VMA}, s{S_T1}, v{q}
    v_lshlrev_b32 v{VMA}, 7, v{VMA}
    v_lshl_add_u32 v{VMA}, v{TMP+4}, 4, v{VMA}
    v_lshlrev_b32 v{VMA3}, 7, v{TMP+2}
    v_lshl_add_u32 v{VMA3}, v{TMP+4}, 4, v{VMA3}
    v_lshl_add_u32 v{VMA3}, v{TMP+3}, 3, v{VMA3}
    s_mul_i32 s{S_T2}, s{S_W}, {32*RS}
    s_add_u32 s{S_T2}, s{S_T2}, {LDS_SX}
    v_mul_u32_u24 v{VSXW}, {RS}, v{c}
    v_lshl_add_u32 v{VSXW}, v{q}, 4, v{VSXW}
    v_add_u32 v{VSXW}, s{S_T2}, v{VSXW}
    s_lshl_b32 s{S_T2}, s{S_W}, 10
    s_add_u32 s{S_T2}, s{S_T2}, {LDS_SM}
    v_lshlrev_b32 v{VSMW}, 5, v{c}
    v_lshl_add_u32 v{VSMW}, v{TMP+3}, 4, v{VSMW}
    v_add_u32 v{VSMW}, s{S_T2}, v{VSMW}
    v_lshrrev_b32 v{VROW}, 3, {lane}
    s_lshl_b32 s{S_T2}, s{S_W}, 3
    v_add_u32 v{VROW}, s{S_T2}, v{VROW}
    v_mul_u32_u24 v{VSXR}, {RS}, v{VROW}
    v_lshl_add_u32 v{VSXR}, v{TMP+4}, 4, v{VSXR}
    v_add_u32 v{VSXR}, {LDS_SX}, v{VSXR}
    v_lshlrev_b32 v{VSMR}, 5, v{VROW}
    v_lshl_add_u32 v{VSMR}, v{TMP+4}, 2, v{VSMR}
    v_add_u32 v{VSMR}, {LDS_SM}, v{VSMR}
    v_lshrrev_b32 v{TMP+5}, 1, v{TMP+4}
    v_lshlrev_b32 v{VPM}, 9, v{TMP+5}
    v_lshl_add_u32 v{VPM}, v{VROW}, 4, v{VPM}
    v_and_b32 v{TMP+5}, 1, {lane}
    v_lshl_add_u32 v{VPX}, v{TMP+5}, 3, v{VPM}
    s_lshr_b32 s{S_T1}, s27, 2
    s_mul_i32 s{S_T1}, s{S_T1}, 10240
    s_and_b32 s{S_T2}, s27, 3
    s_lshl_b32 s{S_T3}, s{S_T2}, 11
    s_add_u32 s{S_T3}, s{S_T3}, s{S_T1}
    v_add_u32 v{VPX}, s{S_T3}, v{VPX}
    s_lshl_b32 s{S_T3}, s{S_T2}, 2
    s_add_u32 s{S_T3}, s{S_T3}, s{S_T1}
    s_add_u32 s{S_T3}, s{S_T3}, 8192
    v_add_u32 v{VPM}, s{S_T3}, v{VPM}
    v_lshlrev_b32 v{TMP+5}, 2, v{TMP+4}
    v_sub_u32 v{VROW}, v{VROW}, v{TMP+5}
    v_cmp_le_i32 s[40:41], 0, v{VROW}
    v_cmp_le_i32 s[42:43], 1, v{VROW}
    v_cmp_le_i32 s[44:45], 2, v{VROW}
    v_cmp_le_i32 s[46:47], 3, v{VROW}
    v_mov_b32 v{VROW}, 0xf149f2ca
    s_mov_b32 s48, 0x55555555
    s_mov_b32 s49, 0x55555555
    s_mov_b32 s52, {XBUF}
    ''')
    a(f'''
    s_lshl_b32 s36, s{S_W}, 10
    s_add_u32 s{S_XN}, s{S_XN}, s36
    s_mov_b64 vcc, 0
    ''')
    loop, nd = a.newlabel('T_LOOP'), a.newlabel('T_ND')
    NF = TMP + 6
    a.flush(); a.label(loop); a.vm = []; a.lg = []
    a(f's_add_u32 s37, s{S_ZERO}, s36')
    a.br(f's_cbranch_vccnz {nd}')
    wait_flags(a, S_FI, VFL, TMP, width=2, sleep=1)
    for j, d in enumerate(dma_list(S_XN, 37, VL16)): a(d, tag=('d', j))
    a(f's_add_u32 s{S_XN}, s{S_XN}, {L.XN_SZ}')
    a.label(nd)
    st()
    a(f'''
    s_xor_b32 s{S_ZERO}, s{S_ZERO}, {XBUF}
    s_add_u32 s37, s{S_ZERO}, s36
    s_add_u32 s{S_FI}, s{S_FI}, 4096
    ''')
    seq = [(tt, ks) for tt in range(2) for ks in range(14)]
    rd = lambda i: f'ds_read_b128 v[{FR+4*(i%3)}:{FR+4*(i%3)+3}], v{VFB} offset:{2048*seq[i][1]+128*seq[i][0]}'
    def cvt(tt):
        o = []
        for kk in range(3):
            for p in range(2):
                c = ACC(tt, 2 * kk + p)
                o += [f'v_cvt_pk_bf16_f32 v{TB(tt,kk)+2*p}, v{c}, v{c+1}', f'v_cvt_pk_bf16_f32 v{TB(tt,kk)+2*p+1}, v{c+2}, v{c+3}']
        c = ACC(tt, 6)
        o += [f'v_cvt_pk_bf16_f32 v{TB(tt,3)}, v{c}, v{c+1}', f'v_cvt_pk_bf16_f32 v{TB(tt,3)+1}, v{c+2}, v{c+3}']
        return o
    def mm(i):
        tt, ks = seq[i]; out = []
        for t in range(7):
            c = f'v[{ACC(tt,t)}:{ACC(tt,t)+3}]'
            out.append(f'v_mfma_f32_16x16x32_bf16 {c}, {R(W(t,ks),4)}, v[{FR+4*(i%3)}:{FR+4*(i%3)+3}], {"0" if ks == 0 else c}')
        return out
    def optdma(d):
        def f():
            a.opt_begin('s_cbranch_vccz'); a(d); a.opt_end()
        return f
    def chk():
        a.wait_vm('nf')
        a(f'v_min_u32 v{NF}, v{NF}, v{NF+1}')
        a(f'v_cmp_eq_u32 vcc, 0, v{NF}')
        a('s_cmp_eq_u64 vcc, 0')
        a('s_cselect_b64 vcc, -1, 0')
    dl = dma_list(S_XN, 37, VL16); dl[6] += f'\ns_add_u32 s{S_XN}, s{S_XN}, {L.XN_SZ}'
    sd = {8: [lambda: a(f'buffer_load_dwordx2 v[{NF}:{NF+1}], v{VFL}, {SRD}, s{S_FI} offen sc1', tag='nf')], 15: cvt(0), 20: [chk]}
    for j in range(7): sd[21 + j] = [optdma(dl[j])]
    st.cyc(0); sd[7] = [lambda: st.cyc(1)]; sd[14] = [lambda: st.cyc(2)]
    def g6():
        a.wait_vm(('d', 6)); a('s_barrier')
        a.opt_begin('s_cbranch_vccz')
        signal(a, 53, VZ, VONE, wait='')
        a.opt_end()
    left = stream(a, 28, rd, mm, {0: gate(a, ('d', 0)), 2: gate(a, ('d', 1)), 4: gate(a, ('d', 3)), 8: g6}, sd, depth=2, per=2)
    st.cyc(3)
    assert not left
    a('s_mov_b64 s[50:51], vcc')
    def hrd(kk):
        h = HF + 8 * (kk % 2)
        if kk < 3: return [f'ds_read_b128 v[{h+4*jt}:{h+4*jt+3}], v{VHB} offset:{2048*kk+128*jt}' for jt in range(2)]
        return [f'ds_read_b64 v[{h+4*jt}:{h+4*jt+1}], v{VHB3} offset:{128*jt}' for jt in range(2)]
    mloads = [f'buffer_load_dwordx4 v[{MF+4*kk}:{MF+4*kk+3}], v{VMA}, {SRD}, s{S_MX} offen offset:{512*kk} sc1' for kk in range(3)] + \
             [f'buffer_load_dwordx2 v[{MF+12}:{MF+13}], v{VMA3}, {SRD}, s{S_MX} offen sc1']
    for s_ in hrd(0) + hrd(1): a(s_)
    for s_ in cvt(1): a(s_)
    for s_ in mloads: a(s_)
    for kk in range(4):
        a(f's_waitcnt lgkmcnt({2 if kk < 3 else 0})')
        h = HF + 8 * (kk % 2)
        for ci, (jt, tt) in enumerate(((0, 0), (0, 1), (1, 1))):
            c = f'v[{SX(ci)}:{SX(ci)+3}]'; cin = '0' if kk == 0 else c
            if kk < 3: a(f'v_mfma_f32_16x16x32_bf16 {c}, v[{h+4*jt}:{h+4*jt+3}], v[{TB(tt,kk)}:{TB(tt,kk)+3}], {cin}')
            else: a(f'v_mfma_f32_16x16x16_bf16 {c}, v[{h+4*jt}:{h+4*jt+1}], v[{TB(tt,kk)}:{TB(tt,kk)+1}], {cin}')
        if kk < 2:
            for s_ in hrd(kk + 2): a(s_)
    for ci, (jt, tt) in enumerate(((0, 0), (0, 1), (1, 1))):
        a(f'ds_write_b128 v{VSXW}, v[{SX(ci)}:{SX(ci)+3}] offset:{16*RS*tt+64*jt}')
    a('s_waitcnt lgkmcnt(0)'); a('s_barrier')
    for w in range(4): a(f'ds_read_b128 v[{HF+4*w}:{HF+4*w+3}], v{VSXR} offset:{32*RS*w}')
    a('s_waitcnt lgkmcnt(2)')
    for i in (0, 2): a(f'v_pk_add_f32 v[{XV+i}:{XV+i+1}], v[{HF+i}:{HF+i+1}], v[{HF+4+i}:{HF+5+i}]')
    a('s_waitcnt lgkmcnt(0)')
    for i in (0, 2): a(f'v_pk_add_f32 v[{HF+8+i}:{HF+9+i}], v[{HF+8+i}:{HF+9+i}], v[{HF+12+i}:{HF+13+i}]')
    for i in (0, 2): a(f'v_pk_add_f32 v[{XV+i}:{XV+i+1}], v[{XV+i}:{XV+i+1}], v[{HF+8+i}:{HF+9+i}]')
    for r in range(4): a(f'v_cndmask_b32 v{XV+r}, v{VROW}, v{XV+r}, s[{40+2*r}:{41+2*r}]')
    a(f'v_max3_f32 v{XV+4}, v{XV}, v{XV+1}, v{XV+2}')
    a(f'v_max_f32 v{XV+4}, v{XV+4}, v{XV+3}')
    st(); st.cyc(4)
    a('s_waitcnt vmcnt(0)')
    check(a, range(MF, MF + 14), TMP)
    a.opt_begin('s_cbranch_vccz')
    poll(a, mloads, range(MF, MF + 14), TMP, sleep=1)
    a.opt_end()
    st()
    for kk in range(4):
        for tt in range(2):
            c = f'v[{SM(tt)}:{SM(tt)+3}]'; cin = '0' if kk == 0 else c
            if kk < 3: a(f'v_mfma_f32_16x16x32_bf16 {c}, v[{MF+4*kk}:{MF+4*kk+3}], v[{TB(tt,kk)}:{TB(tt,kk)+3}], {cin}')
            else: a(f'v_mfma_f32_16x16x16_bf16 {c}, v[{MF+12}:{MF+13}], v[{TB(tt,kk)}:{TB(tt,kk)+1}], {cin}')
    for tt in range(2): a(f'ds_write_b128 v{VSMW}, v[{SM(tt)}:{SM(tt)+3}] offset:{512*tt}')
    M, X5 = TMP, TMP + 2
    a(f'''
    s_waitcnt lgkmcnt(0)
    s_barrier
    ds_read2st64_b32 v[{X5}:{X5+1}], v{VSMR} offset0:0 offset1:4
    ds_read2st64_b32 v[{X5+2}:{X5+3}], v{VSMR} offset0:8 offset1:12
    s_waitcnt lgkmcnt(0)
    v_pk_add_f32 v[{X5}:{X5+1}], v[{X5}:{X5+1}], v[{X5+2}:{X5+3}]
    v_add_f32 v{X5}, v{X5}, v{X5+1}
    v_max_f32 v{M}, v{XV+4}, v{X5}
    ''')
    D3 = ('quad_perm:[1,0,3,2]', 'quad_perm:[2,3,0,1]', 'row_half_mirror')
    for d in D3: a(f'v_max_f32_dpp v{M}, v{M}, v{M} {d} row_mask:0xf bank_mask:0xf')
    a(f'''
    v_sub_f32 v{X5}, v{X5}, v{M}
    v_pk_add_f32 v[{XV}:{XV+1}], v[{XV}:{XV+1}], v[{M}:{M+1}] op_sel_hi:[1,0] neg_lo:[0,1] neg_hi:[0,1]
    v_pk_add_f32 v[{XV+2}:{XV+3}], v[{XV+2}:{XV+3}], v[{M}:{M+1}] op_sel_hi:[1,0] neg_lo:[0,1] neg_hi:[0,1]
    v_exp_f32 v{X5}, v{X5}
    v_exp_f32 v{XV}, v{XV}
    v_exp_f32 v{XV+1}, v{XV+1}
    v_exp_f32 v{XV+2}, v{XV+2}
    v_exp_f32 v{XV+3}, v{XV+3}
    v_add_f32 v{M}, v{X5}, v{XV}
    v_add_f32 v{M}, v{M}, v{XV+1}
    v_add_f32 v{M}, v{M}, v{XV+2}
    v_add_f32 v{M}, v{M}, v{XV+3}
    ''')
    for d in D3: a(f'v_add_f32_dpp v{M}, v{M}, v{M} {d} row_mask:0xf bank_mask:0xf')
    a(f'''
    v_rcp_f32 v{M}, v{M}
    v_mul_f32 v{X5}, v{X5}, v{M}
    v_pk_mul_f32 v[{XV}:{XV+1}], v[{XV}:{XV+1}], v[{M}:{M+1}] op_sel_hi:[1,0]
    v_pk_mul_f32 v[{XV+2}:{XV+3}], v[{XV+2}:{XV+3}], v[{M}:{M+1}] op_sel_hi:[1,0]
    v_mov_b32_dpp v{X5+1}, v{X5} quad_perm:[1,0,3,2] row_mask:0xf bank_mask:0xf
    v_cvt_pk_bf16_f32 v{XV}, v{XV}, v{XV+1}
    v_cvt_pk_bf16_f32 v{XV+1}, v{XV+2}, v{XV+3}
    v_cvt_pk_bf16_f32 v{X5}, v{X5}, v{X5+1}
    buffer_store_dwordx2 v[{XV}:{XV+1}], v{VPX}, {SRD}, s{S_PX} offen sc1
    s_mov_b64 exec, s[48:49]
    buffer_store_dword v{X5}, v{VPM}, {SRD}, s{S_PX} offen sc1
    s_mov_b64 exec, -1
    ''')
    st()
    a(f's_mov_b32 s53, s{S_FO}')
    a(f's_cmp_ge_u32 s{S_STEP}, 62')
    a('s_cselect_b64 s[50:51], 0, s[50:51]')
    a('s_cmp_eq_u64 s[50:51], 0')
    a.opt_begin('s_cbranch_scc0')
    signal(a, S_FO, VZ, VONE)
    a.opt_end()
    st()
    st.flush(6 << 20, TMP, TMP + 1)
    a(f'''
    s_mov_b64 vcc, s[50:51]
    v_xor_b32 v{VFB}, {XBUF}, v{VFB}
    v_add_u32 v{VHB}, s52, v{VHB}
    v_add_u32 v{VHB3}, s52, v{VHB3}
    s_sub_u32 s52, 0, s52
    s_add_u32 s{S_MX}, s{S_MX}, {2*L.MEM_SZ}
    s_add_u32 s{S_PX}, s{S_PX}, {2*L.PX_SZ}
    s_add_u32 s{S_FO}, s{S_FO}, 1024
    s_add_u32 s{S_STEP}, s{S_STEP}, 2
    s_cmp_lt_u32 s{S_STEP}, 64
    s_cbranch_scc1 {loop}
    s_endpgm
    ''')
```

```python
import sys
from common import *
import mega
NAME = 'interleave_layers__memory_aug_recurrent_mem_tr__swiglu_ffn__prompt'
def build(**kw):
    ref = open(f'cdna_kernels/{NAME}.s.ref').read().split('\n')
    hdr = [l for l in ref if l.startswith(';') and '@launch' not in l and 'Override' not in l and 'grid=ceil' not in l]
    hdr = hdr[:15]
    out = '\n'.join(hdr) + '\n'
    out += '; @launch grid=(256,1,1) block=(256,1,1) lds=163840\n'
    out += '.amdgcn_target "amdgcn-amd-amdhsa--gfx950"\n'
    out += mega.mega(NAME + '_kernel', **kw)
    return out
if __name__ == '__main__':
    open(f'cdna_kernels/{NAME}.s', 'w').write(build())
    open('full_st.s', 'w').write(build(stamps=True))
```

```python
from common import *
import prep2

def poll2(a, mk, bases, nreg, tmp, consume, gap=2, spec=None):
    lab = a.newlabel('PP'); n = len(mk(bases[0]))
    a('s_waitcnt vmcnt(0)')
    for l in mk(bases[0]): a(l)
    a(f's_sleep {gap}')
    a.label(lab)
    for l in mk(bases[1]): a(l)
    a(f's_waitcnt vmcnt({n})')
    if spec: spec(bases[0])
    check(a, range(bases[0], bases[0] + nreg), tmp)
    a.br(f's_cbranch_vccz {lab}_d0')
    for l in mk(bases[0]): a(l)
    a(f's_sub_u32 s{S_ABORT}, s{S_ABORT}, 1')
    a(f's_cbranch_scc1 {lab}_abort')
    a(f's_waitcnt vmcnt({n})')
    if spec: spec(bases[1])
    check(a, range(bases[1], bases[1] + nreg), tmp)
    a.br(f's_cbranch_vccnz {lab}')
    a.label(lab + '_d1')
    consume(bases[1])
    a.br(f's_branch {lab}_j')
    h = list(a.hist)
    a.label(lab + '_d0'); a.hist = []
    consume(bases[0])
    a.label(lab + '_j')
    a.deferred.append(f'{lab}_abort:\n    s_mov_b32 s{S_ABORT}, 0\n    s_waitcnt vmcnt(0)\n    s_branch {lab}_d1\n')


def prog_gate(a, vreg, vz, s_prog, s_need):
    lab = a.newlabel('PG')
    a.label(lab)
    a(f'v_readfirstlane_b32 s{S_T0}, v{vreg}')
    a(f's_cmp_gt_u32 s{S_T0}, s{s_need}')
    a(f's_cbranch_scc0 {lab}_slow')
    a.label(lab + '_ok')
    a.deferred.append(f"""{lab}_slow:
    buffer_load_dword v{vreg}, v{vz}, {SRD}, s{s_prog} offen sc1
    s_sub_u32 s{S_ABORT}, s{S_ABORT}, 1
    s_cbranch_scc1 {lab}_ab
    s_waitcnt vmcnt(0)
    s_branch {lab}
{lab}_ab:
    s_mov_b32 s{S_ABORT}, 0
    s_waitcnt vmcnt(0)
    s_branch {lab}_ok
""")

def load_weights(a, groups, voff, soff):
    for g, r in enumerate(groups):
        for p in range(2):
            o = (g * 2048 + p * 1024) % 4096
            a(f'buffer_load_dwordx4 {R(r + 4 * p, 4)}, v{voff}, {SRD}, s{soff} offen offset:{o}')
        if g % 2 == 1: a(f's_add_u32 s{soff}, s{soff}, 4096')

def gather_mem_setup(a, v_g0):
    a(f'''
    s_lshl_b32 s{S_T0}, s{S_W}, 10
    s_cmp_eq_u32 s{S_W}, 3
    s_cselect_b32 s33, 3, 4
    s_lshl_b32 s33, s33, 10
    v_lshlrev_b32 v{v_g0}, 4, v{V_LANE}
    v_add_u32 v{v_g0}, s{S_T0}, v{v_g0}
    ''')

def gather_mem(a, st, G, VG0, S_MEM, TMP, LDS_MEM, VPROG):
    a(f's_add_u32 s34, s{S_MEM}, s33')
    st()
    poll(a, [f'buffer_load_dword v{VPROG}, off, {SRD}, s35 sc1',
             f'buffer_load_dwordx4 v[{G}:{G+3}], v{VG0}, {SRD}, s{S_MEM} offen sc1',
             f'buffer_load_dwordx4 v[{G+4}:{G+7}], v{VG0}, {SRD}, s34 offen sc1'], range(G, G + 8), TMP)
    st()
    a(f'''
    ds_write_b128 v{VG0}, v[{G}:{G+3}] offset:{LDS_MEM}
    ds_write_b128 v{VG0}, v[{G+4}:{G+7}] offset:{LDS_MEM+4096}
    s_waitcnt lgkmcnt(0)
    s_barrier
    ''')

def gather_mem2(a, st, G0, G1, VG0, S_MEM, TMP, LDS_MEM, extra=()):
    a(f's_add_u32 s34, s{S_MEM}, s33')
    a('s_waitcnt vmcnt(0)')
    st()
    mk = lambda G: [f'buffer_load_dwordx4 v[{G}:{G+3}], v{VG0}, {SRD}, s{S_MEM} offen sc1',
                    f'buffer_load_dwordx4 v[{G+4}:{G+7}], v{VG0}, {SRD}, s34 offen sc1']
    def raw(G):
        a(f'ds_write_b128 v{VG0}, v[{G}:{G+3}] offset:{LDS_MEM}')
        a(f'ds_write_b128 v{VG0}, v[{G+4}:{G+7}] offset:{LDS_MEM+4096}')
    def cons(G):
        if not OPT('SPEC', 1): raw(G)
        a('s_waitcnt lgkmcnt(0)')
        a('s_barrier')
        for x in extra: a(x)
        a(f'ds_write2_b32 v63, v{G}, v{G+1} offset0:0 offset1:2')
        a(f'ds_write2_b32 v63, v{G+2}, v{G+3} offset0:32 offset1:34')
        a(f'v_add_u32 v{TMP}, 4096, v63')
        a(f'ds_write2_b32 v{TMP}, v{G+4}, v{G+5} offset0:0 offset1:2')
        a(f'ds_write2_b32 v{TMP}, v{G+6}, v{G+7} offset0:32 offset1:34')
    poll2(a, mk, [G0, G1], 8, TMP, cons, gap=OPT('GAPA', 3), spec=raw if OPT('SPEC', 1) else None)
    st()

def gtile(n): return 4 * n if n < 4 else 16 + 3 * (n - 4) - 1

def chain_A(a, stamps=False):
    lane = f'v{V_LANE}'
    LDS_MEM, LDS_TI, LDS_PG, LDS_NI = 0, 8192, 16384, 20480
    S_MEM, S_PB, S_XN, S_TU, S_TX = 21, 22, 23, 24, 25
    MEMF, ACC, G0, G1 = 0, 28, 40, 48
    VG0, VIDX, VMF, VTW, VPGA, TMP, VPGV = 56, 57, 58, 59, 60, 61, 62
    w0 = a.newlabel('CA_W0')
    def common_setup(WG, ntile):
        a(f'''
        s_mul_i32 s{S_T2}, s{S_ROLE}, 401408
        s_mul_i32 s{S_T0}, s{S_W}, 14336
        s_add_u32 s26, s{S_T2}, s{S_T0}
        s_add_u32 s26, s26, {L.WA}
        v_lshlrev_b32 v{TMP}, 4, {lane}
        ''')
        a(f'''
        v_min_u32 v{VG0}, 13, {lane}
        v_lshlrev_b32 v{VG0}, 2, v{VG0}
        s_lshl_b32 s{S_T1}, s{S_ROLE}, 7
        v_add_u32 v{VG0}, s{S_T1}, v{VG0}
        ''')
        prep2.prog_load(a, [[(f's_add_u32 s{S_T3}, s26, {gtile(n)*14336+2048*j}\n' if p == 0 else '') + f'buffer_load_dwordx4 {R(WG[7*n+j]+4*p, 4)}, v{TMP}, {SRD}, s{S_T3} offen offset:{1024*p} sc1'
                             for n in range(ntile) for p in range(2)] for j in range(7)], VG0, VIDX)
        gather_mem_setup(a, VG0)
        q, c, t = 2, 3, 4
        a(f'''
        v_lshrrev_b32 v{q}, 4, {lane}
        v_and_b32 v{c}, 15, {lane}
        v_and_b32 v{VIDX}, 2, {lane}
        v_cmp_eq_u32 vcc, 2, v{VIDX}
        v_mov_b32 v{VIDX}, 0x44444444
        v_mov_b32 v{VMF}, 0xeeeeeeee
        v_cndmask_b32 v{VIDX}, v{VIDX}, v{VMF}, vcc
        v_and_b32 v{VMF}, 2, {lane}
        v_lshlrev_b32 v{VMF}, 6, v{VMF}
        v_lshl_add_u32 v{VMF}, v{q}, 8, v{VMF}
        v_bfe_u32 v{t}, {lane}, 2, 2
        v_lshl_add_u32 v{VMF}, v{t}, 5, v{VMF}
        v_lshlrev_b32 v{VTW}, 6, v{t}
        v_and_b32 v{t}, 1, {lane}
        v_lshl_add_u32 v{VMF}, v{t}, 4, v{VMF}
        v_lshl_add_u32 v{VTW}, v{t}, 5, v{VTW}
        v_lshl_add_u32 v{VTW}, v{q}, 3, v{VTW}
        v_bfe_u32 v{t}, {lane}, 1, 1
        v_lshl_add_u32 v{VTW}, v{t}, 2, v{VTW}
        s_lshl_b32 s{S_T0}, s{S_W}, 8
        s_add_u32 s{S_T0}, s{S_T0}, {LDS_TI}
        v_add_u32 v{VTW}, s{S_T0}, v{VTW}
        v_bfe_u32 v63, v{VG0}, 7, 1
        v_mul_u32_u24 v63, 124, v63
        v_sub_u32 v63, v{VG0}, v63
        v_add_u32 v63, {LDS_NI}, v63
        s_lshl_b32 s{S_T0}, s{S_W}, 8
        s_add_u32 s{S_T0}, s{S_T0}, {LDS_PG}
        v_lshl_add_u32 v{VPGA}, {lane}, 2, s{S_T0}
        v_mov_b32 v{VPGV}, 0
        ds_write_b32 v{VPGA}, v{VPGV}
        s_mul_i32 s30, s{S_LAYER}, {4*L.MEM_SZ}
        s_add_u32 s30, s30, {L.MEML}
        s_mov_b32 s{S_STEP}, 0
        ''')
    def acc(n): return ACC + 4 * (n % 3)
    def zero(r): return [f'v_mov_b64 v[{r+i}:{r+i+1}], 0' for i in (0, 2)]
    def post(n, pk=False):
        c = acc(n)
        if pk: return [f'v_pk_add_f32 v[{c}:{c+1}], v[{c}:{c+1}], v[{c+2}:{c+3}]', f'v_cvt_pk_bf16_f32 v{c}, v{c}, v{c+1}',
                f'ds_write_b32 v{VTW}, v{c} offset:{256*gtile(n)}']
        return [f'v_add_f32 v{c}, v{c}, v{c+2}', f'v_add_f32 v{c+1}, v{c+1}, v{c+3}', f'v_cvt_pk_bf16_f32 v{c}, v{c}, v{c+1}',
                f'ds_write_b32 v{VTW}, v{c} offset:{256*gtile(n)}']
    BAR = 's_waitcnt lgkmcnt(0)\ns_barrier'
    def step_head(st, extra_loads=()):
        a(f'''
        s_and_b32 s{S_T0}, s{S_STEP}, 3
        s_mul_i32 s{S_T1}, s{S_T0}, {L.MEM_SZ}
        s_add_u32 s{S_MEM}, s{S_T1}, s30
        ''')
        for n in range(3):
            for s_ in zero(acc(n)): a(s_)
        gather_mem2(a, st, G0, G1, VG0, S_MEM, TMP, LDS_MEM, [f'ds_read_b128 v[{MEMF+4*ks}:{MEMF+4*ks+3}], v{VMF} offset:{LDS_MEM+1024*ks}' for ks in range(7)])
        for x in extra_loads: a(x)
    def tsm(WG, n, ks):
        c = acc(n)
        return f'v_smfmac_f32_16x16x64_bf16 v[{c}:{c+3}], v[{MEMF+4*ks}:{MEMF+4*ks+3}], {R(WG[7*n+ks],8)}, v{VIDX}'
    def t_phase(WG, ntile, extra=None):
        for ks in range(7):
            a(f's_waitcnt lgkmcnt({10-ks})' if not stamps or LIGHT or ks == 0 else 's_waitcnt lgkmcnt(0)')
            a(tsm(WG, 0, ks)); a(tsm(WG, 1, ks))
        PG = [f'v_add_u32 v{VPGV}, 1, v{VPGV}', f'ds_write_b32 v{VPGA}, v{VPGV}'] if ntile == 8 else []
        NOP = ['s_nop 0']
        for n in range(2, ntile):
            if n == 2:
                p0, p1, z = post(0), post(1), zero(acc(3))
                side = {0: ['s_nop 1'] + PG[:1], 1: ['s_nop 1'] + p0[:1], 2: p0[1:2], 3: p0[2:], 4: z[:1] + p1[:1], 5: z[1:] + p1[1:2], 6: p1[2:]}
            else:
                z = zero(acc(n + 1)) if n + 1 < ntile else NOP * 2
                sig = n in (3, 4, 6, 7); p = post(n - 1)
                side = {0: NOP + z[:1], 1: NOP + z[1:], 2: NOP + p[:1], 3: p[1:2], 4: p[2:] + (PG[1:] if sig else []), 5: PG[:1] if sig else []}
            for ks in range(7):
                a(tsm(WG, n, ks))
                for s_ in side.get(ks, []): a(s_)
                if extra: extra(n, ks)
    a(f's_cmp_eq_u32 s{S_W}, 0')
    a(f's_cbranch_scc1 {w0}')
    WG = [256 + 8 * g for g in range(32)] + [64 + 8 * g for g in range(24)]
    common_setup(WG, 8)
    st = Stamps(a, stamps and not LIGHT)
    loop = a.newlabel('CA_LOOP')
    a.flush(); a.label(loop)
    step_head(st)
    t_phase(WG, 8)
    for s_ in post(7, True): a(s_)
    a(f'ds_write_b32 v{VPGA}, v{VPGV}')
    st()
    st.flush(0, G0, G0 + 1)
    if OPT('BARA', 1): a('s_barrier')
    if OPT('SLA', 8): a(f's_sleep {OPT("SLA", 8)}')
    a(f'''
    s_add_u32 s{S_STEP}, s{S_STEP}, 1
    s_cmp_lt_u32 s{S_STEP}, 63
    s_cbranch_scc1 {loop}
    s_endpgm
    ''')
    a.label(w0)
    WG0 = [256 + 8 * g for g in range(28)]
    XF = lambda g, jt: 144 + 16 * g + 8 * jt
    TB = lambda g: 64 + 4 * (g % 4)
    MH = lambda g: 80 + 8 * (g % 4)
    SA = lambda jt: 112 + 4 * jt
    VTR, VMH, VXA, VP0, VPM, VPROG, VZ, VTX = 124, 125, 126, 127, 128, 129, 130, 131
    M, T2, PGR = 132, 134, 136
    common_setup(WG0, 4)
    q, c, t = 2, 3, 4
    a(f'''
    v_min_u32 v{VPGA}, 2, {lane}
    v_mul_u32_u24 v{VPGA}, 260, v{VPGA}
    v_add_u32 v{VPGA}, {LDS_PG + 256}, v{VPGA}
    v_lshlrev_b32 v{VTR}, 8, v{q}
    v_lshl_add_u32 v{VTR}, v{c}, 3, v{VTR}
    v_add_u32 v{VTR}, {LDS_TI}, v{VTR}
    v_and_b32 v{t}, 7, {lane}
    v_lshlrev_b32 v{VMH}, 7, v{q}
    v_lshl_add_u32 v{VMH}, v{t}, 4, v{VMH}
    v_lshlrev_b32 v{VXA}, 9, v{q}
    v_lshl_add_u32 v{VXA}, v{c}, 4, v{VXA}
    s_lshr_b32 s{S_T0}, s{S_ROLE}, 2
    s_mul_i32 s{S_T0}, s{S_T0}, 2560
    s_bfe_u32 s{S_T1}, s{S_ROLE}, 0x10001
    s_and_b32 s{S_T2}, s{S_ROLE}, 1
    v_bfe_u32 v{VP0}, {lane}, 3, 1
    v_lshlrev_b32 v{VP0}, 8, v{VP0}
    v_lshl_add_u32 v{VP0}, v{q}, 6, v{VP0}
    v_bfe_u32 v{t}, {lane}, 2, 1
    v_lshl_add_u32 v{VP0}, v{t}, 5, v{VP0}
    v_and_b32 v{t}, 3, {lane}
    v_lshl_add_u32 v{VP0}, v{t}, 2, v{VP0}
    v_bfe_u32 v{t}, {lane}, 1, 2
    s_lshl_b32 s{S_T3}, s{S_T1}, 10
    s_add_u32 s{S_T3}, s{S_T3}, s{S_T0}
    s_lshl_b32 s27, s{S_T2}, 9
    s_add_u32 s{S_T3}, s{S_T3}, s27
    v_add_u32 v{VP0}, s{S_T3}, v{VP0}
    v_lshlrev_b32 v{VPM}, 7, v{t}
    v_lshl_add_u32 v{VPM}, v{q}, 5, v{VPM}
    v_bfe_u32 v{t}, {lane}, 3, 1
    v_lshl_add_u32 v{VPM}, v{t}, 3, v{VPM}
    s_lshl_b32 s{S_T3}, s{S_T2}, 4
    s_lshl_b32 s27, s{S_T1}, 2
    s_add_u32 s{S_T3}, s{S_T3}, s27
    s_add_u32 s{S_T3}, s{S_T3}, s{S_T0}
    s_add_u32 s{S_T3}, s{S_T3}, 2048
    v_add_u32 v{VPM}, s{S_T3}, v{VPM}
    s_mul_i32 s31, s{S_LAYER}, {4*L.PB_SZ}
    s_add_u32 s31, s31, {L.PB}
    s_mul_i32 s{S_XN}, s{S_LAYER}, {64*L.XN_SZ}
    s_add_u32 s{S_XN}, s{S_XN}, {L.XN}
    v_min_u32 v{VTX}, 13, {lane}
    v_lshlrev_b32 v{VTX}, 7, v{VTX}
    s_mul_i32 s{S_TX}, s{S_ROLE}, 1792
    s_add_u32 s{S_TX}, s{S_TX}, s{S_XN}
    s_add_u32 s{S_TX}, s{S_TX}, {2*L.XN_SZ}
    s_mov_b32 s28, 0xff00ff00
    s_mov_b32 s29, 0xff00ff00
    s_mov_b32 s36, 0x55555555
    s_mov_b32 s37, 0x55555555
    s_lshl_b32 s35, s{S_LAYER}, 15
    s_add_u32 s35, s35, {L.flag(L.FL_PROG) + 128}
    v_mov_b32 v{VPROG}, 0
    v_mov_b32 v{VZ}, 0
    ''')
    def xld(g):
        out = []
        for jt in range(2):
            for p in range(2):
                r = XF(g, jt) + 4 * p
                out.append(f'buffer_load_dwordx4 v[{r}:{r+3}], v{VXA}, {SRD}, s{S_XN} offen offset:{2048*p+256*jt} sc1')
        out[-1] += f'\ns_add_u32 s{S_XN}, s{S_XN}, 4096'
        return out
    prog_gate(a, VPROG, VZ, 35, S_STEP)
    for g in range(7):
        for s_ in xld(g): a(s_)
    def body(st_flag):
        st = Stamps(a, stamps)
        loop = a.newlabel('CA0_LOOP')
        a.flush(); a.label(loop); a.lg = []; a.vm = []
        a(f'''
        s_and_b32 s{S_T0}, s{S_STEP}, 3
        s_mul_i32 s{S_T1}, s{S_T0}, {L.PB_SZ}
        s_add_u32 s{S_PB}, s{S_T1}, s31
        s_add_u32 s{S_T0}, s{S_STEP}, 3
        s_and_b32 s{S_T0}, s{S_T0}, 3
        s_mul_i32 s{S_T1}, s{S_T0}, {L.PB_SZ}
        s_add_u32 s32, s{S_T1}, s31
        ''')
        for jt in range(3):
            for s_ in zero(SA(jt)): a(s_)
        step_head(st, [f'buffer_load_dword v{VPROG}, off, {SRD}, s35 sc1'])
        a(f's_add_u32 s{S_STEP}, s{S_STEP}, 1')
        def mh(g): return [f'ds_read_b128 v[{MH(g)+4*p}:{MH(g)+4*p+3}], v{VMH} offset:{LDS_NI+1024*g+512*p}' for p in range(2)]
        def tr(g): return [f'ds_read_b64_tr_b16 v[{TB(g)+2*p}:{TB(g)+2*p+1}], v{VTR} offset:{1024*g+128*p}' for p in range(2)] + (mh(g) if g < 4 else [])
        def ssm(g):
            return [f'v_smfmac_f32_16x16x64_bf16 v[{SA(jt)}:{SA(jt)+3}], v[{TB(g)}:{TB(g)+3}], v[{(MH(g) if jt == 2 else XF(g, jt))}:{(MH(g) if jt == 2 else XF(g, jt))+7}], v{VIDX}' for jt in range(3)]
        pre = mh(0) + mh(1) + mh(2) + mh(3)
        def issue(gs, first=True):
            if first: a(f'v_add_u32 v{VPGV}, 1, v{VPGV}')
            a(f'ds_read_b32 v{PGR}, v{VPGA}', tag='pg')
            for g in gs:
                for s_ in tr(g): a(s_, tag=('tr', g))
        def chk(gs):
            lab = a.newlabel('CA_PW')
            a.wait_lg('pg')
            a(f'v_cmp_lt_u32 vcc, v{PGR}, v{VPGV}')
            a.br(f's_cbranch_vccnz {lab}')
            a.label(lab + '_ok')
            d = f'{lab}:\n    ds_read_b32 v{PGR}, v{VPGA}\n' + ''.join(f'    {x}\n' for g in gs for x in tr(g))
            d += f'    s_waitcnt lgkmcnt({2*len(gs)})\n    v_cmp_lt_u32 vcc, v{PGR}, v{VPGV}\n    s_cbranch_vccnz {lab}\n    s_branch {lab}_ok\n'
            a.deferred.append(d)
        def extra(n, ks):
            if (n, ks) == (3, 2):
                a(f's_waitcnt vmcnt(0)\nv_readfirstlane_b32 s{S_T0}, v{VPROG}')
            if (n, ks) == (3, 5):
                a(f's_cmp_gt_u32 s{S_T0}, s{S_STEP}\ns_cselect_b32 s38, 1, 0')
            if (n, ks) == (3, 6): issue((0, 1, 2))
        t_phase(WG0, 4, extra)
        def optx(g):
            a('s_cmp_eq_u32 s38, 1')
            a.opt_begin('s_cbranch_scc0')
            for s_ in xld(g): a(s_)
            a.opt_end()
        def run(g, side=()):
            a.wait_lg(('tr', g))
            side = list(side)
            for s_ in ssm(g):
                a(s_)
                if side: a(side.pop(0))
        for s_ in post(3, True)[:2]: a(s_)
        chk((0, 1, 2))
        run(0); run(1)
        a.wait_lg(('tr', 2))
        a(post(3, True)[2])
        issue((3,))
        run(2)
        chk((3,))
        run(3)
        for s_ in mh(4) + mh(5) + mh(6): a(s_)
        optx(0)
        issue((4,)); optx(1); chk((4,)); run(4)
        issue((5,)); optx(2); chk((5,))
        a.wait_lg(('tr', 5))
        issue((6,)); run(5); chk((6,)); run(6)
        st()
        E, O, K = SA(0), SA(1), SA(2)
        for r in (E, O, K): a(f'v_pk_add_f32 v[{r}:{r+1}], v[{r}:{r+1}], v[{r+2}:{r+3}]')
        for b in range(2): a(f'v_max3_f32 v{M+b}, v{E+b}, v{O+b}, v{K+b}')
        def red(op):
            for r in (8, 4, 2, 1):
                for b in range(2): a(f'{op}_dpp v{M+b}, v{M+b}, v{M+b} row_ror:{r} row_mask:0xf bank_mask:0xf')
        red('v_max_f32')
        for r in (E, O, K): a(f'v_pk_add_f32 v[{r}:{r+1}], v[{r}:{r+1}], v[{M}:{M+1}] neg_lo:[0,1] neg_hi:[0,1]')
        for r in (E, O, K):
            for b in range(2): a(f'v_exp_f32 v{r+b}, v{r+b}')
        a(f'v_pk_add_f32 v[{M}:{M+1}], v[{E}:{E+1}], v[{O}:{O+1}]')
        a(f'v_pk_fma_f32 v[{M}:{M+1}], v[{K}:{K+1}], 0.5, v[{M}:{M+1}] op_sel_hi:[1,0,1]')
        red('v_add_f32')
        a(f'''
        v_rcp_f32 v{M}, v{M}
        v_rcp_f32 v{M+1}, v{M+1}
        v_pk_mul_f32 v[{K}:{K+1}], v[{K}:{K+1}], v[{M}:{M+1}]
        v_pk_mul_f32 v[{E}:{E+1}], v[{E}:{E+1}], v[{M}:{M+1}]
        v_cndmask_b32 v{K}, v{K}, v{K+1}, s[28:29]
        v_pk_mul_f32 v[{O}:{O+1}], v[{O}:{O+1}], v[{M}:{M+1}]
        v_cvt_pk_bf16_f32 v{E}, v{E}, v{O}
        v_mov_b32_dpp v{K+1}, v{K} quad_perm:[1,0,3,2] row_mask:0xf bank_mask:0xf
        v_min_u32 v{E}, -2, v{E}
        buffer_store_dword v{E}, v{VP0}, {SRD}, s{S_PB} offen {st_flag}
        v_cvt_pk_bf16_f32 v{E+1}, v{E+1}, v{O+1}
        v_cvt_pk_bf16_f32 v{K}, v{K}, v{K+1}
        v_min_u32 v{E+1}, -2, v{E+1}
        buffer_store_dword v{E+1}, v{VP0}, {SRD}, s{S_PB} offen offset:16 {st_flag}
        v_min_u32 v{K}, -2, v{K}
        v_mov_b32 v{M}, -1
        s_mov_b64 exec, s[36:37]
        buffer_store_dword v{K}, v{VPM}, {SRD}, s{S_PB} offen {st_flag}
        buffer_store_dword v{M}, v{VPM}, {SRD}, s32 offen {st_flag}
        s_mov_b64 exec, -1
        buffer_store_dword v{M}, v{VP0}, {SRD}, s32 offen {st_flag}
        buffer_store_dword v{M}, v{VP0}, {SRD}, s32 offen offset:16 {st_flag}
        ''')
        if OPT('BARA', 1): a('s_barrier')
        st(True)
        if stamps: a(f's_sub_u32 s{S_STEP}, s{S_STEP}, 1')
        st.flush(0, G0, G0 + 1)
        if stamps: a(f's_add_u32 s{S_STEP}, s{S_STEP}, 1')
        late = a.newlabel('CA0_LATE')
        a(f'''
        s_cmp_ge_u32 s{S_STEP}, 63
        s_cbranch_scc1 {loop}_end
        s_cmp_eq_u32 s38, 1
        s_cbranch_scc1 {late}
        ''')
        prog_gate(a, VPROG, VZ, 35, S_STEP)
        for g in range(3):
            for s_ in xld(g): a(s_)
        a.label(late)
        for g in (3, 4, 5, 6):
            for s_ in xld(g): a(s_)
        a(f'v_readfirstlane_b32 s{S_T0}, v{VPROG}')
        a(f's_add_u32 s{S_T1}, s{S_STEP}, {1 if not OPT("NOXT") else 100}')
        a(f's_cmp_gt_u32 s{S_T0}, s{S_T1}')
        a.opt_begin('s_cbranch_scc0')
        a(f'buffer_load_dword v{T2}, v{VTX}, {SRD}, s{S_TX} offen sc1')
        a.opt_end()
        a(f's_add_u32 s{S_TX}, s{S_TX}, {L.XN_SZ}')
        a(f's_branch {loop}')
        a.label(loop + '_end')
        a('s_endpgm')
    mode_split(a, body, TMP)

OPT_UXS = (1, 3, 5, 7) if OPT('UX4') else (1, 5)
def chain_B(a, stamps=False, st_flag=''):
    st = Stamps(a, stamps and not LIGHT)
    regs = [256 + 8 * g for g in range(32)] + [128 + 8 * g for g in range(16)]
    WG = {}
    n = 0
    for tl in range(8):
        for ks in range(6):
            WG[(tl, ks)] = regs[n]; n += 1
    ACC = 4
    UXF = 36
    MEMF = 68
    PF = MEMF
    W6 = 96
    UMF = 112
    G = W6
    FACC = ACC
    VG0, VW6, VIDX, VMF, VL16, VUX, VRW, VMST = 120, 121, 122, 123, 124, 125, 126, 127
    TMP, TMP2 = 2, 3
    VRR, VL8 = 0, 1
    LDS_MEM, LDS_RED, LDS_W = 0, 8192, 12288
    S_MEM, S_PB, S_UX, S_UM, S_MX = 21, 22, 23, 24, 25
    lane = f'v{V_LANE}'
    a(f'''
    s_lshl_b32 s{S_T0}, s{S_ROLE}, 2
    s_add_u32 s{S_T0}, s{S_T0}, s{S_W}
    s_mul_i32 s{S_T0}, s{S_W}, 56
    s_add_u32 s{S_T0}, s{S_T0}, s{S_ROLE}
    s_mul_i32 s{S_T0}, s{S_T0}, 28672
    s_add_u32 s{S_T2}, s{S_T0}, {L.WB}
    v_lshrrev_b32 v{VMF}, 4, {lane}
    v_lshlrev_b32 v{VMF}, 9, v{VMF}
    v_and_b32 v{VIDX}, 15, {lane}
    v_lshl_add_u32 v{VMF}, v{VIDX}, 4, v{VMF}
    v_lshlrev_b32 v{VL16}, 4, {lane}
    s_lshl_b32 s{S_T3}, s{S_W}, 14
    s_add_u32 s{S_T3}, s{S_T3}, {LDS_W}
    ''')
    a(f'''
    v_and_b32 v{VG0}, 3, {lane}
    v_lshlrev_b32 v{VG0}, 7, v{VG0}
    s_lshl_b32 s{S_T0}, s{S_W}, 9
    s_lshl_b32 s{S_T1}, s{S_ROLE}, 2
    s_add_u32 s{S_T0}, s{S_T0}, s{S_T1}
    s_add_u32 s{S_T0}, s{S_T0}, {7*2048}
    v_add_u32 v{VG0}, s{S_T0}, v{VG0}
    ''')
    def wl(tl, ks, p):
        base = 401408 * (tl >> 1) + 256 * (tl & 1) + 4096 * ks
        if ks < 6: return (f's_add_u32 s26, s{S_T2}, {base}\n' if p == 0 else '') + f'buffer_load_dwordx4 {R(WG[(tl,ks)] + 4 * p, 4)}, v{VMF}, {SRD}, s26 offen offset:{2048*p} sc1'
        return f's_add_u32 s26, s{S_T2}, {base + 2048*p}\ns_add_u32 m0, s{S_T3}, {2048*tl+1024*p}\nbuffer_load_dwordx4 v{VMF}, {SRD}, s26 offen sc1 lds'
    prep2.prog_load(a, [[wl(tl, j, p) for tl in range(8) for p in range(2)] for j in range(7)], VG0, TMP)
    gather_mem_setup(a, VG0)
    a(f'''
    v_lshrrev_b32 v{TMP}, 4, {lane}
    v_and_b32 v{TMP2}, 15, {lane}
    v_and_b32 v{VIDX}, 2, {lane}
    v_cmp_eq_u32 vcc, 2, v{VIDX}
    v_mov_b32 v{VIDX}, 0x44444444
    v_mov_b32 v{VMF}, 0xeeeeeeee
    v_cndmask_b32 v{VIDX}, v{VIDX}, v{VMF}, vcc
    v_and_b32 v{VMF}, 2, {lane}
    v_lshlrev_b32 v{VMF}, 6, v{VMF}
    v_lshl_add_u32 v{VMF}, v{TMP}, 8, v{VMF}
    v_bfe_u32 v{VUX}, {lane}, 2, 2
    v_lshl_add_u32 v{VMF}, v{VUX}, 5, v{VMF}
    v_and_b32 v{VUX}, 1, {lane}
    v_lshl_add_u32 v{VMF}, v{VUX}, 4, v{VMF}
    s_mul_i32 s{S_T0}, s{S_W}, {4*28672}
    s_lshl_b32 s{S_T1}, s{S_ROLE}, 11
    s_add_u32 s{S_T0}, s{S_T0}, s{S_T1}
    v_lshlrev_b32 v{VUX}, 4, v{TMP2}
    v_lshl_add_u32 v{VUX}, v{TMP}, 9, v{VUX}
    v_add_u32 v{VUX}, s{S_T0}, v{VUX}
    s_lshr_b32 s{S_T0}, s{S_W}, 1
    s_lshl_b32 s{S_T0}, s{S_T0}, 10
    s_and_b32 s{S_T1}, s{S_W}, 1
    s_lshl_b32 s{S_T1}, s{S_T1}, 3
    s_add_u32 s{S_T0}, s{S_T0}, s{S_T1}
    s_add_u32 s{S_T0}, s{S_T0}, {LDS_RED}
    v_add_u32 v{VRW}, s{S_T0}, v{VL16}
    v_lshrrev_b32 v{VMST}, 3, v{TMP2}
    v_lshlrev_b32 v{VMST}, 8, v{VMST}
    v_lshl_add_u32 v{VMST}, v{TMP}, 5, v{VMST}
    v_and_b32 v{TMP2}, 1, {lane}
    v_lshl_add_u32 v{VMST}, v{TMP2}, 7, v{VMST}
    v_bfe_u32 v{TMP2}, {lane}, 1, 2
    v_lshl_add_u32 v{VMST}, v{TMP2}, 2, v{VMST}
    s_lshl_b32 s{S_T0}, s{S_ROLE}, 9
    s_lshl_b32 s{S_T1}, s{S_T1}, 1
    s_add_u32 s{S_T0}, s{S_T0}, s{S_T1}
    v_add_u32 v{VMST}, s{S_T0}, v{VMST}
    s_mul_i32 s{S_MX}, s{S_LAYER}, {64*L.MEM_SZ}
    s_add_u32 s{S_MX}, s{S_MX}, {L.MEMX}
    s_mul_i32 s30, s{S_LAYER}, {4*L.MEM_SZ}
    s_add_u32 s30, s30, {L.MEML}
    s_mul_i32 s31, s{S_LAYER}, {4*L.PB_SZ}
    s_mul_i32 s{S_T0}, s{S_W}, 2560
    s_add_u32 s31, s31, s{S_T0}
    s_add_u32 s31, s31, {L.PB}
    s_mul_i32 s{S_UX}, s{S_LAYER}, {64*L.UX_SZ}
    s_add_u32 s{S_UX}, s{S_UX}, {L.UX}
    s_mul_i32 s{S_UM}, s{S_LAYER}, {64*L.UM_SZ}
    s_lshl_b32 s{S_T0}, s{S_ROLE}, 2
    s_add_u32 s{S_T0}, s{S_T0}, s{S_W}
    s_lshl_b32 s{S_T0}, s{S_T0}, 11
    s_add_u32 s{S_UM}, s{S_UM}, s{S_T0}
    s_add_u32 s{S_UM}, s{S_UM}, {L.UM}
    s_lshl_b32 s26, s{S_W}, 14
    s_add_u32 s26, s26, {LDS_W}
    v_add_u32 v{VW6}, s26, v{VL16}
    s_and_b32 s27, s{S_W}, 1
    s_lshl_b32 s{S_T0}, s27, 7
    s_add_u32 s{S_T0}, s{S_T0}, {LDS_RED}
    v_bfe_u32 v{VRR}, {lane}, 2, 1
    v_lshlrev_b32 v{VRR}, 11, v{VRR}
    v_bfe_u32 v{TMP}, {lane}, 3, 2
    v_lshl_add_u32 v{VRR}, v{TMP}, 8, v{VRR}
    v_and_b32 v{TMP}, 3, {lane}
    v_lshl_add_u32 v{VRR}, v{TMP}, 5, v{VRR}
    v_lshrrev_b32 v{TMP}, 5, {lane}
    v_lshl_add_u32 v{VRR}, v{TMP}, 4, v{VRR}
    v_add_u32 v{VRR}, s{S_T0}, v{VRR}
    s_lshl_b32 s{S_T0}, s{S_ROLE}, 9
    s_lshl_b32 s27, s27, 8
    s_add_u32 s{S_T0}, s{S_T0}, s27
    v_lshl_add_u32 v{VMST}, {lane}, 2, s{S_T0}
    v_lshrrev_b32 v{VL8}, 1, v{VL16}
    s_lshl_b32 s35, s{S_LAYER}, 15
    s_lshl_b32 s36, s{S_ROLE}, 2
    s_add_u32 s36, s36, s{S_W}
    s_lshl_b32 s{S_T0}, s36, 7
    s_add_u32 s{S_MX}, s{S_MX}, s{S_T0}
    s_and_b32 s37, s{S_W}, 1
    s_mul_i32 s37, s37, 120
    s_sub_u32 s37, s{S_T0}, s37
    s_add_u32 s35, s35, {L.flag(L.FL_PROG)}
    s_mov_b32 s{S_STEP}, 0
    ''')
    def ux_list():
        out = []
        for hp in range(4):
            for ct in range(2):
                r = UXF + 16 * ct + 8 * (hp >> 1) + 4 * (hp & 1)
                l = f'buffer_load_dwordx4 v[{r}:{r+3}], v{VUX}, {SRD}, s{S_UX} offen offset:{256*ct} sc1'
                if ct == 1: l += f'\ns_add_u32 s{S_UX}, s{S_UX}, {28672 if hp < 3 else L.UX_SZ - 3 * 28672}'
                out.append(l)
        return out
    def um_stores():
        a(f'''
        buffer_store_dwordx4 v[{UMF}:{UMF+3}], v{VL16}, {SRD}, s{S_UM} offen sc1
        buffer_store_dwordx4 v[{UMF+4}:{UMF+7}], v{VL16}, {SRD}, s{S_UM} offen offset:1024 sc1
        s_add_u32 s{S_UM}, s{S_UM}, {L.UM_SZ}
        ''')
    def body(st_flag):
        loop = a.newlabel('CB_LOOP'); end = a.newlabel('CB_END'); skip = a.newlabel('CB_SKIP')
        a.flush(); a.label(loop)
        a(f'''
        s_and_b32 s{S_T0}, s{S_STEP}, 3
        s_mul_i32 s{S_T1}, s{S_T0}, {L.MEM_SZ}
        s_add_u32 s{S_MEM}, s{S_T1}, s30
        s_mul_i32 s{S_T1}, s{S_T0}, {L.PB_SZ}
        s_add_u32 s{S_PB}, s{S_T1}, s31
        s_add_u32 s{S_T0}, s{S_STEP}, 1
        s_and_b32 s{S_T0}, s{S_T0}, 3
        s_mul_i32 s{S_T1}, s{S_T0}, {L.MEM_SZ}
        s_add_u32 s28, s{S_T1}, s30
        s_add_u32 s{S_T0}, s{S_STEP}, 3
        s_and_b32 s{S_T0}, s{S_T0}, 3
        s_mul_i32 s{S_T1}, s{S_T0}, {L.MEM_SZ}
        s_add_u32 s29, s{S_T1}, s30
        ''')
        for i in range(0, 32, 2): a(f'v_mov_b64 v[{ACC+i}:{ACC+i+1}], 0')
        if OPT('SLB'): a(f's_sleep {OPT("SLB")}')
        if OPT('B2', 0):
            a(f's_add_u32 s34, s{S_MEM}, s33')
            st()
            mkm = lambda G_: [f'buffer_load_dwordx4 v[{G_}:{G_+3}], v{VG0}, {SRD}, s{S_MEM} offen sc1', f'buffer_load_dwordx4 v[{G_+4}:{G_+7}], v{VG0}, {SRD}, s34 offen sc1',
                              f'buffer_load_dword v{G_+8}, off, {SRD}, s35 sc1']
            def rawm(G_):
                a(f'ds_write_b128 v{VG0}, v[{G_}:{G_+3}] offset:{LDS_MEM}')
                a(f'ds_write_b128 v{VG0}, v[{G_+4}:{G_+7}] offset:{LDS_MEM+4096}')
            poll2(a, mkm, [UXF, UXF + 12], 8, TMP, lambda G_: a(f'v_mov_b32 v{TMP2}, v{G_+8}'), spec=rawm)
            st()
            a('s_waitcnt lgkmcnt(0)'); a('s_barrier')
        else: gather_mem(a, st, G, VG0, S_MEM, TMP, LDS_MEM, TMP2)
        for ks in range(7): a(f'ds_read_b128 v[{MEMF+4*ks}:{MEMF+4*ks+3}], v{VMF} offset:{LDS_MEM+1024*ks}')
        EX = UXF + 28
        a(f'''
        v_bfe_u32 v{TMP}, v{VL16}, 4, 3
        v_lshl_add_u32 v{TMP}, v{TMP}, 4, s37
        ds_read2_b32 v[{EX}:{EX+1}], v{TMP} offset0:0 offset1:32
        ds_read2_b32 v[{EX+2}:{EX+3}], v{TMP} offset0:1 offset1:33
        v_mov_b32 v{TMP}, 0
        ''')
        prog_gate(a, TMP2, TMP, 35, S_STEP)
        def exports():
            a(f'''
            s_mov_b64 exec, 0xff
            buffer_store_dwordx4 v[{EX}:{EX+3}], v{VL16}, {SRD}, s{S_MX} offen sc1
            s_mov_b64 exec, -1
            s_cmp_eq_u32 s{S_STEP}, 0
            ''')
            a.opt_begin('s_cbranch_scc1'); um_stores(); a.opt_end()
            a('s_cmp_lg_u32 s36, 0')
            a.opt_begin('s_cbranch_scc1')
            a(f'''
            s_add_u32 s{S_T0}, s{S_STEP}, 1
            v_mov_b32 v{TMP2}, s{S_T0}
            s_mov_b64 exec, 1
            buffer_store_dword v{TMP2}, off, {SRD}, s35 offset:384 {st_flag}
            s_mov_b64 exec, -1
            ''')
            a.opt_end()
        def w6read(tl):
            r = W6 + 8 * (tl % 2)
            return [f'ds_read_b128 v[{r}:{r+3}], v{VW6} offset:{2048*tl}', f'ds_read_b128 v[{r+4}:{r+7}], v{VW6} offset:{2048*tl+1024}']
        for s_ in w6read(0) + w6read(1): a(s_)
        def pack(tl):
            c = ACC + 4 * tl; hh, ct = tl >> 1, tl & 1
            return [f'v_pk_add_f32 v[{c}:{c+1}], v[{c}:{c+1}], v[{c+2}:{c+3}]', f'v_cvt_pk_bf16_f32 v{UMF+4*ct+hh}, v{c}, v{c+1}', f'v_min_u32 v{UMF+4*ct+hh}, -2, v{UMF+4*ct+hh}']
        uxl = ux_list()
        for ks in range(6):
            if ks < 2: a(f's_waitcnt lgkmcnt({12 if ks == 0 else 4})')
            for tl in range(8):
                c = ACC + 4 * tl
                a(f'v_smfmac_f32_16x16x64_bf16 v[{c}:{c+3}], v[{MEMF+4*ks}:{MEMF+4*ks+3}], {R(WG[(tl,ks)],8)}, v{VIDX}')
                if ks == 1 and tl == 0: exports()
                if tl in OPT_UXS and uxl and (ks, tl) != (1, 1): a(uxl.pop(0))
            if 1 <= ks <= 4:
                a('s_waitcnt lgkmcnt(0)')
                for j in range(2):
                    tl = [2, 3, 4, 5, 0, 1, 6, 7][2 * (ks - 1) + j] if False else 2 * (ks - 1) + j
                    c = ACC + 4 * tl; r = W6 + 8 * j
                    a(f'v_smfmac_f32_16x16x64_bf16 v[{c}:{c+3}], v[{MEMF+24}:{MEMF+27}], v[{r}:{r+7}], v{VIDX}')
                if ks < 4:
                    for s_ in w6read(2 * ks) + w6read(2 * ks + 1): a(s_)
        for tl in range(8):
            for s_ in pack(tl): a(s_)
        a(f'''
        s_cmp_eq_u32 s{S_STEP}, 63
        s_cbranch_scc1 {end}
        ''')
        for i in range(0, 8, 2): a(f'v_mov_b64 v[{FACC+i}:{FACC+i+1}], 0')
        if OPT('STV'): a('s_waitcnt vmcnt(0)')
        st()
        mk = lambda P: [f'buffer_load_dwordx4 v[{P}:{P+3}], v{VL16}, {SRD}, s{S_PB} offen sc1',
                 f'buffer_load_dwordx4 v[{P+4}:{P+7}], v{VL16}, {SRD}, s{S_PB} offen offset:1024 sc1',
                 f'buffer_load_dwordx2 v[{P+8}:{P+9}], v{VL8}, {SRD}, s{S_PB} offen offset:2048 sc1']
        def cons(PF):
            for m in range(2):
                for ct in range(2):
                    a(f'v_smfmac_f32_16x16x64_bf16 v[{FACC+4*ct}:{FACC+4*ct+3}], v[{PF+4*m}:{PF+4*m+3}], v[{UXF+16*ct+8*m}:{UXF+16*ct+8*m+7}], v{VIDX}')
            for ct in range(2):
                a(f'v_smfmac_f32_16x16x32_bf16 v[{FACC+4*ct}:{FACC+4*ct+3}], v[{PF+8}:{PF+9}], v[{UMF+4*ct}:{UMF+4*ct+3}], v{VIDX}')
        if OPT('SLP'): a(f's_sleep {OPT("SLP")}')
        poll2(a, mk, [PF, PF + 12], 10, TMP, cons, gap=OPT('GAPB', 3))
        st()
        T = ACC + 8
        a(f'''
        v_mov_b32 v{TMP}, -1
        s_cmp_ge_u32 s{S_W}, 2
        v_add_f32 v{T}, v{FACC}, v{FACC+2}
        v_add_f32 v{T+2}, v{FACC+1}, v{FACC+3}
        v_add_f32 v{T+1}, v{FACC+4}, v{FACC+6}
        v_add_f32 v{T+3}, v{FACC+5}, v{FACC+7}
        ds_write2st64_b64 v{VRW}, v[{T}:{T+1}], v[{T+2}:{T+3}] offset0:0 offset1:4
        s_waitcnt lgkmcnt(0)
        s_barrier
        s_cbranch_scc1 {skip}
        ds_read_b128 v[{T}:{T+3}], v{VRR}
        ds_read_b128 v[{T+4}:{T+7}], v{VRR} offset:1024
        s_waitcnt lgkmcnt(1)
        v_pk_add_f32 v[{T}:{T+1}], v[{T}:{T+1}], v[{T+2}:{T+3}]
        s_waitcnt lgkmcnt(0)
        v_pk_add_f32 v[{T+4}:{T+5}], v[{T+4}:{T+5}], v[{T+6}:{T+7}]
        v_pk_add_f32 v[{T}:{T+1}], v[{T}:{T+1}], v[{T+4}:{T+5}]
        v_cvt_pk_bf16_f32 v{T}, v{T}, v{T+1}
        v_min_u32 v{T}, -2, v{T}
        buffer_store_dword v{T}, v{VMST}, {SRD}, s28 offen {st_flag}
        buffer_store_dword v{TMP}, v{VMST}, {SRD}, s29 offen {st_flag}
        ''')
        a.label(skip)
        st()
        st.flush(2 << 20, TMP, TMP2)
        a(f'''
        s_add_u32 s{S_MX}, s{S_MX}, {L.MEM_SZ}
        s_add_u32 s{S_STEP}, s{S_STEP}, 1
        s_branch {loop}
        ''')
        a.label(end)
        um_stores()
        a('s_endpgm')
    mode_split(a, body, TMP)

def helper_prog(a, woff=0):
    a(f'''
    s_cmp_eq_u32 s{S_W}, 0
    s_cselect_b32 s{S_T0}, 59, 55
    s_cselect_b32 s{S_T1}, 0, {L.FLXN - L.FLU}
    v_min_u32 v2, s{S_T0}, v{V_LANE}
    v_lshrrev_b32 v3, 2, v2
    v_mul_u32_u24 v3, 12, v3
    v_add_lshl_u32 v2, v2, v3, 3
    v_mov_b32 v3, 0
    s_lshl_b32 s21, s{S_LAYER}, 15
    s_lshl_b32 s{S_T0}, s{S_W}, 7
    s_add_u32 s22, s21, s{S_T0}
    s_add_u32 s22, s22, {L.flag(L.FL_PROG) + woff}
    s_lshl_b32 s21, s21, 2
    s_add_u32 s21, s21, s{S_T1}
    s_add_u32 s21, s21, {L.FLU}
    s_mov_b32 s{S_STEP}, 0
    ''')
    def body(st_flag):
        loop = a.newlabel('HP')
        a.label(loop)
        wait_flags(a, 21, 2, 4, width=2, sleep=1)
        a(f'''
        s_add_u32 s{S_STEP}, s{S_STEP}, 1
        s_add_u32 s21, s21, 2048
        v_mov_b32 v6, s{S_STEP}
        s_mov_b64 exec, 1
        buffer_store_dword v6, v3, {SRD}, s22 offen {st_flag}
        s_mov_b64 exec, -1
        s_cmp_lt_u32 s{S_STEP}, 64
        s_cbranch_scc1 {loop}
        s_endpgm
        ''')
    mode_split(a, body, 4)

def helper_touch(a):
    loop = a.newlabel('WX')
    a(f'''
    v_min_u32 v2, 55, v{V_LANE}
    v_lshlrev_b32 v2, 7, v2
    v_and_b32 v3, 1, v{V_LANE}
    v_mul_u32_u24 v3, {L.MEM_SZ}, v3
    s_mul_i32 s22, s{S_LAYER}, {64*L.MEM_SZ}
    s_add_u32 s22, s22, {L.MEMX}
    s_lshl_b32 s23, s{S_LAYER}, 15
    s_add_u32 s23, s23, {L.flag(L.FL_PROG)}
    s_mul_i32 s{S_T2}, s{S_LAYER}, {64*L.UX_SZ}
    s_add_u32 s{S_T2}, s{S_T2}, {L.UX + L.UX_SZ + 57344}
    s_mov_b32 s{S_STEP}, 1
    ''')
    for i in range(5):
        a(f'''
        s_add_u32 s{S_T0}, s21, {4*i+12}
        s_min_u32 s{S_T0}, s{S_T0}, 31
        s_lshr_b32 s{S_T1}, s{S_T0}, 3
        s_mul_i32 s{S_T1}, s{S_T1}, 114688
        s_and_b32 s{S_T0}, s{S_T0}, 7
        s_mul_i32 s{S_T0}, s{S_T0}, 7168
        s_add_u32 s{S_T0}, s{S_T0}, s{S_T1}
        s_add_u32 s{26+i}, s{S_T0}, s{S_T2}
        ''')
    a.label(loop)
    a(f'''
    s_sleep 2
    buffer_load_dword v8, off, {SRD}, s23 offset:384 sc1
    buffer_load_dword v9, off, {SRD}, s23 sc1
    s_sub_u32 s{S_ABORT}, s{S_ABORT}, 1
    s_cbranch_scc1 {loop}_end
    s_waitcnt vmcnt(0)
    v_readfirstlane_b32 s24, v9
    v_readfirstlane_b32 s25, v8
    s_cmp_gt_u32 s25, s{S_STEP}
    s_cbranch_scc1 {loop}_skip
    s_cmp_gt_u32 s24, s{S_STEP}
    s_cbranch_scc0 {loop}
    s_cmp_lt_u32 s25, s{S_STEP}
    s_cbranch_scc1 {loop}
    ''')
    for i in range(5): a(f'buffer_load_dword v4, v2, {SRD}, s{26+i} offen sc1')
    a.label(loop + '_skip')
    for i in range(5): a(f's_add_u32 s{26+i}, s{26+i}, {L.UX_SZ}')
    a(f'''
    s_add_u32 s22, s22, {L.MEM_SZ}
    s_add_u32 s{S_STEP}, s{S_STEP}, 1
    s_cmp_lt_u32 s{S_STEP}, 63
    s_cbranch_scc1 {loop}
    ''')
    a.label(loop + '_end')
    a('s_endpgm')

def filler(a):
    loop = a.newlabel('FILL')
    a(f'''
    v_lshlrev_b32 v2, 4, v{V_LANE}
    v_mov_b32 v4, -1
    v_mov_b32 v5, -1
    v_mov_b32 v6, -1
    v_mov_b32 v7, -1
    v_mov_b32 v8, 1
    s_mul_i32 s22, s{S_W}, 28672
    s_add_u32 s22, s22, {L.UM}
    s_lshl_b32 s23, s{S_W}, 2
    s_add_u32 s23, s23, {L.FLU + 1792}
    ''')
    a.label(loop)
    a(f'''
    s_lshr_b32 s27, s21, 1
    s_cmp_lt_u32 s27, 10
    s_cbranch_scc1 {loop}_go
    s_sub_u32 s28, s27, 10
    s_mul_i32 s28, s28, {L.MEM_SZ}
    s_add_u32 s28, s28, {L.MEMX}
    ''')
    a.label(loop + '_w')
    a(f'''
    buffer_load_dword v9, off, {SRD}, s28 sc1
    s_sub_u32 s{S_ABORT}, s{S_ABORT}, 1
    s_cbranch_scc1 {loop}_ab
    s_waitcnt vmcnt(0)
    v_cmp_eq_u32 vcc, -1, v9
    s_cbranch_vccz {loop}_go
    s_sleep 16
    s_branch {loop}_w
    ''')
    a.label(loop + '_ab')
    a(f's_mov_b32 s{S_ABORT}, 0')
    a.label(loop + '_go')
    a('s_and_b32 s28, s21, 1')
    a('s_lshl_b32 s28, s28, 6')
    a('s_add_u32 s28, s28, s27')
    a(f's_mul_i32 s24, s28, {L.UM_SZ}')
    a('s_add_u32 s24, s24, s22')
    for i in range(28):
        a(f'buffer_store_dwordx4 v[4:7], v2, {SRD}, s24 offen offset:{(i % 4) * 1024} sc1')
        if i % 4 == 3: a('s_add_u32 s24, s24, 4096')
    a(f'''
    s_lshl_b32 s24, s28, 11
    s_add_u32 s24, s24, s23
    s_sub_u32 s25, s24, {2048 - 16}
    s_cmp_eq_u32 s27, 0
    s_cselect_b32 s26, {64*2048}, 0
    s_add_u32 s25, s25, s26
    s_waitcnt vmcnt(0)
    s_mov_b64 exec, 1
    buffer_store_dword v8, off, {SRD}, s24 sc1
    buffer_store_dword v8, off, {SRD}, s25 sc1
    s_mov_b64 exec, -1
    s_add_u32 s21, s21, 2
    s_cmp_lt_u32 s21, 128
    s_cbranch_scc1 {loop}
    s_endpgm
    ''')
```

```python
from asmlib import *
import layout as L
R = RegFile.r
SRD = 's[8:11]'
S_WS, S_DBG = 4, 6
S_W = 12
S_ROLE = 13
S_LAYER = 14
S_STEP = 15
S_ABORT = 16
S_T0, S_T1, S_T2, S_T3 = 17, 18, 19, 20
V_LANE = 1
POLL_BUDGET = 300000
import os
CYC = bool(os.environ.get('CYC'))
LIGHT = bool(os.environ.get('LIGHT'))
OPT = lambda k, d=0: int(os.environ.get(k, d))

def common_prologue(a):
    a(f'''
    s_load_dwordx2 s[{S_WS}:{S_WS+1}], s[0:1], 104
    s_load_dwordx2 s[{S_DBG}:{S_DBG+1}], s[0:1], 96
    v_lshrrev_b32 v2, 6, v0
    v_and_b32 v{V_LANE}, 63, v0
    v_readfirstlane_b32 s{S_W}, v2
    s_waitcnt lgkmcnt(0)
    s_mov_b32 s8, s{S_WS}
    s_and_b32 s9, s{S_WS+1}, 0xffff
    s_mov_b32 s10, 0x10000000
    s_mov_b32 s11, 0x00020000
    s_mov_b32 s{S_ABORT}, {POLL_BUDGET}
    s_mov_b32 s92, s{S_DBG}
    s_and_b32 s93, s{S_DBG+1}, 0xffff
    s_mov_b32 s94, 256
    s_mov_b32 s95, 0x00020000
    ''')

def check(a, regs, tmp):
    r = list(regs)
    a(f'v_max3_u32 v{tmp}, v{r[0]}, v{r[1]}, v{r[2]}'); r = r[3:]
    while len(r) >= 2:
        a(f'v_max3_u32 v{tmp}, v{tmp}, v{r[0]}, v{r[1]}'); r = r[2:]
    if r: a(f'v_max_u32 v{tmp}, v{tmp}, v{r[0]}')
    a(f'v_cmp_eq_u32 vcc, -1, v{tmp}')

def poll(a, loads, regs, tmp, sleep=0):
    lab = a.newlabel('POLL'); done = a.newlabel('POLLD')
    if sleep:
        a(f's_branch {lab}_in')
        a.label(lab); a(f's_sleep {sleep}'); a.label(lab + '_in')
    else: a.label(lab)
    for l in loads: a(l)
    a(f's_sub_u32 s{S_ABORT}, s{S_ABORT}, 1')
    a(f's_cbranch_scc1 {done}_abort')
    a('s_waitcnt vmcnt(0)')
    check(a, regs, tmp)
    a.br(f's_cbranch_vccnz {lab}')
    a.label(done)
    a.deferred.append(f'{done}_abort:\n    s_mov_b32 s{S_ABORT}, 0\n    s_waitcnt vmcnt(0)\n    s_branch {done}\n')

def wait_flags(a, soff, voff, tmp, width=1, sleep=2):
    lab = a.newlabel('WF'); done = a.newlabel('WFD')
    a(f's_branch {lab}_in')
    a.label(lab); a(f's_sleep {sleep}'); a.label(lab + '_in')
    if width == 1: a(f'buffer_load_dword v{tmp}, v{voff}, {SRD}, s{soff} offen sc1')
    else: a(f'buffer_load_dwordx2 v[{tmp}:{tmp+1}], v{voff}, {SRD}, s{soff} offen sc1')
    a(f's_sub_u32 s{S_ABORT}, s{S_ABORT}, 1')
    a(f's_cbranch_scc1 {done}_abort')
    a('s_waitcnt vmcnt(0)')
    if width == 2: a(f'v_min_u32 v{tmp}, v{tmp}, v{tmp+1}')
    a(f'v_cmp_eq_u32 vcc, 0, v{tmp}')
    a.br(f's_cbranch_vccnz {lab}')
    a.label(done)
    a.deferred.append(f'{done}_abort:\n    s_mov_b32 s{S_ABORT}, 0\n    s_waitcnt vmcnt(0)\n    s_branch {done}\n')

def signal(a, soff, vzero, vone, mode='sc1', wait='s_waitcnt vmcnt(0)'):
    a(f'''
    {wait}
    s_mov_b64 exec, 1
    buffer_store_dword v{vone}, v{vzero}, {SRD}, s{soff} offen {mode}
    s_mov_b64 exec, -1
    ''')

def load_frags(a, regs, voff, soff, mods=''):
    for i, r in enumerate(regs):
        a(f'buffer_load_dwordx4 {R(r, 4)}, v{voff}, {SRD}, s{soff} offen offset:{(i % 4) * 1024} {mods}')
        if i % 4 == 3: a(f's_add_u32 s{soff}, s{soff}, 4096')

class Stamps:
    def __init__(self, a, on, base=60):
        self.a, self.on, self.base, self.n = a, on, base, 0
    def __call__(self, key=False):
        if self.on and LIGHT and not key: self.n += 1
        elif self.on:
            self.a(f's_memrealtime s[{self.base+2*self.n}:{self.base+2*self.n+1}]'); self.n += 1
    def cyc(self, k):
        if self.on and CYC: self.a(f's_memtime s[{self.base+16+2*k}:{self.base+17+2*k}]'); self.nc = max(getattr(self, 'nc', 0), k + 1)
    def flush(self, role_off, vt, va, sstep=S_STEP):
        if not self.on: return
        a = self.a
        a('s_waitcnt lgkmcnt(0)')
        a(f's_lshl_b32 s{S_T0}, s{S_ROLE}, 2')
        a(f's_add_u32 s{S_T0}, s{S_T0}, s{S_W}')
        a(f's_lshl_b32 s{S_T0}, s{S_T0}, 7')
        a(f's_add_u32 s{S_T0}, s{S_T0}, s{sstep}')
        a(f's_lshl_b32 s{S_T0}, s{S_T0}, 6')
        a(f's_add_u32 s{S_T0}, s{S_T0}, s59')
        a(f's_add_u32 s{S_T0}, s{S_T0}, {L.DBG + role_off}')
        a(f'v_mbcnt_lo_u32_b32 v{va}, -1, 0')
        a(f'v_lshlrev_b32 v{va}, 2, v{va}')
        for i in range(self.n):
            a(f'v_writelane_b32 v{vt}, s{self.base+2*i}, {i}')
        for i in range(getattr(self, 'nc', 0)):
            a(f'v_writelane_b32 v{vt}, s{self.base+16+2*i}, {8+i}')
        a('s_mov_b64 exec, 0xffff')
        a(f'buffer_store_dword v{vt}, v{va}, {SRD}, s{S_T0} offen')
        a('s_mov_b64 exec, -1')
        self.n = 0

def interleave(a, main, side, per=1, start=0):
    side = list(side)
    for i, m in enumerate(main):
        a(m)
        if i >= start:
            for _ in range(per):
                if side: a(side.pop(0))
    return side

def stats_ops(S, T):
    return [
        f'v_pk_add_f32 v[{S}:{S+1}], v[{S}:{S+1}], v[{S+2}:{S+3}]',
        f'v_pk_add_f32 v[{S+4}:{S+5}], v[{S+4}:{S+5}], v[{S+6}:{S+7}]',
        f'v_pk_add_f32 v[{S}:{S+1}], v[{S}:{S+1}], v[{S+4}:{S+5}]',
        f'v_mov_b32 v{T}, v{S}',
        f'v_mov_b32 v{T+1}, v{S+1}',
        f'v_permlane32_swap_b32 v{T}, v{S}',
        f'v_permlane32_swap_b32 v{T+1}, v{S+1}',
        f'v_pk_add_f32 v[{S}:{S+1}], v[{S}:{S+1}], v[{T}:{T+1}]',
        f'v_mul_f32 v{T}, {hex(f2u(1.0/448))}, v{S}',
        f'v_mul_f32 v{T+1}, {hex(f2u(1.0/448))}, v{S+1}',
        f'v_fma_f32 v{T+1}, -v{T}, v{T}, v{T+1}',
        f'v_max_f32 v{T+1}, 0, v{T+1}',
        f'v_add_f32 v{T+1}, {hex(f2u(1e-5))}, v{T+1}',
        f'v_rsq_f32 v{S}, v{T+1}',
        f'v_mov_b32 v{S+1}, v{T}',
    ]

import struct
def f2u(x): return struct.unpack('<I', struct.pack('<f', x))[0]

def kernel_wrap(name, body, vgpr=512, accum=256, sgpr=102):
    return f'''.text
.globl {name}
.p2align 8
.type {name},@function
{name}:
{body}
.section .rodata,"a"
.p2align 6
.amdhsa_kernel {name}
  .amdhsa_next_free_vgpr {vgpr}
  .amdhsa_next_free_sgpr {sgpr}
  .amdhsa_accum_offset {accum}
  .amdhsa_group_segment_fixed_size 0
  .amdhsa_kernarg_size 112
  .amdhsa_user_sgpr_count 2
  .amdhsa_user_sgpr_kernarg_segment_ptr 1
  .amdhsa_system_sgpr_workgroup_id_x 1
.end_amdhsa_kernel
'''

S_GRP = 56
S_NEED = 57
def mode_split(a, body, vt, force_slow=None):
    lab = a.newlabel('MS')
    if force_slow is not None:
        a(f's_cmp_lg_u32 s{force_slow}, 0'); a(f's_cbranch_scc1 {lab}_slow')
    a.flush()
    a.label(lab)
    a(f"""
    buffer_load_dword v{vt}, off, s[92:95], s{S_GRP} sc1
    s_sub_u32 s{S_ABORT}, s{S_ABORT}, 1
    s_cbranch_scc1 {lab}_ab
    s_waitcnt vmcnt(0)
    v_readfirstlane_b32 s58, v{vt}
    s_and_b32 s{S_T0}, s58, 0xffff
    s_cmp_ge_u32 s{S_T0}, s{S_NEED}
    s_cbranch_scc0 {lab}
    s_lshr_b32 s{S_T0}, s58, 16
    s_cbranch_scc1 {lab}_slow
    """)
    body('')
    a.label(lab + '_ab')
    a(f's_mov_b32 s{S_ABORT}, 0')
    a('s_waitcnt vmcnt(0)')
    a.label(lab + '_slow')
    body('sc1')

def wg_stamp(a, slot, vt, va):
    a(f"""
    s_memrealtime s[96:97]
    s_memtime s[98:99]
    s_lshl_b32 s100, s2, 4
    s_add_u32 s100, s100, {L.DBG + (14 << 20) + slot * 4096}
    s_waitcnt lgkmcnt(0)
    v_mov_b32 v{vt}, s96
    v_mov_b32 v{vt+1}, s98
    buffer_store_dwordx2 v[{vt}:{vt+1}], off, {SRD}, s100
    """)

def try_signal(a, tag, pend, emit, force=False):
    idx = len(a.vm) - 1 - a.vm[::-1].index(tag) if tag in a.vm else None
    n = len(a.vm) - 1 - idx if idx is not None else 15
    assert n <= 15
    lab = a.newlabel('TS')
    a(f's_cmp_eq_u32 s{pend}, 0')
    a.opt_begin('s_cbranch_scc1')
    l2 = a.opt[0]
    if not force and idx is not None:
        a(f's_getreg_b32 s{S_T3}, hwreg(HW_REG_IB_STS)')
        a(f's_and_b32 s{S_T3}, s{S_T3}, 0xc0000f')
        a(f's_cmp_gt_u32 s{S_T3}, {n}')
        a.br(f's_cbranch_scc1 {l2}')
    if idx is not None: a(f's_waitcnt vmcnt({n})')
    emit()
    a(f's_mov_b32 s{pend}, 0')
    a.opt_end()
```

```python
from common import *
import chain, workers, prep2

XMAP = hex(int(os.environ.get('XMAP', '65742130'), 16))
def mega(name, stamps=False, fast=True):
    a = Asm(); a.deferred = []
    common_prologue(a)
    mode = '' if fast else 'sc1'
    REG = L.flag(7)
    if stamps: wg_stamp(a, 2, 10, 0)
    a(f'''
    s_cmp_ge_u32 s2, 256
    s_cbranch_scc1 M_EXIT
    s_mov_b32 s52, 0x20202020
    s_mov_b32 s53, 0x20202020
    s_cmp_lg_u32 s{S_W}, 0
    s_cbranch_scc1 M_WAITROLE
    s_getreg_b32 s3, hwreg(HW_REG_XCC_ID, 0, 3)
    s_lshl_b32 s3, s3, 2
    s_lshr_b32 s3, {XMAP}, s3
    s_and_b32 s3, s3, 7
    s_mov_b64 exec, 1
    v_mov_b32 v2, 1
    s_lshl_b32 s{S_T0}, s3, 5
    buffer_atomic_add v2, off, s[92:95], s{S_T0} sc0 sc1
    s_lshl_b32 s{S_T3}, s3, 3
    s_lshr_b64 s[54:55], s[52:53], s{S_T3}
    s_and_b32 s{S_NEED}, s54, 0xff
    s_waitcnt vmcnt(0)
    v_readfirstlane_b32 s{S_ROLE}, v2
    s_and_b32 s{S_ROLE}, s{S_ROLE}, 0xffff
    s_mov_b64 exec, -1
    s_cmp_lt_u32 s{S_ROLE}, s{S_NEED}
    s_cbranch_scc1 M_GOTROLE
    v_and_b32 v3, 7, v{V_LANE}
    v_lshlrev_b32 v4, 3, v3
    v_lshrrev_b64 v[4:5], v4, s[52:53]
    v_and_b32 v4, 0xff, v4
    v_lshlrev_b32 v3, 5, v3
    s_mov_b32 s{S_T2}, 60
M_SURP:
    buffer_load_dword v5, v3, s[92:95], 0 offen sc1
    s_waitcnt vmcnt(0)
    v_and_b32 v5, 0xffff, v5
    v_cmp_lt_u32 vcc, v5, v4
    s_mov_b32 s3, 8
    s_cbranch_vccz M_GOTROLE
    s_sleep 8
    s_sub_u32 s{S_T2}, s{S_T2}, 1
    s_cbranch_scc0 M_SURP
    s_mov_b32 s{S_T2}, 0
    s_ff1_i32_b32 s3, vcc_lo
    s_mov_b64 exec, 1
    v_mov_b32 v2, 0x10001
    s_lshl_b32 s{S_T0}, s3, 5
    buffer_atomic_add v2, off, s[92:95], s{S_T0} sc0 sc1
    s_lshl_b32 s{S_T3}, s3, 3
    s_lshr_b64 s[54:55], s[52:53], s{S_T3}
    s_and_b32 s{S_NEED}, s54, 0xff
    s_waitcnt vmcnt(0)
    v_readfirstlane_b32 s{S_ROLE}, v2
    s_and_b32 s{S_ROLE}, s{S_ROLE}, 0xffff
    s_mov_b64 exec, -1
    s_cmp_lt_u32 s{S_ROLE}, s{S_NEED}
    s_cbranch_scc0 M_SURP
M_GOTROLE:
    s_lshl_b32 s{S_T0}, s3, 16
    s_or_b32 s{S_T0}, s{S_T0}, s{S_ROLE}
    v_mov_b32 v2, s{S_T0}
    v_mov_b32 v3, 0
    ds_write_b32 v3, v2
    s_waitcnt lgkmcnt(0)
M_WAITROLE:
    s_barrier
    v_mov_b32 v3, 0
    ds_read_b32 v2, v3
    s_waitcnt lgkmcnt(0)
    v_readfirstlane_b32 s{S_T0}, v2
    s_barrier
    s_lshr_b32 s3, s{S_T0}, 16
    s_and_b32 s{S_ROLE}, s{S_T0}, 0xffff
    s_cmp_ge_u32 s3, 8
    s_cbranch_scc1 M_EXIT
    s_mov_b32 s101, s{S_T0}
    s_lshl_b32 s{S_T3}, s3, 3
    s_lshr_b64 s[54:55], s[52:53], s{S_T3}
    s_and_b32 s{S_NEED}, s54, 0xff
    s_lshl_b32 s{S_GRP}, s3, 5
    s_and_b32 s{S_LAYER}, s3, 1
    s_cmp_eq_u32 s3, 0
    s_cbranch_scc1 M_MISC
    s_lshl_b32 s{S_T0}, s3, 2
    s_lshr_b32 s21, 0x3200f1f0, s{S_T0}
    s_lshr_b32 s{S_T1}, 0xca, s3
    s_and_b32 s{S_T1}, s{S_T1}, 1
    s_cbranch_scc0 M_WARM
    ''')
    a(f's_lshr_b32 s21, 0x32001000, s{S_T0}'); a('s_and_b32 s21, s21, 3'); a('s_lshl_b32 s21, s21, 5'); a(f's_add_u32 s21, s21, s{S_ROLE}')
    prep2.gemm(a, stamps)
    if stamps: wg_stamp(a, 1, 10, 0)
    a('s_branch M_PREPD')
    a.label('M_WARM')
    a(f's_lshr_b32 s21, 0x00210000, s{S_T0}'); a('s_and_b32 s21, s21, 3'); a('s_lshl_b32 s21, s21, 5'); a(f's_add_u32 s21, s21, s{S_ROLE}')
    prep2.warm_inputs(a)
    a('s_branch M_NOPREP')
    a.label('M_MISC'); prep2.misc(a, stamps)
    if stamps: wg_stamp(a, 0, 10, 0)
    a.label('M_NOPREP'); prep2.wait_count(a, prep2.D_INIT, 2)
    a.label('M_PREPD')
    a(f'''
    s_lshr_b32 s{S_T0}, 0x8a, s3
    s_and_b32 s{S_T0}, s{S_T0}, 1
    s_cbranch_scc0 M_NOHOLD
    s_mov_b32 s{S_T1}, {L.MEMX}
M_HOLD:
    s_sleep 8
    buffer_load_dword v2, off, {SRD}, s{S_T1} sc1
    s_sub_u32 s{S_ABORT}, s{S_ABORT}, 1
    s_cbranch_scc1 M_HOLDAB
    s_waitcnt vmcnt(0)
    v_cmp_eq_u32 vcc, -1, v2
    s_cbranch_vccnz M_HOLD
    s_branch M_NOHOLD
M_HOLDAB:
    s_mov_b32 s{S_ABORT}, 0
M_NOHOLD:
    s_lshl_b32 s59, s{S_LAYER}, 20
    s_lshr_b32 s3, s3, 1
    s_cmp_eq_u32 s3, 1
    s_cbranch_scc1 M_T
    s_cmp_eq_u32 s3, 2
    s_cbranch_scc1 M_U
    s_cmp_eq_u32 s3, 3
    s_cbranch_scc1 M_PFF
    s_mov_b32 s21, s{S_W}
    s_cmp_eq_u32 s{S_ROLE}, 31
    s_cbranch_scc1 M_HT
    s_add_u32 s21, s{S_W}, 3
    s_cmp_eq_u32 s{S_ROLE}, 30
    s_cbranch_scc1 M_HP
    s_cmp_ge_u32 s{S_ROLE}, 16
    s_cbranch_scc1 M_CB
    ''')
    chain.chain_A(a, stamps)
    a.label('M_CB'); a(f's_sub_u32 s{S_ROLE}, s{S_ROLE}, 16'); chain.chain_B(a, stamps)
    a.label('M_HP'); a(f's_cmp_ge_u32 s{S_W}, 2'); a('s_cbranch_scc1 M_EXIT'); chain.helper_prog(a)
    a.label('M_HT'); chain.helper_touch(a)
    a.label('M_T'); workers.role_T(a, stamps and not LIGHT)
    a.label('M_U')
    a(f's_cmp_ge_u32 s{S_ROLE}, 28'); a('s_cbranch_scc1 M_FILL')
    workers.role_U(a, stamps and not LIGHT)
    a.label('M_FILL')
    a('s_mov_b32 s51, 1'); a(f's_add_u32 s{S_ROLE}, s{S_ROLE}, 4'); a(f's_cmp_lt_u32 s{S_ROLE}, 35'); a('s_cbranch_scc1 M_PUB')
    a(f's_mov_b32 s21, s{S_LAYER}')
    chain.filler(a)
    a.label('M_PFF')
    a(f'''
    s_mov_b32 s50, s{S_LAYER}
    s_mov_b32 s51, 0
    s_cmp_ge_u32 s{S_ROLE}, 28
    s_cbranch_scc1 M_PUB
    s_cmp_ge_u32 s{S_ROLE}, 21
    s_cbranch_scc1 M_F2
    s_cmp_ge_u32 s{S_ROLE}, 14
    s_cbranch_scc1 M_PU
    ''')
    workers.role_F1(a, stamps and not LIGHT)
    a.label('M_PUB'); a(f's_xor_b32 s50, s{S_LAYER}, 1'); a(f's_sub_u32 s{S_ROLE}, s{S_ROLE}, 14')
    a.label('M_PU'); a(f's_sub_u32 s{S_ROLE}, s{S_ROLE}, 14'); workers.role_PU(a, stamps and not LIGHT)
    a.label('M_F2'); a(f's_sub_u32 s{S_ROLE}, s{S_ROLE}, 21'); workers.role_F2(a, stamps and not LIGHT)
    a.label('M_EXIT')
    a('s_endpgm')
    if stamps:
        a.lines = [('    s_branch M_FIN' if l.strip() == 's_endpgm' else l) for l in a.lines]
        a.lines[-1] = '    s_endpgm'
        a.label('M_FIN'); a('s_mov_b64 exec, -1'); wg_stamp(a, 4, 10, 0)
        a('v_mov_b32 v10, s101'); a(f'buffer_store_dword v10, off, {SRD}, s100 offset:8'); a('s_endpgm')
    for d in a.deferred: a.raw(d)
    return kernel_wrap(name, a.text())

HDR = '.amdgcn_target "amdgcn-amd-amdhsa--gfx950"\n'
if __name__ == '__main__':
    for nm, kw in (('mega', {}), ('mega_st', dict(stamps=True))):
        open(f'work/{nm}.s', 'w').write('; @launch grid=(256,1,1) block=(256,1,1) lds=98304\n' + HDR + mega(**kw))
```

```python
from common import *
import prep2
lane = f'v{V_LANE}'
LOG2E = 1.4426950408889634
XBUF = 28672
FQ = 176

def x_dma(a, s_src, s_buf, vl16):
    a(f's_lshl_b32 s{S_T0}, s{S_W}, 10')
    a(f's_add_u32 s{S_T1}, s{S_T0}, s{s_buf}')
    a(f's_add_u32 s{S_T0}, s{S_T0}, s{s_src}')
    for j in range(7):
        a(f's_mov_b32 m0, s{S_T1}')
        if j < 6: a(f's_add_u32 s{S_T1}, s{S_T1}, 4096')
        a(f'buffer_load_dwordx4 v{vl16}, {SRD}, s{S_T0} offen sc1 lds')
        if j < 6: a(f's_add_u32 s{S_T0}, s{S_T0}, 4096')

def perm32_v(a, dst, src, tmp):
    a(f'''
    v_and_b32 v{dst}, 0x13, v{src}
    v_and_b32 v{tmp}, 4, v{src}
    v_lshl_or_b32 v{dst}, v{tmp}, 1, v{dst}
    v_and_b32 v{tmp}, 8, v{src}
    v_lshrrev_b32 v{tmp}, 1, v{tmp}
    v_or_b32 v{dst}, v{dst}, v{tmp}
    ''')

def xn_pos(a, dst, tmp):
    a(f'''
    v_and_b32 v{dst}, 32, {lane}
    v_lshlrev_b32 v{dst}, 4, v{dst}
    v_and_b32 v{tmp}, 1, {lane}
    v_lshl_add_u32 v{dst}, v{tmp}, 8, v{dst}
    v_bfe_u32 v{tmp}, {lane}, 4, 1
    v_lshl_add_u32 v{dst}, v{tmp}, 7, v{dst}
    v_bfe_u32 v{tmp}, {lane}, 1, 1
    v_lshl_add_u32 v{dst}, v{tmp}, 6, v{dst}
    v_bfe_u32 v{tmp}, {lane}, 2, 2
    v_lshl_add_u32 v{dst}, v{tmp}, 4, v{dst}
    ''')

def load_w_tr(a, W, dma, vtr, toff, hoff):
    def issue(k0, k1):
        for ks in range(k0, k1):
            for p in range(2):
                a(f's_add_u32 m0, s38, {(ks % 20) * 2048 + p * 1024}')
                a(dma(ks, p))
    def read(k0, k1):
        for ks in range(k0, k1):
            for t in range(2):
                for hf in range(2):
                    a(f'ds_read_b64_tr_b16 {R(W(t, ks) + 2 * hf, 2)}, v{vtr} offset:{(ks % 20) * 2048 + t * toff + hf * hoff}')
        a('s_waitcnt lgkmcnt(0)')
    issue(0, 20)
    a('s_waitcnt vmcnt(20)'); read(0, 10)
    issue(20, 28)
    a('s_waitcnt vmcnt(16)'); read(10, 20)
    a('s_waitcnt vmcnt(0)'); read(20, 28)
    a('s_barrier')

def tr_addr(a, dst, t0, t1, rowshift, gshift):
    a(f"""
    s_mul_i32 s38, s{S_W}, 40960
    v_lshrrev_b32 v{t0}, 5, {lane}
    v_bfe_u32 v{t1}, {lane}, 2, 2
    v_lshl_add_u32 v{dst}, v{t0}, 3, v{t1}
    v_lshlrev_b32 v{dst}, {rowshift}, v{dst}
    v_bfe_u32 v{t0}, {lane}, 4, 1
    v_lshl_add_u32 v{dst}, v{t0}, {gshift}, v{dst}
    v_and_b32 v{t0}, 1, {lane}
    v_lshl_add_u32 v{dst}, v{t0}, 4, v{dst}
    v_bfe_u32 v{t0}, {lane}, 1, 1
    v_lshl_add_u32 v{dst}, v{t0}, 3, v{dst}
    v_add_u32 v{dst}, s38, v{dst}
    """)

def dma_list(s_src, s_dst, vl16):
    out = []
    for j in range(7):
        out.append(f's_mov_b32 m0, s{s_dst}\ns_add_u32 s{s_dst}, s{s_dst}, 4096\nbuffer_load_dwordx4 v{vl16}, {SRD}, s{s_src} offen sc1 lds\ns_add_u32 s{s_src}, s{s_src}, 4096')
    return out

def unpk(lst):
    out = []
    for x in lst:
        if callable(x) or not x.startswith('v_pk_'): out.append(x); continue
        m = re.match(r'v_pk_(\w+)_f32 (.*?)(?: op_sel_hi:\[([\d,]+)\])?$', x)
        op, ops, sel = m.group(1), split_ops(m.group(2)), m.group(3)
        sel = [int(v) for v in sel.split(',')] if sel else [1] * (len(ops) - 1)
        def pick(o, hi):
            mm_ = re.match(r'v\[(\d+):', o)
            return f'v{int(mm_.group(1)) + hi}' if mm_ else o
        for h in range(2):
            srcs = [pick(o, h and sel[i]) for i, o in enumerate(ops[1:])]
            if op != 'fma' and not srcs[1].startswith('v'): srcs = srcs[::-1]
            out.append(f'v_{op}_f32 {pick(ops[0], h)}, ' + ', '.join(srcs))
    return out

def cost(s_):
    if callable(s_): return 2
    if '\n' in s_: return 2
    return 2 if s_.startswith(('v_exp', 'v_rcp', 'v_rsq')) else 1

def stream(a, n, rd, mm, gates=None, side_at=None, depth=3, per=5, at=None, ramp=3):
    gates = gates or {}; side_at = side_at or {}
    side = []
    def read(i):
        if i in gates: gates[i]()
        a(rd(i), tag=('fr', i))
    nr = min(depth, n, ramp)
    for i in range(nr): read(i)
    for i in range(n):
        side += unpk(side_at.get(i, []))
        a.wait_lg(('fr', i))
        ms = mm(i)
        for j, m in enumerate(ms):
            a(m)
            budget = per
            if at and j == 0 and i in at:
                at[i](); budget -= 2
            lim = i + depth + (1 if j == len(ms) - 1 else 0)
            if nr < min(n, lim) and (j == len(ms) - 1 or depth > 3):
                read(nr); nr += 1; budget -= 1
            while side and budget >= cost(side[0]):
                x = side.pop(0); budget -= cost(x)
                x() if callable(x) else a(x)
    return side

def flush_side(a, side):
    for x in side: x() if callable(x) else a(x)

def gate(a, tag):
    def g():
        a.wait_vm(tag); a('s_barrier')
    return g

def role_U(a, stamps=False, D=14):
    st = Stamps(a, stamps)
    W = lambda t, ks: 256 + 112 * t + 4 * ks
    VL16, VFR, VZ, VONE, VST, VFL, VSW, VSR, VO, VFRB, VXNR = 2, 3, 4, 5, 6, 7, 8, 9, 10, 11, 12
    CS = 14
    TMP = 18
    S8 = 20
    FR = 28
    ACC = 48
    RR, NN = 80, 96
    TT = 112
    PK = 144
    XR = 160
    LDS_ST = 2 * XBUF
    S1, S2, S_L, S_S, S_BUF, S_PRE, S_UO, S_X, S_O, S_F = 21, 22, 23, 24, 25, 26, 27, 28, 29, 30
    a(f'''
    s_lshl_b32 s{S_T0}, s{S_ROLE}, 2
    s_add_u32 s{S_T0}, s{S_T0}, s{S_W}
    s_mul_i32 s{S_T2}, s{S_T0}, 57344
    s_add_u32 s{S_T2}, s{S_T2}, {L.WBU}
    v_lshlrev_b32 v{VL16}, 4, {lane}
    ''')
    a(f'''
    s_mul_i32 s{S_T1}, s{S_T0}, 4682
    s_lshr_b32 s{S_T1}, s{S_T1}, 16
    s_mul_i32 s{S_T2}, s{S_T1}, 14
    s_sub_u32 s{S_T2}, s{S_T0}, s{S_T2}
    s_mul_i32 s{S_UO}, s{S_T1}, {2*28672}
    s_lshl_b32 s{S_T2}, s{S_T2}, 11
    s_add_u32 s{S_UO}, s{S_UO}, s{S_T2}
    s_add_u32 s{S_UO}, s{S_UO}, {L.UX}
    s_lshr_b32 s31, s{S_T0}, 3
    s_mul_i32 s31, s31, 24
    s_add_u32 s31, s31, s{S_T0}
    s_lshl_b32 s31, s31, 2
    s_add_u32 s31, s31, {L.FLU}
    v_mov_b32 v{VZ}, 0
    v_mov_b32 v{VONE}, 1
    ''')
    a(f'''
    s_mul_i32 s44, s{S_T1}, 14
    s_add_u32 s44, s44, s{S_T0}
    s_mul_i32 s44, s44, 28672
    s_add_u32 s44, s44, {L.WB}
    s_add_u32 s45, s44, 401408
    v_and_b32 v{VFR}, 1, {lane}
    v_lshlrev_b32 v{VFR}, 7, v{VFR}
    s_lshl_b32 s{S_T1}, s{S_T1}, 8
    s_lshr_b32 s{S_T2}, s{S_T2}, 9
    s_add_u32 s{S_T1}, s{S_T1}, s{S_T2}
    s_add_u32 s{S_T1}, s{S_T1}, {7*2048}
    v_add_u32 v{VFR}, s{S_T1}, v{VFR}
    ''')
    prep2.prog_load(a, [[f'buffer_load_dwordx4 {R(W(t, 4*j+i), 4)}, v{VL16}, {SRD}, s{44+t} offen offset:{1024*i} sc1' + (f'\ns_add_u32 s{44+t}, s{44+t}, 4096' if i == 3 else '')
                         for t in range(2) for i in range(4)] for j in range(7)], VFR, TMP)
    prep2.wait_count(a, prep2.D_X0, TMP)
    perm32_v(a, VFR, V_LANE, TMP)
    xn_pos(a, 13, TMP)
    a(f'''
    v_lshrrev_b32 v{TMP}, 5, {lane}
    v_lshlrev_b32 v{VFR}, 4, v{VFR}
    v_lshl_add_u32 v{VFR}, v{TMP}, 9, v{VFR}
    v_and_b32 v{TMP+1}, 31, {lane}
    v_mov_b32 v{VST}, v{VL16}
    v_min_u32 v{VFL}, 27, {lane}
    v_lshrrev_b32 v{VZ}, 3, v{VFL}
    v_mul_u32_u24 v{VZ}, 24, v{VZ}
    v_add_lshl_u32 v{VFL}, v{VFL}, v{VZ}, 2
    v_mov_b32 v{VZ}, 0
    s_lshl_b32 s{S_T0}, s{S_W}, 8
    s_add_u32 s{S_T0}, s{S_T0}, {LDS_ST}
    v_lshlrev_b32 v{VSW}, 2, v{TMP+1}
    v_add_u32 v{VSW}, s{S_T0}, v{VSW}
    v_lshlrev_b32 v{VSR}, 5, v{TMP}
    v_add_u32 v{VSR}, s{S_T0}, v{VSR}
    v_mov_b32 v{VO}, v{VL16}
    s_lshl_b32 s{S_T0}, s{S_W}, 4
    s_mov_b64 s[32:33], 0xffff
    s_lshl_b64 s[32:33], s[32:33], s{S_T0}
    v_mov_b32 v{FR}, 0x3f803f80
    v_mov_b32 v{FR+1}, 0x3f803f80
    v_mov_b32 v{FR+2}, 0x3f803f80
    v_mov_b32 v{FR+3}, 0x3f803f80
    s_waitcnt vmcnt(0)
    ''')
    for ks in range(28):
        for t in range(2):
            c = f'v[{ACC+16*t}:{ACC+16*t+15}]'
            a(f'v_mfma_f32_32x32x16_bf16 {c}, v[{FR}:{FR+3}], {R(W(t,ks),4)}, {"0" if ks == 0 else c}')
    a(f'''
    v_mov_b32 v{CS}, v{ACC}
    v_mov_b32 v{CS+2}, v{ACC+16}
    s_mov_b32 s{S1}, s{S_LAYER}
    s_mov_b32 s{S2}, s{S_LAYER}
    s_mov_b32 s{S_BUF}, 0
    s_mov_b32 s{S_PRE}, 0
    ''')
    VNF = 12
    a(f'''
    s_lshl_b32 s36, s{S_W}, 10
    s_lshl_b32 s41, s{S_ROLE}, 10
    s_mov_b32 s35, 0
    ''')
    pick = f'''
    s_add_u32 s{S_T0}, s{S2}, {D}
    s_min_u32 s{S_T0}, s{S_T0}, 64
    s_cmp_lt_u32 s{S1}, s{S_T0}
    s_cselect_b32 s{S_L}, 0, 1
    s_cselect_b32 s{S_S}, s{S1}, s{S2}
    s_cselect_b32 s{S_T0}, 2, 0
    s_add_u32 s{S1}, s{S1}, s{S_T0}
    s_lshl_b32 s{S_T0}, s{S_L}, 1
    s_add_u32 s{S2}, s{S2}, s{S_T0}
    s_lshl_b32 s{S_T2}, s{S_L}, 7
    s_add_u32 s{S_T2}, s{S_T2}, s{S_S}
    s_mul_i32 s40, s{S_T2}, {L.XN_SZ}
    s_add_u32 s40, s40, {L.XS}
    s_add_u32 s{S_X}, s40, s36
    s_add_u32 s40, s40, s41
    s_add_u32 s37, s{S_BUF}, s36
    s_lshl_b32 s39, s{S_T2}, 11
    s_add_u32 s39, s39, {L.ST}
    s_lshl_b32 s42, s{S_S}, 9
    s_add_u32 s42, s42, {L.flag(L.FL_X, 0)}
    '''.strip().split('\n')
    pick = [x.strip() for x in pick]
    def loads():
        out = [(f'buffer_load_dwordx4 v[{S8}:{S8+3}], v{VST}, {SRD}, s39 offen sc1', None),
               (f'buffer_load_dwordx4 v[{S8+4}:{S8+7}], v{VST}, {SRD}, s39 offen offset:1024 sc1', None),
               (f's_mov_b64 exec, s[32:33]\nbuffer_load_dwordx4 v[{XR}:{XR+3}], v{VL16}, {SRD}, s40 offen sc1\ns_mov_b64 exec, -1', 'st')]
        return out + [(d, ('d', j)) for j, d in enumerate(dma_list(S_X, 37, VL16))]
    cold, warm, end, cw = [a.newlabel(x) for x in ('U_COLD', 'U_WARM', 'U_END', 'U_CW')]
    K0 = 6
    seq = [(k, (0, 1)) for k in range(K0)] + [(k, (0,)) for k in range(K0, 28)] + [(k, (1,)) for k in range(K0, 28)]
    rd = lambda i: f'ds_read_b128 v[{FQ+4*(i%8)}:{FQ+4*(i%8)+3}], v{VFRB} offset:{1024*seq[i][0]}'
    def mm(i):
        ks, tiles = seq[i]; out = []
        for t in tiles:
            c = f'v[{ACC+16*t}:{ACC+16*t+15}]'
            out.append(f'v_mfma_f32_32x32x16_bf16 {c}, v[{FQ+4*(i%8)}:{FQ+4*(i%8)+3}], {R(W(t,ks),4)}, {"0" if ks == 0 else c}')
        return out
    U8 = XR + 4
    def task(is_warm, nextl0):
        cur = [f's_mul_i32 s{S_O}, s{S_STEP}, {L.UX_SZ}', f's_add_u32 s{S_O}, s{S_O}, s{S_UO}', f's_lshl_b32 s{S_F}, s{S_STEP}, 11', f's_add_u32 s{S_F}, s{S_F}, s31',
               f's_mul_i32 s34, s{S_STEP}, {L.XN_SZ}', 's_add_u32 s34, s34, s41', f's_add_u32 s34, s34, {L.XN}',
               f's_add_u32 s43, s{S_F}, {L.FLXN - L.FLU}', 's_mov_b32 s46, 1']
        sd = {}
        sd[0] = ['\n'.join(cur), lambda: a.wait_vm('st')] + stats_ops(S8, TMP) + \
                [f'v_mul_f32 v{S8+2}, v{S8}, v{S8+1}', f'v_sub_f32 v{S8+2}, 0, v{S8+2}', f'ds_write2_b32 v{VSW}, v{S8}, v{S8+2} offset0:0 offset1:32']
        for i in range(4):
            sd[0] += [f'v_lshlrev_b32 v{U8+2*i}, 16, v{XR+i}', f'v_and_b32 v{U8+2*i+1}, 0xffff0000, v{XR+i}',
                     f'v_pk_fma_f32 v[{U8+2*i}:{U8+2*i+1}], v[{U8+2*i}:{U8+2*i+1}], v[{S8}:{S8+1}], v[{S8+2}:{S8+3}] op_sel_hi:[1,0,0]',
                     f'v_cvt_pk_bf16_f32 v{XO+i}, v{U8+2*i}, v{U8+2*i+1}']
        done = []
        sd[0] += [lambda: (a('s_mov_b64 exec, s[32:33]\n' + f'buffer_store_dwordx4 v[{XO}:{XO+3}], v13, {SRD}, s34 offen sc1\n' + 's_mov_b64 exec, -1', tag='xs'), done.append(1))]
        for j in range(2):
            for i in range(2):
                sd[0] += [f'ds_read_b128 v[{RR+8*j+4*i}:{RR+8*j+4*i+3}], v{VSR} offset:{64*j+16*i}',
                          f'ds_read_b128 v[{NN+8*j+4*i}:{NN+8*j+4*i+3}], v{VSR} offset:{128+64*j+16*i}']
        last = sd[0].pop(); sd[0].append(lambda: a(last, tag='nn'))
        sd[14] = [lambda: a.wait_lg('nn')] + [f'v_pk_mul_f32 v[{TT+16*t+i}:{TT+16*t+i+1}], v[{NN+i}:{NN+i+1}], v[{CS+2*t}:{CS+2*t+1}] op_sel_hi:[1,0]' for t in range(2) for i in range(0, 16, 2)]
        def flags(force=False):
            def emit():
                if is_warm: signal(a, 35, VZ, VONE, wait='')
                signal(a, 43, VZ, VONE, wait='')
            def f():
                assert done
                try_signal(a, 'xs', 46, emit, force)
            return f
        at = {k: flags() for k in (16, 20, 24, 28)}
        at[32] = flags(True)
        if nextl0:
            for j, (d, tg) in enumerate(loads()):
                at[13 + 2 * j] = (lambda d=d: a(d))
        else:
            def chk():
                a.wait_vm('nf')
                a(f'''
                v_cmp_eq_u32 vcc, 0, v{VNF}
                s_cmp_eq_u64 vcc, 0
                s_cselect_b64 vcc, -1, 0
                s_cmp_ge_u32 s{S_S}, 64
                s_cselect_b64 vcc, 0, vcc
                ''')
            def opt(d):
                def f():
                    a.opt_begin('s_cbranch_vccz'); a(d); a.opt_end()
                return f
            at[13] = lambda: a(f'buffer_load_dword v{VNF}, v{VFL}, {SRD}, s42 offen sc1', tag='nf')
            at[33] = chk
            for j, (d, _) in enumerate(loads()): at[34 + (3 * j) // 2] = opt(d)
        def epi(t):
            o = []
            for i in range(0, 16, 2):
                c = ACC + 16 * t + i
                o.append(f'v_pk_fma_f32 v[{c}:{c+1}], v[{c}:{c+1}], v[{RR+i}:{RR+i+1}], v[{TT+16*t+i}:{TT+16*t+i+1}]')
                o.append(f'v_cvt_pk_bf16_f32 v{PK+8*t+i//2}, v{c}, v{c+1}')
                if i in (6, 14):
                    p = PK + 8 * t + (4 if i == 14 else 0)
                    o.append(f'buffer_store_dwordx4 v[{p}:{p+3}], v{VO}, {SRD}, s{S_O} offen offset:{1024 if i == 14 else 0} sc1')
            return o
        sd[32] = epi(0) + [f's_add_u32 s{S_O}, s{S_O}, 28672']
        def mm2(i):
            if i in (1, 6, 16, 26, 36): st.cyc({1: 1, 6: 2, 16: 3, 26: 4, 36: 5}[i])
            return mm(i)
        left = stream(a, len(seq), rd, mm2, {0: gate(a, ('d', 0)), 4: gate(a, ('d', 1)), 8: gate(a, ('d', 3)), 16: gate(a, ('d', 6))}, sd, per=4, depth=7, at=at)
        st.cyc(6)
        flush_side(a, left + epi(1))
        st(); st.cyc(7)
        st.flush(4 << 20, TMP, TMP + 1)
        a(f's_mov_b32 s35, s{S_F}')
        if nextl0:
            a(f's_branch {warm0}'); return
        a(f's_cbranch_vccnz {warm}')
        a(f'buffer_load_dword v{VNF}, v{VFL}, {SRD}, s42 offen sc1')
        signal(a, S_F, VZ, VONE, wait='s_waitcnt vmcnt(1)')
        a(f'''
        s_cmp_ge_u32 s{S_S}, 64
        s_cbranch_scc1 {end}
        s_waitcnt vmcnt(1)
        v_cmp_eq_u32 vcc, 0, v{VNF}
        ''')
        a.br(f's_cbranch_vccz {cold}')
        a(f's_branch {cw}')
    def both(is_warm):
        st(); st.cyc(0)
        a(f'''
        v_add_u32 v{VFRB}, s{S_BUF}, v{VFR}
        s_xor_b32 s{S_BUF}, s{S_BUF}, {XBUF}
        s_lshl_b32 s{S_T2}, s{S_L}, 6
        s_add_u32 s{S_STEP}, s{S_T2}, s{S_S}
        ''')
        for x in pick: a(x)
        l1 = a.newlabel('U_N1')
        a(f's_cmp_eq_u32 s{S_L}, 1')
        a(f's_cbranch_scc1 {l1}')
        state = (list(a.vm), st.n)
        task(is_warm, True)
        a.label(l1); a.vm, st.n = list(state[0]), state[1]; a.lg = []
        task(is_warm, False)
    XO = XR + 12
    warm0 = a.newlabel('U_WARM0')
    for x in pick: a(x)
    a(f's_branch {cold}')
    a.label(cw)
    wait_flags(a, 42, VFL, TMP, sleep=1)
    a.label(cold); a.vm = []; a.lg = []
    for d, tg in loads(): a(d, tag=tg)
    both(False)
    a.label(warm); a.lg = []
    a.vm = [tg for _, tg in loads()] + [None, None]
    both(True)
    a.label(warm0); a.lg = []
    a.vm = [tg for _, tg in loads()] + [None, None, None, None]
    both(True)
    a.label(end)
    a('s_endpgm')

def role_F1(a, stamps=False, mode='sc1'):
    st = Stamps(a, stamps)
    W = lambda t, ks: 256 + 112 * t + 4 * ks
    VL16, VZ, VONE, VST, VFL, VFRB, VNF = 2, 4, 5, 6, 7, 11, 12
    VTU, VTA, VTS, VTD, VUF, VUR = 13, 14, 15, 16, 17, 10
    TMP = 18; S8 = 20; FR = 28
    ACC = 48
    CS = 80
    EX = 112
    PK = 120
    S_BUF, S_X, S_ST, S_O, S_FI, S_FO = 25, 26, 27, 28, 29, 30
    a(f'''
    s_lshl_b32 s{S_T0}, s{S_ROLE}, 2
    s_add_u32 s{S_T0}, s{S_T0}, s{S_W}
    s_load_dwordx4 s[48:51], s[0:1], 64
    v_lshlrev_b32 v{VL16}, 4, {lane}
    v_lshrrev_b32 v{TMP}, 2, {lane}
    v_mul_u32_u24 v{EX}, 3584, v{TMP}
    v_and_b32 v{TMP}, 3, {lane}
    v_lshl_add_u32 v{EX}, v{TMP}, 4, v{EX}
    s_lshl_b32 s{S_T2}, s{S_T0}, 6
    s_waitcnt lgkmcnt(0)
    s_mov_b32 s40, s48
    s_and_b32 s41, s49, 0xffff
    s_mov_b32 s42, {448*3584}
    s_mov_b32 s43, 0x00020000
    s_mov_b32 s44, s50
    s_and_b32 s45, s51, 0xffff
    s_mov_b32 s46, {448*3584}
    s_mov_b32 s47, 0x00020000
    ''')
    tr_addr(a, EX + 1, TMP, TMP + 1, 6, 10)
    load_w_tr(a, W, lambda ks, p: f'buffer_load_dwordx4 v{EX}, s[{40+4*p}:{43+4*p}], s{S_T2} offen lds' + (f'\ns_add_u32 s{S_T2}, s{S_T2}, {16*3584}' if p else ''), EX + 1, 32, 256)
    a(f'''
    s_mul_i32 s{S_O}, s{S_LAYER}, {64*L.HB_SZ}
    s_lshl_b32 s{S_T1}, s{S_T0}, 11
    s_add_u32 s{S_O}, s{S_O}, s{S_T1}
    s_add_u32 s{S_O}, s{S_O}, {L.HB}
    s_lshl_b32 s{S_T1}, s{S_LAYER}, 15
    s_add_u32 s{S_FI}, s{S_T1}, {L.flag(L.FL_P)}
    s_lshl_b32 s{S_FO}, s{S_T0}, 2
    s_add_u32 s{S_FO}, s{S_FO}, s{S_T1}
    s_add_u32 s{S_FO}, s{S_FO}, {L.flag(L.FL_H)}
    s_mul_i32 s{S_X}, s{S_LAYER}, {128*L.XN_SZ}
    s_add_u32 s{S_X}, s{S_X}, {L.XS + 64*L.XN_SZ}
    s_lshl_b32 s{S_ST}, s{S_LAYER}, 18
    s_add_u32 s{S_ST}, s{S_ST}, {L.ST + 64*L.ST_SZ}
    v_mov_b32 v{VZ}, 0
    v_mov_b32 v{VONE}, 1
    v_lshrrev_b32 v{TMP}, 5, {lane}
    v_and_b32 v{TMP+1}, 31, {lane}
    v_mov_b32 v{VST}, v{VL16}
    v_min_u32 v{VFL}, 27, {lane}
    v_lshrrev_b32 v{VZ}, 3, v{VFL}
    v_mul_u32_u24 v{VZ}, 24, v{VZ}
    v_add_lshl_u32 v{VFL}, v{VFL}, v{VZ}, 2
    v_mov_b32 v{VZ}, 0
    v_mov_b32 v{FR}, 0x3f803f80
    v_mov_b32 v{FR+1}, 0x3f803f80
    v_mov_b32 v{FR+2}, 0x3f803f80
    v_mov_b32 v{FR+3}, 0x3f803f80
    s_mov_b32 s{S_BUF}, 0
    s_mov_b32 s{S_STEP}, 0
    s_waitcnt vmcnt(0)
    ''')
    for ks in range(28):
        for t in range(2):
            c = f'v[{CS+16*t}:{CS+16*t+15}]'
            a(f'v_mfma_f32_32x32x16_bf16 {c}, {R(W(t,ks),4)}, v[{FR}:{FR+3}], {"0" if ks == 0 else c}')
    a(f'''
    s_lshl_b32 s36, s{S_W}, 10
    s_add_u32 s{S_X}, s{S_X}, s36
    s_mov_b64 vcc, 0
    s_mov_b32 s42, 0
    v_mov_b32 v{VNF}, 0
    s_lshl_b32 s{S_T0}, s{S_ROLE}, 2
    s_add_u32 s{S_T0}, s{S_T0}, s{S_W}
    v_lshlrev_b32 v{VTU}, 7, {lane}
    s_mul_i32 s39, s{S_LAYER}, {64*L.UX_SZ}
    s_lshl_b32 s{S_T1}, s{S_T0}, 13
    s_add_u32 s39, s39, s{S_T1}
    s_add_u32 s39, s39, {L.UX + 3*L.UX_SZ}
    s_lshl_b32 s44, s{S_LAYER}, 15
    s_add_u32 s44, s44, {L.flag(L.FL_PROG) + 256}
    v_add_u32 v{VTA}, s{S_O}, v{VTU}
    v_mov_b32 v{VTS}, {L.HB_SZ}
    s_mul_i32 s{S_T1}, s{S_LAYER}, {128*L.XN_SZ}
    s_lshl_b32 s{S_T2}, s{S_T0}, 9
    s_add_u32 s{S_T1}, s{S_T1}, s{S_T2}
    s_add_u32 s{S_T1}, s{S_T1}, {L.XS + 64*L.XN_SZ - 2048}
    v_add_u32 v{TMP}, s{S_T1}, v{VTU}
    v_mov_b32 v{TMP+1}, {L.XN_SZ}
    v_cmp_gt_u32 vcc, 16, {lane}
    v_cndmask_b32 v{VTA}, v{TMP}, v{VTA}, vcc
    v_cndmask_b32 v{VTS}, v{TMP+1}, v{VTS}, vcc
    s_and_b32 s{S_T2}, s{S_T0}, 15
    s_lshl_b32 s{S_T2}, s{S_T2}, 7
    s_add_u32 s{S_T2}, s{S_T2}, s{S_ST}
    v_mov_b32 v{TMP}, s{S_T2}
    v_mov_b32 v{TMP+1}, {L.ST_SZ}
    v_cmp_gt_u32 vcc, 20, {lane}
    v_cndmask_b32 v{VTA}, v{TMP}, v{VTA}, vcc
    v_cndmask_b32 v{VTS}, v{TMP+1}, v{VTS}, vcc
    s_cmp_lt_u32 s{S_T0}, 32
    s_cselect_b32 s46, 0xf0000, 0
    s_bitcmp0_b32 s{S_T0}, 3
    s_cselect_b32 s47, 0x100000, 0
    s_or_b32 s46, s46, s47
    s_or_b32 s46, s46, 0xffff
    s_mov_b32 s47, 0
    s_mov_b64 exec, s[46:47]
    buffer_load_dword v{VTD}, v{VTA}, {SRD}, 0 offen sc1
    s_mov_b64 exec, -1
    v_add_u32 v{VTA}, v{VTA}, v{VTS}
    s_mov_b64 exec, s[46:47]
    buffer_load_dword v{VTD}, v{VTA}, {SRD}, 0 offen sc1
    s_mov_b64 exec, -1
    v_add_u32 v{VTA}, v{VTA}, v{VTS}
    s_mov_b64 vcc, 0
    ''')
    def body(mode):
        loop, nd = a.newlabel('F1_LOOP'), a.newlabel('F1_ND')
        a.flush(); a.label(loop); a.vm = []; a.lg = []
        a(f's_add_u32 s37, s{S_BUF}, s36')
        a.br(f's_cbranch_vccnz {nd}')
        a(f'v_cmp_eq_u32 vcc, 0, v{VNF}')
        a.opt_begin('s_cbranch_vccz')
        wait_flags(a, S_FI, VFL, TMP, sleep=1)
        a.opt_end()
        for j, d in enumerate(dma_list(S_X, 37, VL16)): a(d, tag=('d', j))
        a.label(nd)
        st()
        a(f'buffer_load_dwordx4 v[{S8}:{S8+3}], v{VST}, {SRD}, s{S_ST} offen sc1')
        a(f'buffer_load_dwordx4 v[{S8+4}:{S8+7}], v{VST}, {SRD}, s{S_ST} offen offset:1024 sc1', tag='st')
        a(f'''
        v_add_u32 v{VFRB}, s{S_BUF}, v{VL16}
        s_xor_b32 s{S_BUF}, s{S_BUF}, {XBUF}
        s_add_u32 s37, s{S_BUF}, s36
        s_add_u32 s{S_ST}, s{S_ST}, {L.ST_SZ}
        s_add_u32 s{S_FI}, s{S_FI}, 512
        ''')
        def touch():
            if not mode: a(f'''
            s_add_u32 s{S_T0}, s{S_STEP}, s{S_LAYER}
            s_bitcmp0_b32 s{S_T0}, 0
            s_cselect_b64 exec, -1, s[46:47]
            buffer_load_dword v{VTD}, v{VTA}, {SRD}, 0 offen sc1
            s_mov_b64 exec, -1
            v_add_u32 v{VTA}, v{VTA}, v{VTS}''')
        seq = [(k, (0, 1)) for k in range(8)] + [(k, (0,)) for k in range(8, 28)] + [(k, (1,)) for k in range(8, 28)]
        rd = lambda i: f'ds_read_b128 v[{FQ+4*(i%8)}:{FQ+4*(i%8)+3}], v{VFRB} offset:{1024*seq[i][0]}'
        def mm(i):
            ks, tiles = seq[i]; out = []
            for t in tiles:
                c = f'v[{ACC+16*t}:{ACC+16*t+15}]'
                out.append(f'v_mfma_f32_32x32x16_bf16 {c}, {R(W(t,ks),4)}, v[{FQ+4*(i%8)}:{FQ+4*(i%8)+3}], {"0" if ks == 0 else c}')
            return out
        sto = stats_ops(S8, TMP) + [f'v_sub_f32 v{S8+2}, 0, v{S8+1}', f'v_mul_f32 v{S8+4}, {hex(f2u(-LOG2E))}, v{S8}', f'v_mov_b32 v{S8+6}, v{TMP+1}']
        def epi(t):
            c = ACC + 16 * t; o = []
            for i in range(0, 16, 2):
                o.append(f'v_pk_fma_f32 v[{c+i}:{c+i+1}], v[{CS+16*t+i}:{CS+16*t+i+1}], v[{S8+2}:{S8+3}], v[{c+i}:{c+i+1}] op_sel_hi:[1,0,1]')
            for i in range(0, 8, 2): o.append(f'v_pk_mul_f32 v[{EX+i}:{EX+i+1}], v[{c+i}:{c+i+1}], v[{S8+4}:{S8+5}] op_sel_hi:[1,0]')
            for i in range(8): o.append(f'v_exp_f32 v{EX+i}, v{EX+i}')
            for i in range(0, 8, 2): o.append(f'v_pk_mul_f32 v[{c+i}:{c+i+1}], v[{c+i}:{c+i+1}], v[{c+8+i}:{c+9+i}]')
            for i in range(0, 8, 2): o.append(f'v_pk_fma_f32 v[{EX+i}:{EX+i+1}], v[{EX+i}:{EX+i+1}], v[{S8+6}:{S8+7}], v[{S8+6}:{S8+7}] op_sel_hi:[1,0,0]')
            for i in range(8): o.append(f'v_rcp_f32 v{EX+i}, v{EX+i}')
            for i in range(0, 8, 2): o.append(f'v_pk_mul_f32 v[{c+i}:{c+i+1}], v[{c+i}:{c+i+1}], v[{EX+i}:{EX+i+1}]')
            for i in range(0, 8, 2): o.append(f'v_cvt_pk_bf16_f32 v{PK+4*t+i//2}, v{c+i}, v{c+i+1}')
            o.append(f'buffer_store_dwordx4 v[{PK+4*t}:{PK+4*t+3}], v{VL16}, {SRD}, s{S_O} offen offset:{1024*t} {mode}')
            return o
        def optdma(d):
            def f():
                a.opt_begin('s_cbranch_vccz'); a(d); a.opt_end()
            return f
        def chk():
            a.wait_vm('nf')
            a(f'v_cmp_eq_u32 vcc, 0, v{VNF}')
            a('s_cmp_eq_u64 vcc, 0')
            a('s_cselect_b64 vcc, -1, 0')
        sd = {13: [lambda: a(f'buffer_load_dword v{VNF}, v{VFL}, {SRD}, s{S_FI} offen sc1', tag='nf'), lambda: a.wait_vm('st')] + sto,
              27: [chk], 31: epi(0)}
        dl = dma_list(S_X, 37, VL16)
        e0 = epi(0)
        def prevflag():
            a('s_cmp_eq_u32 s42, 1')
            a.opt_begin('s_cbranch_scc0')
            signal(a, 43, VZ, VONE, mode, wait='')
            a.opt_end()
        sd = {6: [lambda: a.wait_vm('st'), prevflag, touch], 8: sto,
              28: [lambda: a(f'buffer_load_dword v{VNF}, v{VFL}, {SRD}, s{S_FI} offen sc1', tag='nf')],
              30: e0}
        at = {38: chk}
        for j in range(5): at[39 + 2 * j] = optdma(dl[j])
        st.cyc(0)
        mm0 = mm
        def mm(i):
            if i in (1, 8, 18, 28, 38): st.cyc({1: 1, 8: 2, 18: 3, 28: 4, 38: 5}[i])
            return mm0(i)
        left = stream(a, len(seq), rd, mm, {0: gate(a, ('d', 0)), 4: gate(a, ('d', 1)), 8: gate(a, ('d', 3)), 16: gate(a, ('d', 6))}, sd, per=6, depth=7, at=at)
        st.cyc(6)
        print('F1 leftover', len(left))
        flush_side(a, left)
        e1 = epi(1)
        flush_side(a, e1[:12] + [optdma(dl[5])] + e1[12:24] + [optdma(dl[6])] + e1[24:-1])
        a(f'buffer_load_dword v{VNF}, v{VFL}, {SRD}, s{S_FI} offen sc1')
        a(e1[-1])
        st(); st.cyc(7)
        a(f'''
        s_mov_b32 s43, s{S_FO}
        s_cmp_eq_u32 s{S_STEP}, 63
        s_cselect_b64 vcc, 0, vcc
        s_mov_b32 s42, 1
        ''')
        a.opt_begin('s_cbranch_vccnz')
        a('s_mov_b32 s42, 0')
        signal(a, S_FO, VZ, VONE, mode)
        a.opt_end()
        st()
        st.flush(10 << 20, TMP, TMP + 1)
        a(f'''
        s_add_u32 s{S_O}, s{S_O}, {L.HB_SZ}
        s_add_u32 s{S_FO}, s{S_FO}, 512
        s_add_u32 s{S_STEP}, s{S_STEP}, 1
        s_cmp_lt_u32 s{S_STEP}, 64
        s_cbranch_scc1 {loop}
        s_endpgm
        ''')
    mode_split(a, body, TMP)

PH, PQ, PT, PW = 544, 1184, 4736, 9472
def red_setup(a, VRW, VRR, VXO, VSO, TMP, base=0, il=False):
    a(f'''
    v_lshrrev_b32 v{TMP}, 5, {lane}
    v_mul_u32_u24 v{VRW}, {PH}, v{TMP}
    v_and_b32 v{TMP}, 31, {lane}
    v_lshl_add_u32 v{VRW}, v{TMP}, 4, v{VRW}
    s_mul_i32 s{S_T0}, s{S_W}, {PW}
    s_add_u32 s{S_T0}, s{S_T0}, {base}
    v_add_u32 v{VRW}, s{S_T0}, v{VRW}
    v_and_b32 v{TMP}, 1, {lane}
    v_mul_u32_u24 v{VRR}, {PH}, v{TMP}
    v_bfe_u32 v{TMP}, {lane}, 1, 1
    v_mul_u32_u24 v{TMP}, {2*PQ}, v{TMP}
    v_add_u32 v{VRR}, v{VRR}, v{TMP}
    v_bfe_u32 v{TMP}, {lane}, 2, 1
    v_mul_u32_u24 v{TMP}, {PT}, v{TMP}
    v_add_u32 v{VRR}, v{VRR}, v{TMP}
    v_lshrrev_b32 v{TMP}, 3, {lane}
    s_lshl_b32 s{S_T0}, s{S_W}, 3
    v_add_u32 v{TMP}, s{S_T0}, v{TMP}
    v_lshl_add_u32 v{VRR}, v{TMP}, 4, v{VRR}
    v_add_u32 v{VRR}, {base}, v{VRR}
    v_and_b32 v{VXO}, 7, {lane}
    s_lshl_b32 s{S_T0}, s{S_ROLE}, 3
    v_add_u32 v{VXO}, s{S_T0}, v{VXO}
    v_lshlrev_b32 v{VXO}, 9, v{VXO}
    v_lshl_add_u32 v{VXO}, v{TMP}, 4, v{VXO}
    s_lshr_b32 s{S_T1}, s{S_ROLE}, 1
    s_lshl_b32 s{S_T1}, s{S_T1}, 9
    s_and_b32 s{S_T2}, s{S_T0}, 8
    s_add_u32 s{S_T1}, s{S_T1}, s{S_T2}
    v_lshlrev_b32 v{VSO}, 4, v{TMP}
    v_add_u32 v{VSO}, s{S_T1}, v{VSO}
    s_mov_b32 s36, 0x01010101
    s_mov_b32 s37, 0x01010101
    ''')

def red_epilogue(a, ACC, VRW, VRR, XRES, T, store_x, store_st, lds_off=0, extra=(), st=None, il=False):
    extra = list(extra)
    for _ in range(2):
        if extra: extra.pop(0)()
    for t in range(2):
        for rq in range(4):
            a(f'ds_write_b128 v{VRW}, v[{ACC+16*t+4*rq}:{ACC+16*t+4*rq+3}] offset:{lds_off+t*PT+((0,2,1,3)[rq] if il else rq)*PQ}')
            if extra: extra.pop(0)()
    X = ACC
    for x in extra: x()
    a('s_waitcnt lgkmcnt(0)')
    if st: st.cyc(4)
    a('s_barrier')
    if st: st.cyc(5)
    for w in range(4):
        for j in range(2):
            a(f'ds_read_b128 v[{T+8*w+4*j}:{T+8*w+4*j+3}], v{VRR} offset:{lds_off+w*PW+j*PQ}')
    lo = (lambda i: X + i) if il else (lambda i: X + 2 * i)
    hi = (lambda i: X + 4 + i) if il else (lambda i: X + 2 * i + 1)
    for i in range(4):
        a(f'v_lshlrev_b32 v{lo(i)}, 16, v{XRES+i}')
        a(f'v_and_b32 v{hi(i)}, 0xffff0000, v{XRES+i}')
    for w in range(4):
        a(f's_waitcnt lgkmcnt({6-2*w})')
        for i in range(0, 8, 2):
            a(f'v_pk_add_f32 v[{X+i}:{X+i+1}], v[{X+i}:{X+i+1}], v[{T+8*w+i}:{T+8*w+i+1}]')
    for i in range(4): a(f'v_cvt_pk_bf16_f32 v{XRES+i}, v{lo(i)}, v{hi(i)}')
    if st: st.cyc(6)
    store_x(XRES)
    if store_st is None: return
    for i in range(4):
        a(f'v_lshlrev_b32 v{X+2*i}, 16, v{XRES+i}')
        a(f'v_and_b32 v{X+2*i+1}, 0xffff0000, v{XRES+i}')
    a(f'v_pk_add_f32 v[{T}:{T+1}], v[{X}:{X+1}], v[{X+2}:{X+3}]')
    a(f'v_pk_mul_f32 v[{T+2}:{T+3}], v[{X}:{X+1}], v[{X}:{X+1}]')
    a(f'v_pk_add_f32 v[{T+4}:{T+5}], v[{X+4}:{X+5}], v[{X+6}:{X+7}]')
    for i in (2, 4, 6): a(f'v_pk_fma_f32 v[{T+2}:{T+3}], v[{X+i}:{X+i+1}], v[{X+i}:{X+i+1}], v[{T+2}:{T+3}]')
    a(f'v_pk_add_f32 v[{T}:{T+1}], v[{T}:{T+1}], v[{T+4}:{T+5}]')
    a(f'v_add_f32 v{T}, v{T}, v{T+1}')
    a(f'v_add_f32 v{T+1}, v{T+2}, v{T+3}')
    for d in ('quad_perm:[1,0,3,2]', 'quad_perm:[2,3,0,1]', 'row_half_mirror'):
        for r in (T, T + 1): a(f'v_add_f32_dpp v{r}, v{r}, v{r} {d} row_mask:0xf bank_mask:0xf')
    a('s_mov_b64 exec, s[36:37]')
    store_st(T)
    a('s_mov_b64 exec, -1')

def red_list(a, ACC, VRW, VRR, XRES, T, store_x, store_st):
    o = []
    for t in range(2):
        for rq in range(4): o.append(f'ds_write_b128 v{VRW}, v[{ACC+16*t+4*rq}:{ACC+16*t+4*rq+3}] offset:{t*PT+rq*PQ}')
    X = ACC
    o += [None] * 3
    o.append('s_waitcnt lgkmcnt(0)\ns_barrier')
    for w in range(4):
        for j in range(2): o.append(f'ds_read_b128 v[{T+8*w+4*j}:{T+8*w+4*j+3}], v{VRR} offset:{w*PW+j*PQ}')
    for i in range(4): o += [f'v_lshlrev_b32 v{X+2*i}, 16, v{XRES+i}', f'v_and_b32 v{X+2*i+1}, 0xffff0000, v{XRES+i}']
    for w in range(4):
        o.append(f's_waitcnt lgkmcnt({6-2*w})')
        for i in range(0, 8, 2): o.append(f'v_pk_add_f32 v[{X+i}:{X+i+1}], v[{X+i}:{X+i+1}], v[{T+8*w+i}:{T+8*w+i+1}]')
    for i in range(4): o.append(f'v_cvt_pk_bf16_f32 v{XRES+i}, v{X+2*i}, v{X+2*i+1}')
    o.append(store_x)
    if store_st is None: return o
    for i in range(4): o += [f'v_lshlrev_b32 v{X+2*i}, 16, v{XRES+i}', f'v_and_b32 v{X+2*i+1}, 0xffff0000, v{XRES+i}']
    o += [f'v_pk_add_f32 v[{T}:{T+1}], v[{X}:{X+1}], v[{X+2}:{X+3}]', f'v_pk_mul_f32 v[{T+2}:{T+3}], v[{X}:{X+1}], v[{X}:{X+1}]',
          f'v_pk_add_f32 v[{T+4}:{T+5}], v[{X+4}:{X+5}], v[{X+6}:{X+7}]']
    for i in (2, 4, 6): o.append(f'v_pk_fma_f32 v[{T+2}:{T+3}], v[{X+i}:{X+i+1}], v[{X+i}:{X+i+1}], v[{T+2}:{T+3}]')
    o += [f'v_pk_add_f32 v[{T}:{T+1}], v[{T}:{T+1}], v[{T+4}:{T+5}]', f'v_add_f32 v{T}, v{T}, v{T+1}', f'v_add_f32 v{T+1}, v{T+2}, v{T+3}']
    for d in ('quad_perm:[1,0,3,2]', 'quad_perm:[2,3,0,1]', 'row_half_mirror'):
        for r in (T, T + 1): o.append(f'v_add_f32_dpp v{r}, v{r}, v{r} {d} row_mask:0xf bank_mask:0xf')
    o.append(store_st)
    return o

def role_F2(a, stamps=False, mode='sc1'):
    st = Stamps(a, stamps)
    W = lambda t, kk: 256 + 112 * t + 4 * kk
    VL16, VZ, VONE, VFL, VRW, VRR, VXO, VSO, VOUT = 2, 4, 5, 7, 8, 9, 10, 11, 12
    TMP = 18; XRES = 20; ACC = 48; T = 80; H = 112
    S_H, S_XI, S_XO, S_SO, S_FI, S_FO = 25, 26, 27, 28, 29, 30
    OSRD = 's[40:43]'
    a(f'''
    s_load_dwordx4 s[48:51], s[0:1], 80
    s_lshl_b32 s{S_T0}, s{S_ROLE}, 2
    s_add_u32 s{S_T0}, s{S_T0}, s{S_W}
    v_lshlrev_b32 v{VL16}, 4, {lane}
    v_lshrrev_b32 v{TMP}, 3, {lane}
    v_mul_u32_u24 v{H}, 896, v{TMP}
    v_and_b32 v{TMP}, 7, {lane}
    v_lshl_add_u32 v{H}, v{TMP}, 4, v{H}
    s_mul_i32 s{S_T2}, s{S_W}, {448*896}
    s_lshl_b32 s{S_T1}, s{S_ROLE}, 7
    s_add_u32 s{S_T2}, s{S_T2}, s{S_T1}
    s_waitcnt lgkmcnt(0)
    s_mov_b32 s44, s48
    s_and_b32 s45, s49, 0xffff
    s_mov_b32 s46, {1792*896}
    s_mov_b32 s47, 0x00020000
    s_mov_b32 s40, s50
    s_and_b32 s41, s51, 0xffff
    s_mov_b32 s42, {2048*896}
    s_mov_b32 s43, 0x00020000
    ''')
    tr_addr(a, H + 1, TMP, TMP + 1, 7, 5)
    load_w_tr(a, W, lambda ks, p: f'buffer_load_dwordx4 v{H}, s[44:47], s{S_T2} offen lds\ns_add_u32 s{S_T2}, s{S_T2}, {8*896}', H + 1, 64, 512)
    a(f'''
    s_mul_i32 s{S_H}, s{S_LAYER}, {64*L.HB_SZ}
    s_mul_i32 s{S_T1}, s{S_W}, 28672
    s_add_u32 s{S_H}, s{S_H}, s{S_T1}
    s_add_u32 s{S_H}, s{S_H}, {L.HB}
    s_lshl_b32 s{S_T1}, s{S_LAYER}, 15
    s_mul_i32 s{S_FI}, s{S_W}, 56
    s_add_u32 s{S_FI}, s{S_FI}, s{S_T1}
    s_add_u32 s{S_FI}, s{S_FI}, {L.flag(L.FL_H)}
    s_lshl_b32 s{S_FO}, s{S_T0}, 2
    s_add_u32 s{S_FO}, s{S_FO}, s{S_T1}
    s_add_u32 s{S_FO}, s{S_FO}, {L.flag(L.FL_X)}
    s_lshr_b32 s{S_T1}, s{S_ROLE}, 1
    s_mul_i32 s{S_T1}, s{S_T1}, 96
    s_add_u32 s{S_FO}, s{S_FO}, s{S_T1}
    s_mul_i32 s{S_XI}, s{S_LAYER}, {128*L.XN_SZ}
    s_add_u32 s{S_XI}, s{S_XI}, {L.XS + 64*L.XN_SZ}
    s_mov_b32 s{S_XO}, {L.XS + 128*L.XN_SZ}
    s_mov_b32 s{S_SO}, {L.ST + 128*L.ST_SZ}
    v_mov_b32 v{VZ}, 0
    v_mov_b32 v{VONE}, 1
    v_min_u32 v{VFL}, 13, {lane}
    v_lshlrev_b32 v{VFL}, 2, v{VFL}
    s_mov_b32 s{S_STEP}, 0
    s_mov_b32 s35, 0
    ''')
    red_setup(a, VRW, VRR, VXO, VSO, TMP)
    a(f'''
    v_mul_u32_u24 v{VOUT}, 896, v{TMP}
    v_and_b32 v{TMP}, 7, {lane}
    v_add_u32 v{TMP}, s{S_T0}, v{TMP}
    v_lshl_add_u32 v{VOUT}, v{TMP}, 4, v{VOUT}
    ''')
    VNF = 13
    AH = 12
    AC = (48, 224); XRS = (20, 24); RW = (VRW, 14); RD = (VRR, 15)
    a(f'v_add_u32 v14, {4*PW}, v{VRW}')
    a(f'v_add_u32 v15, {4*PW}, v{VRR}')
    def ldt(kk):
        x = f'buffer_load_dwordx4 v[{H+4*kk}:{H+4*kk+3}], v{VL16}, {SRD}, s{S_H} offen offset:{(kk % 4) * 1024} sc1'
        if kk % 4 == 3: x += f'\ns_add_u32 s{S_H}, s{S_H}, {4096 if kk < 27 else L.HB_SZ - 6 * 4096}'
        return x
    def ld(kk): a(ldt(kk), tag=('h', kk))
    def gen(layer):
        lab = {(k, b): a.newlabel(f'F2_{k}{b}') for k in 'CWP' for b in range(2)}
        def epi(b):
            r = XRS[b]
            if layer == 0:
                sx = lambda: a(f'buffer_store_dwordx4 v[{r}:{r+3}], v{VXO}, {SRD}, s{S_XO} offen sc1\ns_add_u32 s{S_XO}, s{S_XO}, {L.XN_SZ}')
                ss = lambda: a(f's_mov_b64 exec, s[36:37]\nbuffer_store_dwordx2 v[{T}:{T+1}], v{VSO}, {SRD}, s{S_SO} offen sc1\ns_mov_b64 exec, -1\ns_add_u32 s{S_SO}, s{S_SO}, {L.ST_SZ}', tag='so')
            else:
                sx = lambda: a(f'buffer_store_dwordx4 v[{r}:{r+3}], v{VOUT}, {OSRD}, s35 offen\ns_add_u32 s35, s35, {32*896}')
                ss = None
            return red_list(a, AC[b], RW[b], RD[b], r, T, sx, ss)
        def flag():
            if layer == 0:
                a.wait_vm('so'); signal(a, S_FO, VZ, VONE, 'sc1', wait='')
                a(f's_add_u32 s{S_FO}, s{S_FO}, 512')
        def steps(b, k0, k1, side, pre, pend=False):
            for kk in range(k0, k1):
                a.wait_vm(('h', kk))
                if pend and kk == 11: flag()
                for t in range(2):
                    c = f'v[{AC[b]+16*t}:{AC[b]+16*t+15}]'
                    a(f'v_mfma_f32_32x32x16_bf16 {c}, {R(W(t,kk),4)}, v[{H+4*kk}:{H+4*kk+3}], {"0" if kk == 0 else c}')
                    budget = 4
                    if t == 0:
                        budget = 3
                        if kk == 3: a(f'buffer_load_dword v{VNF}, v{VFL}, {SRD}, s{S_FI} offen sc1')
                        if kk == 15: a(f'buffer_load_dwordx4 v[{XRS[b]}:{XRS[b]+3}], v{VXO}, {SRD}, s{S_XI} offen sc1\ns_add_u32 s{S_XI}, s{S_XI}, {L.XN_SZ}')
                        if kk + AH < 28: ld(kk + AH)
                        elif pre: a(ldt(kk + AH - 28), tag=('n', kk + AH - 28))
                        elif kk == 21: a(f'buffer_load_dword v{VNF}, v{VFL}, {SRD}, s{S_FI} offen sc1', tag='nf2')
                    while side and budget > 0:
                        x = side.pop(0)
                        if x is None: break
                        x() if callable(x) else a(x)
                        budget -= 4 if (not callable(x) and x.startswith('ds_write')) else 1
        def main(b, warm, pend=False):
            st()
            a(f's_add_u32 s{S_FI}, s{S_FI}, 512')
            side = [None] * 2 + [y for x in epi(1 - b) for y in (unpk([x]) if x else [x])] if warm else []
            steps(b, 0, 16, side, False, pend)
            np_ = a.newlabel('F2_NP')
            a(f'''
            s_add_u32 s{S_STEP}, s{S_STEP}, 1
            v_cmp_eq_u32 vcc, 0, v{VNF}
            s_cmp_eq_u32 s{S_STEP}, 64
            s_cselect_b64 vcc, -1, vcc
            ''')
            a.br(f's_cbranch_vccnz {np_}')
            state = (list(a.vm), list(a.lg), list(a.hist), st.n)
            def tail(pre):
                sd = list(side)
                steps(b, 16, 28, sd, pre)
                assert not sd
                if warm: flag()
                st()
                if stamps: a(f's_sub_u32 s34, s{S_STEP}, 1')
                st.flush(12 << 20, TMP, TMP + 1, sstep=34)
            tail(True)
            a(f's_branch {lab[("W", 1 - b)]}')
            a.label(np_); a.vm, a.lg, a.hist, st.n = list(state[0]), list(state[1]), list(state[2]), state[3]
            tail(False)
            cold = a.newlabel('F2_CE')
            a.wait_vm('nf2')
            a(f'''
            v_cmp_eq_u32 vcc, 0, v{VNF}
            s_cmp_eq_u32 s{S_STEP}, 64
            s_cselect_b64 vcc, -1, vcc
            ''')
            a.br(f's_cbranch_vccnz {cold}')
            state = (list(a.vm), list(a.lg), list(a.hist))
            k = 0
            for x in [None, None] + epi(b):
                if x: x() if callable(x) else a(x)
                if k < AH: a(ldt(k)); k += 1
            a(f's_branch {lab[("P", 1 - b)]}')
            a.label(cold); a.vm, a.lg, a.hist = state
            for x in epi(b):
                if x: x() if callable(x) else a(x)
            a(f'buffer_load_dword v{VNF}, v{VFL}, {SRD}, s{S_FI} offen sc1', tag='nf')
            flag()
            a(f's_cmp_ge_u32 s{S_STEP}, 64')
            a.opt_begin('s_cbranch_scc0'); a('s_endpgm'); a.opt_end()
            a.wait_vm('nf')
            a(f's_branch {lab[("C", 1 - b)]}')
        a(f'v_mov_b32 v{VNF}, 0')
        for b in range(2):
            a.flush(); a.label(lab[('C', b)]); a.vm = []; a.lg = []
            a(f'v_cmp_eq_u32 vcc, 0, v{VNF}')
            a.opt_begin('s_cbranch_vccz')
            wait_flags(a, S_FI, VFL, TMP, sleep=1)
            a.opt_end()
            for kk in range(AH): ld(kk)
            main(b, False)
            a.label(lab[('W', b)]); a.vm = [('h', kk) for kk in range(AH)]; a.lg = []
            main(b, True)
            a.label(lab[('P', b)]); a.vm = [('h', kk) for kk in range(AH)] + ([None, 'so'] if layer == 0 else [None]); a.lg = []
            main(b, False, True)
    l1 = a.newlabel('F2_L1')
    a(f's_cmp_eq_u32 s{S_LAYER}, 1')
    a(f's_cbranch_scc1 {l1}')
    gen(0)
    a.label(l1)
    gen(1)

def role_PU(a, stamps=False, mode='sc1'):
    st = Stamps(a, stamps)
    VL16, VZ, VONE, VFU, VRW, VRR, VXO, VSO, VUX, VUM, VFT, VFM = 2, 4, 5, 7, 8, 9, 10, 11, 12, 13, 14, 15
    TMP = 18; XRES = 20; ACC = 48; T = 80
    UF = lambda t, k: 112 + 40 * t + 4 * k
    PF = lambda k: 192 + 4 * k
    S_UX, S_UM, S_PX, S_XI, S_XO, S_SO, S_FL, S_FO = 21, 22, 23, 24, 25, 26, 27, 28
    a(f'''
    v_lshlrev_b32 v{VL16}, 4, {lane}
    v_mov_b32 v{VZ}, 0
    v_mov_b32 v{VONE}, 1
    ''')
    red_setup(a, VRW, VRR, VXO, VSO, TMP, il=True)
    a(f'''
    v_mov_b32 v{VUX}, v{VL16}
    v_and_b32 v{VUM}, 15, {lane}
    v_lshlrev_b32 v{VUM}, 4, v{VUM}
    v_bfe_u32 v{TMP}, {lane}, 4, 1
    v_lshl_add_u32 v{VUM}, v{TMP}, 10, v{VUM}
    v_lshrrev_b32 v{TMP}, 5, {lane}
    v_lshl_add_u32 v{VUM}, v{TMP}, 8, v{VUM}
    v_and_b32 v{VFU}, 1, {lane}
    v_mul_u32_u24 v{VFU}, 14, v{VFU}
    v_bfe_u32 v{TMP}, {lane}, 1, 1
    v_add_u32 v{VFU}, v{VFU}, v{TMP}
    s_mul_i32 s{S_T0}, s{S_W}, 28
    s_lshl_b32 s{S_T1}, s{S_ROLE}, 1
    s_add_u32 s{S_T0}, s{S_T0}, s{S_T1}
    v_add_u32 v{VFU}, s{S_T0}, v{VFU}
    v_lshrrev_b32 v{TMP}, 3, v{VFU}
    v_mul_u32_u24 v{TMP}, 24, v{TMP}
    v_add_lshl_u32 v{VFU}, v{VFU}, v{TMP}, 2
    v_add_u32 v{VFU}, {L.FLU}, v{VFU}
    ; T flags: 16w + (l&15)
    v_and_b32 v{VFT}, 15, {lane}
    s_lshl_b32 s{S_T0}, s{S_W}, 5
    v_add_u32 v{VFT}, s{S_T0}, v{VFT}
    v_lshlrev_b32 v{VFT}, 2, v{VFT}
    v_add_u32 v{VFT}, {L.flag(L.FL_T)}, v{VFT}
    v_and_b32 v{VFM}, 1, {lane}
    v_add_u32 v{VFM}, s{S_T1}, v{VFM}
    v_lshlrev_b32 v{VFM}, 2, v{VFM}
    v_add_u32 v{VFM}, s{S_W}, v{VFM}
    v_lshlrev_b32 v{VFM}, 2, v{VFM}
    v_add_u32 v{VFM}, {L.flag(L.FL_UM)}, v{VFM}
    s_lshl_b32 s{S_FL}, s{S_LAYER}, 15
    s_lshl_b32 s{S_T0}, s{S_ROLE}, 2
    s_add_u32 s{S_T0}, s{S_T0}, s{S_W}
    s_lshl_b32 s{S_FO}, s{S_T0}, 2
    s_add_u32 s{S_FO}, s{S_FO}, s{S_FL}
    s_add_u32 s{S_FO}, s{S_FO}, {L.flag(L.FL_P)}
    s_lshr_b32 s{S_T1}, s{S_ROLE}, 1
    s_mul_i32 s{S_T1}, s{S_T1}, 96
    s_add_u32 s{S_FO}, s{S_FO}, s{S_T1}
    s_mul_i32 s{S_UX}, s{S_LAYER}, {64*L.UX_SZ}
    s_mul_i32 s{S_T0}, s{S_W}, {4*28672}
    s_add_u32 s{S_UX}, s{S_UX}, s{S_T0}
    s_lshl_b32 s{S_T0}, s{S_ROLE}, 12
    s_add_u32 s{S_UX}, s{S_UX}, s{S_T0}
    s_add_u32 s{S_UX}, s{S_UX}, {L.UX}
    s_mul_i32 s{S_UM}, s{S_LAYER}, {64*L.UM_SZ}
    s_lshl_b32 s{S_T0}, s{S_ROLE}, 14
    s_add_u32 s{S_UM}, s{S_UM}, s{S_T0}
    s_lshl_b32 s{S_T0}, s{S_W}, 11
    s_add_u32 s{S_UM}, s{S_UM}, s{S_T0}
    s_add_u32 s{S_UM}, s{S_UM}, {L.UM}
    s_mul_i32 s{S_PX}, s{S_LAYER}, {64*L.PX_SZ}
    s_mul_i32 s{S_T0}, s{S_W}, 10240
    s_add_u32 s{S_PX}, s{S_PX}, s{S_T0}
    s_add_u32 s{S_PX}, s{S_PX}, {L.PX}
    s_mul_i32 s{S_XI}, s{S_LAYER}, {128*L.XN_SZ}
    s_add_u32 s{S_XI}, s{S_XI}, {L.XS}
    s_add_u32 s{S_XO}, s{S_XI}, {64*L.XN_SZ}
    s_lshl_b32 s{S_SO}, s{S_LAYER}, 18
    s_add_u32 s{S_SO}, s{S_SO}, {L.ST + 64*L.ST_SZ}
    s_mov_b32 s{S_STEP}, s50
    s_mul_i32 s{S_T0}, s50, {L.UX_SZ}
    s_add_u32 s{S_UX}, s{S_UX}, s{S_T0}
    s_mul_i32 s{S_T0}, s50, {L.UM_SZ}
    s_add_u32 s{S_UM}, s{S_UM}, s{S_T0}
    s_mul_i32 s{S_T0}, s50, {L.PX_SZ}
    s_add_u32 s{S_PX}, s{S_PX}, s{S_T0}
    s_mul_i32 s{S_T0}, s50, {L.XN_SZ}
    s_add_u32 s{S_XI}, s{S_XI}, s{S_T0}
    s_add_u32 s{S_XO}, s{S_XO}, s{S_T0}
    s_mul_i32 s{S_T0}, s50, {L.ST_SZ}
    s_add_u32 s{S_SO}, s{S_SO}, s{S_T0}
    s_lshl_b32 s{S_T0}, s50, 9
    s_add_u32 s{S_FL}, s{S_FL}, s{S_T0}
    s_add_u32 s{S_FO}, s{S_FO}, s{S_T0}
    ''')
    UXF = lambda t, k: 256 + 32 * t + 4 * k
    UM4 = lambda t, kk2: 112 + 8 * t + 4 * kk2
    a(f'''
    v_add_u32 v32, {4*PW}, v{VRW}
    v_add_u32 v33, {4*PW}, v{VRR}
    v_cmp_gt_u32 vcc, 32, {lane}
    v_and_b32 v{VFM}, 3, {lane}
    v_lshlrev_b32 v{VFM}, 2, v{VFM}
    v_add_u32 v{VFM}, {L.FLU + 1792}, v{VFM}
    v_cndmask_b32 v{VFM}, v{VFM}, v{VFU}, vcc
    s_add_u32 s29, s{S_UM}, 8192
    ''')
    uml = [f'buffer_load_dwordx4 v[{UM4(t,kk2)}:{UM4(t,kk2)+3}], v{VUM}, {SRD}, s{S_UM if t == 0 else 29} offen offset:{512*kk2} sc1' for kk2 in range(2) for t in range(2)]
    def body(mode):
        loop = a.newlabel('PU_LOOP')
        a.flush(); a.label(loop)
        for b in range(2):
            a.vm = []; a.lg = []
            a(f's_lshl_b32 s30, s{S_FL}, 2')
            wait_flags(a, 30, VFM, TMP, sleep=2)
            for hh in range(4):
                for t in range(2):
                    for kh in range(2):
                        a(f'buffer_load_dwordx4 {R(UXF(t, 2*hh+kh), 4)}, v{VUX}, {SRD}, s{S_UX} offen offset:{2048*t+1024*kh} sc1')
                a(f's_add_u32 s{S_UX}, s{S_UX}, {28672 if hh < 3 else 2*L.UX_SZ - 3*28672}')
            a(f'buffer_load_dwordx4 v[{XRES}:{XRES+3}], v{VXO}, {SRD}, s{S_XI} offen sc1')
            a(f's_add_u32 s{S_XI}, s{S_XI}, {2*L.XN_SZ}')
            wait_flags(a, S_FL, VFT, TMP, sleep=1)
            st()
            order = [0, 1, 2, 3, 'm', 4, 5, 6, 7, 8, 9]
            def pld(k):
                if k == 'm':
                    for x in uml: a(x, tag='m')
                    return
                a(f'buffer_load_dwordx4 v[{PF(k)}:{PF(k)+3}], v{VL16}, {SRD}, s{S_PX} offen offset:{(k % 4) * 1024} sc1', tag=('p', k))
                if k % 4 == 3: a(f's_add_u32 s{S_PX}, s{S_PX}, 4096')
            for k in range(10): pld(k)
            pld('m')
            a(f's_add_u32 s{S_PX}, s{S_PX}, {2*L.PX_SZ - 8192}')
            a(f's_add_u32 s{S_FL}, s{S_FL}, 1024')
            for k in range(10):
                if k < 8: a.wait_vm(('p', k))
                if k == 8:
                    a.wait_vm('m')
                    check(a, range(112, 128), TMP)
                    a.opt_begin('s_cbranch_vccz')
                    poll(a, uml, range(112, 128), TMP, sleep=1)
                    a.opt_end()
                    a(f's_add_u32 s{S_UM}, s{S_UM}, {2*L.UM_SZ}')
                    a(f's_add_u32 s29, s29, {2*L.UM_SZ}')
                for t in range(2):
                    c = f'v[{ACC+16*t}:{ACC+16*t+15}]'
                    u = R(UXF(t, k), 4) if k < 8 else f'v[{UM4(t,k-8)}:{UM4(t,k-8)+3}]'
                    a(f'v_mfma_f32_32x32x16_bf16 {c}, {u}, v[{PF(k)}:{PF(k)+3}], {"0" if k == 0 else c}')
            st()
            def sx(r):
                a(f'buffer_store_dwordx4 v[{r}:{r+3}], v{VXO}, {SRD}, s{S_XO} offen {mode}')
            red_epilogue(a, ACC, (VRW, 32)[b], (VRR, 33)[b], XRES, T, sx,
                         lambda r: a(f'buffer_store_dwordx2 v[{r}:{r+1}], v{VSO}, {SRD}, s{S_SO} offen {mode}'), il=True)
            st()
            signal(a, S_FO, VZ, VONE, mode)
            st()
            st.flush(8 << 20, TMP, TMP + 1)
            a(f'''
            s_add_u32 s{S_XO}, s{S_XO}, {2*L.XN_SZ}
            s_add_u32 s{S_SO}, s{S_SO}, {2*L.ST_SZ}
            s_add_u32 s{S_FO}, s{S_FO}, 1024
            s_add_u32 s{S_STEP}, s{S_STEP}, 2
            ''')
        a(f'''
        s_cmp_lt_u32 s{S_STEP}, 64
        s_cbranch_scc1 {loop}
        s_endpgm
        ''')
    mode_split(a, body, TMP, force_slow=51)

def role_T(a, stamps=False):
    st = Stamps(a, stamps)
    WR = [256 + 4 * i for i in range(64)] + [120 + 4 * i for i in range(34)]
    W = lambda t, ks: WR[14 * t + ks]
    ACC = lambda tt, t: 0 + 28 * tt + 4 * t
    TB = lambda tt, kk: 56 + 14 * tt + 4 * kk
    FR = 84
    VL16, VFB, VHB, VHB3, VMA, VMA3, VSXW, VSXR, VSMW, VSMR, VPX, VPM, VFL, VZ, VONE, VROW = range(96, 112)
    TMP = 112
    SX = lambda c: 0 + 4 * c
    HF = 12
    SM = lambda tt: 28 + 4 * tt
    MF = 36
    XV = 50
    RS = 144
    LDS_SX = 2 * XBUF
    LDS_SM = LDS_SX + 4 * 32 * RS
    S_XN, S_MX, S_PX, S_FI, S_FO, S_ZERO = 21, 22, 23, 24, 25, 26
    a(f'''
    s_and_b32 s27, s{S_ROLE}, 15
    s_lshr_b32 s{S_STEP}, s{S_ROLE}, 4
    s_lshl_b32 s{S_T0}, s27, 2
    s_add_u32 s{S_T0}, s{S_T0}, s{S_W}
    s_mul_i32 s{S_T2}, s{S_T0}, 100352
    s_add_u32 s{S_T2}, s{S_T2}, {L.WA}
    v_lshlrev_b32 v{VL16}, 4, {lane}
    ''')
    a(f'''
    v_min_u32 v{TMP+1}, 13, {lane}
    v_lshlrev_b32 v{TMP+1}, 2, v{TMP+1}
    s_lshl_b32 s{S_T1}, s27, 7
    v_add_u32 v{TMP+1}, s{S_T1}, v{TMP+1}
    ''')
    a(f'''
    v_bfe_u32 v{VFB}, {lane}, 3, 1
    v_mul_u32_u24 v{VFB}, 14336, v{VFB}
    v_lshrrev_b32 v{TMP}, 4, {lane}
    v_lshl_add_u32 v{VFB}, v{TMP}, 8, v{VFB}
    v_bfe_u32 v{TMP}, {lane}, 2, 1
    v_lshl_add_u32 v{VFB}, v{TMP}, 7, v{VFB}
    v_and_b32 v{TMP}, 3, {lane}
    v_lshl_add_u32 v{VFB}, v{TMP}, 4, v{VFB}
    ''')
    prep2.prog_load(a, [[(f's_add_u32 s{S_T3}, s{S_T2}, {14336*(t&~1)+2048*j}\n' if i == 0 else '') + f'buffer_load_dwordx4 {R(W(t, 2*j+i), 4)}, v{VFB if t < 6 else VL16}, {SRD}, s{S_T3} offen offset:{1024*i+64*(t&1)} sc1'
                         for t in range(7) for i in range(2)] for j in range(7)], TMP + 1, TMP)
    q, c = TMP, TMP + 1
    a(f'''
    s_lshl_b32 s{S_T1}, s{S_LAYER}, 6
    s_add_u32 s{S_T1}, s{S_T1}, s{S_STEP}
    s_mul_i32 s{S_XN}, s{S_T1}, {L.XN_SZ}
    s_add_u32 s{S_XN}, s{S_XN}, {L.XN}
    s_mul_i32 s{S_MX}, s{S_T1}, {L.MEM_SZ}
    s_add_u32 s{S_MX}, s{S_MX}, {L.MEMX}
    s_mul_i32 s{S_PX}, s{S_T1}, {L.PX_SZ}
    s_add_u32 s{S_PX}, s{S_PX}, {L.PX}
    s_lshl_b32 s{S_FI}, s{S_T1}, 9
    s_lshl_b32 s{S_FO}, s{S_T0}, 2
    s_add_u32 s{S_FO}, s{S_FO}, s{S_FI}
    s_add_u32 s{S_FO}, s{S_FO}, {L.flag(L.FL_T)}
    s_lshr_b32 s{S_T3}, s27, 2
    s_lshl_b32 s{S_T3}, s{S_T3}, 6
    s_add_u32 s{S_FO}, s{S_FO}, s{S_T3}
    s_lshl_b32 s{S_FI}, s{S_FI}, 2
    s_add_u32 s{S_FI}, s{S_FI}, {L.FLXN}
    s_mov_b32 s{S_ZERO}, 0
    v_mov_b32 v{VZ}, 0
    v_mov_b32 v{VONE}, 1
    v_min_u32 v{VFL}, 55, {lane}
    v_lshrrev_b32 v{TMP}, 2, v{VFL}
    v_mul_u32_u24 v{TMP}, 12, v{TMP}
    v_add_lshl_u32 v{VFL}, v{VFL}, v{TMP}, 3
    v_lshrrev_b32 v{q}, 4, {lane}
    v_and_b32 v{c}, 15, {lane}
    v_and_b32 v{TMP+6}, 1, {lane}
    v_lshlrev_b32 v{TMP+6}, 4, v{TMP+6}
    v_bfe_u32 v{TMP+7}, {lane}, 1, 1
    v_lshl_add_u32 v{TMP+6}, v{TMP+7}, 2, v{TMP+6}
    v_bfe_u32 v{TMP+7}, {lane}, 2, 2
    v_add_u32 v{TMP+6}, v{TMP+6}, v{TMP+7}
    v_lshlrev_b32 v{VFB}, 9, v{q}
    v_lshl_add_u32 v{VFB}, v{TMP+6}, 4, v{VFB}
    s_mul_i32 s{S_T1}, s{S_W}, 14
    s_lshl_b32 s{S_T2}, s{S_T1}, 9
    v_add_u32 v{VHB}, s{S_T2}, v{VFB}
    v_lshrrev_b32 v{TMP+2}, 5, {lane}
    v_add_u32 v{TMP+2}, s{S_T1}, v{TMP+2}
    v_add_u32 v{TMP+2}, 12, v{TMP+2}
    v_and_b32 v{TMP+3}, 1, v{q}
    v_lshlrev_b32 v{VHB3}, 9, v{TMP+2}
    v_lshl_add_u32 v{VHB3}, v{TMP+6}, 4, v{VHB3}
    v_lshl_add_u32 v{VHB3}, v{TMP+3}, 3, v{VHB3}
    v_and_b32 v{TMP+4}, 7, {lane}
    v_add_u32 v{VMA}, s{S_T1}, v{q}
    v_lshlrev_b32 v{VMA}, 7, v{VMA}
    v_lshl_add_u32 v{VMA}, v{TMP+4}, 4, v{VMA}
    v_lshlrev_b32 v{VMA3}, 7, v{TMP+2}
    v_lshl_add_u32 v{VMA3}, v{TMP+4}, 4, v{VMA3}
    v_lshl_add_u32 v{VMA3}, v{TMP+3}, 3, v{VMA3}
    s_mul_i32 s{S_T2}, s{S_W}, {32*RS}
    s_add_u32 s{S_T2}, s{S_T2}, {LDS_SX}
    v_mul_u32_u24 v{VSXW}, {RS}, v{c}
    v_lshl_add_u32 v{VSXW}, v{q}, 4, v{VSXW}
    v_add_u32 v{VSXW}, s{S_T2}, v{VSXW}
    s_lshl_b32 s{S_T2}, s{S_W}, 10
    s_add_u32 s{S_T2}, s{S_T2}, {LDS_SM}
    v_lshlrev_b32 v{VSMW}, 5, v{c}
    v_lshl_add_u32 v{VSMW}, v{TMP+3}, 4, v{VSMW}
    v_add_u32 v{VSMW}, s{S_T2}, v{VSMW}
    v_lshrrev_b32 v{VROW}, 3, {lane}
    s_lshl_b32 s{S_T2}, s{S_W}, 3
    v_add_u32 v{VROW}, s{S_T2}, v{VROW}
    v_mul_u32_u24 v{VSXR}, {RS}, v{VROW}
    v_lshl_add_u32 v{VSXR}, v{TMP+4}, 4, v{VSXR}
    v_add_u32 v{VSXR}, {LDS_SX}, v{VSXR}
    v_lshlrev_b32 v{VSMR}, 5, v{VROW}
    v_lshl_add_u32 v{VSMR}, v{TMP+4}, 2, v{VSMR}
    v_add_u32 v{VSMR}, {LDS_SM}, v{VSMR}
    v_lshrrev_b32 v{TMP+5}, 1, v{TMP+4}
    v_lshlrev_b32 v{VPM}, 9, v{TMP+5}
    v_lshl_add_u32 v{VPM}, v{VROW}, 4, v{VPM}
    v_and_b32 v{TMP+5}, 1, {lane}
    v_lshl_add_u32 v{VPX}, v{TMP+5}, 3, v{VPM}
    s_lshr_b32 s{S_T1}, s27, 2
    s_mul_i32 s{S_T1}, s{S_T1}, 10240
    s_and_b32 s{S_T2}, s27, 3
    s_lshl_b32 s{S_T3}, s{S_T2}, 11
    s_add_u32 s{S_T3}, s{S_T3}, s{S_T1}
    v_add_u32 v{VPX}, s{S_T3}, v{VPX}
    s_lshl_b32 s{S_T3}, s{S_T2}, 2
    s_add_u32 s{S_T3}, s{S_T3}, s{S_T1}
    s_add_u32 s{S_T3}, s{S_T3}, 8192
    v_add_u32 v{VPM}, s{S_T3}, v{VPM}
    v_lshlrev_b32 v{TMP+5}, 2, v{TMP+4}
    v_sub_u32 v{VROW}, v{VROW}, v{TMP+5}
    v_cmp_le_i32 s[40:41], 0, v{VROW}
    v_cmp_le_i32 s[42:43], 1, v{VROW}
    v_cmp_le_i32 s[44:45], 2, v{VROW}
    v_cmp_le_i32 s[46:47], 3, v{VROW}
    v_mov_b32 v{VROW}, 0xf149f2ca
    s_mov_b32 s48, 0x55555555
    s_mov_b32 s49, 0x55555555
    s_mov_b32 s52, {XBUF}
    ''')
    a(f'''
    s_lshl_b32 s36, s{S_W}, 10
    s_add_u32 s{S_XN}, s{S_XN}, s36
    s_mov_b64 vcc, 0
    ''')
    loop, nd = a.newlabel('T_LOOP'), a.newlabel('T_ND')
    NF = TMP + 6
    a.flush(); a.label(loop); a.vm = []; a.lg = []
    a(f's_add_u32 s37, s{S_ZERO}, s36')
    a.br(f's_cbranch_vccnz {nd}')
    wait_flags(a, S_FI, VFL, TMP, width=2, sleep=1)
    for j, d in enumerate(dma_list(S_XN, 37, VL16)): a(d, tag=('d', j))
    a(f's_add_u32 s{S_XN}, s{S_XN}, {L.XN_SZ}')
    a.label(nd)
    st()
    a(f'''
    s_xor_b32 s{S_ZERO}, s{S_ZERO}, {XBUF}
    s_add_u32 s37, s{S_ZERO}, s36
    s_add_u32 s{S_FI}, s{S_FI}, 4096
    ''')
    seq = [(tt, ks) for tt in range(2) for ks in range(14)]
    rd = lambda i: f'ds_read_b128 v[{FR+4*(i%3)}:{FR+4*(i%3)+3}], v{VFB} offset:{2048*seq[i][1]+128*seq[i][0]}'
    def cvt(tt):
        o = []
        for kk in range(3):
            for p in range(2):
                c = ACC(tt, 2 * kk + p)
                o += [f'v_cvt_pk_bf16_f32 v{TB(tt,kk)+2*p}, v{c}, v{c+1}', f'v_cvt_pk_bf16_f32 v{TB(tt,kk)+2*p+1}, v{c+2}, v{c+3}']
        c = ACC(tt, 6)
        o += [f'v_cvt_pk_bf16_f32 v{TB(tt,3)}, v{c}, v{c+1}', f'v_cvt_pk_bf16_f32 v{TB(tt,3)+1}, v{c+2}, v{c+3}']
        return o
    def mm(i):
        tt, ks = seq[i]; out = []
        for t in range(7):
            c = f'v[{ACC(tt,t)}:{ACC(tt,t)+3}]'
            out.append(f'v_mfma_f32_16x16x32_bf16 {c}, {R(W(t,ks),4)}, v[{FR+4*(i%3)}:{FR+4*(i%3)+3}], {"0" if ks == 0 else c}')
        return out
    def optdma(d):
        def f():
            a.opt_begin('s_cbranch_vccz'); a(d); a.opt_end()
        return f
    def chk():
        a.wait_vm('nf')
        a(f'v_min_u32 v{NF}, v{NF}, v{NF+1}')
        a(f'v_cmp_eq_u32 vcc, 0, v{NF}')
        a('s_cmp_eq_u64 vcc, 0')
        a('s_cselect_b64 vcc, -1, 0')
    dl = dma_list(S_XN, 37, VL16); dl[6] += f'\ns_add_u32 s{S_XN}, s{S_XN}, {L.XN_SZ}'
    sd = {8: [lambda: a(f'buffer_load_dwordx2 v[{NF}:{NF+1}], v{VFL}, {SRD}, s{S_FI} offen sc1', tag='nf')], 15: cvt(0), 20: [chk]}
    for j in range(7): sd[21 + j] = [optdma(dl[j])]
    st.cyc(0); sd[7] = [lambda: st.cyc(1)]; sd[14] = [lambda: st.cyc(2)]
    def g6():
        a.wait_vm(('d', 6)); a('s_barrier')
        a.opt_begin('s_cbranch_vccz')
        signal(a, 53, VZ, VONE, wait='')
        a.opt_end()
    left = stream(a, 28, rd, mm, {0: gate(a, ('d', 0)), 2: gate(a, ('d', 1)), 4: gate(a, ('d', 3)), 8: g6}, sd, depth=2, per=2)
    st.cyc(3)
    assert not left
    a('s_mov_b64 s[50:51], vcc')
    def hrd(kk):
        h = HF + 8 * (kk % 2)
        if kk < 3: return [f'ds_read_b128 v[{h+4*jt}:{h+4*jt+3}], v{VHB} offset:{2048*kk+128*jt}' for jt in range(2)]
        return [f'ds_read_b64 v[{h+4*jt}:{h+4*jt+1}], v{VHB3} offset:{128*jt}' for jt in range(2)]
    mloads = [f'buffer_load_dwordx4 v[{MF+4*kk}:{MF+4*kk+3}], v{VMA}, {SRD}, s{S_MX} offen offset:{512*kk} sc1' for kk in range(3)] + \
             [f'buffer_load_dwordx2 v[{MF+12}:{MF+13}], v{VMA3}, {SRD}, s{S_MX} offen sc1']
    for s_ in hrd(0) + hrd(1): a(s_)
    for s_ in cvt(1): a(s_)
    for s_ in mloads: a(s_)
    for kk in range(4):
        a(f's_waitcnt lgkmcnt({2 if kk < 3 else 0})')
        h = HF + 8 * (kk % 2)
        for ci, (jt, tt) in enumerate(((0, 0), (0, 1), (1, 1))):
            c = f'v[{SX(ci)}:{SX(ci)+3}]'; cin = '0' if kk == 0 else c
            if kk < 3: a(f'v_mfma_f32_16x16x32_bf16 {c}, v[{h+4*jt}:{h+4*jt+3}], v[{TB(tt,kk)}:{TB(tt,kk)+3}], {cin}')
            else: a(f'v_mfma_f32_16x16x16_bf16 {c}, v[{h+4*jt}:{h+4*jt+1}], v[{TB(tt,kk)}:{TB(tt,kk)+1}], {cin}')
        if kk < 2:
            for s_ in hrd(kk + 2): a(s_)
    for ci, (jt, tt) in enumerate(((0, 0), (0, 1), (1, 1))):
        a(f'ds_write_b128 v{VSXW}, v[{SX(ci)}:{SX(ci)+3}] offset:{16*RS*tt+64*jt}')
    a('s_waitcnt lgkmcnt(0)'); a('s_barrier')
    for w in range(4): a(f'ds_read_b128 v[{HF+4*w}:{HF+4*w+3}], v{VSXR} offset:{32*RS*w}')
    a('s_waitcnt lgkmcnt(2)')
    for i in (0, 2): a(f'v_pk_add_f32 v[{XV+i}:{XV+i+1}], v[{HF+i}:{HF+i+1}], v[{HF+4+i}:{HF+5+i}]')
    a('s_waitcnt lgkmcnt(0)')
    for i in (0, 2): a(f'v_pk_add_f32 v[{HF+8+i}:{HF+9+i}], v[{HF+8+i}:{HF+9+i}], v[{HF+12+i}:{HF+13+i}]')
    for i in (0, 2): a(f'v_pk_add_f32 v[{XV+i}:{XV+i+1}], v[{XV+i}:{XV+i+1}], v[{HF+8+i}:{HF+9+i}]')
    for r in range(4): a(f'v_cndmask_b32 v{XV+r}, v{VROW}, v{XV+r}, s[{40+2*r}:{41+2*r}]')
    a(f'v_max3_f32 v{XV+4}, v{XV}, v{XV+1}, v{XV+2}')
    a(f'v_max_f32 v{XV+4}, v{XV+4}, v{XV+3}')
    st(); st.cyc(4)
    a('s_waitcnt vmcnt(0)')
    check(a, range(MF, MF + 14), TMP)
    a.opt_begin('s_cbranch_vccz')
    poll(a, mloads, range(MF, MF + 14), TMP, sleep=1)
    a.opt_end()
    st()
    for kk in range(4):
        for tt in range(2):
            c = f'v[{SM(tt)}:{SM(tt)+3}]'; cin = '0' if kk == 0 else c
            if kk < 3: a(f'v_mfma_f32_16x16x32_bf16 {c}, v[{MF+4*kk}:{MF+4*kk+3}], v[{TB(tt,kk)}:{TB(tt,kk)+3}], {cin}')
            else: a(f'v_mfma_f32_16x16x16_bf16 {c}, v[{MF+12}:{MF+13}], v[{TB(tt,kk)}:{TB(tt,kk)+1}], {cin}')
    for tt in range(2): a(f'ds_write_b128 v{VSMW}, v[{SM(tt)}:{SM(tt)+3}] offset:{512*tt}')
    M, X5 = TMP, TMP + 2
    a(f'''
    s_waitcnt lgkmcnt(0)
    s_barrier
    ds_read2st64_b32 v[{X5}:{X5+1}], v{VSMR} offset0:0 offset1:4
    ds_read2st64_b32 v[{X5+2}:{X5+3}], v{VSMR} offset0:8 offset1:12
    s_waitcnt lgkmcnt(0)
    v_pk_add_f32 v[{X5}:{X5+1}], v[{X5}:{X5+1}], v[{X5+2}:{X5+3}]
    v_add_f32 v{X5}, v{X5}, v{X5+1}
    v_max_f32 v{M}, v{XV+4}, v{X5}
    ''')
    D3 = ('quad_perm:[1,0,3,2]', 'quad_perm:[2,3,0,1]', 'row_half_mirror')
    for d in D3: a(f'v_max_f32_dpp v{M}, v{M}, v{M} {d} row_mask:0xf bank_mask:0xf')
    a(f'''
    v_sub_f32 v{X5}, v{X5}, v{M}
    v_pk_add_f32 v[{XV}:{XV+1}], v[{XV}:{XV+1}], v[{M}:{M+1}] op_sel_hi:[1,0] neg_lo:[0,1] neg_hi:[0,1]
    v_pk_add_f32 v[{XV+2}:{XV+3}], v[{XV+2}:{XV+3}], v[{M}:{M+1}] op_sel_hi:[1,0] neg_lo:[0,1] neg_hi:[0,1]
    v_exp_f32 v{X5}, v{X5}
    v_exp_f32 v{XV}, v{XV}
    v_exp_f32 v{XV+1}, v{XV+1}
    v_exp_f32 v{XV+2}, v{XV+2}
    v_exp_f32 v{XV+3}, v{XV+3}
    v_add_f32 v{M}, v{X5}, v{XV}
    v_add_f32 v{M}, v{M}, v{XV+1}
    v_add_f32 v{M}, v{M}, v{XV+2}
    v_add_f32 v{M}, v{M}, v{XV+3}
    ''')
    for d in D3: a(f'v_add_f32_dpp v{M}, v{M}, v{M} {d} row_mask:0xf bank_mask:0xf')
    a(f'''
    v_rcp_f32 v{M}, v{M}
    v_mul_f32 v{X5}, v{X5}, v{M}
    v_pk_mul_f32 v[{XV}:{XV+1}], v[{XV}:{XV+1}], v[{M}:{M+1}] op_sel_hi:[1,0]
    v_pk_mul_f32 v[{XV+2}:{XV+3}], v[{XV+2}:{XV+3}], v[{M}:{M+1}] op_sel_hi:[1,0]
    v_mov_b32_dpp v{X5+1}, v{X5} quad_perm:[1,0,3,2] row_mask:0xf bank_mask:0xf
    v_cvt_pk_bf16_f32 v{XV}, v{XV}, v{XV+1}
    v_cvt_pk_bf16_f32 v{XV+1}, v{XV+2}, v{XV+3}
    v_cvt_pk_bf16_f32 v{X5}, v{X5}, v{X5+1}
    buffer_store_dwordx2 v[{XV}:{XV+1}], v{VPX}, {SRD}, s{S_PX} offen sc1
    s_mov_b64 exec, s[48:49]
    buffer_store_dword v{X5}, v{VPM}, {SRD}, s{S_PX} offen sc1
    s_mov_b64 exec, -1
    ''')
    st()
    a(f's_mov_b32 s53, s{S_FO}')
    a(f's_cmp_ge_u32 s{S_STEP}, 62')
    a('s_cselect_b64 s[50:51], 0, s[50:51]')
    a('s_cmp_eq_u64 s[50:51], 0')
    a.opt_begin('s_cbranch_scc0')
    signal(a, S_FO, VZ, VONE)
    a.opt_end()
    st()
    st.flush(6 << 20, TMP, TMP + 1)
    a(f'''
    s_mov_b64 vcc, s[50:51]
    v_xor_b32 v{VFB}, {XBUF}, v{VFB}
    v_add_u32 v{VHB}, s52, v{VHB}
    v_add_u32 v{VHB3}, s52, v{VHB3}
    s_sub_u32 s52, 0, s52
    s_add_u32 s{S_MX}, s{S_MX}, {2*L.MEM_SZ}
    s_add_u32 s{S_PX}, s{S_PX}, {2*L.PX_SZ}
    s_add_u32 s{S_FO}, s{S_FO}, 1024
    s_add_u32 s{S_STEP}, s{S_STEP}, 2
    s_cmp_lt_u32 s{S_STEP}, 64
    s_cbranch_scc1 {loop}
    s_endpgm
    ''')
```

```python
import sys
from common import *
import mega
NAME = 'interleave_layers__memory_aug_recurrent_mem_tr__swiglu_ffn__prompt'
def build(**kw):
    ref = open(f'cdna_kernels/{NAME}.s.ref').read().split('\n')
    hdr = [l for l in ref if l.startswith(';') and '@launch' not in l and 'Override' not in l and 'grid=ceil' not in l]
    hdr = hdr[:15]
    out = '\n'.join(hdr) + '\n'
    out += '; @launch grid=(256,1,1) block=(256,1,1) lds=163840\n'
    out += '.amdgcn_target "amdgcn-amd-amdhsa--gfx950"\n'
    out += mega.mega(NAME + '_kernel', **kw)
    head, body = out.split('.amdgcn_target', 1)
    body = '\n'.join(l.strip() if l.startswith('    ') else l for l in body.split('\n') if not l.strip().startswith(';') or '====' in l)
    return head + '.amdgcn_target' + body
if __name__ == '__main__':
    if len(sys.argv) < 2: open(f'cdna_kernels/{NAME}.s', 'w').write(build())
    open('work/' + (sys.argv[1] if len(sys.argv) > 1 else 'full_st.s'), 'w').write(build(stamps=True))
```
